```python
import torch

def _softmax(x, axis=-1):
    return torch.softmax(x, dim=axis)
def _gelu(x):
    return torch.nn.functional.gelu(x, approximate="tanh")
def _silu(x):
    return torch.nn.functional.silu(x)
def _sigmoid(x):
    return torch.sigmoid(x)
def _layernorm(x, axis=-1, eps=1e-5):
    m = x.mean(dim=axis, keepdim=True)
    v = x.var(dim=axis, keepdim=True, unbiased=False)
    return (x - m) / torch.sqrt(v + eps)
def _scatter_add(tgt, idx, src, axis=0):
    return tgt.clone().index_add_(axis, idx, src)
def _segment_sum(src, seg, n):
    out = torch.zeros((n,) + src.shape[1:], dtype=src.dtype)
    return out.index_add_(0, seg, src)
def _pad(x, pw):
    flat = tuple(v for pair in reversed(pw) for v in pair)
    return torch.nn.functional.pad(x, flat)

kernel_name = 'gated_mix__grouped_kv_mqa__grouped_kv_mqa__prompt'

def setup_inputs():

    _w = (lambda a: (lambda t: t.to(torch.bfloat16) if t.is_floating_point() else t)(torch.as_tensor(a)))
    def _A_setup():
        B, S, D, H = 1, 2048, 640, 32
        Dh = D // H
        return {
            "x": _w((lambda *s: torch.randn(*s, dtype=torch.bfloat16) * 0.05)(B, S, D)),
            "wq": _w((lambda *s: torch.randn(*s, dtype=torch.bfloat16) * 0.8)(D, H * Dh)),
            "wk": _w((lambda *s: torch.randn(*s, dtype=torch.bfloat16) * 0.8)(D, Dh)),
            "wv": _w((lambda *s: torch.randn(*s, dtype=torch.bfloat16) * 0.05)(D, Dh)),
            "wo": _w((lambda *s: torch.randn(*s, dtype=torch.bfloat16) * 0.05)(H * Dh, D)),
        }
    _A_in = _A_setup()

    def _B_setup():
        B, S, D, H = 1, 2048, 640, 32
        Dh = D // H
        return {
            "x": _w((lambda *s: torch.randn(*s, dtype=torch.bfloat16) * 0.05)(B, S, D)),
            "wq": _w((lambda *s: torch.randn(*s, dtype=torch.bfloat16) * 0.8)(D, H * Dh)),
            "wk": _w((lambda *s: torch.randn(*s, dtype=torch.bfloat16) * 0.8)(D, Dh)),
            "wv": _w((lambda *s: torch.randn(*s, dtype=torch.bfloat16) * 0.05)(D, Dh)),
            "wo": _w((lambda *s: torch.randn(*s, dtype=torch.bfloat16) * 0.05)(H * Dh, D)),
        }
    _B_in = _B_setup()

    return {
        "A_x": _A_in["x"],
        "A_wq": _A_in["wq"],
        "A_wk": _A_in["wk"],
        "A_wv": _A_in["wv"],
        "A_wo": _A_in["wo"],
        "B_x": _B_in["x"],
        "B_wq": _B_in["wq"],
        "B_wk": _B_in["wk"],
        "B_wv": _B_in["wv"],
        "B_wo": _B_in["wo"],
        "gate_w": _w((lambda *s: torch.randn(*s, dtype=torch.bfloat16) * 0.05)(640) * 16.0),
    }

def reference(A_x, A_wq, A_wk, A_wv, A_wo, B_x, B_wq, B_wk, B_wv, B_wo, gate_w):
    def _A_ref(x, wq, wk, wv, wo):
        B, S, D = x.shape
        H = 32
        Dh = D // H
        q = (lambda x, *d: x.permute(*d))((x @ wq).reshape(B, S, H, Dh), 0, 2, 1, 3)
        k = x @ wk
        v = x @ wv
        scores = torch.einsum("bhqd,bkd->bhqk", q, k) * (Dh ** -0.5)
        p = _softmax(scores, axis=-1)
        o = torch.einsum("bhqk,bkd->bhqd", p, v)
        return (lambda x, *d: x.permute(*d))(o, 0, 2, 1, 3).reshape(B, S, H * Dh) @ wo

    def _B_ref(x, wq, wk, wv, wo):
        B, S, D = x.shape
        H = 32
        Dh = D // H
        q = (lambda x, *d: x.permute(*d))((x @ wq).reshape(B, S, H, Dh), 0, 2, 1, 3)
        k = x @ wk
        v = x @ wv
        scores = torch.einsum("bhqd,bkd->bhqk", q, k) * (Dh ** -0.5)
        p = _softmax(scores, axis=-1)
        o = torch.einsum("bhqk,bkd->bhqd", p, v)
        return (lambda x, *d: x.permute(*d))(o, 0, 2, 1, 3).reshape(B, S, H * Dh) @ wo

    x = A_x
    g = _sigmoid((x * gate_w).sum(-1, keepdims=True))
    a = _A_ref(x, A_wq, A_wk, A_wv, A_wo)
    b = _B_ref(x, B_wq, B_wk, B_wv, B_wo)
    return g * a + (1 - g) * b
```

```python
import math, struct, sys

NAME = "gated_mix__grouped_kv_mqa__grouped_kv_mqa__prompt"

KV_BYTES = 163840
WS_KV   = 0
WS_G    = 2 * KV_BYTES
WS_Q    = WS_G + 8192
Q_BYTES = 2 * 32 * 64 * 1280
WS_O    = WS_Q + Q_BYTES
O_BYTES = 128 * 40 * 1024
WS_WO   = WS_O + O_BYTES
WO_BYTES = 8 * 5 * 40 * 1024
WS_END  = WS_WO + WO_BYTES

def f32bits(x):
    return struct.unpack("<I", struct.pack("<f", x))[0]

QSCALE = f32bits((20 ** -0.5) * math.log2(math.e))
LOG2E = f32bits(math.log2(math.e))

class Asm:
    def __init__(self):
        self.l = []
    def __call__(self, s):
        for line in s.split("\n"):
            line = line.strip()
            if line:
                self.l.append(("" if line.endswith(":") else "  ") + line)
    def c(self, s):
        self.l.append("  ; " + s)
    def text(self):
        return "\n".join(self.l) + "\n"

def vr(b, n=1):
    return f"v{b}" if n == 1 else f"v[{b}:{b+n-1}]"
def ar(b, n=1):
    return f"a{b}" if n == 1 else f"a[{b}:{b+n-1}]"
def sr(b, n=1):
    return f"s{b}" if n == 1 else f"s[{b}:{b+n-1}]"

def srd(a, d, lo, hi, nbytes, off=0):
    if off:
        a(f"s_add_u32 s{d}, s{lo}, {off}")
        a(f"s_addc_u32 s{d+1}, s{hi}, 0")
    else:
        a(f"s_mov_b32 s{d}, s{lo}")
        a(f"s_mov_b32 s{d+1}, s{hi}")
    a(f"s_mov_b32 s{d+2}, {nbytes}")
    a(f"s_mov_b32 s{d+3}, 0x00020000")

def kernel_head(a, name):
    a(f".globl {name}\n.p2align 8\n.type {name},@function\n{name}:")

def kd(name, vgpr, accum, sgpr=96):
    return f""".p2align 6
.amdhsa_kernel {name}
  .amdhsa_next_free_vgpr {vgpr}
  .amdhsa_next_free_sgpr {sgpr}
  .amdhsa_accum_offset {accum}
  .amdhsa_group_segment_fixed_size 0
  .amdhsa_kernarg_size 112
  .amdhsa_user_sgpr_count 2
  .amdhsa_user_sgpr_kernarg_segment_ptr 1
  .amdhsa_system_sgpr_workgroup_id_x 1
.end_amdhsa_kernel
"""

def decode_wg(a):
    a("""
    s_and_b32 s3, s2, 1
    s_lshr_b32 s4, s2, 1
    s_and_b32 s4, s4, 3
    s_lshl_b32 s4, s4, 2
    s_lshr_b32 s5, s2, 3
    s_and_b32 s5, s5, 3
    s_add_u32 s4, s4, s5
    s_lshr_b32 s5, s2, 5
    """)

def gen_k1(a):
    N = "proj_kernel"
    STG = 26624; XB = 16384
    L_WK = 4 * STG; L_WV = L_WK + 25600; L_G = L_WV + 25600
    kernel_head(a, N)
    a("s_cmp_ge_u32 s2, 256\ns_cbranch_scc1 K1_END")
    a("""
    s_load_dwordx8 s[8:15], s[0:1], 0
    s_load_dwordx4 s[16:19], s[0:1], 48
    s_load_dwordx2 s[20:21], s[0:1], 64
    s_load_dwordx2 s[22:23], s[0:1], 80
    s_load_dwordx2 s[24:25], s[0:1], 104
    """)
    decode_wg(a)
    a("""
    v_lshrrev_b32 v1, 6, v0
    v_and_b32 v0, 63, v0
    s_nop 0
    v_readfirstlane_b32 s6, v1
    s_waitcnt lgkmcnt(0)
    s_cmp_eq_u32 s3, 0
    s_cselect_b32 s10, s10, s16
    s_cselect_b32 s11, s11, s17
    s_cselect_b32 s12, s12, s18
    s_cselect_b32 s13, s13, s19
    s_cselect_b32 s14, s14, s20
    s_cselect_b32 s15, s15, s21
    """)
    srd(a, 28, 24, 25, WS_END)
    a("s_cmp_ge_u32 s6, 4\ns_cbranch_scc1 K1_LOADER")

    ACC = 8
    FR = 48
    AX, AW = 2, 3
    a.c("x frag address: row=(32*w + n) ; chunk = (4ks+kg) ^ (n&7)")
    a(f"""
    v_and_b32 v5, 15, v0
    v_lshrrev_b32 v6, 4, v0
    v_and_b32 v7, 7, v0
    v_xor_b32 v7, v7, v6
    v_lshlrev_b32 v7, 4, v7
    v_lshl_add_u32 v{AX}, v5, 7, v7
    s_lshl_b32 s7, s6, 12
    v_add_u32 v{AX}, s7, v{AX}
    v_xor_b32 v4, 64, v{AX}
    """)
    a.c("W frag address: lane=(kg, r=(l>>2)&3, c=l&3): LDS row p = 16*(kg>>1) + 4*(kg&1) + r (+8 for second read); byte = p*160 + 40c + 8ct")
    a(f"""
    v_lshrrev_b32 v7, 1, v6
    v_lshlrev_b32 v7, 4, v7
    v_and_b32 v{AW}, 1, v6
    v_lshl_add_u32 v7, v{AW}, 2, v7
    v_bfe_u32 v{AW}, v0, 2, 2
    v_add_u32 v7, v7, v{AW}
    v_mul_u32_u24 v7, 160, v7
    v_and_b32 v{AW}, 3, v0
    v_mul_u32_u24 v{AW}, 40, v{AW}
    v_add_u32 v{AW}, v7, v{AW}
    v_add_u32 v1, {2*STG}, v{AX}
    v_add_u32 v104, {2*STG}, v4
    v_add_u32 v105, {2*STG}, v{AW}
    """)
    for i in range(40):
        a(f"v_mov_b32 v{ACC+i}, 0")
    def reads(s, ks):
        slot = s % 4
        hi = slot >= 2
        base = (slot % 2) * STG
        ax = ([AX, 4] if not hi else [1, 104])[ks]
        aw = AW if not hi else 105
        f = FR + 28 * ks
        r = []
        for rt in range(2):
            r.append(f"ds_read_b128 {vr(f+4*rt,4)}, v{ax} offset:{base + rt*2048}")
        for ct in range(5):
            for hf in range(2):
                r.append(f"ds_read_b64_tr_b16 {vr(f+8+4*ct+2*hf,2)}, v{aw} offset:{base + XB + (32*ks + 8*hf)*160 + 8*ct}")
        return r
    def mf(ks, ct):
        f = FR + 28 * ks
        return [f"v_mfma_f32_16x16x32_bf16 {vr(ACC+(rt*5+ct)*4,4)}, {vr(f+8+4*ct,4)}, {vr(f+4*rt,4)}, {vr(ACC+(rt*5+ct)*4,4)}" for rt in range(2)]
    for s in range(10):
        a("s_barrier")
        r0 = reads(s, 0); r1 = reads(s, 1)
        for x in r0: a(x)
        issued1 = 0
        plan = [2, 3, 3, 2, 2]
        for ct in range(5):
            need_done = 4 + 2 * ct
            outstanding_allowed = (12 - need_done) + issued1
            a(f"s_waitcnt lgkmcnt({outstanding_allowed})")
            for x in mf(0, ct): a(x)
            for x in r1[issued1:issued1 + plan[ct]]: a(x)
            issued1 += plan[ct]
        for ct in range(5):
            a(f"s_waitcnt lgkmcnt({12 - (4 + 2*ct)})")
            for x in mf(1, ct): a(x)
    a.c("epilogue: scale, pack, store Q fragments")
    a(f"""
    s_lshl_b32 s7, s3, 5
    s_lshl_b32 s26, s5, 2
    s_add_u32 s7, s7, s26
    s_lshl_b32 s7, s7, 6
    s_lshl_b32 s26, s4, 2
    s_add_u32 s7, s7, s26
    s_add_u32 s7, s7, s6
    s_mul_i32 s7, s7, 1280
    s_add_u32 s7, s7, {WS_Q}
    s_mov_b32 s26, {64*1280}
    v_mul_lo_u32 v2, v6, s26
    v_lshl_add_u32 v3, v5, 3, v2
    v_lshl_add_u32 v2, v5, 4, v2
    s_mov_b32 s27, {QSCALE}
    s_nop 4
    """)
    for rt in range(2):
        for i in range(20):
            a(f"v_mul_f32 v{ACC+rt*20+i}, s27, v{ACC+rt*20+i}")
        P = FR + 12 * rt
        for i in range(10):
            a(f"v_cvt_pk_bf16_f32 v{P+i}, v{ACC+rt*20+2*i}, v{ACC+rt*20+2*i+1}")
        a(f"buffer_store_dwordx4 {vr(P,4)}, v2, s[28:31], s7 offen offset:{rt*256}")
        a(f"buffer_store_dwordx4 {vr(P+4,4)}, v2, s[28:31], s7 offen offset:{512+rt*256}")
        a(f"buffer_store_dwordx2 {vr(P+8,2)}, v3, s[28:31], s7 offen offset:{1024+rt*128}")
    a("s_endpgm")

    a("K1_LOADER:")
    a("s_sub_u32 s6, s6, 4")
    srd(a, 32, 8, 9, 2048 * 1280)
    srd(a, 36, 10, 11, 640 * 1280)
    a("s_cmp_lt_u32 s6, 2\ns_cselect_b32 s12, s12, s14\ns_cselect_b32 s13, s13, s15")
    srd(a, 40, 12, 13, 25600)
    srd(a, 44, 22, 23, 1280)
    a.c("x DMA source offset: row = l>>3, chunk = (l&7) ^ (row&7)")
    a("""
    v_lshrrev_b32 v5, 3, v0
    v_and_b32 v6, 7, v0
    v_xor_b32 v6, v6, v5
    v_lshlrev_b32 v6, 4, v6
    v_mul_u32_u24 v2, 1280, v5
    v_add_u32 v2, v2, v6
    """)
    a.c("Wq DMA source offsets for 3 instrs: q=64i+l, p=q/10, c=q%10, src row = swap bits2,3 of p")
    for i in range(3):
        a(f"""
        v_add_u32 v5, {64*i}, v0
        v_mul_u32_u24 v6, 6554, v5
        v_lshrrev_b32 v6, 16, v6
        v_mul_u32_u24 v7, 10, v6
        v_sub_u32 v7, v5, v7
        v_and_b32 v5, 0x13, v6
        v_and_b32 v8, 4, v6
        v_lshl_or_b32 v5, v8, 1, v5
        v_and_b32 v8, 8, v6
        v_lshrrev_b32 v8, 1, v8
        v_or_b32 v5, v5, v8
        v_mul_u32_u24 v5, 1280, v5
        v_lshl_add_u32 v{10+i}, v7, 4, v5
        """)
    a("v_lshlrev_b32 v3, 4, v0")
    a(f"""
    s_lshl_b32 s48, s4, 7
    s_lshl_b32 s49, s6, 5
    s_add_u32 s48, s48, s49
    s_mul_i32 s48, s48, 1280
    s_mul_i32 s49, s5, 160
    s_mul_i32 s50, s6, {16*1280}
    s_add_u32 s49, s49, s50
    s_lshl_b32 s50, s6, 12
    s_mul_i32 s51, s6, 2560
    s_add_u32 s51, s51, {XB}
    """)
    a.c("small matrices: wave parity picks odd/even KBs")
    a(f"""
    s_and_b32 s52, s6, 1
    s_lshl_b32 s53, s52, 10
    s_cmp_lt_u32 s6, 2
    s_cselect_b32 s54, 0, 25600
    s_add_u32 s54, s54, {L_WK}
    s_add_u32 s55, s54, s53
    """)
    for i in range(12):
        a(f"s_add_u32 m0, s55, {2048*i}\ns_add_u32 s56, s53, {2048*i}")
        a("buffer_load_dwordx4 v3, s[40:43], s56 offen lds")
    a.c("13th: even waves: KB 24 of own matrix; odd waves: gate piece")
    a(f"""
    s_cmp_eq_u32 s52, 0
    s_cbranch_scc0 K1_LG
    s_add_u32 m0, s54, {24*1024}
    s_mov_b32 s56, {24*1024}
    buffer_load_dwordx4 v3, s[40:43], s56 offen lds
    s_branch K1_LG2
    K1_LG:
    s_lshr_b32 s56, s6, 1
    s_lshl_b32 s56, s56, 10
    s_add_u32 m0, s56, {L_G}
    s_nop 0
    buffer_load_dwordx4 v3, s[44:47], s56 offen lds
    K1_LG2:
    """)
    def issue_stage(s):
        slot = s % 4
        for i in range(4):
            a(f"s_add_u32 m0, s50, {slot*STG + 1024*i}\ns_add_u32 s56, s48, {s*128 + i*8*1280}")
            a("buffer_load_dwordx4 v2, s[32:35], s56 offen lds")
        a(f"s_add_u32 s56, s49, {s*64*1280}")
        for i in range(3):
            a(f"s_add_u32 m0, s51, {slot*STG + 1024*i}")
            if i == 2: a("s_mov_b32 exec_hi, 0")
            else: a("s_nop 0")
            a(f"buffer_load_dwordx4 v{10+i}, s[36:39], s56 offen lds")
        a("s_mov_b32 exec_hi, -1")
    for s in range(4):
        issue_stage(s)
    a.c("KV fragment addresses")
    a(f"""
    v_and_b32 v5, 15, v0
    v_lshrrev_b32 v6, 4, v0
    v_and_b32 v7, 7, v0
    v_xor_b32 v7, v7, v6
    v_lshlrev_b32 v7, 4, v7
    v_lshl_add_u32 v14, v5, 7, v7
    s_lshl_b32 s56, s5, 11
    v_add_u32 v14, s56, v14
    v_xor_b32 v15, 64, v14
    v_add_u32 v16, {2*STG}, v14
    v_add_u32 v17, {2*STG}, v15
    v_bfe_u32 v7, v0, 2, 2
    v_lshl_add_u32 v7, v6, 3, v7
    v_mul_u32_u24 v7, 40, v7
    v_and_b32 v8, 3, v0
    v_lshlrev_b32 v8, 3, v8
    s_cmp_eq_u32 s52, 0
    s_cselect_b32 s56, -1, 0
    s_cselect_b32 s57, 0, 32
    v_and_b32 v8, s56, v8
    s_add_u32 s57, s57, s54
    v_add3_u32 v18, v7, v8, s57
    v_lshlrev_b32 v19, 4, v6
    v_add_u32 v19, {L_G}, v19
    """)
    for i in range(8):
        a(f"v_mov_b32 v{20+i}, 0")
    a("s_cmp_eq_u32 s6, 1\ns_cbranch_scc1 K1_LOOP_G\ns_cmp_ge_u32 s6, 2\ns_cbranch_scc1 K1_LOOP_V")
    def loader_loop(kind):
        for s in range(10):
            allowed = 7 * (min(max(3, s + 2), 9) - s)
            a(f"s_waitcnt vmcnt({allowed})\ns_barrier")
            if s >= 1 and s + 3 <= 9:
                issue_stage(s + 3)
            slot = s % 4
            base = (slot % 2) * STG
            for ks in range(2):
                ax = [14, 15, 16, 17][(2 if slot >= 2 else 0) + ks]
                f = 28 + 12 * ks
                a(f"ds_read_b128 {vr(f,4)}, v{ax} offset:{base}")
                for hf in range(2):
                    a(f"ds_read_b64_tr_b16 {vr(f+4+2*hf,2)}, v18 offset:{(64*s + 32*ks + 4*hf)*40}")
                if kind == "G":
                    a(f"ds_read_b128 {vr(f+8,4)}, v19 offset:{(64*s + 32*ks)*2}")
            a("s_waitcnt lgkmcnt(0)")
            for ks in range(2):
                f = 28 + 12 * ks
                if kind == "V":
                    a(f"v_mfma_f32_16x16x32_bf16 v[20:23], {vr(f,4)}, {vr(f+4,4)}, v[20:23]")
                else:
                    a(f"v_mfma_f32_16x16x32_bf16 v[20:23], {vr(f+4,4)}, {vr(f,4)}, v[20:23]")
                if kind == "G":
                    a(f"v_mfma_f32_16x16x32_bf16 v[24:27], {vr(f+8,4)}, {vr(f,4)}, v[24:27]")
    def kv_tilebase():
        a(f"""
        s_lshl_b32 s58, s4, 2
        s_lshr_b32 s59, s5, 1
        s_add_u32 s58, s58, s59
        s_mul_i32 s58, s58, 2560
        s_mul_i32 s59, s3, {KV_BYTES}
        s_add_u32 s58, s58, s59
        s_and_b32 s59, s5, 1
        """)
    loader_loop("K")
    kv_tilebase()
    a.c("K lo: lane(key n, rg): addr = (rg>>1)*512 + (16*par+n)*16 + (rg&1)*8")
    a(f"""
    s_lshl_b32 s59, s59, 8
    s_add_u32 s58, s58, s59
    v_lshrrev_b32 v7, 1, v6
    v_lshlrev_b32 v7, 9, v7
    v_lshl_add_u32 v7, v5, 4, v7
    v_and_b32 v8, 1, v6
    v_lshl_add_u32 v7, v8, 3, v7
    s_nop 4
    v_cvt_pk_bf16_f32 v28, v20, v21
    v_cvt_pk_bf16_f32 v29, v22, v23
    buffer_store_dwordx2 v[28:29], v7, s[28:31], s58 offen
    s_endpgm
    """)
    a("K1_LOOP_G:")
    loader_loop("G")
    kv_tilebase()
    a.c("K hi: lanes rg==0: addr = 1024 + (16*par+n)*8 ; gate: g[128rb+16hg+n]")
    a(f"""
    s_lshl_b32 s59, s59, 7
    s_add_u32 s58, s58, s59
    v_lshlrev_b32 v7, 3, v5
    s_lshl_b32 s60, s4, 7
    s_lshl_b32 s61, s5, 4
    s_add_u32 s60, s60, s61
    s_lshl_b32 s60, s60, 2
    s_add_u32 s60, s60, {WS_G}
    v_lshlrev_b32 v8, 2, v5
    s_mov_b32 s61, {LOG2E}
    s_nop 4
    v_cvt_pk_bf16_f32 v28, v20, v21
    v_cvt_pk_bf16_f32 v29, v22, v23
    v_mul_f32 v24, s61, v24
    v_exp_f32 v24, -v24
    s_nop 0
    v_add_f32 v24, 1.0, v24
    v_rcp_f32 v24, v24
    s_mov_b64 exec, 0xffff
    buffer_store_dwordx2 v[28:29], v7, s[28:31], s58 offen offset:1024
    s_cmp_eq_u32 s3, 0
    s_cbranch_scc0 K1_END
    buffer_store_dword v24, v8, s[28:31], s60 offen
    s_endpgm
    """)
    a("K1_LOOP_V:")
    loader_loop("V")
    kv_tilebase()
    a.c("V: lane(d n (+16 if hi), rg): addr = 1280 + par*640 + ((rg>>1)*20 + d)*16 + (rg&1)*8")
    a(f"""
    s_mul_i32 s59, s59, 640
    s_add_u32 s58, s58, s59
    s_lshl_b32 s59, s52, 8
    s_add_u32 s58, s58, s59
    v_lshrrev_b32 v7, 1, v6
    v_mul_u32_u24 v7, 320, v7
    v_lshl_add_u32 v7, v5, 4, v7
    v_and_b32 v8, 1, v6
    v_lshl_add_u32 v7, v8, 3, v7
    s_cmp_eq_u32 s52, 0
    s_cselect_b32 s60, -1, 0x000f000f
    s_mov_b32 s61, s60
    s_nop 2
    v_cvt_pk_bf16_f32 v28, v20, v21
    v_cvt_pk_bf16_f32 v29, v22, v23
    s_mov_b64 exec, s[60:61]
    buffer_store_dwordx2 v[28:29], v7, s[28:31], s58 offen offset:1280
    K1_END:
    s_endpgm
    """)
    return kd(N, 112, 112)

def gen_k2(a):
    N = "attn_kernel"
    Q1 = [4, 12]; Q2 = [8, 16]
    AK1, AK2, AV, IDX, G = 1, 2, 3, 10, 11
    T0, T1, T2, T3 = 18, 19, 20, 21
    M = [22, 23]
    KF1 = [24, 32]; KF2 = [28, 36]
    VF = [40, 48]
    O = [56, 72]
    S = [88, 104, 120, 136]
    RL = 152
    kernel_head(a, N)
    a("s_cmp_ge_u32 s2, 256\ns_cbranch_scc1 K2_END")
    a("""
    s_load_dwordx2 s[24:25], s[0:1], 104
    s_load_dwordx2 s[8:9], s[0:1], 32
    s_load_dwordx2 s[10:11], s[0:1], 72
    """)
    decode_wg(a)
    a("""
    v_lshrrev_b32 v1, 6, v0
    v_and_b32 v0, 63, v0
    s_nop 0
    v_readfirstlane_b32 s6, v1
    s_waitcnt lgkmcnt(0)
    """)
    srd(a, 28, 24, 25, WS_END)
    a.c("s12 = rt32 = 4rb + (w&3); s13 = hp = w>>2 ; s14 = bh0 = branch*32 + 4hg + 2hp")
    a(f"""
    s_and_b32 s12, s6, 3
    s_lshl_b32 s13, s4, 2
    s_add_u32 s12, s12, s13
    s_lshr_b32 s13, s6, 2
    s_lshl_b32 s14, s3, 5
    s_lshl_b32 s15, s5, 2
    s_add_u32 s14, s14, s15
    s_lshl_b32 s15, s13, 1
    s_add_u32 s14, s14, s15
    s_lshl_b32 s15, s14, 6
    s_add_u32 s15, s15, s12
    s_mul_i32 s15, s15, 1280
    s_add_u32 s15, s15, {WS_Q}
    s_add_u32 s16, s15, {64*1280}
    v_lshlrev_b32 v{AK1}, 4, v0
    v_and_b32 v{T0}, 31, v0
    v_lshrrev_b32 v{T1}, 5, v0
    v_lshlrev_b32 v{AK2}, 3, v{T0}
    v_lshl_add_u32 v{AK2}, v{T1}, 2, v{AK2}
    buffer_load_dwordx4 {vr(Q1[0],4)}, v{AK1}, s[28:31], s15 offen
    buffer_load_dword v{Q2[0]}, v{AK2}, s[28:31], s15 offen offset:1024
    buffer_load_dwordx4 {vr(Q1[1],4)}, v{AK1}, s[28:31], s16 offen
    buffer_load_dword v{Q2[1]}, v{AK2}, s[28:31], s16 offen offset:1024
    s_lshl_b32 s17, s12, 7
    s_add_u32 s17, s17, {WS_G}
    v_lshlrev_b32 v{T2}, 2, v{T0}
    buffer_load_dword v{G}, v{T2}, s[28:31], s17 offen
    s_mul_i32 s18, s3, {KV_BYTES}
    s_lshl_b32 s19, s6, 10
    s_add_u32 s18, s18, s19
    """)
    for r in range(20):
        a(f"s_add_u32 m0, s19, {8192*r}\ns_add_u32 s20, s18, {8192*r}")
        a(f"buffer_load_dwordx4 v{AK1}, s[28:31], s20 offen lds")
    a.c("wo re-layout job: job id = wg (<200), lane job = 64*wg + l : G = id/80, octet = id%80")
    a(f"""
    v_mov_b32 v{RL+66}, 0
    v_mov_b32 v{RL+67}, 0
    s_cmp_lt_u32 s2, 200
    s_cselect_b32 s21, 1, 0
    s_cmp_eq_u32 s6, 0
    s_cselect_b32 s21, s21, 0
    s_cmp_eq_u32 s21, 0
    s_cbranch_scc1 K2_NORL
    """)
    a("s_cmp_lt_u32 s2, 100\ns_cselect_b32 s8, s8, s10\ns_cselect_b32 s9, s9, s11")
    srd(a, 32, 8, 9, 640 * 1280)
    RA = RL + 64
    a(f"""
    s_lshl_b32 s22, s2, 6
    v_add_u32 v{T2}, s22, v0
    s_mov_b32 s22, 52429
    v_mul_lo_u32 v{T3}, v{T2}, s22
    v_lshrrev_b32 v{T3}, 22, v{T3}
    v_mul_u32_u24 v{RA}, 80, v{T3}
    v_sub_u32 v{RA}, v{T2}, v{RA}
    """)
    a.c("T3 = G (0..159), RA = octet. per element e: p = 8*(G>>1)+e ; bh=p/10 ; j=p%10 ; d = (j<8 ? (j&3)+8*(j>>2)+4h : 16+(j-8)+2h)")
    a(f"""
    v_and_b32 v{RA+1}, 1, v{T3}
    v_lshrrev_b32 v{RA+2}, 1, v{T3}
    v_lshlrev_b32 v{RA+2}, 3, v{RA+2}
    """)
    for e in range(8):
        t = RL + 32
        a(f"""
        v_add_u32 v{t}, {e}, v{RA+2}
        v_mul_u32_u24 v{t+1}, 6554, v{t}
        v_lshrrev_b32 v{t+1}, 16, v{t+1}
        v_mul_u32_u24 v{t+2}, 10, v{t+1}
        v_sub_u32 v{t+2}, v{t}, v{t+2}
        v_and_b32 v{t+1}, 31, v{t+1}
        v_mul_u32_u24 v{t+1}, 20, v{t+1}
        v_and_b32 v{t}, 3, v{t+2}
        v_add_u32 v{t+1}, v{t+1}, v{t}
        v_lshrrev_b32 v{t}, 2, v{t+2}
        v_lshl_add_u32 v{t+1}, v{t}, 3, v{t+1}
        v_lshrrev_b32 v{t}, 3, v{t+2}
        v_sub_u32 v{t}, 2, v{t}
        v_lshlrev_b32 v{t}, v{t}, v{RA+1}
        v_add_u32 v{t+1}, v{t+1}, v{t}
        v_mul_u32_u24 v{t+1}, 1280, v{t+1}
        v_lshl_add_u32 v{t+1}, v{RA}, 4, v{t+1}
        buffer_load_dwordx4 {vr(RL+4*e,4)}, v{t+1}, s[32:35], 0 offen
        """)
    a.c("destination addresses of the two 4-column chunks: chunk index cq = 2*octet+z ; cb=cq/20 ; w=cq%20 ; rg=w/5 ; ct=w%5")
    for z in range(2):
        t = RL + 32
        a(f"""
        v_lshlrev_b32 v{t}, 1, v{RA}
        v_add_u32 v{t}, {z}, v{t}
        v_mul_u32_u24 v{t+1}, 3277, v{t}
        v_lshrrev_b32 v{t+1}, 16, v{t+1}
        v_mul_u32_u24 v{t+2}, 20, v{t+1}
        v_sub_u32 v{t+2}, v{t}, v{t+2}
        v_mul_u32_u24 v{t}, 52, v{t+2}
        v_lshrrev_b32 v{t}, 8, v{t}
        v_mul_u32_u24 v{t+3}, 5, v{t}
        v_sub_u32 v{t+3}, v{t+2}, v{t+3}
        v_mul_u32_u24 v{t+1}, 5, v{t+1}
        v_add_u32 v{t+1}, v{t+1}, v{t+3}
        v_mul_u32_u24 v{t+1}, 40960, v{t+1}
        v_lshl_add_u32 v{t+1}, v{T3}, 8, v{t+1}
        v_lshl_add_u32 v{RA+2+z}, v{t}, 6, v{t+1}
        """)
    a("K2_NORL:")
    a.c("V address: slot = ha*20 + d(m) ; m<18 -> d=m ; m=20,21 -> d=m-2")
    a(f"""
    v_cmp_lt_u32 vcc, 19, v{T0}
    v_subrev_u32 v{T2}, 2, v{T0}
    v_mul_u32_u24 v{AV}, 20, v{T1}
    v_cndmask_b32 v{T2}, v{T0}, v{T2}, vcc
    v_add_lshl_u32 v{AV}, v{AV}, v{T2}, 4
    v_mov_b32 v{IDX}, 0xdddddddd
    s_mov_b32 s36, 0x0033ffff
    s_mov_b32 s37, 0x0033ffff
    s_mov_b32 s38, 0
    s_mov_b32 s39, -1
    s_mov_b32 s40, 0xffff0000
    s_mov_b32 s41, 1
    s_mov_b32 s42, 1
    """)
    for b in range(2):
        a(f"v_mov_b32 v{KF2[b]+1}, 0x3f803f80")
        for i in range(8):
            a(f"v_mov_b32 v{VF[b]+i}, 0x3f803f80")
    a.c("wait Q + first 4 rounds of K/V image (relayout loads, if any, are younger: wait is conservative there)")
    a("s_cmp_eq_u32 s21, 0\ns_cbranch_scc1 K2_W0\ns_waitcnt vmcnt(24)\ns_branch K2_W1\nK2_W0:\ns_waitcnt vmcnt(16)\nK2_W1:\ns_barrier")
    a("K2_RETRY:")
    for j in range(2):
        a(f"v_mov_b32 v{Q2[j]+1}, 0\nv_mov_b32 v{M[j]}, 0xff800000")
    a(f"v_mov_b32 v{T2}, v{AK1}\nv_mov_b32 v{T3}, v{AK2}\ns_mov_b32 s43, s41")
    a("K2_MAXL:")
    a(f"ds_read_b128 {vr(KF1[0],4)}, v{T2}\nds_read_b32 v{KF2[0]}, v{T3} offset:1024")
    a(f"v_add_u32 v{T2}, 2560, v{T2}\nv_add_u32 v{T3}, 2560, v{T3}\ns_waitcnt lgkmcnt(0)")
    for j in range(2):
        a(f"v_mfma_f32_32x32x16_bf16 {vr(S[j],16)}, {vr(KF1[0],4)}, {vr(Q1[j],4)}, 0")
        a(f"v_mfma_f32_32x32x8_bf16 {vr(S[j],16)}, {vr(KF2[0],2)}, {vr(Q2[j],2)}, {vr(S[j],16)}")
    a("s_nop 10")
    for j in range(2):
        if j == 1: a("s_nop 3")
        for i in range(8):
            a(f"v_max3_f32 v{M[j]}, v{S[j]+2*i}, v{S[j]+2*i+1}, v{M[j]}")
    a("s_sub_u32 s43, s43, 1\ns_cmp_lg_u32 s43, 0\ns_cbranch_scc1 K2_MAXL")
    a.c("start loading K(0) (buf0), K(1)/V(0) (buf1) while finishing the max")
    def rdK(b, off):
        return [f"ds_read_b128 {vr(KF1[b],4)}, v{AK1} offset:{off}", f"ds_read_b32 v{KF2[b]}, v{AK2} offset:{off+1024}"]
    def rdV(b, off):
        return ["s_mov_b64 exec, s[36:37]",
                f"ds_read_b128 {vr(VF[b],4)}, v{AV} offset:{off+1280}", f"ds_read_b128 {vr(VF[b]+4,4)}, v{AV} offset:{off+1920}",
                "s_mov_b64 exec, -1"]
    for x in rdK(0, 0) + rdK(1, 2560) + rdV(1, 0): a(x)
    for j in range(2):
        a(f"""
        v_mov_b32 v{T2}, v{M[j]}
        s_nop 1
        v_permlane32_swap_b32 v{M[j]}, v{T2}
        s_nop 1
        v_max_f32 v{M[j]}, v{M[j]}, v{T2}
        v_xor_b32 v{M[j]}, 0x80000000, v{M[j]}
        v_and_b32 v{T2}, s40, v{M[j]}
        v_sub_f32 v{T3}, v{M[j]}, v{T2}
        v_lshrrev_b32 v{T2}, 16, v{T2}
        v_and_or_b32 v{T2}, v{T3}, s40, v{T2}
        v_and_b32 v{M[j]}, s40, v{T3}
        v_sub_f32 v{T3}, v{T3}, v{M[j]}
        v_lshrrev_b32 v{T3}, 16, v{T3}
        v_cndmask_b32 v{Q2[j]+1}, v{T2}, v{T3}, s[38:39]
        """)
    for j in range(2):
        for i in range(16): a(f"v_mov_b32 v{O[j]+i}, 0")
    for i in range(16): a(f"v_mov_b32 v{S[3]+i}, 0")
    a("s_waitcnt lgkmcnt(0)")
    def qk1(u, kb): return f"v_mfma_f32_32x32x16_bf16 {vr(S[u%4],16)}, {vr(KF1[kb],4)}, {vr(Q1[u%2],4)}, 0"
    def qk2(u, kb): return f"v_mfma_f32_32x32x8_bf16 {vr(S[u%4],16)}, {vr(KF2[kb],2)}, {vr(Q2[u%2],2)}, {vr(S[u%4],16)}"
    def pv(u, vb, i): return f"v_smfmac_f32_32x32x32_bf16 {vr(O[u%2],16)}, {vr(VF[vb]+4*i,4)}, {vr(S[u%4]+8*i,8)}, v{IDX}"
    a(qk1(0, 0)); a(qk2(0, 0))
    a("s_mov_b32 s44, 8\ns_nop 10")
    a(".p2align 6\nK2_LOOP:")
    for t in range(8):
        for j in range(2):
            u = 2 * t + j
            b = (t + j) % 2
            ex = [f"v_exp_f32 v{S[u%4]+i}, v{S[u%4]+i}" for i in range(16)]
            extra = [[], [], [], []]
            if j == 1:
                a("s_waitcnt lgkmcnt(0)")
                extra[0] = rdK(t % 2, (t + 2) * 2560)
                extra[1] = rdV(t % 2, (t + 1) * 2560)
            ms = [qk1(u + 1, b), qk2(u + 1, b), pv(u - 1, b, 0), pv(u - 1, b, 1)]
            for g in range(4):
                a(ms[g])
                for x in ex[4 * g:4 * g + 2]: a(x)
                for x in extra[g]: a(x)
                for x in ex[4 * g + 2:4 * g + 4]: a(x)
    a(f"v_add_u32 v{AK1}, 20480, v{AK1}\nv_add_u32 v{AK2}, 20480, v{AK2}\nv_add_u32 v{AV}, 20480, v{AV}")
    a("s_cmp_eq_u32 s42, 0\ns_cbranch_scc1 K2_NOSYNC")
    a("s_mov_b32 s42, 0\ns_waitcnt vmcnt(0)\ns_barrier")
    a("s_cmp_eq_u32 s21, 0\ns_cbranch_scc1 K2_NOSYNC")
    a.c("wo re-layout: 8x8 16-bit transposition in registers and store")
    a("s_mov_b32 s22, 0x05040100\ns_mov_b32 s23, 0x07060302")
    for c in range(8):
        for r in range(4):
            sel = "s22" if c % 2 == 0 else "s23"
            a(f"v_perm_b32 v{RL+32+4*c+r}, v{RL+4*(2*r+1)+c//2}, v{RL+4*(2*r)+c//2}, {sel}")
    a(f"s_mov_b32 s22, {WS_WO}")
    for c in range(8):
        a(f"buffer_store_dwordx4 {vr(RL+32+4*c,4)}, v{RA+2+c//4}, s[28:31], s22 offen offset:{(c%4)*16}")
    a("K2_NOSYNC:")
    a("s_sub_u32 s44, s44, 1\ns_cmp_lg_u32 s44, 0\ns_cbranch_scc1 K2_LOOP")
    a.c("drain: PV for last unit (u=15 mod 16 -> S[3], V(63) in buf 0)")
    a(pv(15, 0, 0)); a(pv(15, 0, 1))
    a(f"""
    v_subrev_u32 v{AK1}, {KV_BYTES}, v{AK1}
    v_subrev_u32 v{AK2}, {KV_BYTES}, v{AK2}
    v_subrev_u32 v{AV}, {KV_BYTES}, v{AV}
    s_mov_b32 s46, {f32bits(2.0**-40)}
    s_mov_b32 s47, {f32bits(2.0**40)}
    s_waitcnt lgkmcnt(0)
    s_nop 8
    """)
    a.c("run-time safety check of the stand-in max: row sums must lie in [2^-40, 2^40], else redo with the true max")
    a(f"""
    v_cmp_le_f32 s[48:49], s46, v{O[0]+10}
    v_cmp_ge_f32 s[50:51], s47, v{O[0]+10}
    v_cmp_le_f32 s[52:53], s46, v{O[1]+10}
    v_cmp_ge_f32 s[54:55], s47, v{O[1]+10}
    s_nop 1
    s_and_b64 s[48:49], s[48:49], s[50:51]
    s_and_b64 s[52:53], s[52:53], s[54:55]
    s_and_b64 s[48:49], s[48:49], s[52:53]
    s_cmp_eq_u64 s[48:49], -1
    s_cbranch_scc1 K2_OK
    s_cmp_eq_u32 s41, 64
    s_cbranch_scc1 K2_OK
    s_mov_b32 s41, 64
    s_branch K2_RETRY
    K2_OK:
    """)
    a.c("scale = gate/l ; gate = g (branch A) or 1-g (branch B)")
    a(f"""
    v_sub_f32 v{T2}, 1.0, v{G}
    s_cmp_eq_u32 s3, 0
    s_cselect_b64 vcc, -1, 0
    v_rcp_f32 v{M[0]}, v{O[0]+10}
    v_rcp_f32 v{M[1]}, v{O[1]+10}
    v_cndmask_b32 v{G}, v{T2}, v{G}, vcc
    s_nop 0
    v_mul_f32 v{M[0]}, v{M[0]}, v{G}
    v_mul_f32 v{M[1]}, v{M[1]}, v{G}
    """)
    P = S[0]
    for j in range(2):
        for i in range(10): a(f"v_mul_f32 v{O[j]+i}, v{O[j]+i}, v{M[j]}")
        for i in range(5): a(f"v_cvt_pk_bf16_f32 v{P+5*j+i}, v{O[j]+2*i}, v{O[j]+2*i+1}")
    a.c("O address: rt16 = 2*rt32 + (row>>4) ; G = 2f + h ; addr = rt16*40960 + G*256 + (row&15)*16 ; f0 = floor(10*bh0/8)")
    a(f"""
    s_mul_i32 s22, s12, 81920
    s_mul_i32 s23, s14, 10
    s_lshr_b32 s23, s23, 3
    s_lshl_b32 s23, s23, 9
    s_add_u32 s22, s22, s23
    s_add_u32 s22, s22, {WS_O}
    v_lshrrev_b32 v{T2}, 4, v{T0}
    v_mul_u32_u24 v{T2}, 40960, v{T2}
    v_lshl_add_u32 v{T2}, v{T1}, 8, v{T2}
    v_and_b32 v{T3}, 15, v0
    v_lshl_add_u32 v{T2}, v{T3}, 4, v{T2}
    s_cmp_eq_u32 s13, 0
    s_cbranch_scc0 K2_ST1
    buffer_store_dwordx4 {vr(P,4)}, v{T2}, s[28:31], s22 offen
    buffer_store_dwordx4 {vr(P+4,4)}, v{T2}, s[28:31], s22 offen offset:512
    buffer_store_dwordx2 {vr(P+8,2)}, v{T2}, s[28:31], s22 offen offset:1024
    s_endpgm
    K2_ST1:
    buffer_store_dwordx2 {vr(P,2)}, v{T2}, s[28:31], s22 offen offset:8
    buffer_store_dwordx4 {vr(P+2,4)}, v{T2}, s[28:31], s22 offen offset:512
    buffer_store_dwordx4 {vr(P+6,4)}, v{T2}, s[28:31], s22 offen offset:1024
    K2_END:
    s_endpgm
    """)
    return kd(N, 224, 224)

def gen_k3(a):
    N = "outp_kernel"
    ACC = 16
    OF = 96
    kernel_head(a, N)
    a("s_cmp_ge_u32 s2, 256\ns_cbranch_scc1 K3_END")
    a("""
    s_load_dwordx2 s[24:25], s[0:1], 104
    s_load_dwordx2 s[8:9], s[0:1], 88
    """)
    a.c("xcd = wg&7 : rb64 = 8*(xcd>>1) + ((wg>>3)&7) ; cb = 4*(xcd&1) + (wg>>6)")
    a("""
    s_lshr_b32 s4, s2, 1
    s_and_b32 s4, s4, 3
    s_lshl_b32 s4, s4, 3
    s_lshr_b32 s5, s2, 3
    s_and_b32 s5, s5, 7
    s_add_u32 s4, s4, s5
    s_and_b32 s5, s2, 1
    s_lshl_b32 s5, s5, 2
    s_lshr_b32 s7, s2, 6
    s_add_u32 s5, s5, s7
    v_lshrrev_b32 v1, 6, v0
    v_and_b32 v0, 63, v0
    v_lshlrev_b32 v2, 4, v0
    v_readfirstlane_b32 s6, v1
    s_waitcnt lgkmcnt(0)
    """)
    srd(a, 28, 24, 25, WS_END)
    srd(a, 32, 8, 9, 2048 * 1280)
    a(f"""
    s_mul_i32 s12, s4, {4*40960}
    s_mul_i32 s13, s6, 10240
    s_add_u32 s12, s12, s13
    s_add_u32 s12, s12, {WS_O}
    s_mul_i32 s14, s5, {5*40960}
    s_add_u32 s14, s14, s13
    s_add_u32 s14, s14, {WS_WO}
    """)
    for i in range(1, 4): a(f"s_add_u32 s{16+i}, s12, {40960*i}")
    a("s_mov_b32 s16, s12")
    for i in range(1, 5): a(f"s_add_u32 s{36+i}, s14, {40960*i}")
    a("s_mov_b32 s36, s14")
    a("v_add_u32 v3, 4096, v2\nv_add_u32 v4, 8192, v2")
    def loads(st):
        av = 2 + st // 4; off = (st % 4) * 1024
        for rt in range(4):
            a(f"buffer_load_dwordx4 {vr(OF+(st*4+rt)*4,4)}, v{av}, s[28:31], s{16+rt} offen offset:{off}")
        for ct in range(5):
            a(f"buffer_load_dwordx4 {ar((st*5+ct)*4,4)}, v{av}, s[28:31], s{36+ct} offen offset:{off}")
    PRE = 7
    for st in range(PRE): loads(st)
    for i in range(80): a(f"v_mov_b32 v{ACC+i}, 0")
    issued = PRE
    for st in range(10):
        a(f"s_waitcnt vmcnt({9*(issued-st-1)})")
        if issued < 10:
            loads(issued); issued += 1
        for rt in range(4):
            for ct in range(5):
                d = vr(ACC + (rt*5+ct)*4, 4)
                a(f"v_mfma_f32_16x16x32_bf16 {d}, {ar((st*5+ct)*4,4)}, {vr(OF+(st*4+rt)*4,4)}, {d}")
    a.c("reduce-scatter over the 4 waves through LDS: region [dest rt][src wave][5 KB]")
    a("s_mul_i32 s20, s6, 5120\nv_add_u32 v5, s20, v2\ns_mul_i32 s21, s6, 20480\nv_add_u32 v6, s21, v2\nv_add_u32 v9, 40960, v5\ns_nop 6")
    for rt in range(4):
        for ct in range(5):
            a(f"ds_write_b128 v{5 if rt<2 else 9}, {vr(ACC+(rt*5+ct)*4,4)} offset:{(rt%2)*20480+ct*1024}")
        if rt == 1: a("s_waitcnt lgkmcnt(4)")
    a("s_waitcnt lgkmcnt(0)\ns_barrier")
    for src in range(4):
        for ct in range(5):
            a(f"ds_read_b128 {vr(OF+(src*5+ct)*4,4)}, v6 offset:{src*5120+ct*1024}")
        if src == 1: a("s_waitcnt lgkmcnt(4)")
    a.c("out address: row = 64rb + 16w + n ; byte = row*1280 + cb*160 + rg*40")
    a(f"""
    s_lshl_b32 s20, s4, 6
    s_lshl_b32 s21, s6, 4
    s_add_u32 s20, s20, s21
    s_mul_i32 s20, s20, 1280
    s_mul_i32 s21, s5, 160
    s_add_u32 s20, s20, s21
    v_and_b32 v7, 15, v0
    v_mul_u32_u24 v7, 1280, v7
    v_lshrrev_b32 v8, 4, v0
    v_mul_u32_u24 v8, 40, v8
    v_add_u32 v7, v7, v8
    s_waitcnt lgkmcnt(0)
    """)
    for i in range(20):
        a(f"v_add_f32 v{OF+i}, v{OF+i}, v{OF+20+i}\nv_add_f32 v{OF+40+i}, v{OF+40+i}, v{OF+60+i}")
    for i in range(20):
        a(f"v_add_f32 v{OF+i}, v{OF+i}, v{OF+40+i}")
    for i in range(10):
        a(f"v_cvt_pk_bf16_f32 v{ACC+i}, v{OF+2*i}, v{OF+2*i+1}")
    a(f"""
    buffer_store_dwordx4 {vr(ACC,4)}, v7, s[32:35], s20 offen
    buffer_store_dwordx4 {vr(ACC+4,4)}, v7, s[32:35], s20 offen offset:16
    buffer_store_dwordx2 {vr(ACC+8,2)}, v7, s[32:35], s20 offen offset:32
    K3_END:
    s_endpgm
    """)
    return kd(N, 456, 256)

def main():
    ref = open(f"cdna_kernels/{NAME}.s.ref").read().split("\n")
    head = [l for l in ref if l.startswith(";") and "@launch" not in l and "Override launch" not in l and "grid=ceil" not in l]
    a = Asm()
    kds = [gen_k1(a), gen_k2(a), gen_k3(a)]
    out = "\n".join(head) + "\n"
    out += "; @launch kernel=proj_kernel grid=(256,1,1) block=(512,1,1) lds=163840\n"
    out += "; @launch kernel=attn_kernel grid=(256,1,1) block=(512,1,1) lds=163840\n"
    out += "; @launch kernel=outp_kernel grid=(256,1,1) block=(256,1,1) lds=81920\n"
    out += '.amdgcn_target "amdgcn-amd-amdhsa--gfx950"\n.text\n'
    out += a.text()
    out += '.section .rodata,"a"\n' + "".join(kds)
    path = sys.argv[1] if len(sys.argv) > 1 else f"cdna_kernels/{NAME}.s"
    open(path, "w").write(out)

main()
```

```python
import math, struct, sys

NAME = "gated_mix__grouped_kv_mqa__grouped_kv_mqa__prompt"
ARGS = sys.argv[1:]
def opt(n): return ("--" + n) in ARGS
def optv(n, d):
    for x in ARGS:
        if x.startswith("--" + n + "="): return int(x.split("=")[1])
    return d

KV_BYTES = 163840
WS_KV   = 0
WS_G    = 2 * KV_BYTES
WS_O    = WS_G + 16384
O_BYTES = 128 * 40 * 1024
WS_WO   = WS_O + O_BYTES
WO_BYTES = 8 * 5 * 40 * 1024
WS_FL   = WS_WO + WO_BYTES
FL_EPOCH = WS_FL
FL_KV   = WS_FL + 256
FL_W    = FL_KV + 1024
FL_O    = FL_W + 1024
WS_END  = FL_O + 2048

def f32bits(x):
    return struct.unpack("<I", struct.pack("<f", x))[0]
QSCALE = f32bits((20 ** -0.5) * math.log2(math.e))
LOG2E = f32bits(math.log2(math.e))

class Asm:
    def __init__(self): self.l = []
    def __call__(self, s):
        for line in s.split("\n"):
            line = line.strip()
            if line: self.l.append(("" if line.endswith(":") else "  ") + line)
    def c(self, s): self.l.append("  ; " + s)
    def text(self): return "\n".join(self.l) + "\n"

def vr(b, n=1): return f"v{b}" if n == 1 else f"v[{b}:{b+n-1}]"

def srd(a, d, lo, hi, nbytes):
    a(f"s_mov_b32 s{d}, s{lo}\ns_mov_b32 s{d+1}, s{hi}\ns_mov_b32 s{d+2}, {nbytes}\ns_mov_b32 s{d+3}, 0x00020000")

PROF = opt("prof")
PROF_BASE = 16 << 20
NST = 12
def stamp(a, i):
    if PROF:
        a(f"s_memrealtime s[{76+2*i}:{77+2*i}]")
def stamp_flush(a):
    if not PROF: return
    a("s_waitcnt lgkmcnt(0)\ns_mov_b64 exec, 1")
    a(f"s_lshl_b32 s62, s2, 3\ns_add_u32 s62, s62, s6\ns_lshl_b32 s62, s62, 6\ns_add_u32 s62, s62, {PROF_BASE}")
    a("s_mov_b32 s30, 0x2000000\nv_mov_b32 v0, 0")
    for i in range(NST):
        a(f"v_mov_b32 v2, s{76+2*i}\nbuffer_store_dword v2, v0, s[28:31], s62 offen offset:{4*i}\ns_nop 1")

SPIN = 200000
def poll(a, lbl, addr_v, soff, width, tmp, mask=None, preloaded=True):
    ld = {1: "dword", 2: "dwordx2", 4: "dwordx4"}[width]
    a(f"s_mov_b32 s60, {SPIN}")
    if mask is not None: a(f"s_mov_b64 exec, {mask}")
    if preloaded: a(f"s_branch {lbl}_chk")
    a(f"{lbl}_ld:")
    a(f"buffer_load_{ld} {vr(tmp,width)}, v{addr_v}, s[28:31], {soff} offen sc1")
    a(f"{lbl}_chk:\ns_waitcnt vmcnt(0)")
    a(f"v_cmp_ne_u32 vcc, s34, v{tmp}")
    for i in range(1, width):
        a(f"v_cmp_ne_u32 s[58:59], s34, v{tmp+i}\ns_or_b64 vcc, vcc, s[58:59]")
    a(f"s_sub_u32 s60, s60, 1\ns_cbranch_scc1 {lbl}_ok")
    a(f"s_cmp_eq_u64 vcc, 0\ns_cbranch_scc1 {lbl}_ok\ns_sleep 1\ns_branch {lbl}_ld\n{lbl}_ok:")
    if mask is not None: a("s_mov_b64 exec, -1")

def gen(a):
    N = NAME + "_kernel"
    STG = 26624; XB = 16384
    L_WK = 0; L_WV = 25600; L_G = 51200; RING = 57344
    L_X16 = RING + 3 * STG
    L_QX = 143360
    a(f".globl {N}\n.p2align 8\n.type {N},@function\n{N}:")
    a("s_cmp_ge_u32 s2, 256\ns_cbranch_scc1 L_END")
    a("""
    s_load_dwordx8 s[8:15], s[0:1], 0
    s_load_dwordx8 s[16:23], s[0:1], 48
    s_load_dwordx2 s[24:25], s[0:1], 104
    s_load_dwordx4 s[64:67], s[0:1], 80
    s_load_dwordx2 s[68:69], s[0:1], 32
    """)
    stamp(a, 0)
    a.c("s3 = branch, s4 = rb (128-row block), s5 = hg (head group), s6 = wave")
    a("""
    s_and_b32 s3, s2, 1
    s_lshr_b32 s4, s2, 1
    s_and_b32 s4, s4, 3
    s_lshl_b32 s4, s4, 2
    s_lshr_b32 s5, s2, 3
    s_and_b32 s5, s5, 3
    s_add_u32 s4, s4, s5
    s_lshr_b32 s5, s2, 5
    v_lshrrev_b32 v1, 6, v0
    v_and_b32 v0, 63, v0
    v_lshlrev_b32 v3, 4, v0
    v_readfirstlane_b32 s6, v1
    """)
    a.c("x DMA source offset: row = l>>3, chunk = (l&7) ^ row")
    a("""
    v_lshrrev_b32 v5, 3, v0
    v_and_b32 v6, 7, v0
    v_xor_b32 v6, v6, v5
    v_lshlrev_b32 v6, 4, v6
    v_mul_u32_u24 v2, 1280, v5
    v_add_u32 v2, v2, v6
    v_mov_b32 v4, 0
    s_lshl_b32 s48, s4, 7
    s_lshl_b32 s49, s5, 4
    s_add_u32 s49, s48, s49
    s_mul_i32 s49, s49, 1280
    s_lshl_b32 s50, s6, 10
    s_waitcnt lgkmcnt(0)
    s_cmp_eq_u32 s3, 0
    s_cselect_b32 s10, s10, s16
    s_cselect_b32 s11, s11, s17
    s_cselect_b32 s12, s12, s18
    s_cselect_b32 s13, s13, s19
    s_cselect_b32 s14, s14, s20
    s_cselect_b32 s15, s15, s21
    """)
    srd(a, 36, 8, 9, 2048 * 1280)
    srd(a, 40, 12, 13, 25600)
    srd(a, 44, 14, 15, 25600)
    srd(a, 28, 24, 25, WS_END)
    a.c("phase A loads: 9 per wave. x16: piece i = w+8j (<20): chunk i>>1, rows 8*(i&1)")
    a(f"""
    s_lshr_b32 s51, s6, 1
    s_lshl_b32 s51, s51, 7
    s_and_b32 s52, s6, 1
    s_mul_i32 s53, s52, {8*1280}
    s_add_u32 s51, s51, s53
    s_add_u32 s51, s51, s49
    s_add_u32 m0, s50, {L_X16}
    s_add_u32 s53, s51, 512
    buffer_load_dwordx4 v2, s[36:39], s51 offen lds
    s_add_u32 m0, s50, {L_X16 + 8192}
    s_add_u32 s54, s50, 8192
    buffer_load_dwordx4 v2, s[36:39], s53 offen lds
    s_add_u32 m0, s50, {L_WK}
    s_add_u32 s55, s50, 16384
    buffer_load_dwordx4 v3, s[40:43], s50 offen lds
    s_add_u32 m0, s50, {L_WV}
    s_nop 0
    buffer_load_dwordx4 v3, s[44:47], s50 offen lds
    s_add_u32 m0, s54, {L_WK}
    s_nop 0
    buffer_load_dwordx4 v3, s[40:43], s54 offen lds
    s_add_u32 m0, s54, {L_WV}
    s_nop 0
    buffer_load_dwordx4 v3, s[44:47], s54 offen lds
    s_add_u32 m0, s55, {L_WK}
    s_nop 0
    buffer_load_dwordx4 v3, s[40:43], s55 offen lds
    s_add_u32 m0, s55, {L_WV}
    s_nop 0
    buffer_load_dwordx4 v3, s[44:47], s55 offen lds
    s_cmp_ge_u32 s6, 4
    s_cbranch_scc1 L_LOADER
    """)
    a.c("waves 0-3: x16 pieces 16..19")
    a(f"""
    s_add_u32 m0, s50, {L_X16 + 16384}
    s_add_u32 s53, s51, 1024
    buffer_load_dwordx4 v2, s[36:39], s53 offen lds
    s_mov_b32 s53, {FL_EPOCH}
    buffer_load_dword v9, v4, s[28:31], s53 offen sc1
    """)
    a.c("KV fragment addresses (wave: 0 K lo, 1 K hi + gate, 2 V lo, 3 V hi)")
    a(f"""
    v_and_b32 v5, 15, v0
    v_lshrrev_b32 v6, 4, v0
    v_and_b32 v7, 7, v0
    v_xor_b32 v7, v7, v6
    v_lshlrev_b32 v7, 4, v7
    v_lshl_add_u32 v10, v5, 7, v7
    v_add_u32 v14, {L_X16}, v10
    v_xor_b32 v15, 64, v14
    v_bfe_u32 v7, v0, 2, 2
    v_lshl_add_u32 v7, v6, 3, v7
    v_mul_u32_u24 v7, 40, v7
    v_and_b32 v8, 3, v0
    v_lshlrev_b32 v8, 3, v8
    s_cmp_eq_u32 s52, 0
    s_cselect_b32 s56, -1, 0
    s_cselect_b32 s57, 0, 32
    v_and_b32 v8, s56, v8
    s_cmp_lt_u32 s6, 2
    s_cselect_b32 s56, 0, {L_WV}
    s_add_u32 s57, s57, s56
    v_add3_u32 v18, v7, v8, s57
    v_lshlrev_b32 v19, 4, v6
    v_add_u32 v19, {L_G}, v19
    """)
    for i in range(8): a(f"v_mov_b32 v{20+i}, 0")
    a.c("s58 = branch*KV + tile32*2560 ; s59 = hg&1")
    a(f"""
    s_lshl_b32 s58, s4, 2
    s_lshr_b32 s59, s5, 1
    s_add_u32 s58, s58, s59
    s_mul_i32 s58, s58, 2560
    s_mul_i32 s59, s3, {KV_BYTES}
    s_add_u32 s58, s58, s59
    s_and_b32 s59, s5, 1
    s_waitcnt vmcnt(0)
    s_barrier
    """)
    stamp(a, 1)
    a("v_readfirstlane_b32 s34, v9")
    a("s_cmp_eq_u32 s6, 1\ns_cbranch_scc1 L_KV_G\ns_cmp_ge_u32 s6, 2\ns_cbranch_scc1 L_KV_V")
    def kv_loop(kind):
        per = 4 if kind == "G" else 3
        nb = 3 if kind == "G" else 4
        def rd(k):
            f = 28 + 12 * (k % (2 * nb))
            r = [f"ds_read_b128 {vr(f,4)}, v{14 + (k & 1)} offset:{(k >> 1) * 2048}"]
            for hf in range(2):
                r.append(f"ds_read_b64_tr_b16 {vr(f+4+2*hf,2)}, v18 offset:{(32*k + 4*hf)*40}")
            if kind == "G": r.append(f"ds_read_b128 {vr(f+8,4)}, v19 offset:{64*k}")
            return r
        def mm(k):
            f = 28 + 12 * (k % (2 * nb))
            if kind == "V": r = [f"v_mfma_f32_16x16x32_bf16 v[20:23], {vr(f,4)}, {vr(f+4,4)}, v[20:23]"]
            else: r = [f"v_mfma_f32_16x16x32_bf16 v[20:23], {vr(f+4,4)}, {vr(f,4)}, v[20:23]"]
            if kind == "G": r.append(f"v_mfma_f32_16x16x32_bf16 v[24:27], {vr(f+8,4)}, {vr(f,4)}, v[24:27]")
            return r
        if PROF: a("s_waitcnt lgkmcnt(0)")
        for k in range(nb):
            for x in rd(k): a(x)
        for k in range(20):
            ahead = min(k + nb, 20) - (k + 1)
            a(f"s_waitcnt lgkmcnt({ahead * per})")
            for x in mm(k): a(x)
            if k + nb < 20:
                for x in rd(k + nb): a(x)
    kv_loop("K")
    a.c("K lo: lane(key n, rg): addr = (rg>>1)*512 + (16*par+n)*16 + (rg&1)*8")
    a(f"""
    s_lshl_b32 s59, s59, 8
    s_add_u32 s58, s58, s59
    v_lshrrev_b32 v7, 1, v6
    v_lshlrev_b32 v7, 9, v7
    v_lshl_add_u32 v7, v5, 4, v7
    v_and_b32 v8, 1, v6
    v_lshl_add_u32 v7, v8, 3, v7
    s_nop 2
    v_cvt_pk_bf16_f32 v28, v20, v21
    v_cvt_pk_bf16_f32 v29, v22, v23
    buffer_store_dwordx2 v[28:29], v7, s[28:31], s58 offen sc1
    s_branch L_QPROJ
    L_KV_G:
    """)
    kv_loop("G")
    a.c("K hi: lanes rg==0: addr = 1024 + (16*par+n)*8 ; gate factor (g or 1-g) -> G[branch][128rb+16hg+n]")
    a(f"""
    s_lshl_b32 s59, s59, 7
    s_add_u32 s58, s58, s59
    v_lshlrev_b32 v7, 3, v5
    s_lshl_b32 s60, s3, 11
    s_add_u32 s60, s60, s48
    s_lshl_b32 s61, s5, 4
    s_add_u32 s60, s60, s61
    s_lshl_b32 s60, s60, 2
    s_add_u32 s60, s60, {WS_G}
    v_lshlrev_b32 v8, 2, v5
    s_lshl_b32 s61, s3, 31
    s_xor_b32 s61, s61, {LOG2E | 0x80000000}
    v_cvt_pk_bf16_f32 v28, v20, v21
    v_cvt_pk_bf16_f32 v29, v22, v23
    v_mul_f32 v24, s61, v24
    v_exp_f32 v24, v24
    s_nop 0
    v_add_f32 v24, 1.0, v24
    v_rcp_f32 v24, v24
    s_mov_b64 exec, 0xffff
    buffer_store_dwordx2 v[28:29], v7, s[28:31], s58 offen offset:1024 sc1
    buffer_store_dword v24, v8, s[28:31], s60 offen sc1
    s_mov_b64 exec, -1
    s_branch L_QPROJ
    L_KV_V:
    """)
    kv_loop("V")
    a.c("V: lane(d n (+16 if hi), rg): addr = 1280 + par*640 + ((rg>>1)*20 + d)*16 + (rg&1)*8")
    a(f"""
    s_mul_i32 s59, s59, 640
    s_add_u32 s58, s58, s59
    s_lshl_b32 s59, s52, 8
    s_add_u32 s58, s58, s59
    v_lshrrev_b32 v7, 1, v6
    v_mul_u32_u24 v7, 320, v7
    v_lshl_add_u32 v7, v5, 4, v7
    v_and_b32 v8, 1, v6
    v_lshl_add_u32 v7, v8, 3, v7
    s_cmp_eq_u32 s52, 0
    s_cselect_b32 s60, -1, 0x000f000f
    s_mov_b32 s61, s60
    v_cvt_pk_bf16_f32 v28, v20, v21
    v_cvt_pk_bf16_f32 v29, v22, v23
    s_mov_b64 exec, s[60:61]
    buffer_store_dwordx2 v[28:29], v7, s[28:31], s58 offen offset:1280 sc1
    s_mov_b64 exec, -1
    """)
    a("L_QPROJ:")
    stamp(a, 2)
    ACC = 112; FR = 32
    AXR = [12, 13, 14, 15]
    AWR = [16, 17]
    a.c("tag = f(epoch)")
    a("s_mul_i32 s34, s34, 0x9e3779b1\ns_add_u32 s34, s34, 0x7f4a7c15")
    a(f"""
    s_lshl_b32 s7, s6, 12
    s_add_u32 s7, s7, {RING}
    v_add_u32 v{AXR[0]}, s7, v10
    v_xor_b32 v{AXR[1]}, 64, v{AXR[0]}
    v_add_u32 v{AXR[2]}, {2*STG}, v{AXR[0]}
    v_add_u32 v{AXR[3]}, {2*STG}, v{AXR[1]}
    v_lshrrev_b32 v7, 1, v6
    v_lshlrev_b32 v7, 4, v7
    v_and_b32 v8, 1, v6
    v_lshl_add_u32 v7, v8, 2, v7
    v_bfe_u32 v8, v0, 2, 2
    v_add_u32 v7, v7, v8
    v_mul_u32_u24 v7, 160, v7
    v_and_b32 v8, 3, v0
    v_mul_u32_u24 v8, 40, v8
    v_add_u32 v7, v7, v8
    v_add_u32 v{AWR[0]}, {RING + XB}, v7
    v_add_u32 v{AWR[1]}, {RING + XB + 2*STG}, v7
    """)
    for i in range(40): a(f"v_mov_b32 v{ACC+i}, 0")
    def reads(s, ks):
        slot = s % 4; hi = slot >= 2; base = (slot % 2) * STG
        ax = AXR[2 * hi + ks]; aw = AWR[hi]; f = FR + 28 * ks
        r = [f"ds_read_b128 {vr(f+4*rt,4)}, v{ax} offset:{base + rt*2048}" for rt in range(2)]
        for ct in range(5):
            for hf in range(2):
                r.append(f"ds_read_b64_tr_b16 {vr(f+8+4*ct+2*hf,2)}, v{aw} offset:{base + (32*ks + 8*hf)*160 + 8*ct}")
        return r
    def mf(ks, ct):
        f = FR + 28 * ks
        return [f"v_mfma_f32_16x16x32_bf16 {vr(ACC+(rt*5+ct)*4,4)}, {vr(f+8+4*ct,4)}, {vr(f+4*rt,4)}, {vr(ACC+(rt*5+ct)*4,4)}" for rt in range(2)]
    if PROF: a("s_waitcnt lgkmcnt(0)")
    for s in range(10):
        if s == 1: a("s_waitcnt vmcnt(0)")
        a("s_barrier")
        if s == 1:
            a.c("publish this workgroup's K/V slice (wave 0, one lane)")
            a(f"""
            s_cmp_eq_u32 s6, 0
            s_cbranch_scc0 L_NOPUB
            s_lshr_b32 s56, s2, 1
            s_lshl_b32 s57, s3, 7
            s_add_u32 s56, s56, s57
            s_lshl_b32 s56, s56, 2
            s_add_u32 s56, s56, {FL_KV}
            v_mov_b32 v7, s34
            s_mov_b64 exec, 1
            buffer_store_dword v7, v4, s[28:31], s56 offen sc1
            s_mov_b64 exec, -1
            L_NOPUB:
            """)
        r0 = reads(s, 0); r1 = reads(s, 1)
        if s == 0:
            for x in r0: a(x)
        else:
            k = 0
            for ct in range(5):
                n = [4, 2, 2, 2, 2][ct]
                for x in r0[k:k+n]: a(x)
                k += n
                for x in mf(1, ct): a(x)
        issued1 = 0
        plan = [2, 3, 3, 2, 2]
        for ct in range(5):
            a(f"s_waitcnt lgkmcnt({(12 - (4 + 2*ct)) + issued1})")
            for x in mf(0, ct): a(x)
            for x in r1[issued1:issued1 + plan[ct]]: a(x)
            issued1 += plan[ct]
        a("s_waitcnt lgkmcnt(0)")
    for ct in range(5):
        for x in mf(1, ct): a(x)
    stamp(a, 3)
    a.c("Q epilogue: scale, pack, write fragments to LDS [w][head rg][1280]")
    a(f"""
    s_mul_i32 s7, s6, 5120
    s_add_u32 s7, s7, {L_QX}
    v_mul_u32_u24 v7, 1280, v6
    v_add_u32 v7, s7, v7
    v_lshl_add_u32 v8, v5, 3, v7
    v_lshl_add_u32 v7, v5, 4, v7
    s_mov_b32 s27, {QSCALE}
    s_nop 1
    """)
    for rt in range(2):
        for i in range(20): a(f"v_mul_f32 v{ACC+rt*20+i}, s27, v{ACC+rt*20+i}")
        P = FR + 12 * rt
        for i in range(10): a(f"v_cvt_pk_bf16_f32 v{P+i}, v{ACC+rt*20+2*i}, v{ACC+rt*20+2*i+1}")
        a(f"ds_write_b128 v7, {vr(P,4)} offset:{rt*256}")
        a(f"ds_write_b128 v7, {vr(P+4,4)} offset:{512+rt*256}")
        a(f"ds_write_b64 v8, {vr(P+8,2)} offset:{1024+rt*128}")
    a("s_waitcnt lgkmcnt(0)\ns_branch L_ATT")

    a("L_LOADER:")
    a.c("waves 4,5: last KB of wk / wv ; waves 6,7: gate pieces")
    srd(a, 72, 64, 65, 1280)
    a(f"""
    s_mov_b32 s53, {24*1024}
    s_cmp_eq_u32 s6, 4
    s_cbranch_scc0 L_LA1
    s_mov_b32 m0, {L_WK + 24*1024}
    s_nop 0
    buffer_load_dwordx4 v3, s[40:43], s53 offen lds
    s_branch L_LA3
    L_LA1:
    s_cmp_eq_u32 s6, 5
    s_cbranch_scc0 L_LA2
    s_mov_b32 m0, {L_WV + 24*1024}
    s_nop 0
    buffer_load_dwordx4 v3, s[44:47], s53 offen lds
    s_branch L_LA3
    L_LA2:
    s_lshl_b32 s53, s52, 10
    s_add_u32 m0, s53, {L_G}
    s_nop 0
    buffer_load_dwordx4 v3, s[72:75], s53 offen lds
    L_LA3:
    s_mov_b32 s53, {FL_EPOCH}
    buffer_load_dword v9, v4, s[28:31], s53 offen sc1
    """)
    srd(a, 40, 10, 11, 640 * 1280)
    a.c("Wq DMA source offsets for 3 instrs: q=64i+l, p=q/10, c=q%10, src row = swap bits 2,3 of p")
    for i in range(3):
        a(f"""
        v_add_u32 v5, {64*i}, v0
        v_mul_u32_u24 v6, 6554, v5
        v_lshrrev_b32 v6, 16, v6
        v_mul_u32_u24 v7, 10, v6
        v_sub_u32 v7, v5, v7
        v_and_b32 v5, 0x13, v6
        v_and_b32 v8, 4, v6
        v_lshl_or_b32 v5, v8, 1, v5
        v_and_b32 v8, 8, v6
        v_lshrrev_b32 v8, 1, v8
        v_or_b32 v5, v5, v8
        v_mul_u32_u24 v5, 1280, v5
        v_lshl_add_u32 v{10+i}, v7, 4, v5
        """)
    a(f"""
    s_sub_u32 s7, s6, 4
    s_lshl_b32 s49, s7, 5
    s_add_u32 s48, s48, s49
    s_mul_i32 s48, s48, 1280
    s_mul_i32 s49, s5, 160
    s_mul_i32 s50, s7, {16*1280}
    s_add_u32 s49, s49, s50
    s_lshl_b32 s50, s7, 12
    s_add_u32 s50, s50, {RING}
    s_mul_i32 s51, s7, 2560
    s_add_u32 s51, s51, {RING + XB}
    """)
    def issue_stage(s):
        slot = s % 4
        for i in range(4):
            a(f"s_add_u32 m0, s50, {slot*STG + 1024*i}\ns_add_u32 s56, s48, {s*128 + i*8*1280}")
            a("buffer_load_dwordx4 v2, s[36:39], s56 offen lds")
        a(f"s_add_u32 s56, s49, {s*64*1280}")
        for i in range(3):
            a(f"s_add_u32 m0, s51, {slot*STG + 1024*i}")
            a("s_mov_b32 exec_hi, 0" if i == 2 else "s_nop 0")
            a(f"buffer_load_dwordx4 v{10+i}, s[40:43], s56 offen lds")
        a("s_mov_b32 exec_hi, -1")
    issue_stage(0)
    a("s_waitcnt vmcnt(7)\ns_barrier")
    stamp(a, 1)
    a("v_readfirstlane_b32 s34, v9")
    issue_stage(1); issue_stage(2)
    a("s_mul_i32 s34, s34, 0x9e3779b1\ns_add_u32 s34, s34, 0x7f4a7c15")
    a(f"v_lshlrev_b32 v13, 3, v0\ns_lshl_b32 s57, s3, 9\ns_add_u32 s57, s57, {FL_KV}")
    stamp(a, 2)
    for s in range(10):
        extra = 1 if s in (7, 8) else 0
        a(f"s_waitcnt vmcnt({7 * (min(s + 2, 9) - s) + extra})\ns_barrier")
        if s + 3 <= 9: issue_stage(s + 3)
        if s == 6: a("buffer_load_dwordx2 v[14:15], v13, s[28:31], s57 offen sc1")
    stamp(a, 3)
    poll(a, "L_PKV", 13, "s57", 2, 14)
    stamp(a, 4)
    a.c("first 32 KB of the K/V image")
    a(f"s_mul_i32 s18, s3, {KV_BYTES}\ns_lshl_b32 s19, s7, 10\ns_add_u32 s18, s18, s19")
    for r in range(8):
        a(f"s_add_u32 m0, s19, {4096*r}\ns_add_u32 s20, s18, {4096*r}")
        a("buffer_load_dwordx4 v3, s[28:31], s20 offen sc1 lds")

    Q1 = [4, 12]; Q2 = [8, 16]
    AK1, AK2, AV, IDX, G = 1, 2, 3, 10, 11
    T0, T1, T2, T3 = 18, 19, 20, 21
    M = [22, 23]
    KF1 = [24, 32]; KF2 = [28, 36]
    VF = [40, 48]
    O = [56, 72]
    S = [88, 104, 120, 136]
    WO = 152; RL = 152; PT = 252
    a("L_ATT:")
    a.c("s12 = rt32 ; s13 = hp ; s14 = bh0")
    a(f"""
    s_and_b32 s15, s6, 3
    s_lshl_b32 s13, s4, 2
    s_add_u32 s12, s15, s13
    s_lshr_b32 s13, s6, 2
    s_lshl_b32 s14, s3, 5
    s_lshl_b32 s16, s5, 2
    s_add_u32 s14, s14, s16
    s_lshl_b32 s16, s13, 1
    s_add_u32 s14, s14, s16
    s_mul_i32 s15, s15, 5120
    s_mul_i32 s16, s13, 2560
    s_add_u32 s15, s15, s16
    s_add_u32 s15, s15, {L_QX}
    v_lshlrev_b32 v{AK1}, 4, v0
    v_and_b32 v{T0}, 31, v0
    v_lshrrev_b32 v{T1}, 5, v0
    v_lshlrev_b32 v{AK2}, 3, v{T0}
    v_lshl_add_u32 v{AK2}, v{T1}, 2, v{AK2}
    v_add_u32 v{T2}, s15, v{AK1}
    v_add_u32 v{T3}, s15, v{AK2}
    s_barrier
    ds_read_b128 {vr(Q1[0],4)}, v{T2}
    ds_read_b32 v{Q2[0]}, v{T3} offset:1024
    ds_read_b128 {vr(Q1[1],4)}, v{T2} offset:1280
    ds_read_b32 v{Q2[1]}, v{T3} offset:2304
    v_cmp_lt_u32 vcc, 19, v{T0}
    v_subrev_u32 v{T2}, 2, v{T0}
    v_mul_u32_u24 v{AV}, 20, v{T1}
    v_cndmask_b32 v{T2}, v{T0}, v{T2}, vcc
    v_add_lshl_u32 v{AV}, v{AV}, v{T2}, 4
    v_mov_b32 v{IDX}, 0xdddddddd
    s_mov_b32 s36, 0x0033ffff
    s_mov_b32 s37, 0x0033ffff
    s_mov_b32 s38, 0
    s_mov_b32 s39, -1
    s_mov_b32 s40, 0xffff0000
    s_mov_b32 s41, 1
    s_mov_b32 s42, 1
    s_mov_b32 s45, 0xffff
    """)
    for b in range(2):
        a(f"v_mov_b32 v{KF2[b]+1}, 0x3f803f80")
        for i in range(8): a(f"v_mov_b32 v{VF[b]+i}, 0")
    a("s_mov_b32 exec_lo, 0x00440000\ns_mov_b32 exec_hi, 0x00440000")
    for b in range(2):
        for i in range(8): a(f"v_mov_b32 v{VF[b]+i}, 0x3f803f80")
    a("s_mov_b64 exec, -1")
    a("s_waitcnt vmcnt(0) lgkmcnt(0)\ns_barrier")
    stamp(a, 5)
    a.c("gate factor of this lane's row")
    a(f"""
    s_lshl_b32 s17, s3, 6
    s_add_u32 s17, s17, s12
    s_lshl_b32 s17, s17, 7
    s_add_u32 s17, s17, {WS_G}
    v_lshlrev_b32 v{T2}, 2, v{T0}
    buffer_load_dword v{G}, v{T2}, s[28:31], s17 offen sc1
    s_cmp_eq_u32 s13, 0
    s_cbranch_scc1 L_RETRY
    """)
    a.c("waves 4-7: rest of the K/V image")
    for r in range(8, 40):
        a(f"s_add_u32 m0, s19, {4096*r}\ns_add_u32 s20, s18, {4096*r}")
        a(f"buffer_load_dwordx4 v{AK1}, s[28:31], s20 offen sc1 lds")
    a.c("wo re-layout job (wave 4 of workgroups < 200): lane job = 64*wg + l : G = id/80, octet = id%80")
    a("s_cmp_lt_u32 s2, 200\ns_cbranch_scc0 L_NORL\ns_cmp_eq_u32 s6, 4\ns_cbranch_scc0 L_NORL")
    a("s_cmp_lt_u32 s2, 100\ns_cselect_b32 s22, s68, s22\ns_cselect_b32 s23, s69, s23")
    srd(a, 72, 22, 23, 640 * 1280)
    RA = RL + 64
    a(f"""
    s_lshl_b32 s56, s2, 6
    v_add_u32 v{T2}, s56, v0
    s_mov_b32 s56, 52429
    v_mul_lo_u32 v{T3}, v{T2}, s56
    v_lshrrev_b32 v{T3}, 22, v{T3}
    v_mul_u32_u24 v{RA}, 80, v{T3}
    v_sub_u32 v{RA}, v{T2}, v{RA}
    v_and_b32 v{RA+1}, 1, v{T3}
    v_lshrrev_b32 v{RA+2}, 1, v{T3}
    v_lshlrev_b32 v{RA+2}, 3, v{RA+2}
    """)
    t = RL + 32
    for e in range(8):
        a(f"""
        v_add_u32 v{t}, {e}, v{RA+2}
        v_mul_u32_u24 v{t+1}, 6554, v{t}
        v_lshrrev_b32 v{t+1}, 16, v{t+1}
        v_mul_u32_u24 v{t+2}, 10, v{t+1}
        v_sub_u32 v{t+2}, v{t}, v{t+2}
        v_and_b32 v{t+1}, 31, v{t+1}
        v_mul_u32_u24 v{t+1}, 20, v{t+1}
        v_and_b32 v{t}, 3, v{t+2}
        v_add_u32 v{t+1}, v{t+1}, v{t}
        v_lshrrev_b32 v{t}, 2, v{t+2}
        v_lshl_add_u32 v{t+1}, v{t}, 3, v{t+1}
        v_lshrrev_b32 v{t}, 3, v{t+2}
        v_sub_u32 v{t}, 2, v{t}
        v_lshlrev_b32 v{t}, v{t}, v{RA+1}
        v_add_u32 v{t+1}, v{t+1}, v{t}
        v_mul_u32_u24 v{t+1}, 1280, v{t+1}
        v_lshl_add_u32 v{t+1}, v{RA}, 4, v{t+1}
        buffer_load_dwordx4 {vr(RL+4*e,4)}, v{t+1}, s[72:75], 0 offen
        """)
    for z in range(2):
        a(f"""
        v_lshlrev_b32 v{t}, 1, v{RA}
        v_add_u32 v{t}, {z}, v{t}
        v_mul_u32_u24 v{t+1}, 3277, v{t}
        v_lshrrev_b32 v{t+1}, 16, v{t+1}
        v_mul_u32_u24 v{t+2}, 20, v{t+1}
        v_sub_u32 v{t+2}, v{t}, v{t+2}
        v_mul_u32_u24 v{t}, 52, v{t+2}
        v_lshrrev_b32 v{t}, 8, v{t}
        v_mul_u32_u24 v{t+3}, 5, v{t}
        v_sub_u32 v{t+3}, v{t+2}, v{t+3}
        v_mul_u32_u24 v{t+1}, 5, v{t+1}
        v_add_u32 v{t+1}, v{t+1}, v{t+3}
        v_mul_u32_u24 v{t+1}, 40960, v{t+1}
        v_lshl_add_u32 v{t+1}, v{T3}, 8, v{t+1}
        v_lshl_add_u32 v{RA+2+z}, v{t}, 6, v{t+1}
        """)
    a("s_mov_b32 s56, 0x05040100\ns_mov_b32 s57, 0x07060302\ns_waitcnt vmcnt(0)")
    for c in range(8):
        for r in range(4):
            a(f"v_perm_b32 v{RL+32+4*c+r}, v{RL+4*(2*r+1)+c//2}, v{RL+4*(2*r)+c//2}, {'s56' if c % 2 == 0 else 's57'}")
    a(f"s_mov_b32 s56, {WS_WO}")
    for c in range(8):
        a(f"buffer_store_dwordx4 {vr(RL+32+4*c,4)}, v{RA+2+c//4}, s[28:31], s56 offen offset:{(c%4)*16} sc1")
    a(f"""
    s_lshl_b32 s56, s2, 2
    s_add_u32 s56, s56, {FL_W}
    v_mov_b32 v{T2}, s34
    v_mov_b32 v{T3}, 0
    s_waitcnt vmcnt(0)
    s_mov_b64 exec, 1
    buffer_store_dword v{T2}, v{T3}, s[28:31], s56 offen sc1
    s_mov_b64 exec, -1
    L_NORL:
    """)
    a("L_RETRY:")
    for j in range(2):
        a(f"v_mov_b32 v{Q2[j]+1}, 0\nv_mov_b32 v{M[j]}, 0xff800000")
    a(f"v_mov_b32 v{T2}, v{AK1}\nv_mov_b32 v{T3}, v{AK2}\ns_mov_b32 s43, s41")
    a("L_MAXL:")
    a(f"ds_read_b128 {vr(KF1[0],4)}, v{T2}\nds_read_b32 v{KF2[0]}, v{T3} offset:1024")
    a(f"v_add_u32 v{T2}, 2560, v{T2}\nv_add_u32 v{T3}, 2560, v{T3}\ns_waitcnt lgkmcnt(0)")
    for j in range(2):
        a(f"v_mfma_f32_32x32x16_bf16 {vr(S[j],16)}, {vr(KF1[0],4)}, {vr(Q1[j],4)}, 0")
        a(f"v_mfma_f32_32x32x8_bf16 {vr(S[j],16)}, {vr(KF2[0],2)}, {vr(Q2[j],2)}, {vr(S[j],16)}")
    a("s_nop 10")
    for j in range(2):
        if j == 1: a("s_nop 3")
        for i in range(8):
            a(f"v_max3_f32 v{M[j]}, v{S[j]+2*i}, v{S[j]+2*i+1}, v{M[j]}")
    a("s_sub_u32 s43, s43, 1\ns_cmp_lg_u32 s43, 0\ns_cbranch_scc1 L_MAXL")
    def rdK(b, off):
        return [f"ds_read_b128 {vr(KF1[b],4)}, v{AK1} offset:{off}", f"ds_read_b32 v{KF2[b]}, v{AK2} offset:{off+1024}"]
    def rdV(b, off):
        return ["s_mov_b64 exec, s[36:37]",
                f"ds_read_b128 {vr(VF[b],4)}, v{AV} offset:{off+1280}", f"ds_read_b128 {vr(VF[b]+4,4)}, v{AV} offset:{off+1920}",
                "s_mov_b64 exec, -1"]
    for x in rdK(0, 0) + rdK(1, 2560) + rdV(1, 0): a(x)
    a.c("-m split into bf16 pieces that ride in the spare k-slots; first pass keeps only the leading piece (s45)")
    for j in range(2):
        a(f"""
        v_mov_b32 v{T2}, v{M[j]}
        s_nop 1
        v_permlane32_swap_b32 v{M[j]}, v{T2}
        s_nop 1
        v_max_f32 v{M[j]}, v{M[j]}, v{T2}
        v_xor_b32 v{M[j]}, 0x80000000, v{M[j]}
        v_and_b32 v{T2}, s40, v{M[j]}
        v_sub_f32 v{T3}, v{M[j]}, v{T2}
        v_lshrrev_b32 v{T2}, 16, v{T2}
        v_and_or_b32 v{T2}, v{T3}, s40, v{T2}
        v_and_b32 v{M[j]}, s40, v{T3}
        v_sub_f32 v{T3}, v{T3}, v{M[j]}
        v_and_b32 v{T3}, s40, v{T3}
        v_cndmask_b32 v{T2}, v{T2}, v{T3}, s[38:39]
        v_and_b32 v{Q2[j]+1}, s45, v{T2}
        """)
    for j in range(2):
        for i in range(16): a(f"v_mov_b32 v{O[j]+i}, 0")
    for i in range(16): a(f"v_mov_b32 v{S[3]+i}, 0")
    a("s_waitcnt lgkmcnt(0)")
    def qk1(u, kb): return f"v_mfma_f32_32x32x16_bf16 {vr(S[u%4],16)}, {vr(KF1[kb],4)}, {vr(Q1[u%2],4)}, 0"
    def qk2(u, kb): return f"v_mfma_f32_32x32x8_bf16 {vr(S[u%4],16)}, {vr(KF2[kb],2)}, {vr(Q2[u%2],2)}, {vr(S[u%4],16)}"
    def pv(u, vb, i): return f"v_smfmac_f32_32x32x32_bf16 {vr(O[u%2],16)}, {vr(VF[vb]+4*i,4)}, {vr(S[u%4]+8*i,8)}, v{IDX}"
    a(qk1(0, 0)); a(qk2(0, 0))
    a.c("waves 4-7 (first pass): image complete -> S1 now; waves 0-3 meet it after their first 8 tiles")
    a("""
    s_mov_b32 s44, 8
    s_and_b32 s43, s42, s13
    s_cmp_eq_u32 s43, 0
    s_cbranch_scc1 L_NOS1
    s_waitcnt vmcnt(0)
    s_barrier
    L_NOS1:
    s_setprio 3
    s_nop 8
    """)
    stamp(a, 6)
    a(".p2align 6\nL_LOOP:")
    for t in range(8):
        for j in range(2):
            u = 2 * t + j
            b = (t + j) % 2
            ex = [f"v_exp_f32 v{S[u%4]+i}, v{S[u%4]+i}" for i in range(16)]
            extra = [[], [], [], []]
            if j == 1:
                a("s_waitcnt lgkmcnt(0)")
                extra[0] = rdK(t % 2, (t + 2) * 2560)
                extra[1] = rdV(t % 2, (t + 1) * 2560)
            ms = [qk1(u + 1, b), qk2(u + 1, b), pv(u - 1, b, 0), pv(u - 1, b, 1)]
            for g in range(4):
                a(ms[g])
                for x in ex[4 * g:4 * g + 2]: a(x)
                for x in extra[g]: a(x)
                for x in ex[4 * g + 2:4 * g + 4]: a(x)
    a(f"v_add_u32 v{AK1}, 20480, v{AK1}\nv_add_u32 v{AK2}, 20480, v{AK2}\nv_add_u32 v{AV}, 20480, v{AV}")
    P1, P2, P3 = optv("p1", 6), optv("p2", 4), optv("p3", 2)
    a(f"""
    s_cmp_eq_u32 s44, {P1}
    s_cbranch_scc0 L_P1
    s_setprio 2
    L_P1:
    s_cmp_eq_u32 s44, {P2}
    s_cbranch_scc0 L_P2
    s_setprio 1
    L_P2:
    s_cmp_eq_u32 s44, {P3}
    s_cbranch_scc0 L_P3
    s_setprio 0
    L_P3:
    s_cmp_eq_u32 s42, 0
    s_cbranch_scc1 L_NEXT
    s_cmp_eq_u32 s44, 8
    s_cbranch_scc0 L_E1
    s_cmp_eq_u32 s13, 0
    s_cbranch_scc0 L_NEXT
    s_barrier
    s_branch L_NEXT
    L_E1:
    s_cmp_eq_u32 s44, 5
    s_cbranch_scc0 L_E2
    v_lshlrev_b32 v{T2}, 4, v0
    s_mov_b32 s57, {FL_W}
    buffer_load_dwordx4 {vr(PT,4)}, v{T2}, s[28:31], s57 offen sc1
    s_branch L_NEXT
    L_E2:
    s_cmp_eq_u32 s44, 4
    s_cbranch_scc0 L_NEXT
    s_mov_b32 s54, -1
    s_mov_b32 s55, 0x3ffff
    """)
    poll(a, "L_PW", T2, "s57", 4, PT, mask="s[54:55]")
    a.c("prefetch this wave's Wo fragments: [cb=hg][ct][f32 = 5w+st]")
    a(f"""
    s_mul_i32 s56, s5, {5*40960}
    s_mul_i32 s57, s6, 5120
    s_add_u32 s56, s56, s57
    s_add_u32 s56, s56, {WS_WO}
    v_add_u32 v{T3}, 4096, v{T2}
    """)
    for ct in range(5):
        for st in range(5):
            av = T2 if st < 4 else T3
            a(f"buffer_load_dwordx4 {vr(WO+(st*5+ct)*4,4)}, v{av}, s[28:31], s56 offen offset:{(st%4)*1024} sc1")
        if ct < 4: a("s_add_u32 s56, s56, 40960")
    a("L_NEXT:")
    a("s_sub_u32 s44, s44, 1\ns_cmp_lg_u32 s44, 0\ns_cbranch_scc1 L_LOOP")
    stamp(a, 7)
    a(pv(15, 0, 0)); a(pv(15, 0, 1))
    a(f"""
    v_subrev_u32 v{AK1}, {KV_BYTES}, v{AK1}
    v_subrev_u32 v{AK2}, {KV_BYTES}, v{AK2}
    v_subrev_u32 v{AV}, {KV_BYTES}, v{AV}
    s_mov_b32 s46, {f32bits(2.0**-40)}
    s_mov_b32 s47, {f32bits(2.0**40)}
    s_mov_b32 s42, 0
    s_waitcnt vmcnt(0) lgkmcnt(0)
    s_nop 8
    """)
    a.c("run-time safety check of the stand-in max: row sums must lie in [2^-40, 2^40], else redo with the true max")
    a(f"""
    v_cmp_le_f32 s[48:49], s46, v{O[0]+10}
    v_cmp_ge_f32 s[50:51], s47, v{O[0]+10}
    v_cmp_le_f32 s[52:53], s46, v{O[1]+10}
    v_cmp_ge_f32 s[54:55], s47, v{O[1]+10}
    s_nop 1
    s_and_b64 s[48:49], s[48:49], s[50:51]
    s_and_b64 s[52:53], s[52:53], s[54:55]
    s_and_b64 s[48:49], s[48:49], s[52:53]
    s_cmp_eq_u64 s[48:49], -1
    s_cbranch_scc1 L_OK
    s_cmp_eq_u32 s41, 64
    s_cbranch_scc1 L_OK
    s_mov_b32 s41, 64
    s_mov_b32 s45, -1
    s_branch L_RETRY
    L_OK:
    v_rcp_f32 v{M[0]}, v{O[0]+10}
    v_rcp_f32 v{M[1]}, v{O[1]+10}
    s_mul_i32 s22, s12, 81920
    v_mul_f32 v{M[0]}, v{M[0]}, v{G}
    v_mul_f32 v{M[1]}, v{M[1]}, v{G}
    """)
    P = S[0]
    for j in range(2):
        for i in range(10): a(f"v_mul_f32 v{O[j]+i}, v{O[j]+i}, v{M[j]}")
        for i in range(5): a(f"v_cvt_pk_bf16_f32 v{P+5*j+i}, v{O[j]+2*i}, v{O[j]+2*i+1}")
    a(f"""
    s_mul_i32 s23, s14, 10
    s_lshr_b32 s23, s23, 3
    s_lshl_b32 s23, s23, 9
    s_add_u32 s22, s22, s23
    s_add_u32 s22, s22, {WS_O}
    v_lshrrev_b32 v{T2}, 4, v{T0}
    v_mul_u32_u24 v{T2}, 40960, v{T2}
    v_lshl_add_u32 v{T2}, v{T1}, 8, v{T2}
    v_and_b32 v{T3}, 15, v0
    v_lshl_add_u32 v{T2}, v{T3}, 4, v{T2}
    s_cmp_eq_u32 s13, 0
    s_cbranch_scc0 L_ST1
    buffer_store_dwordx4 {vr(P,4)}, v{T2}, s[28:31], s22 offen sc1
    buffer_store_dwordx4 {vr(P+4,4)}, v{T2}, s[28:31], s22 offen offset:512 sc1
    buffer_store_dwordx2 {vr(P+8,2)}, v{T2}, s[28:31], s22 offen offset:1024 sc1
    s_branch L_ST2
    L_ST1:
    buffer_store_dwordx2 {vr(P,2)}, v{T2}, s[28:31], s22 offen offset:8 sc1
    buffer_store_dwordx4 {vr(P+2,4)}, v{T2}, s[28:31], s22 offen offset:512 sc1
    buffer_store_dwordx4 {vr(P+6,4)}, v{T2}, s[28:31], s22 offen offset:1024 sc1
    L_ST2:
    """)
    EACC = 56
    OF = [8, 24, 40, 136, 8]
    a.c("phase E: tile rows 128rb + 64*branch .. +63, columns 80*hg .. +79 ; wave = K eighth")
    a(f"""
    s_lshl_b32 s57, s4, 7
    s_add_u32 s57, s57, {FL_O}
    s_lshl_b32 s56, s5, 1
    s_add_u32 s56, s56, s3
    s_lshl_b32 s56, s56, 2
    s_add_u32 s56, s56, s57
    v_mov_b32 v2, s34
    v_mov_b32 v3, 0
    v_lshlrev_b32 v4, 2, v0
    v_lshlrev_b32 v5, 4, v0
    v_add_u32 v6, 4096, v5
    s_lshl_b32 s16, s4, 1
    s_add_u32 s16, s16, s3
    s_mul_i32 s17, s16, {4*40960}
    s_mul_i32 s18, s6, 5120
    s_add_u32 s17, s17, s18
    s_add_u32 s17, s17, {WS_O}
    s_add_u32 s18, s17, 40960
    s_add_u32 s19, s17, 81920
    s_add_u32 s20, s17, 122880
    s_waitcnt vmcnt(0)
    s_barrier
    """)
    stamp(a, 8)
    a("""
    s_cmp_eq_u32 s6, 0
    s_cbranch_scc0 L_NOPUB2
    s_mov_b64 exec, 1
    buffer_store_dword v2, v3, s[28:31], s56 offen sc1
    s_mov_b64 exec, -1
    L_NOPUB2:
    """)
    for i in range(80): a(f"v_mov_b32 v{EACC+i}, 0")
    poll(a, "L_PO", 4, "s57", 1, 7, mask="0xffff", preloaded=False)
    stamp(a, 9)
    def oloads(st):
        av = 5 if st < 4 else 6
        for rt in range(4):
            a(f"buffer_load_dwordx4 {vr(OF[st]+4*rt,4)}, v{av}, s[28:31], s{17+rt} offen offset:{(st%4)*1024} sc1")
    for st in range(4): oloads(st)
    a.c("workgroup 0 advances the epoch (every workgroup has read it by now): older than nothing it could delay")
    for st in range(5):
        a(f"s_waitcnt vmcnt({[12, 12, 8, 4, 0][st]})")
        for rt in range(4):
            for ct in range(5):
                d = vr(EACC + (rt*5+ct)*4, 4)
                a(f"v_mfma_f32_16x16x32_bf16 {d}, {vr(WO+(st*5+ct)*4,4)}, {vr(OF[st]+4*rt,4)}, {d}")
        if st == 0: oloads(4)
    stamp(a, 10)
    a.c("8-way reduction through LDS: [rt 4][src 8][ct 5][1024]")
    a("""
    s_mul_i32 s20, s6, 5120
    v_add_u32 v8, s20, v5
    v_add_u32 v9, 40960, v8
    v_add_u32 v10, 81920, v8
    v_add_u32 v11, 122880, v8
    s_and_b32 s21, s6, 3
    s_mul_i32 s20, s21, 40960
    s_lshl_b32 s22, s13, 11
    s_add_u32 s20, s20, s22
    v_add_u32 v12, s20, v5
    """)
    if PROF: a("s_waitcnt lgkmcnt(0)")
    for rt in range(4):
        for ct in range(5):
            a(f"ds_write_b128 v{8+rt}, {vr(EACC+(rt*5+ct)*4,4)} offset:{ct*1024}")
        if rt == 1: a("s_waitcnt lgkmcnt(4)")
    srd(a, 72, 66, 67, 2048 * 1280)
    a.c("out address: row = 64*(2rb+branch) + 16*(w&3) + n ; byte = row*1280 + hg*160 + rg*40 + hp*16")
    a(f"""
    s_lshl_b32 s20, s16, 6
    s_lshl_b32 s21, s21, 4
    s_add_u32 s20, s20, s21
    s_mul_i32 s20, s20, 1280
    s_mul_i32 s21, s5, 160
    s_add_u32 s20, s20, s21
    s_lshl_b32 s21, s13, 4
    s_add_u32 s20, s20, s21
    v_and_b32 v7, 15, v0
    v_mul_u32_u24 v7, 1280, v7
    v_lshrrev_b32 v13, 4, v0
    v_mul_u32_u24 v13, 40, v13
    v_add_u32 v7, v7, v13
    s_waitcnt lgkmcnt(0)
    s_barrier
    s_cmp_eq_u32 s13, 0
    s_cbranch_scc0 L_RED3
    """)
    def reduce(nct):
        R = 56
        w = 4 * nct
        cnt = 0
        for src in range(8):
            for c in range(nct):
                a(f"ds_read_b128 {vr(R+src*w+4*c,4)}, v12 offset:{src*5120+c*1024}")
                cnt += 1
                if cnt == 12: a("s_waitcnt lgkmcnt(2)")
        a("s_waitcnt lgkmcnt(0)")
        for stp in (4, 2, 1):
            for s_ in range(stp):
                for i in range(w):
                    a(f"v_add_f32 v{R+s_*w+i}, v{R+s_*w+i}, v{R+(s_+stp)*w+i}")
        for i in range(w // 2):
            a(f"v_cvt_pk_bf16_f32 v{16+i}, v{R+2*i}, v{R+2*i+1}")
        a("buffer_store_dwordx4 v[16:19], v7, s[72:75], s20 offen")
        if nct == 3: a("buffer_store_dwordx2 v[20:21], v7, s[72:75], s20 offen offset:16")
    reduce(2)
    a(f"""
    s_or_b32 s21, s2, s6
    s_cmp_eq_u32 s21, 0
    s_cbranch_scc0 L_FIN
    s_mov_b32 s21, {FL_EPOCH}
    s_mov_b64 exec, 1
    buffer_store_dword v2, v3, s[28:31], s21 offen sc1
    s_branch L_FIN
    L_RED3:
    """)
    reduce(3)
    a("L_FIN:")
    if PROF: a("s_waitcnt vmcnt(0)")
    stamp(a, 11)
    stamp_flush(a)
    a("L_END:\ns_endpgm")
    return f""".p2align 6
.amdhsa_kernel {N}
  .amdhsa_next_free_vgpr 256
  .amdhsa_next_free_sgpr 102
  .amdhsa_accum_offset 256
  .amdhsa_group_segment_fixed_size 0
  .amdhsa_kernarg_size 112
  .amdhsa_user_sgpr_count 2
  .amdhsa_user_sgpr_kernarg_segment_ptr 1
  .amdhsa_system_sgpr_workgroup_id_x 1
.end_amdhsa_kernel
"""

def main():
    ref = open(f"cdna_kernels/{NAME}.s.ref").read().split("\n")
    head = [l for l in ref if l.startswith(";") and "@launch" not in l]
    a = Asm()
    kd = gen(a)
    out = "\n".join(head) + "\n"
    out += "; @launch grid=(256,1,1) block=(512,1,1) lds=163840\n"
    out += '.amdgcn_target "amdgcn-amd-amdhsa--gfx950"\n.text\n'
    out += a.text()
    out += '.section .rodata,"a"\n' + kd
    path = ARGS[0] if ARGS and not ARGS[0].startswith("--") else f"cdna_kernels/{NAME}.s"
    open(path, "w").write(out)
main()
```

```python
import math, struct, sys

NAME = "gated_mix__grouped_kv_mqa__grouped_kv_mqa__prompt"
ARGS = sys.argv[1:]
def opt(n): return ("--" + n) in ARGS
def optv(n, d):
    for x in ARGS:
        if x.startswith("--" + n + "="): return int(x.split("=")[1])
    return d

KV_BYTES = 163840
WS_KV   = 0
WS_G    = 2 * KV_BYTES
WS_O    = WS_G + 16384
O_BYTES = 128 * 40 * 1024
WS_WO   = WS_O + O_BYTES
WO_BYTES = 8 * 5 * 40 * 1024
WS_FL   = WS_WO + WO_BYTES
FL_EPOCH = WS_FL
FL_KV   = WS_FL + 256
FL_W    = FL_KV + 8192
WS_END  = FL_W + 4096

def f32bits(x):
    return struct.unpack("<I", struct.pack("<f", x))[0]
QSCALE = f32bits((20 ** -0.5) * math.log2(math.e))
LOG2E = f32bits(math.log2(math.e))

class Asm:
    def __init__(self): self.l = []
    def __call__(self, s):
        for line in s.split("\n"):
            line = line.strip()
            if line: self.l.append(("" if line.endswith(":") else "  ") + line)
    def c(self, s): self.l.append("  ; " + s)
    def text(self): return "\n".join(self.l) + "\n"

def vr(b, n=1): return f"v{b}" if n == 1 else f"v[{b}:{b+n-1}]"

def srd(a, d, lo, hi, nbytes):
    a(f"s_mov_b32 s{d}, s{lo}\ns_mov_b32 s{d+1}, s{hi}\ns_mov_b32 s{d+2}, {nbytes}\ns_mov_b32 s{d+3}, 0x00020000")
def srd_sel(a, d, lo0, lo1, nbytes):
    a(f"s_cselect_b32 s{d}, s{lo0}, s{lo1}\ns_cselect_b32 s{d+1}, s{lo0+1}, s{lo1+1}\ns_mov_b32 s{d+2}, {nbytes}\ns_mov_b32 s{d+3}, 0x00020000")

PROF = opt("prof")
PROF_BASE = 16 << 20
NST = 12
def stamp(a, i):
    if PROF: a(f"s_memrealtime s[{76+2*i}:{77+2*i}]")
def stamp_flush(a):
    if not PROF: return
    a("s_waitcnt lgkmcnt(0)\ns_mov_b64 exec, 1")
    a(f"s_lshl_b32 s62, s2, 3\ns_add_u32 s62, s62, s6\ns_lshl_b32 s62, s62, 6\ns_add_u32 s62, s62, {PROF_BASE}")
    a("s_mov_b32 s30, 0x2000000\nv_mov_b32 v0, 0")
    for i in range(NST):
        a(f"v_mov_b32 v2, s{76+2*i}\nbuffer_store_dword v2, v0, s[28:31], s62 offen offset:{4*i}\ns_nop 1")

SPIN = 200000
def poll(a, lbl, addr_v, soff, width, tmp, mask=None, preloaded=True, sleep=1):
    ld = {1: "dword", 2: "dwordx2", 4: "dwordx4"}[width]
    a(f"s_mov_b32 s60, {SPIN}")
    if mask is not None: a(f"s_mov_b64 exec, {mask}")
    if preloaded: a(f"s_branch {lbl}_chk")
    a(f"{lbl}_ld:")
    a(f"buffer_load_{ld} {vr(tmp,width)}, v{addr_v}, s[28:31], {soff} offen sc1")
    a(f"{lbl}_chk:\ns_waitcnt vmcnt(0)")
    a(f"v_cmp_ne_u32 vcc, s34, v{tmp}")
    for i in range(1, width):
        a(f"v_cmp_ne_u32 s[58:59], s34, v{tmp+i}\ns_or_b64 vcc, vcc, s[58:59]")
    a(f"s_sub_u32 s60, s60, 1\ns_cbranch_scc1 {lbl}_ok")
    a(f"s_cmp_eq_u64 vcc, 0\ns_cbranch_scc1 {lbl}_ok\ns_sleep {sleep}\ns_branch {lbl}_ld\n{lbl}_ok:")
    if mask is not None: a("s_mov_b64 exec, -1")

def flag_store(a, soff, vtmp, vzero):
    a(f"v_mov_b32 v{vtmp}, s34\ns_mov_b64 exec, 1\nbuffer_store_dword v{vtmp}, v{vzero}, s[28:31], {soff} offen sc1\ns_mov_b64 exec, -1")

def gen(a):
    N = NAME + "_kernel"
    STG = 26624; XB = 16384
    L_WK = 0; L_WV = 25600; L_G = 51200; RING = 57344
    L_X16 = RING + 3 * STG
    L_QX = 143360
    a(f".globl {N}\n.p2align 8\n.type {N},@function\n{N}:")
    a("s_cmp_ge_u32 s2, 256\ns_cbranch_scc1 L_END")
    a("""
    s_load_dwordx8 s[8:15], s[0:1], 0
    s_load_dwordx8 s[16:23], s[0:1], 48
    s_load_dwordx2 s[24:25], s[0:1], 104
    s_load_dwordx4 s[64:67], s[0:1], 80
    s_load_dwordx2 s[68:69], s[0:1], 32
    """)
    stamp(a, 0)
    a.c("s3 = branch, s4 = rb (128-row block), s5 = hg (head group), s6 = wave, s33 = rb&3")
    a(f"""
    v_lshrrev_b32 v1, 6, v0
    v_and_b32 v0, 63, v0
    s_and_b32 s3, s2, 1
    s_xor_b32 s3, s3, {1 if opt("swapbr") else 0}
    v_readfirstlane_b32 s6, v1
    s_lshr_b32 s4, s2, 1
    s_and_b32 s4, s4, 3
    s_lshl_b32 s4, s4, 2
    s_lshr_b32 s33, s2, 3
    s_and_b32 s33, s33, 3
    s_add_u32 s4, s4, s33
    s_lshr_b32 s5, s2, 5
    v_lshlrev_b32 v3, 4, v0
    v_lshrrev_b32 v5, 3, v0
    v_and_b32 v6, 7, v0
    v_xor_b32 v6, v6, v5
    v_lshlrev_b32 v6, 4, v6
    v_mul_u32_u24 v2, 1280, v5
    v_add_u32 v2, v2, v6
    v_mov_b32 v4, 0
    s_lshl_b32 s48, s4, 7
    s_lshl_b32 s50, s6, 10
    s_cmp_ge_u32 s6, 4
    s_cbranch_scc1 L_LOADER
    """)
    SLOT = {"A": RING, "B": RING + STG, "C": RING + 2 * STG, "D": RING + 3 * STG, "F": 30720}
    SMAP = ["A", "B", "C", "D", "F", "A", "B", "C", "F", "A"]
    NCH0 = 25
    a(f"""
    s_lshl_b32 s49, s5, 4
    s_add_u32 s49, s48, s49
    s_mul_i32 s49, s49, 1280
    s_lshr_b32 s51, s6, 1
    s_lshl_b32 s51, s51, 7
    s_and_b32 s52, s6, 1
    s_mul_i32 s53, s52, {8*1280}
    s_add_u32 s51, s51, s53
    s_add_u32 s51, s51, s49
    s_lshr_b32 s54, s2, 3
    s_lshl_b32 s54, s54, 10
    s_waitcnt lgkmcnt(0)
    """)
    srd(a, 36, 8, 9, 2048 * 1280)
    a.c("lines no other CU of this XCD is asking for yet: x16 pieces w+4j, one KB of wk / wv (L2 warm-up), gate")
    for j in range(5):
        a(f"s_add_u32 m0, s50, {L_X16 + 4096*j}\ns_add_u32 s53, s51, {256*j}\nbuffer_load_dwordx4 v2, s[36:39], s53 offen lds")
        if j == 0:
            srd(a, 28, 24, 25, WS_END)
            a(f"""
            s_cmp_ge_u32 s6, 2
            s_cbranch_scc1 L_LA2
            s_cmp_eq_u32 s6, 0
            s_cselect_b32 s12, s12, s14
            s_cselect_b32 s13, s13, s15
            s_cselect_b32 s18, s18, s20
            s_cselect_b32 s19, s19, s21
            s_cmp_eq_u32 s3, 0
            """)
            srd_sel(a, 40, 12, 18, 25600)
            a(f"""
            buffer_load_dwordx4 v[248:251], v3, s[40:43], s54 offen
            s_branch L_LA3
            L_LA2:
            """)
            srd(a, 40, 64, 65, 1280)
            a(f"""
            s_lshl_b32 s53, s52, 10
            s_add_u32 m0, s53, {L_G}
            s_nop 0
            buffer_load_dwordx4 v3, s[40:43], s53 offen lds
            L_LA3:
            """)
    a(f"s_mov_b32 s53, {FL_EPOCH}\nbuffer_load_dword v9, v4, s[28:31], s53 offen sc1")
    a.c("KV fragment addresses (wave: 0 K lo, 1 K hi + gate, 2 V lo, 3 V hi)")
    a(f"""
    v_and_b32 v5, 15, v0
    v_lshrrev_b32 v6, 4, v0
    v_and_b32 v7, 7, v0
    v_xor_b32 v7, v7, v6
    v_lshlrev_b32 v7, 4, v7
    v_lshl_add_u32 v10, v5, 7, v7
    v_add_u32 v14, {L_X16}, v10
    v_xor_b32 v15, 64, v14
    v_bfe_u32 v7, v0, 2, 2
    v_lshl_add_u32 v7, v6, 3, v7
    v_mul_u32_u24 v7, 40, v7
    v_and_b32 v8, 3, v0
    v_lshlrev_b32 v8, 3, v8
    s_cmp_eq_u32 s52, 0
    s_cselect_b32 s56, -1, 0
    s_cselect_b32 s57, 0, 32
    v_and_b32 v8, s56, v8
    s_cmp_lt_u32 s6, 2
    s_cselect_b32 s56, 0, {L_WV}
    s_add_u32 s57, s57, s56
    v_add3_u32 v18, v7, v8, s57
    v_lshlrev_b32 v19, 4, v6
    v_add_u32 v19, {L_G}, v19
    """)
    for i in range(8): a(f"v_mov_b32 v{20+i}, 0")
    ACC = 112; FR = 32; KVF = 152
    BASES = [SLOT["F"], SLOT["B"], SLOT["D"]]
    AXR = [232, 234, 236]; AWR = [238, 239, 240]
    def base_of(slot):
        o = SLOT[slot]
        i = max(k for k in range(3) if BASES[k] <= o)
        return i, o - BASES[i]
    a.c("Q-projection addresses and accumulators (set up while the loads fly)")
    a(f"""
    s_lshl_b32 s7, s6, 12
    v_add_u32 v11, s7, v10
    v_lshrrev_b32 v7, 1, v6
    v_lshlrev_b32 v7, 4, v7
    v_and_b32 v8, 1, v6
    v_lshl_add_u32 v7, v8, 2, v7
    v_bfe_u32 v8, v0, 2, 2
    v_add_u32 v7, v7, v8
    v_mul_u32_u24 v7, 160, v7
    v_and_b32 v8, 3, v0
    v_mul_u32_u24 v8, 40, v8
    v_add_u32 v7, v7, v8
    """)
    for k in range(3):
        a(f"v_add_u32 v{AXR[k]}, {BASES[k]}, v11\nv_xor_b32 v{AXR[k]+1}, 64, v{AXR[k]}\nv_add_u32 v{AWR[k]}, {BASES[k] + XB}, v7")
    for i in range(40): a(f"v_mov_b32 v{ACC+i}, 0")
    for i in (218, 219, 228, 229, 230, 231): a(f"v_mov_b32 v{i}, 0")
    a.c("K/V/gate store addresses: v12 (+ s58), exec mask s[60:61]; gate: v13 (+ s62), s63 = -+log2e")
    a(f"""
    s_lshl_b32 s58, s4, 2
    s_lshr_b32 s59, s5, 1
    s_add_u32 s58, s58, s59
    s_mul_i32 s58, s58, 2560
    s_mul_i32 s59, s3, {KV_BYTES}
    s_add_u32 s58, s58, s59
    s_and_b32 s59, s5, 1
    s_lshl_b32 s62, s3, 11
    s_add_u32 s62, s62, s48
    s_lshl_b32 s63, s5, 4
    s_add_u32 s62, s62, s63
    s_lshl_b32 s62, s62, 2
    s_add_u32 s62, s62, {WS_G}
    v_lshlrev_b32 v13, 2, v5
    s_lshl_b32 s63, s3, 31
    s_xor_b32 s63, s63, {LOG2E | 0x80000000}
    v_lshrrev_b32 v7, 1, v6
    v_and_b32 v8, 1, v6
    s_mov_b32 s27, {QSCALE}
    s_cmp_eq_u32 s6, 1
    s_cbranch_scc1 L_AD1
    s_cmp_ge_u32 s6, 2
    s_cbranch_scc1 L_AD2
    s_lshl_b32 s59, s59, 8
    s_add_u32 s58, s58, s59
    v_lshlrev_b32 v7, 9, v7
    v_lshl_add_u32 v7, v5, 4, v7
    v_lshl_add_u32 v12, v8, 3, v7
    s_mov_b64 s[60:61], -1
    s_branch L_AD3
    L_AD1:
    s_lshl_b32 s59, s59, 7
    s_add_u32 s58, s58, s59
    s_add_u32 s58, s58, 1024
    v_lshlrev_b32 v12, 3, v5
    s_mov_b64 s[60:61], 0xffff
    s_branch L_AD3
    L_AD2:
    s_mul_i32 s59, s59, 640
    s_add_u32 s58, s58, s59
    s_lshl_b32 s59, s52, 8
    s_add_u32 s58, s58, s59
    s_add_u32 s58, s58, 1280
    v_mul_u32_u24 v7, 320, v7
    v_lshl_add_u32 v7, v5, 4, v7
    v_lshl_add_u32 v12, v8, 3, v7
    s_cmp_eq_u32 s52, 0
    s_cselect_b32 s60, -1, 0x000f000f
    s_mov_b32 s61, s60
    s_mov_b32 s27, 1.0
    L_AD3:
    """)
    def kv_loop(kind, pre):
        per = 4 if kind == "G" else 3
        nb = 3 if kind == "G" else 5
        ring = nb + 1
        def rd(k):
            f = KVF + 12 * (k % ring)
            r = [f"ds_read_b128 {vr(f,4)}, v{14 + (k & 1)} offset:{(k >> 1) * 2048}"]
            for hf in range(2):
                r.append(f"ds_read_b64_tr_b16 {vr(f+4+2*hf,2)}, v18 offset:{(32*k + 4*hf)*40}")
            if kind == "G": r.append(f"ds_read_b128 {vr(f+8,4)}, v19 offset:{64*k}")
            return r
        def mm(k):
            f = KVF + 12 * (k % ring)
            if kind == "V": r = [f"v_mfma_f32_16x16x32_bf16 v[20:23], {vr(f,4)}, {vr(f+4,4)}, v[20:23]"]
            else: r = [f"v_mfma_f32_16x16x32_bf16 v[20:23], {vr(f+4,4)}, {vr(f,4)}, v[20:23]"]
            if kind == "G": r.append(f"v_mfma_f32_16x16x32_bf16 v[24:27], {vr(f+8,4)}, {vr(f,4)}, v[24:27]")
            return r
        for k in range(nb):
            for x in rd(k): a(x)
        for k in range(20):
            ahead = min(k + nb, 20) - (k + 1)
            a(f"s_waitcnt lgkmcnt({ahead * per})")
            for x in mm(k): a(x)
            if k + nb < 20:
                for x in rd(k + nb): a(x)
    def reads(s, ks):
        bi, base = base_of(SMAP[s])
        ax = AXR[bi] + ks; aw = AWR[bi]; f = FR + 28 * ks
        r = [f"ds_read_b128 {vr(f+4*rt,4)}, v{ax} offset:{base + rt*2048}" for rt in range(2)]
        for ct in range(5):
            for hf in range(2):
                r.append(f"ds_read_b64_tr_b16 {vr(f+8+4*ct+2*hf,2)}, v{aw} offset:{base + (32*ks + 8*hf)*160 + 8*ct}")
        return r
    def mf(ks, ct):
        f = FR + 28 * ks
        return [f"v_mfma_f32_16x16x32_bf16 {vr(ACC+(rt*5+ct)*4,4)}, {vr(f+8+4*ct,4)}, {vr(f+4*rt,4)}, {vr(ACC+(rt*5+ct)*4,4)}" for rt in range(2)]
    def stage(s):
        r0 = reads(s, 0); r1 = reads(s, 1)
        if s == 0:
            for x in r0: a(x)
        else:
            k = 0
            for ct in range(5):
                n = [4, 3, 3, 2, 0][ct]
                for x in r0[k:k+n]: a(x)
                k += n
                for x in mf(1, ct): a(x)
        issued1 = 0
        plan = [4, 4, 3, 1, 0]
        for ct in range(5):
            a(f"s_waitcnt lgkmcnt({(12 - (4 + 2*ct)) + issued1})")
            for x in mf(0, ct): a(x)
            for x in r1[issued1:issued1 + plan[ct]]: a(x)
            issued1 += plan[ct]
        a("s_waitcnt lgkmcnt(0)")
    PUB = optv("pub", 4)
    nb_ = [0]
    def cbar():
        i = nb_[0]; nb_[0] += 1
        if i == PUB: a("s_waitcnt vmcnt(0)")
        a("s_barrier")
        if opt("probeB"):
            stamp(a, 1 + i if i < 10 else 11); a("s_waitcnt lgkmcnt(0)")
            if i == 10: a("s_branch L_FIN2")
        if i == PUB:
            a.c("publish this workgroup's K/V slice (wave 0, one lane)")
            a(f"""
            s_cmp_eq_u32 s6, 0
            s_cbranch_scc0 L_NOPUB
            s_bfe_u32 s56, s2, 0x50001
            s_lshl_b32 s56, s56, 7
            s_lshl_b32 s57, s3, 12
            s_add_u32 s56, s56, s57
            s_lshr_b32 s57, s2, 6
            s_lshl_b32 s57, s57, 2
            s_add_u32 s56, s56, s57
            s_add_u32 s56, s56, {FL_KV}
            """)
            flag_store(a, "s56", 7, 4)
            a("L_NOPUB:")
    a("s_waitcnt vmcnt(0)")
    cbar()
    if not opt("probeB"):
        stamp(a, 1)
        if PROF: a("s_waitcnt lgkmcnt(0)")
    a("v_readfirstlane_b32 s34, v9")
    a("s_cmp_eq_u32 s6, 1\ns_cbranch_scc1 L_KV_G\ns_cmp_ge_u32 s6, 2\ns_cbranch_scc1 L_KV_V")
    kv_loop("K", None)
    a("s_branch L_KV_E\nL_KV_G:")
    kv_loop("G", None)
    a("""
    s_nop 7
    v_mul_f32 v24, s63, v24
    v_exp_f32 v24, v24
    s_nop 0
    v_add_f32 v24, 1.0, v24
    v_rcp_f32 v24, v24
    s_mov_b64 exec, 0xffff
    buffer_store_dword v24, v13, s[28:31], s62 offen sc1
    s_mov_b64 exec, -1
    s_branch L_KV_E
    L_KV_V:
    """)
    kv_loop("V", None)
    a("L_KV_E:")
    a.c("tag = f(epoch); the softmax scale rides on K")
    a("""
    s_mul_i32 s34, s34, 0x9e3779b1
    s_add_u32 s34, s34, 0x7f4a7c15
    s_nop 5
    v_mul_f32 v20, s27, v20
    v_mul_f32 v21, s27, v21
    v_mul_f32 v22, s27, v22
    v_mul_f32 v23, s27, v23
    v_cvt_pk_bf16_f32 v28, v20, v21
    v_cvt_pk_bf16_f32 v29, v22, v23
    s_mov_b64 exec, s[60:61]
    buffer_store_dwordx2 v[28:29], v12, s[28:31], s58 offen sc1
    s_mov_b64 exec, -1
    """)
    if not opt("probeB"):
        stamp(a, 2)
        if PROF: a("s_waitcnt lgkmcnt(0)")
    for s in range(10):
        cbar(); stage(s)
    for rt in range(2):
        for ct in range(5): a(mf(1, ct)[rt])
    stamp(a, 3)
    a.c("Q epilogue: pack, write fragments to LDS [w][head rg][1280]")
    a(f"""
    s_mul_i32 s7, s6, 5120
    s_add_u32 s7, s7, {L_QX}
    v_mul_u32_u24 v7, 1280, v6
    v_add_u32 v7, s7, v7
    v_lshl_add_u32 v8, v5, 3, v7
    v_lshl_add_u32 v7, v5, 4, v7
    """)
    for rt in range(2):
        P = FR + 12 * rt
        for i in range(10): a(f"v_cvt_pk_bf16_f32 v{P+i}, v{ACC+rt*20+2*i}, v{ACC+rt*20+2*i+1}")
        a(f"ds_write_b128 v7, {vr(P,4)} offset:{rt*256}")
        a(f"ds_write_b128 v7, {vr(P+4,4)} offset:{512+rt*256}")
        a(f"ds_write_b64 v8, {vr(P+8,2)} offset:{1024+rt*128}")
    a("s_branch L_ATT")

    a("L_LOADER:")
    a.c("Wq DMA source offsets for 3 instrs: q=64i+l, p=q/10, c=q%10, src row = swap bits 2,3 of p")
    for i in range(3):
        a(f"""
        v_add_u32 v5, {64*i}, v0
        v_mul_u32_u24 v6, 6554, v5
        v_lshrrev_b32 v6, 16, v6
        v_mul_u32_u24 v7, 10, v6
        v_sub_u32 v7, v5, v7
        v_and_b32 v5, 0x13, v6
        v_and_b32 v8, 4, v6
        v_lshl_or_b32 v5, v8, 1, v5
        v_and_b32 v8, 8, v6
        v_lshrrev_b32 v8, 1, v8
        v_or_b32 v5, v5, v8
        v_mul_u32_u24 v5, 1280, v5
        v_lshl_add_u32 v{10+i}, v7, 4, v5
        """)
    a.c("s33 = k-chunk rotation (0,3,5,8): workgroups sharing Wq columns start at different k")
    a(f"""
    s_sub_u32 s7, s6, 4
    s_lshl_b32 s49, s7, 5
    s_add_u32 s48, s48, s49
    s_mul_i32 s48, s48, 1280
    s_mul_i32 s49, s5, 160
    s_mul_i32 s54, s7, {16*1280}
    s_add_u32 s49, s49, s54
    s_lshl_b32 s54, s7, 12
    s_mul_i32 s51, s7, 2560
    s_add_u32 s51, s51, {XB}
    s_mul_i32 s33, s33, 5
    s_add_u32 s33, s33, 1
    s_lshr_b32 s33, s33, 1
    s_lshl_b32 s50, s7, 10
    s_waitcnt lgkmcnt(0)
    s_cmp_eq_u32 s3, 0
    """)
    srd_sel(a, 72, 10, 16, 640 * 1280)
    srd_sel(a, 40, 12, 18, 25600)
    srd_sel(a, 44, 14, 20, 25600)
    Q_ = []
    def kchunk(s):
        a(f"s_add_u32 s55, s33, {s}\ns_cmp_ge_u32 s55, 10\ns_cselect_b32 s56, 10, 0\ns_sub_u32 s55, s55, s56")
    def issue_x(s):
        kchunk(s)
        a("s_lshl_b32 s55, s55, 7\ns_add_u32 s55, s55, s48")
        for i in range(4):
            a(f"s_add_u32 m0, s54, {SLOT[SMAP[s]] + 1024*i}\ns_add_u32 s56, s55, {i*8*1280}")
            a("buffer_load_dwordx4 v2, s[36:39], s56 offen lds")
        Q_.append((f"X{s}", 4))
    def issue_w(s):
        kchunk(s)
        a(f"s_mul_i32 s55, s55, {64*1280}\ns_add_u32 s55, s55, s49")
        for i in range(3):
            a(f"s_add_u32 m0, s51, {SLOT[SMAP[s]] + 1024*i}")
            a("s_mov_b32 exec_hi, 0" if i == 2 else "s_nop 0")
            a(f"buffer_load_dwordx4 v{10+i}, s[72:75], s55 offen lds")
        a("s_mov_b32 exec_hi, -1")
        Q_.append((f"W{s}", 3))
    def issue_st(s): issue_w(s); issue_x(s)
    def issue_small():
        a.c("wk / wv: KB lw+4j; the 7th round only exists for lw = 0 (others take a zero-length detour through the same count)")
        for j in range(6):
            a(f"s_add_u32 m0, s50, {L_WK + 4096*j}\ns_add_u32 s53, s50, {4096*j}\nbuffer_load_dwordx4 v3, s[40:43], s53 offen lds")
            a(f"s_add_u32 m0, s50, {L_WV + 4096*j}\ns_nop 0\nbuffer_load_dwordx4 v3, s[44:47], s53 offen lds")
        a.c("last KB: 256 B per loader wave")
        a(f"""
        s_lshl_b32 s53, s7, 8
        s_add_u32 s53, s53, {24*1024}
        s_mov_b64 exec, 0xffff
        s_add_u32 m0, s53, {L_WK}
        s_nop 0
        buffer_load_dwordx4 v3, s[40:43], s53 offen lds
        s_add_u32 m0, s53, {L_WV}
        s_nop 0
        buffer_load_dwordx4 v3, s[44:47], s53 offen lds
        s_mov_b64 exec, -1
        """)
        Q_.append(("SM", 14))
    def younger(name):
        i = [n for n, _ in Q_].index(name)
        return sum(c for _, c in Q_[i+1:])
    lb_ = [0]
    def lbar(name, extra5=0):
        i = lb_[0]; lb_[0] += 1
        n = younger(name)
        if opt("probeB"): stamp(a, 1 + i if i < 10 else 11)
        if extra5:
            a(f"s_cmp_eq_u32 s6, 5\ns_cbranch_scc0 L_LW{i}\ns_waitcnt vmcnt({n+extra5})\ns_branch L_LX{i}\nL_LW{i}:\ns_waitcnt vmcnt({n})\nL_LX{i}:")
        else:
            a(f"s_waitcnt vmcnt({n})")
        a("s_barrier")
    issue_w(0)
    srd(a, 36, 8, 9, 2048 * 1280)
    srd(a, 28, 24, 25, WS_END)
    issue_w(1); issue_w(2)
    a(f"s_mov_b32 s53, {FL_EPOCH}\nbuffer_load_dword v9, v4, s[28:31], s53 offen sc1")
    RL = 152; RA = RL + 64; RS = RA + 12
    a.c("wo re-layout job (wave 5): cb = wg&7, G = 5*(wg>>3) + l/10, octet = l%10 (50 lanes); addresses now, data later")
    for i in [2, 3] + list(range(12, 20)): a(f"v_mov_b32 v{RA+i}, 0")
    a("s_cmp_eq_u32 s6, 5\ns_cbranch_scc0 L_NORL")
    t = RL + 32
    U = RA + 11
    a(f"""
    s_lshr_b32 s56, s2, 3
    s_mul_i32 s56, s56, 5
    s_and_b32 s57, s2, 7
    s_mul_i32 s32, s57, 160
    s_lshr_b32 s35, s2, 7
    s_mul_i32 s35, s35, {40*1280}
    s_add_u32 s32, s32, s35
    v_mul_u32_u24 v{U}, 6554, v0
    v_lshrrev_b32 v{U}, 16, v{U}
    v_mul_u32_u24 v{RA}, 10, v{U}
    v_sub_u32 v{RA}, v0, v{RA}
    v_add_u32 v{t}, s56, v{U}
    v_and_b32 v{RA+1}, 1, v{t}
    v_lshrrev_b32 v{RA+2}, 1, v{t}
    v_lshlrev_b32 v{RA+2}, 3, v{RA+2}
    """)
    for e in range(8):
        a(f"""
        v_add_u32 v{t}, {e}, v{RA+2}
        v_mul_u32_u24 v{t+1}, 6554, v{t}
        v_lshrrev_b32 v{t+1}, 16, v{t+1}
        v_mul_u32_u24 v{t+2}, 10, v{t+1}
        v_sub_u32 v{t+2}, v{t}, v{t+2}
        v_and_b32 v{t}, 14, v{t+1}
        v_and_b32 v{t+1}, 1, v{t+1}
        v_lshl_add_u32 v{t+1}, v{t}, 1, v{t+1}
        v_mul_u32_u24 v{t+1}, 20, v{t+1}
        v_and_b32 v{t}, 3, v{t+2}
        v_add_u32 v{t+1}, v{t+1}, v{t}
        v_lshrrev_b32 v{t}, 2, v{t+2}
        v_lshl_add_u32 v{t+1}, v{t}, 3, v{t+1}
        v_lshrrev_b32 v{t}, 3, v{t+2}
        v_sub_u32 v{t}, 2, v{t}
        v_lshlrev_b32 v{t}, v{t}, v{RA+1}
        v_add_u32 v{t+1}, v{t+1}, v{t}
        v_mul_u32_u24 v{t+1}, 1280, v{t+1}
        v_lshl_add_u32 v{RS+e}, v{RA}, 4, v{t+1}
        """)
    for z in range(2):
        a(f"""
        v_lshlrev_b32 v{t+2}, 1, v{RA}
        v_add_u32 v{t+2}, {z}, v{t+2}
        v_mul_u32_u24 v{t}, 52, v{t+2}
        v_lshrrev_b32 v{t}, 8, v{t}
        v_mul_u32_u24 v{t+3}, 5, v{t}
        v_sub_u32 v{t+3}, v{t+2}, v{t+3}
        v_mul_u32_u24 v{t+3}, 40960, v{t+3}
        v_lshl_add_u32 v{t+3}, v{U}, 8, v{t+3}
        v_lshl_add_u32 v{RA+2+z}, v{t}, 6, v{t+3}
        """)
    a(f"""
    s_mul_i32 s35, s57, {5*40960}
    s_lshl_b32 s56, s56, 8
    s_add_u32 s35, s35, s56
    s_add_u32 s35, s35, {WS_WO}
    L_NORL:
    v_and_b32 v13, 31, v0
    v_lshlrev_b32 v13, 7, v13
    s_lshl_b32 s57, s3, 12
    s_add_u32 s57, s57, {FL_KV}
    s_mul_i32 s18, s3, {KV_BYTES}
    """)
    issue_small(); issue_x(0)
    if not opt("probeB"): stamp(a, 1)
    lbar("SM")
    a("v_readfirstlane_b32 s34, v9")
    issue_x(1); issue_x(2)
    a("s_mul_i32 s34, s34, 0x9e3779b1\ns_add_u32 s34, s34, 0x7f4a7c15")
    if not opt("probeB"): stamp(a, 2)
    lbar("X0"); issue_st(3)
    if opt("dbl"): issue_st(4)
    lbar("X1")
    if not opt("dbl"): issue_st(4)
    if opt("dbl"):
        issue_st(5); lbar("X2"); issue_st(6); lbar("X3"); issue_st(7); lbar("X4"); lbar("X5"); issue_st(8); lbar("X6"); issue_st(9); lbar("X7")
    else:
        lbar("X2"); issue_st(5); lbar("X3"); issue_st(6); lbar("X4"); issue_st(7); lbar("X5"); issue_st(8); lbar("X6"); issue_st(9); lbar("X7")
    a.c("wave 4: one look at the K/V flags; if complete, fetch the first tiles of the image early")
    def chunk0():
        for r in range(NCH0):
            a(f"s_mov_b32 m0, {1024*r}\ns_add_u32 s20, s18, {1024*r}")
            a("buffer_load_dwordx4 v3, s[28:31], s20 offen sc1 lds")
    a("""
    s_cmp_eq_u32 s6, 4
    s_cbranch_scc0 L_N4
    s_mov_b32 exec_hi, 0
    buffer_load_dwordx4 v[16:19], v13, s[28:31], s57 offen sc1
    s_waitcnt vmcnt(1)
    s_barrier
    s_waitcnt vmcnt(0)
    v_cmp_ne_u32 vcc, s34, v16
    v_cmp_ne_u32 s[58:59], s34, v17
    s_or_b64 vcc, vcc, s[58:59]
    v_cmp_ne_u32 s[58:59], s34, v18
    s_or_b64 vcc, vcc, s[58:59]
    v_cmp_ne_u32 s[58:59], s34, v19
    s_or_b64 vcc, vcc, s[58:59]
    s_mov_b32 exec_hi, -1
    s_cmp_eq_u64 vcc, 0
    s_cbranch_scc1 L_EARLY
    s_barrier
    s_mov_b32 s20, -1
    s_mov_b32 s21, 0
    """)
    if opt("probeB"): a("s_branch L_FIN")
    stamp(a, 3)
    poll(a, "L_PKV", 13, "s57", 4, 16, mask="s[20:21]", preloaded=False)
    stamp(a, 4)
    chunk0()
    a("s_branch L_ATT\nL_EARLY:")
    for r in range(8):
        a(f"s_mov_b32 m0, {1024*r}\ns_add_u32 s20, s18, {1024*r}")
        a("buffer_load_dwordx4 v3, s[28:31], s20 offen sc1 lds")
    a("s_barrier")
    if opt("probeB"): a("s_branch L_FIN")
    stamp(a, 3); stamp(a, 4)
    for r in range(8, NCH0):
        a(f"s_mov_b32 m0, {1024*r}\ns_add_u32 s20, s18, {1024*r}")
        a("buffer_load_dwordx4 v3, s[28:31], s20 offen sc1 lds")
    a("s_branch L_ATT\nL_N4:")
    lbar("X8")
    lbar("X9")
    if opt("probeB"): a("s_branch L_FIN2")
    stamp(a, 3)

    Q1 = [4, 12]; Q2 = [8, 16]
    AK1, AK2, AV, IDX, G = 1, 2, 3, 10, 11
    T0, T1, T2, T3 = 18, 19, 20, 21
    M = [22, 23]
    KF1 = [24, 32]; KF2 = [28, 36]
    VF = [40, 48]
    O = [56, 72]
    S = [88, 104, 120, 136]
    WO = 152; PT = 252; OA = 30
    a("L_ATT:")
    a.c("s12 = rt32 ; s13 = hp ; s14 = bh0")
    a(f"""
    s_and_b32 s15, s6, 3
    s_lshl_b32 s13, s4, 2
    s_add_u32 s12, s15, s13
    s_lshr_b32 s13, s6, 2
    s_lshl_b32 s14, s3, 5
    s_lshl_b32 s16, s5, 2
    s_add_u32 s14, s14, s16
    s_lshl_b32 s16, s13, 1
    s_add_u32 s14, s14, s16
    s_mul_i32 s15, s15, 5120
    s_mul_i32 s16, s13, 2560
    s_add_u32 s15, s15, s16
    s_add_u32 s15, s15, {L_QX}
    v_lshlrev_b32 v{AK1}, 4, v0
    v_and_b32 v{T0}, 31, v0
    v_lshrrev_b32 v{T1}, 5, v0
    v_lshlrev_b32 v{AK2}, 3, v{T0}
    v_lshl_add_u32 v{AK2}, v{T1}, 2, v{AK2}
    v_add_u32 v{T2}, s15, v{AK1}
    v_add_u32 v{T3}, s15, v{AK2}
    s_waitcnt lgkmcnt(0)
    s_barrier
    ds_read_b128 {vr(Q1[0],4)}, v{T2}
    ds_read_b32 v{Q2[0]}, v{T3} offset:1024
    ds_read_b128 {vr(Q1[1],4)}, v{T2} offset:1280
    ds_read_b32 v{Q2[1]}, v{T3} offset:2304
    v_cmp_lt_u32 vcc, 19, v{T0}
    v_subrev_u32 v{T2}, 2, v{T0}
    v_mul_u32_u24 v{AV}, 20, v{T1}
    v_cndmask_b32 v{T2}, v{T0}, v{T2}, vcc
    v_add_lshl_u32 v{AV}, v{AV}, v{T2}, 4
    v_mov_b32 v{IDX}, 0xdddddddd
    s_mov_b32 s36, 0x0033ffff
    s_mov_b32 s37, 0x0033ffff
    s_mov_b32 s38, 0
    s_mov_b32 s39, -1
    s_mov_b32 s40, 0xffff0000
    s_mov_b32 s41, 1
    s_mov_b32 s42, 1
    s_mov_b32 s45, 0xffff
    """)
    for b in range(2):
        a(f"v_mov_b32 v{KF2[b]+1}, 0x3f803f80")
        for i in range(8): a(f"v_mov_b32 v{VF[b]+i}, 0")
    a("s_mov_b32 exec_lo, 0x00440000\ns_mov_b32 exec_hi, 0x00440000")
    for b in range(2):
        for i in range(8): a(f"v_mov_b32 v{VF[b]+i}, 0x3f803f80")
    a("s_mov_b64 exec, -1")
    a("s_cmp_eq_u32 s6, 4\ns_cbranch_scc0 L_BQ2\ns_waitcnt vmcnt(0)\nL_BQ2:\ns_waitcnt lgkmcnt(0)\ns_barrier")
    stamp(a, 5)
    a.c("gate factor of this lane's row")
    a(f"""
    s_lshl_b32 s17, s3, 6
    s_add_u32 s17, s17, s12
    s_lshl_b32 s17, s17, 7
    s_add_u32 s17, s17, {WS_G}
    v_lshlrev_b32 v{T2}, 2, v{T0}
    buffer_load_dword v{G}, v{T2}, s[28:31], s17 offen sc1
    """)
    a.c("O address (v30 + s26): rt16 = 2*rt32 + (row>>4) ; G = 2f + h ; f0 = floor(20*block/8), block = 16hp + 8branch + hg")
    a(f"""
    s_mul_i32 s26, s12, 81920
    s_lshl_b32 s27, s13, 1
    s_add_u32 s27, s27, s3
    s_lshl_b32 s27, s27, 3
    s_add_u32 s27, s27, s5
    s_mul_i32 s27, s27, 5
    s_lshr_b32 s27, s27, 1
    s_lshl_b32 s27, s27, 9
    s_add_u32 s26, s26, s27
    s_add_u32 s26, s26, {WS_O}
    v_lshrrev_b32 v{OA}, 4, v{T0}
    v_mul_u32_u24 v{OA}, 40960, v{OA}
    v_lshl_add_u32 v{OA}, v{T1}, 8, v{OA}
    v_and_b32 v{T3}, 15, v0
    v_lshl_add_u32 v{OA}, v{T3}, 4, v{OA}
    s_cmp_eq_u32 s13, 0
    s_cbranch_scc1 L_RETRY
    """)
    a.c("waves 4-7: rest of the K/V image")
    a(f"s_add_u32 s19, s50, {1024*(NCH0-1)}\ns_add_u32 s18, s18, s19")
    for r in range(34):
        if r == 0: a("s_cmp_eq_u32 s6, 4\ns_cbranch_scc1 L_SK0")
        a(f"s_add_u32 m0, s19, {4096*r}\ns_add_u32 s20, s18, {4096*r}")
        a(f"buffer_load_dwordx4 v{AK1}, s[28:31], s20 offen sc1 lds")
        if r == 0: a("L_SK0:")
    a("s_cmp_eq_u32 s6, 5\ns_cbranch_scc0 L_RETRY\ns_bitcmp0_b32 s2, 6")
    srd_sel(a, 72, 68, 22, 640 * 1280)
    a("s_mov_b32 exec_hi, 0x3ffff")
    for e in range(8):
        a(f"buffer_load_dwordx4 {vr(RL+4*e,4)}, v{RS+e}, s[72:75], s32 offen")
    a("s_mov_b32 exec_hi, -1")
    a("L_RETRY:")
    a(f"v_mov_b32 v{T2}, v{AK1}\nv_mov_b32 v{T3}, v{AK2}\ns_mov_b32 s43, s41")
    for j in range(2):
        a(f"v_mov_b32 v{Q2[j]+1}, 0\nv_mov_b32 v{M[j]}, 0xff800000")
    a("L_MAXL:")
    a(f"ds_read_b128 {vr(KF1[0],4)}, v{T2}\nds_read_b32 v{KF2[0]}, v{T3} offset:1024")
    a(f"v_add_u32 v{T2}, 2560, v{T2}\nv_add_u32 v{T3}, 2560, v{T3}")
    for i in range(16): a(f"v_mov_b32 v{S[3]+i}, 0")
    a("s_waitcnt lgkmcnt(0)")
    for j in range(2):
        a(f"v_mfma_f32_32x32x16_bf16 {vr(S[j],16)}, {vr(KF1[0],4)}, {vr(Q1[j],4)}, 0")
        for i in range(8): a(f"v_mov_b32 v{O[j]+i}, 0")
        a(f"v_mfma_f32_32x32x8_bf16 {vr(S[j],16)}, {vr(KF2[0],2)}, {vr(Q2[j],2)}, {vr(S[j],16)}")
        for i in range(8, 16): a(f"v_mov_b32 v{O[j]+i}, 0")
    for j in range(2):
        for i in range(8):
            a(f"v_max3_f32 v{M[j]}, v{S[j]+2*i}, v{S[j]+2*i+1}, v{M[j]}")
    a("s_sub_u32 s43, s43, 1\ns_cmp_lg_u32 s43, 0\ns_cbranch_scc1 L_MAXL")
    def rdK(b, off):
        return [f"ds_read_b128 {vr(KF1[b],4)}, v{AK1} offset:{off}", f"ds_read_b32 v{KF2[b]}, v{AK2} offset:{off+1024}"]
    def rdV(b, off):
        return ["s_mov_b64 exec, s[36:37]",
                f"ds_read_b128 {vr(VF[b],4)}, v{AV} offset:{off+1280}", f"ds_read_b128 {vr(VF[b]+4,4)}, v{AV} offset:{off+1920}",
                "s_mov_b64 exec, -1"]
    TA = [S[2], S[2] + 1]; TB = [S[2] + 2, S[2] + 3]
    for j in range(2): a(f"v_mov_b32 v{TA[j]}, v{M[j]}")
    for x in rdK(0, 0) + rdK(1, 2560) + rdV(1, 0): a(x)
    a.c("-m split into bf16 pieces that ride in the spare k-slots; first pass keeps only the leading piece (s45)")
    seq = ["v_permlane32_swap_b32 v{m}, v{ta}", "s_nop 0", "v_max_f32 v{m}, v{m}, v{ta}", "v_xor_b32 v{m}, 0x80000000, v{m}",
           "v_and_b32 v{ta}, s40, v{m}", "v_sub_f32 v{tb}, v{m}, v{ta}", "v_lshrrev_b32 v{ta}, 16, v{ta}",
           "v_and_or_b32 v{ta}, v{tb}, s40, v{ta}", "v_and_b32 v{m}, s40, v{tb}", "v_sub_f32 v{tb}, v{tb}, v{m}",
           "v_and_b32 v{tb}, s40, v{tb}", "v_cndmask_b32 v{ta}, v{ta}, v{tb}, s[38:39]", "v_and_b32 v{q}, s45, v{ta}"]
    for x in seq:
        for j in range(2):
            if x == "s_nop 0" and j == 1: continue
            a(x.format(m=M[j], ta=TA[j], tb=TB[j], q=Q2[j] + 1))
    a("s_waitcnt lgkmcnt(0)")
    def qk1(u, kb): return f"v_mfma_f32_32x32x16_bf16 {vr(S[u%4],16)}, {vr(KF1[kb],4)}, {vr(Q1[u%2],4)}, 0"
    def qk2(u, kb): return f"v_mfma_f32_32x32x8_bf16 {vr(S[u%4],16)}, {vr(KF2[kb],2)}, {vr(Q2[u%2],2)}, {vr(S[u%4],16)}"
    def pv(u, vb, i): return f"v_smfmac_f32_32x32x32_bf16 {vr(O[u%2],16)}, {vr(VF[vb]+4*i,4)}, {vr(S[u%4]+8*i,8)}, v{IDX}"
    a(qk1(0, 0)); a(qk2(0, 0))
    a.c("waves 4-7 (first pass): image complete -> S1 now; waves 0-3 meet it after their first 8 tiles")
    a(f"""
    s_mov_b32 s44, 8
    s_and_b32 s43, s42, s13
    s_cmp_eq_u32 s43, 0
    s_cbranch_scc1 L_NOS1
    s_waitcnt vmcnt(8)
    s_cmp_eq_u32 s6, 5
    s_cbranch_scc1 L_S1
    s_waitcnt vmcnt(0)
    L_S1:
    s_barrier
    s_setprio 3
    s_branch L_PR
    L_NOS1:
    s_setprio 2
    L_PR:
    s_nop 6
    """)
    stamp(a, 6)
    a(".p2align 6\nL_LOOP:")
    for t in range(8):
        for j in range(2):
            u = 2 * t + j
            b = (t + j) % 2
            ex = [f"v_exp_f32 v{S[u%4]+i}, v{S[u%4]+i}" for i in range(16)]
            extra = [[], [], [], []]
            if j == 1:
                a("s_waitcnt lgkmcnt(0)")
                extra[0] = rdK(t % 2, (t + 2) * 2560)
                extra[1] = rdV(t % 2, (t + 1) * 2560)
            ms = [qk1(u + 1, b), qk2(u + 1, b), pv(u - 1, b, 0), pv(u - 1, b, 1)]
            for g in range(4):
                a(ms[g])
                for x in ex[4 * g:4 * g + 2]: a(x)
                for x in extra[g]: a(x)
                for x in ex[4 * g + 2:4 * g + 4]: a(x)
    a(f"v_add_u32 v{AK1}, 20480, v{AK1}\nv_add_u32 v{AK2}, 20480, v{AK2}\nv_add_u32 v{AV}, 20480, v{AV}")
    a(f"""
    s_lshl_b32 s43, s13, 4
    s_add_u32 s43, s43, s44
    s_cmp_eq_u32 s43, {16 + optv("nl", 3)}
    s_cbranch_scc0 L_P1
    s_setprio 1
    L_P1:
    s_cmp_eq_u32 s42, 0
    s_cbranch_scc1 L_NEXT
    s_cmp_eq_u32 s44, 8
    s_cbranch_scc0 L_E0
    s_cmp_eq_u32 s13, 0
    s_cbranch_scc0 L_RL2
    s_barrier
    s_branch L_NEXT
    L_RL2:
    s_cmp_eq_u32 s6, 5
    s_cbranch_scc0 L_POIS
    s_mov_b32 s56, 0x05040100
    s_mov_b32 s57, 0x07060302
    s_mov_b32 exec_hi, 0x3ffff
    s_waitcnt vmcnt(0)
    """)
    a.c("wo re-layout: 8x8 16-bit transposition in registers")
    for c in range(8):
        for r in range(4):
            a(f"v_perm_b32 v{RL+32+4*c+r}, v{RL+4*(2*r+1)+c//2}, v{RL+4*(2*r)+c//2}, {'s56' if c % 2 == 0 else 's57'}")
        a(f"buffer_store_dwordx4 {vr(RL+32+4*c,4)}, v{RA+2+c//4}, s[28:31], s35 offen offset:{(c%4)*16} sc1")
    a("s_mov_b32 exec_hi, -1\ns_branch L_NEXT\nL_POIS:")
    a.c("waves 4,6,7: mark this workgroup's share of the O hand-off buffer as not yet written (rt16 = 8rb + i, slice 8*branch+hg); one KB column each")
    a(f"""
    s_mul_i32 s55, s4, {8*40960}
    s_lshl_b32 s56, s3, 3
    s_add_u32 s56, s56, s5
    s_mul_i32 s56, s56, 2560
    s_add_u32 s55, s55, s56
    s_add_u32 s55, s55, {WS_O}
    s_sub_u32 s56, s6, 5
    s_max_i32 s56, s56, 0
    s_lshl_b32 s56, s56, 10
    s_add_u32 s55, s55, s56
    v_lshlrev_b32 v{T2}, 4, v0
    v_mov_b32 v{PT}, -1
    v_mov_b32 v{PT+1}, -1
    v_mov_b32 v{PT+2}, -1
    v_mov_b32 v{PT+3}, -1
    s_cmp_eq_u32 s6, 7
    s_cselect_b32 exec_hi, 0, -1
    """)
    for i in range(8):
        a(f"buffer_store_dwordx4 {vr(PT,4)}, v{T2}, s[28:31], s55 offen sc1\ns_add_u32 s55, s55, 40960")
    a(f"""
    s_mov_b32 exec_hi, -1
    s_branch L_NEXT
    L_E0:
    s_cmp_eq_u32 s43, {16 + 6}
    s_cbranch_scc0 L_E1
    s_lshl_b32 s56, s2, 2
    s_add_u32 s56, s56, s6
    s_lshl_b32 s56, s56, 2
    s_add_u32 s56, s56, {FL_W - 16}
    v_mov_b32 v{T3}, 0
    s_waitcnt vmcnt(0)
    """)
    flag_store(a, "s56", T2, T3)
    a.c("flags to see: lanes 0-31 the workgroups that re-lay this tile's Wo columns, lanes 32-63 the row group")
    a(f"""
    s_branch L_NEXT
    L_E1:
    s_cmp_eq_u32 s44, 4
    s_cbranch_scc0 L_E2
    v_lshl_add_u32 v{T2}, v{T0}, 3, s5
    v_and_b32 v{T3}, 14, v0
    v_lshlrev_b32 v{T3}, 4, v{T3}
    v_and_or_b32 v{T3}, v0, 1, v{T3}
    s_and_b32 s57, s2, 0x1e
    v_or_b32 v{T3}, s57, v{T3}
    v_cndmask_b32 v{T2}, v{T2}, v{T3}, s[38:39]
    v_lshlrev_b32 v{T2}, 4, v{T2}
    s_mov_b32 s57, {FL_W}
    buffer_load_dwordx4 {vr(PT,4)}, v{T2}, s[28:31], s57 offen sc1
    s_branch L_NEXT
    L_E2:
    s_cmp_eq_u32 s44, 3
    s_cbranch_scc0 L_NEXT
    """)
    poll(a, "L_PW", T2, "s57", 4, PT, sleep=8)
    a.c("prefetch this wave's Wo fragments: [cb=hg][ct][f32 = 5w+st]")
    a(f"""
    s_mul_i32 s56, s5, {5*40960}
    s_mul_i32 s57, s6, 5120
    s_add_u32 s56, s56, s57
    s_add_u32 s56, s56, {WS_WO}
    v_lshlrev_b32 v{T2}, 4, v0
    v_add_u32 v{T3}, 4096, v{T2}
    """)
    for ct in range(5):
        for st in range(5):
            av = T2 if st < 4 else T3
            a(f"buffer_load_dwordx4 {vr(WO+(st*5+ct)*4,4)}, v{av}, s[28:31], s56 offen offset:{(st%4)*1024} sc1")
        if ct < 4: a("s_add_u32 s56, s56, 40960")
    a("L_NEXT:")
    a("s_sub_u32 s44, s44, 1\ns_cmp_lg_u32 s44, 0\ns_cbranch_scc1 L_LOOP")
    stamp(a, 7)
    a(pv(15, 0, 0)); a(pv(15, 0, 1))
    a(f"""
    s_setprio 3
    v_subrev_u32 v{AK1}, {KV_BYTES}, v{AK1}
    v_subrev_u32 v{AK2}, {KV_BYTES}, v{AK2}
    v_subrev_u32 v{AV}, {KV_BYTES}, v{AV}
    s_mov_b32 s46, {f32bits(2.0**-40)}
    s_mov_b32 s47, {f32bits(2.0**40)}
    s_mov_b32 s42, 0
    s_mov_b32 s23, -2
    s_nop 3
    s_waitcnt vmcnt(0) lgkmcnt(0)
    """)
    a.c("run-time safety check of the stand-in max: row sums must lie in [2^-40, 2^40], else redo with the true max")
    a(f"""
    v_cmp_le_f32 s[48:49], s46, v{O[0]+10}
    v_cmp_ge_f32 s[50:51], s47, v{O[0]+10}
    v_cmp_le_f32 s[52:53], s46, v{O[1]+10}
    v_cmp_ge_f32 s[54:55], s47, v{O[1]+10}
    v_rcp_f32 v{M[0]}, v{O[0]+10}
    v_rcp_f32 v{M[1]}, v{O[1]+10}
    s_and_b64 s[48:49], s[48:49], s[50:51]
    s_and_b64 s[52:53], s[52:53], s[54:55]
    s_and_b64 s[48:49], s[48:49], s[52:53]
    s_cmp_eq_u64 s[48:49], -1
    s_cbranch_scc1 L_OK
    s_cmp_eq_u32 s41, 64
    s_cbranch_scc1 L_OK
    s_mov_b32 s41, 64
    s_mov_b32 s45, -1
    s_branch L_RETRY
    L_OK:
    v_mul_f32 v{M[0]}, v{M[0]}, v{G}
    v_mul_f32 v{M[1]}, v{M[1]}, v{G}
    """)
    P = S[0]
    for j in range(2):
        for i in range(10): a(f"v_mul_f32 v{O[j]+i}, v{O[j]+i}, v{M[j]}")
        for i in range(5): a(f"v_cvt_pk_bf16_f32 v{P+5*j+i}, v{O[j]+2*i}, v{O[j]+2*i+1}")
    for i in range(10): a(f"v_min_u32 v{P+i}, s23, v{P+i}")
    a(f"""
    s_and_b32 s21, s5, 1
    s_cbranch_scc1 L_ST1
    buffer_store_dwordx4 {vr(P,4)}, v{OA}, s[28:31], s26 offen sc1
    buffer_store_dwordx4 {vr(P+4,4)}, v{OA}, s[28:31], s26 offen offset:512 sc1
    buffer_store_dwordx2 {vr(P+8,2)}, v{OA}, s[28:31], s26 offen offset:1024 sc1
    s_branch L_ST2
    L_ST1:
    buffer_store_dwordx2 {vr(P,2)}, v{OA}, s[28:31], s26 offen offset:8 sc1
    buffer_store_dwordx4 {vr(P+2,4)}, v{OA}, s[28:31], s26 offen offset:512 sc1
    buffer_store_dwordx4 {vr(P+6,4)}, v{OA}, s[28:31], s26 offen offset:1024 sc1
    L_ST2:
    s_setprio {optv("pe", 0)}
    """)
    OF = 16
    EA = [96, 116, 16, 36]
    a.c("phase E: tile rows 64*(2rb+branch).., columns 80*hg.. ; wave = K eighth")
    a(f"""
    s_lshl_b32 s16, s4, 1
    s_add_u32 s16, s16, s3
    v_mov_b32 v2, s34
    v_mov_b32 v3, 0
    v_lshlrev_b32 v5, 4, v0
    v_add_u32 v6, 4096, v5
    s_mul_i32 s17, s16, {4*40960}
    s_mul_i32 s18, s6, 5120
    s_add_u32 s17, s17, s18
    s_add_u32 s17, s17, {WS_O}
    v_add_u32 v7, s18, v5
    s_mov_b32 s21, s17
    """)
    a.c("row tiles are taken in an order rotated by hg: the CUs that share these rows miss on different lines")
    for i in range(4):
        a(f"s_add_u32 s22, s5, {i}\ns_and_b32 s22, s22, 3\ns_mul_i32 s22, s22, 40960\ns_add_u32 s{17+i}, s21, s22\nv_add_u32 v{8+i}, s22, v7")
    srd(a, 72, 66, 67, 2048 * 1280)
    a.c("out address (waves 0-3): row = 64*(2rb+branch) + 16w + n ; byte = row*1280 + hg*160 + rg*40")
    a(f"""
    s_mul_i32 s22, s6, 40960
    v_add_u32 v12, s22, v5
    s_lshl_b32 s22, s16, 6
    s_lshl_b32 s21, s6, 4
    s_add_u32 s22, s22, s21
    s_mul_i32 s22, s22, 1280
    s_mul_i32 s21, s5, 160
    s_add_u32 s22, s22, s21
    v_and_b32 v13, 15, v0
    v_mul_u32_u24 v13, 1280, v13
    v_lshrrev_b32 v14, 4, v0
    v_mul_u32_u24 v14, 40, v14
    v_add_u32 v13, v13, v14
    s_mov_b32 s60, {SPIN}
    """)
    def oload(rt, sc=" sc1"):
        for st in range(5):
            av = 5 if st < 4 else 6
            a(f"buffer_load_dwordx4 {vr(OF+(rt*5+st)*4,4)}, v{av}, s[28:31], s{17+rt} offen offset:{(st%4)*1024}{sc}")
    def ewrites(rt):
        return [f"ds_write_b128 v{8+rt}, {vr(EA[rt]+4*ct,4)} offset:{ct*1024}" for ct in range(5)]
    def egemm(tag, wr, bar=-1):
        for rt in range(4):
            if rt == bar: a("s_barrier")
            a(f"L_CH{tag}{rt}:\ns_waitcnt vmcnt({15 - 5*rt})")
            a.c("hand-off check: no word may still hold the not-yet-written mark")
            b = OF + rt * 20
            a(f"v_max3_u32 v15, v{b}, v{b+1}, v{b+2}\nv_max3_u32 v4, v{b+3}, v{b+4}, v{b+5}")
            for i in range(6, 20, 4):
                a(f"v_max3_u32 v15, v{b+i}, v{b+i+1}, v15")
                if i + 2 < 20: a(f"v_max3_u32 v4, v{b+i+2}, v{b+i+3}, v4")
            a(f"""
            v_max_u32 v15, v15, v4
            v_cmp_eq_u32 vcc, -1, v15
            s_cmp_eq_u64 vcc, 0
            s_cbranch_scc1 L_GO{tag}{rt}
            s_cmp_eq_u32 s60, 0
            s_cbranch_scc1 L_GO{tag}{rt}
            s_sub_u32 s60, s60, 1
            s_waitcnt vmcnt(0)
            s_sleep {optv("slp", 4)}
            """)
            for r2 in range(rt, 4): oload(r2)
            a(f"s_branch L_CH{tag}{rt}\nL_GO{tag}{rt}:")
            if wr and rt >= 1:
                for x in ewrites(rt - 1): a(x)
            for st in range(5):
                for ct in range(5):
                    d = vr(EA[rt] + 4 * ct, 4)
                    a(f"v_mfma_f32_16x16x32_bf16 {d}, {vr(WO+(st*5+ct)*4,4)}, {vr(OF+(rt*5+st)*4,4)}, {'0' if st == 0 else d}")
    def retries():
        if PROF: a(f"s_waitcnt lgkmcnt(0)\ns_sub_u32 s84, {SPIN}, s60\ns_mul_i32 s84, s84, 100\ns_add_u32 s84, s84, s76")
    a.c("every wave of this workgroup is past its last K/V read: LDS can be reused")
    a("s_barrier")
    if not opt("noack"): a("s_waitcnt vmcnt(0)")
    else: a(f"s_sleep {optv('dly', 4)}")
    stamp(a, 8)
    for rt in range(4): oload(rt)
    if PROF: a("s_waitcnt lgkmcnt(0)")
    a("s_cmp_eq_u32 s13, 0\ns_cbranch_scc1 L_ELEAD")
    egemm("B", True, optv("bar", 2))
    stamp(a, 10); retries()
    a("s_waitcnt lgkmcnt(5)\ns_nop 6")
    for x in ewrites(3): a(x)
    a("s_waitcnt lgkmcnt(0)\ns_barrier\ns_branch L_FIN")
    a("L_ELEAD:\ns_setprio 2")
    egemm("A", True)
    stamp(a, 9); retries()
    a("s_waitcnt lgkmcnt(5)\ns_nop 6")
    for x in ewrites(3): a(x)
    a("s_waitcnt lgkmcnt(0)\ns_barrier")
    R = 56
    def rsum(src0, keep):
        for src in range(4):
            for c in range(5):
                a(f"ds_read_b128 {vr(R+src*20+4*c,4)}, v12 offset:{(src0+src)*5120+c*1024}")
            if src == 1: a("s_waitcnt lgkmcnt(4)")
        a("s_waitcnt lgkmcnt(10)")
        for i in range(20): a(f"v_add_f32 v{R+i}, v{R+i}, v{R+20+i}")
        if keep:
            for i in range(20): a(f"v_add_f32 v{R+i}, v{R+i}, v{16+i}")
        a("s_waitcnt lgkmcnt(0)")
        for i in range(20): a(f"v_add_f32 v{R+40+i}, v{R+40+i}, v{R+60+i}")
        for i in range(20): a(f"v_add_f32 v{16+i}, v{R+i}, v{R+40+i}")
    rsum(0, False)
    a("s_barrier")
    stamp(a, 10)
    if PROF: a("s_waitcnt lgkmcnt(0)")
    rsum(4, True)
    for i in range(10): a(f"v_cvt_pk_bf16_f32 v{40+i}, v{16+2*i}, v{16+2*i+1}")
    a("""
    buffer_store_dwordx4 v[40:43], v13, s[72:75], s22 offen
    buffer_store_dwordx4 v[44:47], v13, s[72:75], s22 offen offset:16
    buffer_store_dwordx2 v[48:49], v13, s[72:75], s22 offen offset:32
    """)
    a.c("workgroup 0 advances the epoch: every workgroup has read it by now")
    a(f"""
    s_or_b32 s21, s2, s6
    s_cmp_eq_u32 s21, 0
    s_cbranch_scc0 L_FIN
    s_mov_b32 s21, {FL_EPOCH}
    s_mov_b64 exec, 1
    buffer_store_dword v2, v3, s[28:31], s21 offen sc1
    """)
    a("L_FIN:")
    if PROF: a("s_waitcnt vmcnt(0)")
    stamp(a, 11)
    a("L_FIN2:")
    stamp_flush(a)
    a("L_END:\ns_endpgm")
    return f""".p2align 6
.amdhsa_kernel {N}
  .amdhsa_next_free_vgpr 256
  .amdhsa_next_free_sgpr 102
  .amdhsa_accum_offset 256
  .amdhsa_group_segment_fixed_size 0
  .amdhsa_kernarg_size 112
  .amdhsa_user_sgpr_count 2
  .amdhsa_user_sgpr_kernarg_segment_ptr 1
  .amdhsa_system_sgpr_workgroup_id_x 1
.end_amdhsa_kernel
"""

def main():
    ref = open(f"cdna_kernels/{NAME}.s.ref").read().split("\n")
    head = [l for l in ref if l.startswith(";") and "@launch" not in l]
    a = Asm()
    kd = gen(a)
    out = "\n".join(head) + "\n"
    out += "; @launch grid=(256,1,1) block=(512,1,1) lds=163840\n"
    out += '.amdgcn_target "amdgcn-amd-amdhsa--gfx950"\n.text\n'
    out += a.text().replace("offen sc1 lds", "offen lds") if opt("plainKV") else a.text()
    out += '.section .rodata,"a"\n' + kd
    path = ARGS[0] if ARGS and not ARGS[0].startswith("--") else f"cdna_kernels/{NAME}.s"
    open(path, "w").write(out)
main()
```

```python
import math, struct, sys

NAME = "gated_mix__grouped_kv_mqa__grouped_kv_mqa__prompt"
ARGS = sys.argv[1:]
def opt(n): return ("--" + n) in ARGS
def optv(n, d):
    for x in ARGS:
        if x.startswith("--" + n + "="): return int(x.split("=")[1])
    return d

KV_BYTES = 163840
WS_KV   = 0
WS_G    = 2 * KV_BYTES
WS_O    = WS_G + 16384
O_BYTES = 128 * 40 * 1024
WS_WO   = WS_O + O_BYTES
WO_BYTES = 8 * 5 * 40 * 1024
WS_FL   = WS_WO + WO_BYTES
FL_EPOCH = WS_FL
FL_KV   = WS_FL + 256
FL_W    = FL_KV + 8192
WS_END  = FL_W + 4096

def f32bits(x):
    return struct.unpack("<I", struct.pack("<f", x))[0]
QSCALE = f32bits((20 ** -0.5) * math.log2(math.e))
LOG2E = f32bits(math.log2(math.e))

class Asm:
    def __init__(self): self.l = []
    def __call__(self, s):
        for line in s.split("\n"):
            line = line.strip()
            if line: self.l.append(("" if line.endswith(":") else "  ") + line)
    def c(self, s): self.l.append("  ; " + s)
    def text(self): return "\n".join(self.l) + "\n"

def vr(b, n=1): return f"v{b}" if n == 1 else f"v[{b}:{b+n-1}]"

def srd(a, d, lo, hi, nbytes):
    a(f"s_mov_b32 s{d}, s{lo}\ns_mov_b32 s{d+1}, s{hi}\ns_mov_b32 s{d+2}, {nbytes}\ns_mov_b32 s{d+3}, 0x00020000")
def srd_sel(a, d, lo0, lo1, nbytes):
    a(f"s_cselect_b32 s{d}, s{lo0}, s{lo1}\ns_cselect_b32 s{d+1}, s{lo0+1}, s{lo1+1}\ns_mov_b32 s{d+2}, {nbytes}\ns_mov_b32 s{d+3}, 0x00020000")

PROF = opt("prof")
PROF_BASE = 16 << 20
NST = 12
def stamp(a, i):
    if PROF: a(f"s_memrealtime s[{76+2*i}:{77+2*i}]")
def stamp_flush(a):
    if not PROF: return
    a("s_waitcnt lgkmcnt(0)\ns_mov_b64 exec, 1")
    a(f"s_lshl_b32 s62, s2, 3\ns_add_u32 s62, s62, s6\ns_lshl_b32 s62, s62, 6\ns_add_u32 s62, s62, {PROF_BASE}")
    a("s_mov_b32 s30, 0x2000000\nv_mov_b32 v0, 0")
    for i in range(NST):
        a(f"v_mov_b32 v2, s{76+2*i}\nbuffer_store_dword v2, v0, s[28:31], s62 offen offset:{4*i}\ns_nop 1")

SPIN = 200000
def poll(a, lbl, addr_v, soff, width, tmp, mask=None, preloaded=True, sleep=1):
    ld = {1: "dword", 2: "dwordx2", 4: "dwordx4"}[width]
    a(f"s_mov_b32 s60, {SPIN}")
    if mask is not None: a(f"s_mov_b64 exec, {mask}")
    if preloaded: a(f"s_branch {lbl}_chk")
    a(f"{lbl}_ld:")
    a(f"buffer_load_{ld} {vr(tmp,width)}, v{addr_v}, s[28:31], {soff} offen sc1")
    a(f"{lbl}_chk:\ns_waitcnt vmcnt(0)")
    a(f"v_cmp_ne_u32 vcc, s34, v{tmp}")
    for i in range(1, width):
        a(f"v_cmp_ne_u32 s[58:59], s34, v{tmp+i}\ns_or_b64 vcc, vcc, s[58:59]")
    a(f"s_sub_u32 s60, s60, 1\ns_cbranch_scc1 {lbl}_ok")
    a(f"s_cmp_eq_u64 vcc, 0\ns_cbranch_scc1 {lbl}_ok\ns_sleep {sleep}\ns_branch {lbl}_ld\n{lbl}_ok:")
    if mask is not None: a("s_mov_b64 exec, -1")

def flag_store(a, soff, vtmp, vzero):
    a(f"v_mov_b32 v{vtmp}, s34\ns_mov_b64 exec, 1\nbuffer_store_dword v{vtmp}, v{vzero}, s[28:31], {soff} offen sc1\ns_mov_b64 exec, -1")

def gen(a):
    N = NAME + "_kernel"
    STG = 26624; XB = 16384
    L_WK = 0; L_WV = 25600; L_G = 51200; RING = 57344
    L_X16 = RING + 3 * STG
    L_QX = 143360
    a(f".globl {N}\n.p2align 8\n.type {N},@function\n{N}:")
    a("s_cmp_ge_u32 s2, 256\ns_cbranch_scc1 L_END")
    a("""
    s_load_dwordx8 s[8:15], s[0:1], 0
    s_load_dwordx8 s[16:23], s[0:1], 48
    s_load_dwordx2 s[24:25], s[0:1], 104
    s_load_dwordx4 s[64:67], s[0:1], 80
    s_load_dwordx2 s[68:69], s[0:1], 32
    """)
    stamp(a, 0)
    a.c("s3 = branch, s4 = rb (128-row block), s5 = hg (head group), s6 = wave, s33 = rb&3")
    a(f"""
    v_lshrrev_b32 v1, 6, v0
    v_and_b32 v0, 63, v0
    s_and_b32 s3, s2, 1
    s_xor_b32 s3, s3, {1 if opt("swapbr") else 0}
    v_readfirstlane_b32 s6, v1
    s_lshr_b32 s4, s2, 1
    s_and_b32 s4, s4, 3
    s_lshl_b32 s4, s4, 2
    s_lshr_b32 s33, s2, 3
    s_and_b32 s33, s33, 3
    s_add_u32 s4, s4, s33
    s_lshr_b32 s5, s2, 5
    v_lshlrev_b32 v3, 4, v0
    v_lshrrev_b32 v5, 3, v0
    v_and_b32 v6, 7, v0
    v_xor_b32 v6, v6, v5
    v_lshlrev_b32 v6, 4, v6
    v_mul_u32_u24 v2, 1280, v5
    v_add_u32 v2, v2, v6
    v_mov_b32 v4, 0
    s_lshl_b32 s48, s4, 7
    s_lshl_b32 s50, s6, 10
    s_cmp_ge_u32 s6, 4
    s_cbranch_scc1 L_LOADER
    """)
    SLOT = {"A": RING, "B": RING + STG, "C": RING + 2 * STG, "D": RING + 3 * STG, "F": 30720}
    SMAP = ["A", "B", "C", "D", "F", "A", "B", "C", "F", "A"]
    NCH0 = 25
    a(f"""
    s_lshl_b32 s49, s5, 4
    s_add_u32 s49, s48, s49
    s_mul_i32 s49, s49, 1280
    s_lshr_b32 s51, s6, 1
    s_lshl_b32 s51, s51, 7
    s_and_b32 s52, s6, 1
    s_mul_i32 s53, s52, {8*1280}
    s_add_u32 s51, s51, s53
    s_add_u32 s51, s51, s49
    s_lshr_b32 s54, s2, 3
    s_lshl_b32 s54, s54, 10
    s_waitcnt lgkmcnt(0)
    """)
    srd(a, 36, 8, 9, 2048 * 1280)
    a.c("lines no other CU of this XCD is asking for yet: x16 pieces w+4j, one KB of wk / wv (L2 warm-up), gate")
    for j in range(5):
        a(f"s_add_u32 m0, s50, {L_X16 + 4096*j}\ns_add_u32 s53, s51, {256*j}\nbuffer_load_dwordx4 v2, s[36:39], s53 offen lds")
        if j == 0:
            srd(a, 28, 24, 25, WS_END)
            a(f"""
            s_cmp_ge_u32 s6, 2
            s_cbranch_scc1 L_LA2
            s_cmp_eq_u32 s6, 0
            s_cselect_b32 s12, s12, s14
            s_cselect_b32 s13, s13, s15
            s_cselect_b32 s18, s18, s20
            s_cselect_b32 s19, s19, s21
            s_cmp_eq_u32 s3, 0
            """)
            srd_sel(a, 40, 12, 18, 25600)
            a(f"""
            buffer_load_dwordx4 v[248:251], v3, s[40:43], s54 offen
            s_branch L_LA3
            L_LA2:
            """)
            srd(a, 40, 64, 65, 1280)
            a(f"""
            s_lshl_b32 s53, s52, 10
            s_add_u32 m0, s53, {L_G}
            s_nop 0
            buffer_load_dwordx4 v3, s[40:43], s53 offen lds
            L_LA3:
            """)
    a(f"s_mov_b32 s53, {FL_EPOCH}\nbuffer_load_dword v9, v4, s[28:31], s53 offen sc1")
    if opt("cpf"):
        a.c("bring this kernel's own code into L2: 1 KB per workgroup of the XCD round (wave 2)")
        a(f"""
        s_cmp_eq_u32 s6, 2
        s_cbranch_scc0 L_NCPF
        s_getpc_b64 s[56:57]
        L_PCREF:
        s_sub_u32 s56, s56, L_PCREF-{N}
        s_subb_u32 s57, s57, 0
        v_add_u32 v7, s54, v3
        v_min_u32 v7, L_END-{N}-16, v7
        global_load_dwordx4 v[248:251], v7, s[56:57]
        L_NCPF:
        """)
    a.c("KV fragment addresses (wave: 0 K lo, 1 K hi + gate, 2 V lo, 3 V hi)")
    a(f"""
    v_and_b32 v5, 15, v0
    v_lshrrev_b32 v6, 4, v0
    v_and_b32 v7, 7, v0
    v_xor_b32 v7, v7, v6
    v_lshlrev_b32 v7, 4, v7
    v_lshl_add_u32 v10, v5, 7, v7
    v_add_u32 v14, {L_X16}, v10
    v_xor_b32 v15, 64, v14
    v_bfe_u32 v7, v0, 2, 2
    v_lshl_add_u32 v7, v6, 3, v7
    v_mul_u32_u24 v7, 40, v7
    v_and_b32 v8, 3, v0
    v_lshlrev_b32 v8, 3, v8
    s_cmp_eq_u32 s52, 0
    s_cselect_b32 s56, -1, 0
    s_cselect_b32 s57, 0, 32
    v_and_b32 v8, s56, v8
    s_cmp_lt_u32 s6, 2
    s_cselect_b32 s56, 0, {L_WV}
    s_add_u32 s57, s57, s56
    v_add3_u32 v18, v7, v8, s57
    v_lshlrev_b32 v19, 4, v6
    v_add_u32 v19, {L_G}, v19
    """)
    for i in range(8): a(f"v_mov_b32 v{20+i}, 0")
    ACC = 112; FR = 32; KVF = 152
    BASES = [SLOT["F"], SLOT["B"], SLOT["D"]]
    AXR = [232, 234, 236]; AWR = [238, 239, 240]
    def base_of(slot):
        o = SLOT[slot]
        i = max(k for k in range(3) if BASES[k] <= o)
        return i, o - BASES[i]
    a.c("Q-projection addresses and accumulators (set up while the loads fly)")
    a(f"""
    s_lshl_b32 s7, s6, 12
    v_add_u32 v11, s7, v10
    v_lshrrev_b32 v7, 1, v6
    v_lshlrev_b32 v7, 4, v7
    v_and_b32 v8, 1, v6
    v_lshl_add_u32 v7, v8, 2, v7
    v_bfe_u32 v8, v0, 2, 2
    v_add_u32 v7, v7, v8
    v_mul_u32_u24 v7, 160, v7
    v_and_b32 v8, 3, v0
    v_mul_u32_u24 v8, 40, v8
    v_add_u32 v7, v7, v8
    """)
    for k in range(3):
        a(f"v_add_u32 v{AXR[k]}, {BASES[k]}, v11\nv_xor_b32 v{AXR[k]+1}, 64, v{AXR[k]}\nv_add_u32 v{AWR[k]}, {BASES[k] + XB}, v7")
    for i in range(40): a(f"v_mov_b32 v{ACC+i}, 0")
    for i in (218, 219, 228, 229, 230, 231): a(f"v_mov_b32 v{i}, 0")
    a.c("K/V/gate store addresses: v12 (+ s58), exec mask s[60:61]; gate: v13 (+ s62), s63 = -+log2e")
    a(f"""
    s_lshl_b32 s58, s4, 2
    s_lshr_b32 s59, s5, 1
    s_add_u32 s58, s58, s59
    s_mul_i32 s58, s58, 2560
    s_mul_i32 s59, s3, {KV_BYTES}
    s_add_u32 s58, s58, s59
    s_and_b32 s59, s5, 1
    s_lshl_b32 s62, s3, 11
    s_add_u32 s62, s62, s48
    s_lshl_b32 s63, s5, 4
    s_add_u32 s62, s62, s63
    s_lshl_b32 s62, s62, 2
    s_add_u32 s62, s62, {WS_G}
    v_lshlrev_b32 v13, 2, v5
    s_lshl_b32 s63, s3, 31
    s_xor_b32 s63, s63, {LOG2E | 0x80000000}
    v_lshrrev_b32 v7, 1, v6
    v_and_b32 v8, 1, v6
    s_mov_b32 s27, {QSCALE}
    s_cmp_eq_u32 s6, 1
    s_cbranch_scc1 L_AD1
    s_cmp_ge_u32 s6, 2
    s_cbranch_scc1 L_AD2
    s_lshl_b32 s59, s59, 8
    s_add_u32 s58, s58, s59
    v_lshlrev_b32 v7, 9, v7
    v_lshl_add_u32 v7, v5, 4, v7
    v_lshl_add_u32 v12, v8, 3, v7
    s_mov_b64 s[60:61], -1
    s_branch L_AD3
    L_AD1:
    s_lshl_b32 s59, s59, 7
    s_add_u32 s58, s58, s59
    s_add_u32 s58, s58, 1024
    v_lshlrev_b32 v12, 3, v5
    s_mov_b64 s[60:61], 0xffff
    s_branch L_AD3
    L_AD2:
    s_mul_i32 s59, s59, 640
    s_add_u32 s58, s58, s59
    s_lshl_b32 s59, s52, 8
    s_add_u32 s58, s58, s59
    s_add_u32 s58, s58, 1280
    v_mul_u32_u24 v7, 320, v7
    v_lshl_add_u32 v7, v5, 4, v7
    v_lshl_add_u32 v12, v8, 3, v7
    s_cmp_eq_u32 s52, 0
    s_cselect_b32 s60, -1, 0x000f000f
    s_mov_b32 s61, s60
    s_mov_b32 s27, 1.0
    L_AD3:
    """)
    def kv_loop(kind, pre):
        per = 4 if kind == "G" else 3
        nb = 3 if kind == "G" else 5
        ring = nb + 1
        def rd(k):
            f = KVF + 12 * (k % ring)
            r = [f"ds_read_b128 {vr(f,4)}, v{14 + (k & 1)} offset:{(k >> 1) * 2048}"]
            for hf in range(2):
                r.append(f"ds_read_b64_tr_b16 {vr(f+4+2*hf,2)}, v18 offset:{(32*k + 4*hf)*40}")
            if kind == "G": r.append(f"ds_read_b128 {vr(f+8,4)}, v19 offset:{64*k}")
            return r
        def mm(k):
            f = KVF + 12 * (k % ring)
            if kind == "V": r = [f"v_mfma_f32_16x16x32_bf16 v[20:23], {vr(f,4)}, {vr(f+4,4)}, v[20:23]"]
            else: r = [f"v_mfma_f32_16x16x32_bf16 v[20:23], {vr(f+4,4)}, {vr(f,4)}, v[20:23]"]
            if kind == "G": r.append(f"v_mfma_f32_16x16x32_bf16 v[24:27], {vr(f+8,4)}, {vr(f,4)}, v[24:27]")
            return r
        for k in range(nb):
            for x in rd(k): a(x)
        for k in range(20):
            ahead = min(k + nb, 20) - (k + 1)
            a(f"s_waitcnt lgkmcnt({ahead * per})")
            for x in mm(k): a(x)
            if k + nb < 20:
                for x in rd(k + nb): a(x)
    def reads(s, ks):
        bi, base = base_of(SMAP[s])
        ax = AXR[bi] + ks; aw = AWR[bi]; f = FR + 28 * ks
        r = [f"ds_read_b128 {vr(f+4*rt,4)}, v{ax} offset:{base + rt*2048}" for rt in range(2)]
        for ct in range(5):
            for hf in range(2):
                r.append(f"ds_read_b64_tr_b16 {vr(f+8+4*ct+2*hf,2)}, v{aw} offset:{base + (32*ks + 8*hf)*160 + 8*ct}")
        return r
    def mf(ks, ct):
        f = FR + 28 * ks
        return [f"v_mfma_f32_16x16x32_bf16 {vr(ACC+(rt*5+ct)*4,4)}, {vr(f+8+4*ct,4)}, {vr(f+4*rt,4)}, {vr(ACC+(rt*5+ct)*4,4)}" for rt in range(2)]
    def stage(s):
        r0 = reads(s, 0); r1 = reads(s, 1)
        if s == 0:
            for x in r0: a(x)
        else:
            k = 0
            for ct in range(5):
                n = [4, 3, 3, 2, 0][ct]
                for x in r0[k:k+n]: a(x)
                k += n
                for x in mf(1, ct): a(x)
        issued1 = 0
        plan = [4, 4, 3, 1, 0]
        for ct in range(5):
            a(f"s_waitcnt lgkmcnt({(12 - (4 + 2*ct)) + issued1})")
            for x in mf(0, ct): a(x)
            for x in r1[issued1:issued1 + plan[ct]]: a(x)
            issued1 += plan[ct]
        a("s_waitcnt lgkmcnt(0)")
    PUB = optv("pub", 4)
    nb_ = [0]
    def cbar():
        i = nb_[0]; nb_[0] += 1
        if i == PUB: a("s_waitcnt vmcnt(0)")
        a("s_barrier")
        if opt("probeB"):
            stamp(a, 1 + i if i < 10 else 11); a("s_waitcnt lgkmcnt(0)")
            if i == 10: a("s_branch L_FIN2")
        if i == PUB:
            a.c("publish this workgroup's K/V slice (wave 0, one lane)")
            a(f"""
            s_cmp_eq_u32 s6, 0
            s_cbranch_scc0 L_NOPUB
            s_bfe_u32 s56, s2, 0x50001
            s_lshl_b32 s56, s56, 7
            s_lshl_b32 s57, s3, 12
            s_add_u32 s56, s56, s57
            s_lshr_b32 s57, s2, 6
            s_lshl_b32 s57, s57, 2
            s_add_u32 s56, s56, s57
            s_add_u32 s56, s56, {FL_KV}
            """)
            flag_store(a, "s56", 7, 4)
            a("L_NOPUB:")
    a("s_waitcnt vmcnt(0)")
    cbar()
    if not opt("probeB"):
        stamp(a, 1)
        if PROF: a("s_waitcnt lgkmcnt(0)")
    a("v_readfirstlane_b32 s34, v9")
    a("s_cmp_eq_u32 s6, 1\ns_cbranch_scc1 L_KV_G\ns_cmp_ge_u32 s6, 2\ns_cbranch_scc1 L_KV_V")
    kv_loop("K", None)
    a("s_branch L_KV_E\nL_KV_G:")
    kv_loop("G", None)
    a("""
    s_nop 7
    v_mul_f32 v24, s63, v24
    v_exp_f32 v24, v24
    s_nop 0
    v_add_f32 v24, 1.0, v24
    v_rcp_f32 v24, v24
    s_mov_b64 exec, 0xffff
    buffer_store_dword v24, v13, s[28:31], s62 offen sc1
    s_mov_b64 exec, -1
    s_branch L_KV_E
    L_KV_V:
    """)
    kv_loop("V", None)
    a("L_KV_E:")
    a.c("tag = f(epoch); the softmax scale rides on K")
    a("""
    s_mul_i32 s34, s34, 0x9e3779b1
    s_add_u32 s34, s34, 0x7f4a7c15
    s_nop 5
    v_mul_f32 v20, s27, v20
    v_mul_f32 v21, s27, v21
    v_mul_f32 v22, s27, v22
    v_mul_f32 v23, s27, v23
    v_cvt_pk_bf16_f32 v28, v20, v21
    v_cvt_pk_bf16_f32 v29, v22, v23
    s_mov_b64 exec, s[60:61]
    buffer_store_dwordx2 v[28:29], v12, s[28:31], s58 offen sc1
    s_mov_b64 exec, -1
    """)
    if not opt("probeB"):
        stamp(a, 2)
        if PROF: a("s_waitcnt lgkmcnt(0)")
    for s in range(10):
        cbar(); stage(s)
    for rt in range(2):
        for ct in range(5): a(mf(1, ct)[rt])
    stamp(a, 3)
    a.c("Q epilogue: pack, write fragments to LDS [w][head rg][1280]")
    a(f"""
    s_mul_i32 s7, s6, 5120
    s_add_u32 s7, s7, {L_QX}
    v_mul_u32_u24 v7, 1280, v6
    v_add_u32 v7, s7, v7
    v_lshl_add_u32 v8, v5, 3, v7
    v_lshl_add_u32 v7, v5, 4, v7
    """)
    for rt in range(2):
        P = FR + 12 * rt
        for i in range(10): a(f"v_cvt_pk_bf16_f32 v{P+i}, v{ACC+rt*20+2*i}, v{ACC+rt*20+2*i+1}")
        a(f"ds_write_b128 v7, {vr(P,4)} offset:{rt*256}")
        a(f"ds_write_b128 v7, {vr(P+4,4)} offset:{512+rt*256}")
        a(f"ds_write_b64 v8, {vr(P+8,2)} offset:{1024+rt*128}")
    a("s_branch L_ATT")

    a("L_LOADER:")
    a.c("Wq DMA source offsets for 3 instrs: q=64i+l, p=q/10, c=q%10, src row = swap bits 2,3 of p")
    for i in range(3):
        a(f"""
        v_add_u32 v5, {64*i}, v0
        v_mul_u32_u24 v6, 6554, v5
        v_lshrrev_b32 v6, 16, v6
        v_mul_u32_u24 v7, 10, v6
        v_sub_u32 v7, v5, v7
        v_and_b32 v5, 0x13, v6
        v_and_b32 v8, 4, v6
        v_lshl_or_b32 v5, v8, 1, v5
        v_and_b32 v8, 8, v6
        v_lshrrev_b32 v8, 1, v8
        v_or_b32 v5, v5, v8
        v_mul_u32_u24 v5, 1280, v5
        v_lshl_add_u32 v{10+i}, v7, 4, v5
        """)
    a.c("s33 = k-chunk rotation (0,3,5,8): workgroups sharing Wq columns start at different k")
    a(f"""
    s_sub_u32 s7, s6, 4
    s_lshl_b32 s49, s7, 5
    s_add_u32 s48, s48, s49
    s_mul_i32 s48, s48, 1280
    s_mul_i32 s49, s5, 160
    s_mul_i32 s54, s7, {16*1280}
    s_add_u32 s49, s49, s54
    s_lshl_b32 s54, s7, 12
    s_mul_i32 s51, s7, 2560
    s_add_u32 s51, s51, {XB}
    s_mul_i32 s33, s33, 5
    s_add_u32 s33, s33, 1
    s_lshr_b32 s33, s33, 1
    s_lshl_b32 s50, s7, 10
    s_waitcnt lgkmcnt(0)
    s_cmp_eq_u32 s3, 0
    """)
    srd_sel(a, 72, 10, 16, 640 * 1280)
    srd_sel(a, 40, 12, 18, 25600)
    srd_sel(a, 44, 14, 20, 25600)
    Q_ = []
    def kchunk(s):
        a(f"s_add_u32 s55, s33, {s}\ns_cmp_ge_u32 s55, 10\ns_cselect_b32 s56, 10, 0\ns_sub_u32 s55, s55, s56")
    def issue_x(s):
        kchunk(s)
        a("s_lshl_b32 s55, s55, 7\ns_add_u32 s55, s55, s48")
        for i in range(4):
            a(f"s_add_u32 m0, s54, {SLOT[SMAP[s]] + 1024*i}\ns_add_u32 s56, s55, {i*8*1280}")
            a("buffer_load_dwordx4 v2, s[36:39], s56 offen lds")
        Q_.append((f"X{s}", 4))
    def issue_w(s):
        kchunk(s)
        a(f"s_mul_i32 s55, s55, {64*1280}\ns_add_u32 s55, s55, s49")
        for i in range(3):
            a(f"s_add_u32 m0, s51, {SLOT[SMAP[s]] + 1024*i}")
            a("s_mov_b32 exec_hi, 0" if i == 2 else "s_nop 0")
            a(f"buffer_load_dwordx4 v{10+i}, s[72:75], s55 offen lds")
        a("s_mov_b32 exec_hi, -1")
        Q_.append((f"W{s}", 3))
    def issue_st(s): issue_w(s); issue_x(s)
    def issue_small():
        a.c("wk / wv: KB lw+4j; the 7th round only exists for lw = 0 (others take a zero-length detour through the same count)")
        for j in range(6):
            a(f"s_add_u32 m0, s50, {L_WK + 4096*j}\ns_add_u32 s53, s50, {4096*j}\nbuffer_load_dwordx4 v3, s[40:43], s53 offen lds")
            a(f"s_add_u32 m0, s50, {L_WV + 4096*j}\ns_nop 0\nbuffer_load_dwordx4 v3, s[44:47], s53 offen lds")
        a.c("last KB: 256 B per loader wave")
        a(f"""
        s_lshl_b32 s53, s7, 8
        s_add_u32 s53, s53, {24*1024}
        s_mov_b64 exec, 0xffff
        s_add_u32 m0, s53, {L_WK}
        s_nop 0
        buffer_load_dwordx4 v3, s[40:43], s53 offen lds
        s_add_u32 m0, s53, {L_WV}
        s_nop 0
        buffer_load_dwordx4 v3, s[44:47], s53 offen lds
        s_mov_b64 exec, -1
        """)
        Q_.append(("SM", 14))
    def younger(name):
        i = [n for n, _ in Q_].index(name)
        return sum(c for _, c in Q_[i+1:])
    lb_ = [0]
    def lbar(name, extra5=0):
        i = lb_[0]; lb_[0] += 1
        n = younger(name)
        if opt("probeB"): stamp(a, 1 + i if i < 10 else 11)
        if extra5:
            a(f"s_cmp_eq_u32 s6, 5\ns_cbranch_scc0 L_LW{i}\ns_waitcnt vmcnt({n+extra5})\ns_branch L_LX{i}\nL_LW{i}:\ns_waitcnt vmcnt({n})\nL_LX{i}:")
        else:
            a(f"s_waitcnt vmcnt({n})")
        a("s_barrier")
    issue_w(0)
    srd(a, 36, 8, 9, 2048 * 1280)
    srd(a, 28, 24, 25, WS_END)
    issue_w(1); issue_w(2)
    a(f"s_mov_b32 s53, {FL_EPOCH}\nbuffer_load_dword v9, v4, s[28:31], s53 offen sc1")
    RL = 152; RA = RL + 64; RS = RA + 12
    a.c("wo re-layout job (wave 5): cb = wg&7, G = 5*(wg>>3) + l/10, octet = l%10 (50 lanes); addresses now, data later")
    for i in [2, 3] + list(range(12, 20)): a(f"v_mov_b32 v{RA+i}, 0")
    a("s_cmp_eq_u32 s6, 5\ns_cbranch_scc0 L_NORL")
    t = RL + 32
    U = RA + 11
    a(f"""
    s_lshr_b32 s56, s2, 3
    s_mul_i32 s56, s56, 5
    s_and_b32 s57, s2, 7
    s_mul_i32 s32, s57, 160
    s_lshr_b32 s35, s2, 7
    s_mul_i32 s35, s35, {40*1280}
    s_add_u32 s32, s32, s35
    v_mul_u32_u24 v{U}, 6554, v0
    v_lshrrev_b32 v{U}, 16, v{U}
    v_mul_u32_u24 v{RA}, 10, v{U}
    v_sub_u32 v{RA}, v0, v{RA}
    v_add_u32 v{t}, s56, v{U}
    v_and_b32 v{RA+1}, 1, v{t}
    v_lshrrev_b32 v{RA+2}, 1, v{t}
    v_lshlrev_b32 v{RA+2}, 3, v{RA+2}
    """)
    for e in range(8):
        a(f"""
        v_add_u32 v{t}, {e}, v{RA+2}
        v_mul_u32_u24 v{t+1}, 6554, v{t}
        v_lshrrev_b32 v{t+1}, 16, v{t+1}
        v_mul_u32_u24 v{t+2}, 10, v{t+1}
        v_sub_u32 v{t+2}, v{t}, v{t+2}
        v_and_b32 v{t}, 14, v{t+1}
        v_and_b32 v{t+1}, 1, v{t+1}
        v_lshl_add_u32 v{t+1}, v{t}, 1, v{t+1}
        v_mul_u32_u24 v{t+1}, 20, v{t+1}
        v_and_b32 v{t}, 3, v{t+2}
        v_add_u32 v{t+1}, v{t+1}, v{t}
        v_lshrrev_b32 v{t}, 2, v{t+2}
        v_lshl_add_u32 v{t+1}, v{t}, 3, v{t+1}
        v_lshrrev_b32 v{t}, 3, v{t+2}
        v_sub_u32 v{t}, 2, v{t}
        v_lshlrev_b32 v{t}, v{t}, v{RA+1}
        v_add_u32 v{t+1}, v{t+1}, v{t}
        v_mul_u32_u24 v{t+1}, 1280, v{t+1}
        v_lshl_add_u32 v{RS+e}, v{RA}, 4, v{t+1}
        """)
    for z in range(2):
        a(f"""
        v_lshlrev_b32 v{t+2}, 1, v{RA}
        v_add_u32 v{t+2}, {z}, v{t+2}
        v_mul_u32_u24 v{t}, 52, v{t+2}
        v_lshrrev_b32 v{t}, 8, v{t}
        v_mul_u32_u24 v{t+3}, 5, v{t}
        v_sub_u32 v{t+3}, v{t+2}, v{t+3}
        v_mul_u32_u24 v{t+3}, 40960, v{t+3}
        v_lshl_add_u32 v{t+3}, v{U}, 8, v{t+3}
        v_lshl_add_u32 v{RA+2+z}, v{t}, 6, v{t+3}
        """)
    a(f"""
    s_mul_i32 s35, s57, {5*40960}
    s_lshl_b32 s56, s56, 8
    s_add_u32 s35, s35, s56
    s_add_u32 s35, s35, {WS_WO}
    L_NORL:
    v_and_b32 v13, 31, v0
    v_lshlrev_b32 v13, 7, v13
    s_lshl_b32 s57, s3, 12
    s_add_u32 s57, s57, {FL_KV}
    s_mul_i32 s18, s3, {KV_BYTES}
    """)
    issue_small(); issue_x(0)
    if not opt("probeB"): stamp(a, 1)
    lbar("SM")
    a("v_readfirstlane_b32 s34, v9")
    issue_x(1); issue_x(2)
    a("s_mul_i32 s34, s34, 0x9e3779b1\ns_add_u32 s34, s34, 0x7f4a7c15")
    if not opt("probeB"): stamp(a, 2)
    lbar("X0"); issue_st(3)
    if opt("dbl"): issue_st(4)
    lbar("X1")
    if not opt("dbl"): issue_st(4)
    if opt("dbl"):
        issue_st(5); lbar("X2"); issue_st(6); lbar("X3"); issue_st(7); lbar("X4"); lbar("X5"); issue_st(8); lbar("X6"); issue_st(9); lbar("X7")
    else:
        lbar("X2"); issue_st(5); lbar("X3"); issue_st(6); lbar("X4"); issue_st(7); lbar("X5"); issue_st(8); lbar("X6"); issue_st(9); lbar("X7")
    a.c("wave 4: one look at the K/V flags; if complete, fetch the first tiles of the image early")
    def chunk0():
        for r in range(NCH0):
            a(f"s_mov_b32 m0, {1024*r}\ns_add_u32 s20, s18, {1024*r}")
            a("buffer_load_dwordx4 v3, s[28:31], s20 offen sc1 lds")
    a("""
    s_cmp_eq_u32 s6, 4
    s_cbranch_scc0 L_N4
    s_mov_b32 exec_hi, 0
    buffer_load_dwordx4 v[16:19], v13, s[28:31], s57 offen sc1
    s_waitcnt vmcnt(1)
    s_barrier
    s_waitcnt vmcnt(0)
    v_cmp_ne_u32 vcc, s34, v16
    v_cmp_ne_u32 s[58:59], s34, v17
    s_or_b64 vcc, vcc, s[58:59]
    v_cmp_ne_u32 s[58:59], s34, v18
    s_or_b64 vcc, vcc, s[58:59]
    v_cmp_ne_u32 s[58:59], s34, v19
    s_or_b64 vcc, vcc, s[58:59]
    s_mov_b32 exec_hi, -1
    s_cmp_eq_u64 vcc, 0
    s_cbranch_scc1 L_EARLY
    s_barrier
    s_mov_b32 s20, -1
    s_mov_b32 s21, 0
    """)
    if opt("probeB"): a("s_branch L_FIN")
    stamp(a, 3)
    poll(a, "L_PKV", 13, "s57", 4, 16, mask="s[20:21]", preloaded=False)
    stamp(a, 4)
    chunk0()
    a("s_branch L_ATT\nL_EARLY:")
    for r in range(8):
        a(f"s_mov_b32 m0, {1024*r}\ns_add_u32 s20, s18, {1024*r}")
        a("buffer_load_dwordx4 v3, s[28:31], s20 offen sc1 lds")
    a("s_barrier")
    if opt("probeB"): a("s_branch L_FIN")
    stamp(a, 3); stamp(a, 4)
    for r in range(8, NCH0):
        a(f"s_mov_b32 m0, {1024*r}\ns_add_u32 s20, s18, {1024*r}")
        a("buffer_load_dwordx4 v3, s[28:31], s20 offen sc1 lds")
    a("s_branch L_ATT\nL_N4:")
    lbar("X8")
    lbar("X9")
    if opt("probeB"): a("s_branch L_FIN2")
    stamp(a, 3)

    Q1 = [4, 12]; Q2 = [8, 16]
    AK1, AK2, AV, IDX, G = 1, 2, 3, 10, 11
    T0, T1, T2, T3 = 18, 19, 20, 21
    M = [22, 23]
    KF1 = [24, 32]; KF2 = [28, 36]
    VF = [40, 48]
    O = [56, 72]
    S = [88, 104, 120, 136]
    WO = 152; PT = 252; OA = 30
    a("L_ATT:")
    a.c("s12 = rt32 ; s13 = hp ; s14 = bh0")
    a(f"""
    s_and_b32 s15, s6, 3
    s_lshl_b32 s13, s4, 2
    s_add_u32 s12, s15, s13
    s_lshr_b32 s13, s6, 2
    s_lshl_b32 s14, s3, 5
    s_lshl_b32 s16, s5, 2
    s_add_u32 s14, s14, s16
    s_lshl_b32 s16, s13, 1
    s_add_u32 s14, s14, s16
    s_mul_i32 s15, s15, 5120
    s_mul_i32 s16, s13, 2560
    s_add_u32 s15, s15, s16
    s_add_u32 s15, s15, {L_QX}
    v_lshlrev_b32 v{AK1}, 4, v0
    v_and_b32 v{T0}, 31, v0
    v_lshrrev_b32 v{T1}, 5, v0
    v_lshlrev_b32 v{AK2}, 3, v{T0}
    v_lshl_add_u32 v{AK2}, v{T1}, 2, v{AK2}
    v_add_u32 v{T2}, s15, v{AK1}
    v_add_u32 v{T3}, s15, v{AK2}
    s_waitcnt lgkmcnt(0)
    s_barrier
    ds_read_b128 {vr(Q1[0],4)}, v{T2}
    ds_read_b32 v{Q2[0]}, v{T3} offset:1024
    ds_read_b128 {vr(Q1[1],4)}, v{T2} offset:1280
    ds_read_b32 v{Q2[1]}, v{T3} offset:2304
    v_cmp_lt_u32 vcc, 19, v{T0}
    v_subrev_u32 v{T2}, 2, v{T0}
    v_mul_u32_u24 v{AV}, 20, v{T1}
    v_cndmask_b32 v{T2}, v{T0}, v{T2}, vcc
    v_add_lshl_u32 v{AV}, v{AV}, v{T2}, 4
    v_mov_b32 v{IDX}, 0xdddddddd
    s_mov_b32 s36, 0x0033ffff
    s_mov_b32 s37, 0x0033ffff
    s_mov_b32 s38, 0
    s_mov_b32 s39, -1
    s_mov_b32 s40, 0xffff0000
    s_mov_b32 s41, 1
    s_mov_b32 s42, 1
    s_mov_b32 s45, 0xffff
    """)
    for b in range(2):
        a(f"v_mov_b32 v{KF2[b]+1}, 0x3f803f80")
        for i in range(8): a(f"v_mov_b32 v{VF[b]+i}, 0")
    a("s_mov_b32 exec_lo, 0x00440000\ns_mov_b32 exec_hi, 0x00440000")
    for b in range(2):
        for i in range(8): a(f"v_mov_b32 v{VF[b]+i}, 0x3f803f80")
    a("s_mov_b64 exec, -1")
    a("s_cmp_eq_u32 s6, 4\ns_cbranch_scc0 L_BQ2\ns_waitcnt vmcnt(0)\nL_BQ2:\ns_waitcnt lgkmcnt(0)\ns_barrier")
    stamp(a, 5)
    a.c("gate factor of this lane's row")
    a(f"""
    s_lshl_b32 s17, s3, 6
    s_add_u32 s17, s17, s12
    s_lshl_b32 s17, s17, 7
    s_add_u32 s17, s17, {WS_G}
    v_lshlrev_b32 v{T2}, 2, v{T0}
    buffer_load_dword v{G}, v{T2}, s[28:31], s17 offen sc1
    """)
    a.c("O address (v30 + s26): rt16 = 2*rt32 + (row>>4) ; G = 2f + h ; f0 = floor(20*block/8), block = 16hp + 8branch + hg")
    a(f"""
    s_mul_i32 s26, s12, 81920
    s_lshl_b32 s27, s13, 1
    s_add_u32 s27, s27, s3
    s_lshl_b32 s27, s27, 3
    s_add_u32 s27, s27, s5
    s_mul_i32 s27, s27, 5
    s_lshr_b32 s27, s27, 1
    s_lshl_b32 s27, s27, 9
    s_add_u32 s26, s26, s27
    s_add_u32 s26, s26, {WS_O}
    v_lshrrev_b32 v{OA}, 4, v{T0}
    v_mul_u32_u24 v{OA}, 40960, v{OA}
    v_lshl_add_u32 v{OA}, v{T1}, 8, v{OA}
    v_and_b32 v{T3}, 15, v0
    v_lshl_add_u32 v{OA}, v{T3}, 4, v{OA}
    s_cmp_eq_u32 s13, 0
    s_cbranch_scc1 L_RETRY
    """)
    a.c("waves 4-7: rest of the K/V image")
    a(f"s_add_u32 s19, s50, {1024*(NCH0-1)}\ns_add_u32 s18, s18, s19")
    for r in range(34):
        if r == 0: a("s_cmp_eq_u32 s6, 4\ns_cbranch_scc1 L_SK0")
        a(f"s_add_u32 m0, s19, {4096*r}\ns_add_u32 s20, s18, {4096*r}")
        a(f"buffer_load_dwordx4 v{AK1}, s[28:31], s20 offen sc1 lds")
        if r == 0: a("L_SK0:")
    a("s_cmp_eq_u32 s6, 5\ns_cbranch_scc0 L_RETRY\ns_bitcmp0_b32 s2, 6")
    srd_sel(a, 72, 68, 22, 640 * 1280)
    a("s_mov_b32 exec_hi, 0x3ffff")
    for e in range(8):
        a(f"buffer_load_dwordx4 {vr(RL+4*e,4)}, v{RS+e}, s[72:75], s32 offen")
    a("s_mov_b32 exec_hi, -1")
    a("L_RETRY:")
    a(f"v_mov_b32 v{T2}, v{AK1}\nv_mov_b32 v{T3}, v{AK2}\ns_mov_b32 s43, s41")
    for j in range(2):
        a(f"v_mov_b32 v{Q2[j]+1}, 0\nv_mov_b32 v{M[j]}, 0xff800000")
    a("L_MAXL:")
    a(f"ds_read_b128 {vr(KF1[0],4)}, v{T2}\nds_read_b32 v{KF2[0]}, v{T3} offset:1024")
    a(f"v_add_u32 v{T2}, 2560, v{T2}\nv_add_u32 v{T3}, 2560, v{T3}")
    for i in range(16): a(f"v_mov_b32 v{S[3]+i}, 0")
    a("s_waitcnt lgkmcnt(0)")
    for j in range(2):
        a(f"v_mfma_f32_32x32x16_bf16 {vr(S[j],16)}, {vr(KF1[0],4)}, {vr(Q1[j],4)}, 0")
        for i in range(8): a(f"v_mov_b32 v{O[j]+i}, 0")
        a(f"v_mfma_f32_32x32x8_bf16 {vr(S[j],16)}, {vr(KF2[0],2)}, {vr(Q2[j],2)}, {vr(S[j],16)}")
        for i in range(8, 16): a(f"v_mov_b32 v{O[j]+i}, 0")
    for j in range(2):
        for i in range(8):
            a(f"v_max3_f32 v{M[j]}, v{S[j]+2*i}, v{S[j]+2*i+1}, v{M[j]}")
    a("s_sub_u32 s43, s43, 1\ns_cmp_lg_u32 s43, 0\ns_cbranch_scc1 L_MAXL")
    def rdK(b, off):
        return [f"ds_read_b128 {vr(KF1[b],4)}, v{AK1} offset:{off}", f"ds_read_b32 v{KF2[b]}, v{AK2} offset:{off+1024}"]
    def rdV(b, off):
        return ["s_mov_b64 exec, s[36:37]",
                f"ds_read_b128 {vr(VF[b],4)}, v{AV} offset:{off+1280}", f"ds_read_b128 {vr(VF[b]+4,4)}, v{AV} offset:{off+1920}",
                "s_mov_b64 exec, -1"]
    TA = [S[2], S[2] + 1]; TB = [S[2] + 2, S[2] + 3]
    for j in range(2): a(f"v_mov_b32 v{TA[j]}, v{M[j]}")
    for x in rdK(0, 0) + rdK(1, 2560) + rdV(1, 0): a(x)
    a.c("-m split into bf16 pieces that ride in the spare k-slots; first pass keeps only the leading piece (s45)")
    seq = ["v_permlane32_swap_b32 v{m}, v{ta}", "s_nop 0", "v_max_f32 v{m}, v{m}, v{ta}", "v_xor_b32 v{m}, 0x80000000, v{m}",
           "v_and_b32 v{ta}, s40, v{m}", "v_sub_f32 v{tb}, v{m}, v{ta}", "v_lshrrev_b32 v{ta}, 16, v{ta}",
           "v_and_or_b32 v{ta}, v{tb}, s40, v{ta}", "v_and_b32 v{m}, s40, v{tb}", "v_sub_f32 v{tb}, v{tb}, v{m}",
           "v_and_b32 v{tb}, s40, v{tb}", "v_cndmask_b32 v{ta}, v{ta}, v{tb}, s[38:39]", "v_and_b32 v{q}, s45, v{ta}"]
    for x in seq:
        for j in range(2):
            if x == "s_nop 0" and j == 1: continue
            a(x.format(m=M[j], ta=TA[j], tb=TB[j], q=Q2[j] + 1))
    a("s_waitcnt lgkmcnt(0)")
    def qk1(u, kb): return f"v_mfma_f32_32x32x16_bf16 {vr(S[u%4],16)}, {vr(KF1[kb],4)}, {vr(Q1[u%2],4)}, 0"
    def qk2(u, kb): return f"v_mfma_f32_32x32x8_bf16 {vr(S[u%4],16)}, {vr(KF2[kb],2)}, {vr(Q2[u%2],2)}, {vr(S[u%4],16)}"
    def pv(u, vb, i): return f"v_smfmac_f32_32x32x32_bf16 {vr(O[u%2],16)}, {vr(VF[vb]+4*i,4)}, {vr(S[u%4]+8*i,8)}, v{IDX}"
    a(qk1(0, 0)); a(qk2(0, 0))
    a.c("waves 4-7 (first pass): image complete -> S1 now; waves 0-3 meet it after their first 8 tiles")
    a(f"""
    s_mov_b32 s44, 8
    s_and_b32 s43, s42, s13
    s_cmp_eq_u32 s43, 0
    s_cbranch_scc1 L_NOS1
    s_waitcnt vmcnt(8)
    s_cmp_eq_u32 s6, 5
    s_cbranch_scc1 L_S1
    s_waitcnt vmcnt(0)
    L_S1:
    s_barrier
    s_setprio 3
    s_branch L_PR
    L_NOS1:
    s_setprio 2
    L_PR:
    s_nop 6
    """)
    stamp(a, 6)
    a(".p2align 6\nL_LOOP:")
    for t in range(8):
        for j in range(2):
            u = 2 * t + j
            b = (t + j) % 2
            ex = [f"v_exp_f32 v{S[u%4]+i}, v{S[u%4]+i}" for i in range(16)]
            extra = [[], [], [], []]
            if j == 1:
                a("s_waitcnt lgkmcnt(0)")
                extra[0] = rdK(t % 2, (t + 2) * 2560)
                extra[1] = rdV(t % 2, (t + 1) * 2560)
            ms = [qk1(u + 1, b), qk2(u + 1, b), pv(u - 1, b, 0), pv(u - 1, b, 1)]
            for g in range(4):
                a(ms[g])
                for x in ex[4 * g:4 * g + 2]: a(x)
                for x in extra[g]: a(x)
                for x in ex[4 * g + 2:4 * g + 4]: a(x)
    a(f"v_add_u32 v{AK1}, 20480, v{AK1}\nv_add_u32 v{AK2}, 20480, v{AK2}\nv_add_u32 v{AV}, 20480, v{AV}")
    a(f"""
    s_lshl_b32 s43, s13, 4
    s_add_u32 s43, s43, s44
    s_cmp_eq_u32 s43, {16 + optv("nl", 3)}
    s_cbranch_scc0 L_P1
    s_setprio 1
    L_P1:
    s_cmp_eq_u32 s42, 0
    s_cbranch_scc1 L_NEXT
    s_cmp_eq_u32 s44, 8
    s_cbranch_scc0 L_E0
    s_cmp_eq_u32 s13, 0
    s_cbranch_scc0 L_RL2
    s_barrier
    s_branch L_NEXT
    L_RL2:
    s_cmp_eq_u32 s6, 5
    s_cbranch_scc0 L_POIS
    s_mov_b32 s56, 0x05040100
    s_mov_b32 s57, 0x07060302
    s_mov_b32 exec_hi, 0x3ffff
    s_waitcnt vmcnt(0)
    """)
    a.c("wo re-layout: 8x8 16-bit transposition in registers")
    for c in range(8):
        for r in range(4):
            a(f"v_perm_b32 v{RL+32+4*c+r}, v{RL+4*(2*r+1)+c//2}, v{RL+4*(2*r)+c//2}, {'s56' if c % 2 == 0 else 's57'}")
        a(f"buffer_store_dwordx4 {vr(RL+32+4*c,4)}, v{RA+2+c//4}, s[28:31], s35 offen offset:{(c%4)*16} sc1")
    a("s_mov_b32 exec_hi, -1\ns_branch L_NEXT\nL_POIS:")
    a.c("waves 4,6,7: mark this workgroup's share of the O hand-off buffer as not yet written (rt16 = 8rb + i, slice 8*branch+hg); one KB column each")
    a(f"""
    s_mul_i32 s55, s4, {8*40960}
    s_lshl_b32 s56, s3, 3
    s_add_u32 s56, s56, s5
    s_mul_i32 s56, s56, 2560
    s_add_u32 s55, s55, s56
    s_add_u32 s55, s55, {WS_O}
    s_sub_u32 s56, s6, 5
    s_max_i32 s56, s56, 0
    s_lshl_b32 s56, s56, 10
    s_add_u32 s55, s55, s56
    v_lshlrev_b32 v{T2}, 4, v0
    v_mov_b32 v{PT}, -1
    v_mov_b32 v{PT+1}, -1
    v_mov_b32 v{PT+2}, -1
    v_mov_b32 v{PT+3}, -1
    s_cmp_eq_u32 s6, 7
    s_cselect_b32 exec_hi, 0, -1
    """)
    for i in range(8):
        a(f"buffer_store_dwordx4 {vr(PT,4)}, v{T2}, s[28:31], s55 offen sc1\ns_add_u32 s55, s55, 40960")
    a(f"""
    s_mov_b32 exec_hi, -1
    s_branch L_NEXT
    L_E0:
    s_cmp_eq_u32 s43, {16 + 6}
    s_cbranch_scc0 L_E1
    s_lshl_b32 s56, s2, 2
    s_add_u32 s56, s56, s6
    s_lshl_b32 s56, s56, 2
    s_add_u32 s56, s56, {FL_W - 16}
    v_mov_b32 v{T3}, 0
    s_waitcnt vmcnt(0)
    """)
    flag_store(a, "s56", T2, T3)
    a.c("flags to see: lanes 0-31 the workgroups that re-lay this tile's Wo columns, lanes 32-63 the row group")
    a(f"""
    s_branch L_NEXT
    L_E1:
    s_cmp_eq_u32 s44, 4
    s_cbranch_scc0 L_E2
    v_lshl_add_u32 v{T2}, v{T0}, 3, s5
    v_and_b32 v{T3}, 14, v0
    v_lshlrev_b32 v{T3}, 4, v{T3}
    v_and_or_b32 v{T3}, v0, 1, v{T3}
    s_and_b32 s57, s2, 0x1e
    v_or_b32 v{T3}, s57, v{T3}
    v_cndmask_b32 v{T2}, v{T2}, v{T3}, s[38:39]
    v_lshlrev_b32 v{T2}, 4, v{T2}
    s_mov_b32 s57, {FL_W}
    buffer_load_dwordx4 {vr(PT,4)}, v{T2}, s[28:31], s57 offen sc1
    s_branch L_NEXT
    L_E2:
    s_cmp_eq_u32 s44, 3
    s_cbranch_scc0 L_NEXT
    """)
    poll(a, "L_PW", T2, "s57", 4, PT, sleep=8)
    a.c("prefetch this wave's Wo fragments: [cb=hg][ct][f32 = 5w+st]")
    a(f"""
    s_mul_i32 s56, s5, {5*40960}
    s_mul_i32 s57, s6, 5120
    s_add_u32 s56, s56, s57
    s_add_u32 s56, s56, {WS_WO}
    v_lshlrev_b32 v{T2}, 4, v0
    v_add_u32 v{T3}, 4096, v{T2}
    """)
    for ct in range(5):
        for st in range(5):
            av = T2 if st < 4 else T3
            a(f"buffer_load_dwordx4 {vr(WO+(st*5+ct)*4,4)}, v{av}, s[28:31], s56 offen offset:{(st%4)*1024} sc1")
        if ct < 4: a("s_add_u32 s56, s56, 40960")
    a("L_NEXT:")
    a("s_sub_u32 s44, s44, 1\ns_cmp_lg_u32 s44, 0\ns_cbranch_scc1 L_LOOP")
    stamp(a, 7)
    a(pv(15, 0, 0)); a(pv(15, 0, 1))
    a(f"""
    s_setprio 3
    v_subrev_u32 v{AK1}, {KV_BYTES}, v{AK1}
    v_subrev_u32 v{AK2}, {KV_BYTES}, v{AK2}
    v_subrev_u32 v{AV}, {KV_BYTES}, v{AV}
    s_mov_b32 s46, {f32bits(2.0**-40)}
    s_mov_b32 s47, {f32bits(2.0**40)}
    s_mov_b32 s42, 0
    s_mov_b32 s23, -2
    s_nop 3
    s_waitcnt vmcnt(0) lgkmcnt(0)
    """)
    a.c("run-time safety check of the stand-in max: row sums must lie in [2^-40, 2^40], else redo with the true max")
    a(f"""
    v_cmp_le_f32 s[48:49], s46, v{O[0]+10}
    v_cmp_ge_f32 s[50:51], s47, v{O[0]+10}
    v_cmp_le_f32 s[52:53], s46, v{O[1]+10}
    v_cmp_ge_f32 s[54:55], s47, v{O[1]+10}
    v_rcp_f32 v{M[0]}, v{O[0]+10}
    v_rcp_f32 v{M[1]}, v{O[1]+10}
    s_and_b64 s[48:49], s[48:49], s[50:51]
    s_and_b64 s[52:53], s[52:53], s[54:55]
    s_and_b64 s[48:49], s[48:49], s[52:53]
    s_cmp_eq_u64 s[48:49], -1
    s_cbranch_scc1 L_OK
    s_cmp_eq_u32 s41, 64
    s_cbranch_scc1 L_OK
    s_mov_b32 s41, 64
    s_mov_b32 s45, -1
    s_branch L_RETRY
    L_OK:
    v_mul_f32 v{M[0]}, v{M[0]}, v{G}
    v_mul_f32 v{M[1]}, v{M[1]}, v{G}
    """)
    P = S[0]
    for j in range(2):
        for i in range(10): a(f"v_mul_f32 v{O[j]+i}, v{O[j]+i}, v{M[j]}")
        for i in range(5): a(f"v_cvt_pk_bf16_f32 v{P+5*j+i}, v{O[j]+2*i}, v{O[j]+2*i+1}")
    for i in range(10): a(f"v_min_u32 v{P+i}, s23, v{P+i}")
    a(f"""
    s_and_b32 s21, s5, 1
    s_cbranch_scc1 L_ST1
    buffer_store_dwordx4 {vr(P,4)}, v{OA}, s[28:31], s26 offen sc1
    buffer_store_dwordx4 {vr(P+4,4)}, v{OA}, s[28:31], s26 offen offset:512 sc1
    buffer_store_dwordx2 {vr(P+8,2)}, v{OA}, s[28:31], s26 offen offset:1024 sc1
    s_branch L_ST2
    L_ST1:
    buffer_store_dwordx2 {vr(P,2)}, v{OA}, s[28:31], s26 offen offset:8 sc1
    buffer_store_dwordx4 {vr(P+2,4)}, v{OA}, s[28:31], s26 offen offset:512 sc1
    buffer_store_dwordx4 {vr(P+6,4)}, v{OA}, s[28:31], s26 offen offset:1024 sc1
    L_ST2:
    s_setprio {optv("pe", 0)}
    """)
    OF = 16
    EA = [96, 116, 16, 36]
    a.c("phase E: tile rows 64*(2rb+branch).., columns 80*hg.. ; wave = K eighth")
    a(f"""
    s_lshl_b32 s16, s4, 1
    s_add_u32 s16, s16, s3
    v_mov_b32 v2, s34
    v_mov_b32 v3, 0
    v_lshlrev_b32 v5, 4, v0
    v_add_u32 v6, 4096, v5
    s_mul_i32 s17, s16, {4*40960}
    s_mul_i32 s18, s6, 5120
    s_add_u32 s17, s17, s18
    s_add_u32 s17, s17, {WS_O}
    v_add_u32 v7, s18, v5
    s_mov_b32 s21, s17
    """)
    a.c("row tiles are taken in an order rotated by hg: the CUs that share these rows miss on different lines")
    for i in range(4):
        a(f"s_add_u32 s22, s5, {i}\ns_and_b32 s22, s22, 3\ns_mul_i32 s22, s22, 40960\ns_add_u32 s{17+i}, s21, s22\nv_add_u32 v{8+i}, s22, v7")
    srd(a, 72, 66, 67, 2048 * 1280)
    a.c("out address (waves 0-3): row = 64*(2rb+branch) + 16w + n ; byte = row*1280 + hg*160 + rg*40")
    a(f"""
    s_mul_i32 s22, s6, 40960
    v_add_u32 v12, s22, v5
    s_lshl_b32 s22, s16, 6
    s_lshl_b32 s21, s6, 4
    s_add_u32 s22, s22, s21
    s_mul_i32 s22, s22, 1280
    s_mul_i32 s21, s5, 160
    s_add_u32 s22, s22, s21
    v_and_b32 v13, 15, v0
    v_mul_u32_u24 v13, 1280, v13
    v_lshrrev_b32 v14, 4, v0
    v_mul_u32_u24 v14, 40, v14
    v_add_u32 v13, v13, v14
    s_mov_b32 s60, {SPIN}
    """)
    def oload(rt, sc=" sc1"):
        for st in range(5):
            av = 5 if st < 4 else 6
            a(f"buffer_load_dwordx4 {vr(OF+(rt*5+st)*4,4)}, v{av}, s[28:31], s{17+rt} offen offset:{(st%4)*1024}{sc}")
    def ewrites(rt):
        return [f"ds_write_b128 v{8+rt}, {vr(EA[rt]+4*ct,4)} offset:{ct*1024}" for ct in range(5)]
    def egemm(tag, wr, bar=-1):
        for rt in range(4):
            if rt == bar: a("s_barrier")
            a(f"L_CH{tag}{rt}:\ns_waitcnt vmcnt({15 - 5*rt})")
            a.c("hand-off check: no word may still hold the not-yet-written mark")
            b = OF + rt * 20
            a(f"v_max3_u32 v15, v{b}, v{b+1}, v{b+2}\nv_max3_u32 v4, v{b+3}, v{b+4}, v{b+5}")
            for i in range(6, 20, 4):
                a(f"v_max3_u32 v15, v{b+i}, v{b+i+1}, v15")
                if i + 2 < 20: a(f"v_max3_u32 v4, v{b+i+2}, v{b+i+3}, v4")
            a(f"""
            v_max_u32 v15, v15, v4
            v_cmp_eq_u32 vcc, -1, v15
            s_cmp_eq_u64 vcc, 0
            s_cbranch_scc1 L_GO{tag}{rt}
            s_cmp_eq_u32 s60, 0
            s_cbranch_scc1 L_GO{tag}{rt}
            s_sub_u32 s60, s60, 1
            s_waitcnt vmcnt(0)
            s_sleep {optv("slp", 4)}
            """)
            for r2 in range(rt, 4): oload(r2)
            a(f"s_branch L_CH{tag}{rt}\nL_GO{tag}{rt}:")
            if wr and rt >= 1:
                for x in ewrites(rt - 1): a(x)
            for st in range(5):
                for ct in range(5):
                    d = vr(EA[rt] + 4 * ct, 4)
                    a(f"v_mfma_f32_16x16x32_bf16 {d}, {vr(WO+(st*5+ct)*4,4)}, {vr(OF+(rt*5+st)*4,4)}, {'0' if st == 0 else d}")
    def retries():
        if PROF: a(f"s_waitcnt lgkmcnt(0)\ns_sub_u32 s84, {SPIN}, s60\ns_mul_i32 s84, s84, 100\ns_add_u32 s84, s84, s76")
    a.c("every wave of this workgroup is past its last K/V read: LDS can be reused")
    a("s_barrier")
    if not opt("noack"): a("s_waitcnt vmcnt(0)")
    else: a(f"s_sleep {optv('dly', 4)}")
    stamp(a, 8)
    for rt in range(4): oload(rt)
    if PROF: a("s_waitcnt lgkmcnt(0)")
    a("s_cmp_eq_u32 s13, 0\ns_cbranch_scc1 L_ELEAD")
    egemm("B", True, optv("bar", 2))
    stamp(a, 10); retries()
    a("s_waitcnt lgkmcnt(5)\ns_nop 6")
    for x in ewrites(3): a(x)
    a("s_waitcnt lgkmcnt(0)\ns_barrier\ns_branch L_FIN")
    a("L_ELEAD:\ns_setprio 2")
    egemm("A", True)
    stamp(a, 9); retries()
    a("s_waitcnt lgkmcnt(5)\ns_nop 6")
    for x in ewrites(3): a(x)
    a("s_waitcnt lgkmcnt(0)\ns_barrier")
    R = 56
    def rsum(src0, keep):
        for src in range(4):
            for c in range(5):
                a(f"ds_read_b128 {vr(R+src*20+4*c,4)}, v12 offset:{(src0+src)*5120+c*1024}")
            if src == 1: a("s_waitcnt lgkmcnt(4)")
        a("s_waitcnt lgkmcnt(10)")
        for i in range(20): a(f"v_add_f32 v{R+i}, v{R+i}, v{R+20+i}")
        if keep:
            for i in range(20): a(f"v_add_f32 v{R+i}, v{R+i}, v{16+i}")
        a("s_waitcnt lgkmcnt(0)")
        for i in range(20): a(f"v_add_f32 v{R+40+i}, v{R+40+i}, v{R+60+i}")
        for i in range(20): a(f"v_add_f32 v{16+i}, v{R+i}, v{R+40+i}")
    rsum(0, False)
    a("s_barrier")
    stamp(a, 10)
    if PROF: a("s_waitcnt lgkmcnt(0)")
    rsum(4, True)
    for i in range(10): a(f"v_cvt_pk_bf16_f32 v{40+i}, v{16+2*i}, v{16+2*i+1}")
    a("""
    buffer_store_dwordx4 v[40:43], v13, s[72:75], s22 offen
    buffer_store_dwordx4 v[44:47], v13, s[72:75], s22 offen offset:16
    buffer_store_dwordx2 v[48:49], v13, s[72:75], s22 offen offset:32
    """)
    a.c("workgroup 0 advances the epoch: every workgroup has read it by now")
    a(f"""
    s_or_b32 s21, s2, s6
    s_cmp_eq_u32 s21, 0
    s_cbranch_scc0 L_FIN
    s_mov_b32 s21, {FL_EPOCH}
    s_mov_b64 exec, 1
    buffer_store_dword v2, v3, s[28:31], s21 offen sc1
    """)
    a("L_FIN:")
    if PROF: a("s_waitcnt vmcnt(0)")
    stamp(a, 11)
    a("L_FIN2:")
    stamp_flush(a)
    a("L_END:\ns_endpgm")
    return f""".p2align 6
.amdhsa_kernel {N}
  .amdhsa_next_free_vgpr 256
  .amdhsa_next_free_sgpr 102
  .amdhsa_accum_offset 256
  .amdhsa_group_segment_fixed_size 0
  .amdhsa_kernarg_size 112
  .amdhsa_user_sgpr_count 2
  .amdhsa_user_sgpr_kernarg_segment_ptr 1
  .amdhsa_system_sgpr_workgroup_id_x 1
.end_amdhsa_kernel
"""

def main():
    ref = open(f"cdna_kernels/{NAME}.s.ref").read().split("\n")
    head = [l for l in ref if l.startswith(";") and "@launch" not in l]
    a = Asm()
    kd = gen(a)
    out = "\n".join(head) + "\n"
    out += "; @launch grid=(256,1,1) block=(512,1,1) lds=163840\n"
    out += '.amdgcn_target "amdgcn-amd-amdhsa--gfx950"\n.text\n'
    out += a.text().replace("offen sc1 lds", "offen lds") if opt("plainKV") else a.text()
    out += '.section .rodata,"a"\n' + kd
    path = ARGS[0] if ARGS and not ARGS[0].startswith("--") else f"cdna_kernels/{NAME}.s"
    open(path, "w").write(out)
main()
```

```python
import math, struct, sys

NAME = "gated_mix__grouped_kv_mqa__grouped_kv_mqa__prompt"
ARGS = sys.argv[1:]
def opt(n): return ("--" + n) in ARGS
def optv(n, d):
    for x in ARGS:
        if x.startswith("--" + n + "="): return int(x.split("=")[1])
    return d

KV_BYTES = 163840
WS_KV   = 0
WS_G    = 2 * KV_BYTES
WS_O    = WS_G + 16384
O_BYTES = 128 * 40 * 1024
WS_WO   = WS_O + O_BYTES
WO_BYTES = 8 * 5 * 40 * 1024
WS_FL   = WS_WO + WO_BYTES
FL_EPOCH = WS_FL
FL_KV   = WS_FL + 256
FL_W    = FL_KV + 8192
WS_END  = FL_W + 4096

def f32bits(x):
    return struct.unpack("<I", struct.pack("<f", x))[0]
QSCALE = f32bits((20 ** -0.5) * math.log2(math.e))
LOG2E = f32bits(math.log2(math.e))

class Asm:
    def __init__(self): self.l = []
    def __call__(self, s):
        for line in s.split("\n"):
            line = line.strip()
            if line: self.l.append(("" if line.endswith(":") else "  ") + line)
    def c(self, s): self.l.append("  ; " + s)
    def text(self): return "\n".join(self.l) + "\n"

def vr(b, n=1): return f"v{b}" if n == 1 else f"v[{b}:{b+n-1}]"

def srd(a, d, lo, hi, nbytes):
    a(f"s_mov_b32 s{d}, s{lo}\ns_mov_b32 s{d+1}, s{hi}\ns_mov_b32 s{d+2}, {nbytes}\ns_mov_b32 s{d+3}, 0x00020000")
def srd_sel(a, d, lo0, lo1, nbytes):
    a(f"s_cselect_b32 s{d}, s{lo0}, s{lo1}\ns_cselect_b32 s{d+1}, s{lo0+1}, s{lo1+1}\ns_mov_b32 s{d+2}, {nbytes}\ns_mov_b32 s{d+3}, 0x00020000")

PROF = opt("prof")
PROF_BASE = 16 << 20
NST = 12
def stamp(a, i):
    if PROF: a(f"s_memrealtime s[{76+2*i}:{77+2*i}]")
def stamp_flush(a):
    if not PROF: return
    a("s_waitcnt lgkmcnt(0)\ns_mov_b64 exec, 1")
    a(f"s_lshl_b32 s62, s2, 3\ns_add_u32 s62, s62, s6\ns_lshl_b32 s62, s62, 6\ns_add_u32 s62, s62, {PROF_BASE}")
    a("s_mov_b32 s30, 0x2000000\nv_mov_b32 v0, 0")
    for i in range(NST):
        a(f"v_mov_b32 v2, s{76+2*i}\nbuffer_store_dword v2, v0, s[28:31], s62 offen offset:{4*i}\ns_nop 1")

SPIN = 200000
def poll(a, lbl, addr_v, soff, width, tmp, mask=None, preloaded=True, sleep=1):
    ld = {1: "dword", 2: "dwordx2", 4: "dwordx4"}[width]
    a(f"s_mov_b32 s60, {SPIN}")
    if mask is not None: a(f"s_mov_b64 exec, {mask}")
    if preloaded: a(f"s_branch {lbl}_chk")
    a(f"{lbl}_ld:")
    a(f"buffer_load_{ld} {vr(tmp,width)}, v{addr_v}, s[28:31], {soff} offen sc1")
    a(f"{lbl}_chk:\ns_waitcnt vmcnt(0)")
    a(f"v_cmp_ne_u32 vcc, s34, v{tmp}")
    for i in range(1, width):
        a(f"v_cmp_ne_u32 s[58:59], s34, v{tmp+i}\ns_or_b64 vcc, vcc, s[58:59]")
    a(f"s_sub_u32 s60, s60, 1\ns_cbranch_scc1 {lbl}_ok")
    a(f"s_cmp_eq_u64 vcc, 0\ns_cbranch_scc1 {lbl}_ok\ns_sleep {sleep}\ns_branch {lbl}_ld\n{lbl}_ok:")
    if mask is not None: a("s_mov_b64 exec, -1")

def flag_store(a, soff, vtmp, vzero):
    a(f"v_mov_b32 v{vtmp}, s34\ns_mov_b64 exec, 1\nbuffer_store_dword v{vtmp}, v{vzero}, s[28:31], {soff} offen sc1\ns_mov_b64 exec, -1")

def gen(a):
    N = NAME + "_kernel"
    STG = 26624; XB = 16384
    L_WK = 0; L_WV = 25600; L_G = 51200; RING = 57344
    L_X16 = RING + 3 * STG
    L_QX = 143360
    a(f".globl {N}\n.p2align 8\n.type {N},@function\n{N}:")
    a("s_cmp_ge_u32 s2, 256\ns_cbranch_scc1 L_END")
    a("""
    s_load_dwordx8 s[8:15], s[0:1], 0
    s_load_dwordx8 s[16:23], s[0:1], 48
    s_load_dwordx2 s[24:25], s[0:1], 104
    s_load_dwordx4 s[64:67], s[0:1], 80
    s_load_dwordx2 s[68:69], s[0:1], 32
    """)
    stamp(a, 0)
    a.c("s3 = branch, s4 = rb (128-row block), s5 = hg (head group), s6 = wave, s33 = rb&3")
    a(f"""
    v_lshrrev_b32 v1, 6, v0
    v_and_b32 v0, 63, v0
    s_and_b32 s3, s2, 1
    s_xor_b32 s3, s3, {1 if opt("swapbr") else 0}
    v_readfirstlane_b32 s6, v1
    s_lshr_b32 s4, s2, 1
    s_and_b32 s4, s4, 3
    s_lshl_b32 s4, s4, 2
    s_lshr_b32 s33, s2, 3
    s_and_b32 s33, s33, 3
    s_add_u32 s4, s4, s33
    s_lshr_b32 s5, s2, 5
    v_lshlrev_b32 v3, 4, v0
    v_lshrrev_b32 v5, 3, v0
    v_and_b32 v6, 7, v0
    v_xor_b32 v6, v6, v5
    v_lshlrev_b32 v6, 4, v6
    v_mul_u32_u24 v2, 1280, v5
    v_add_u32 v2, v2, v6
    v_mov_b32 v4, 0
    s_lshl_b32 s48, s4, 7
    s_lshl_b32 s50, s6, 10
    s_cmp_ge_u32 s6, 4
    s_cbranch_scc1 L_LOADER
    """)
    SLOT = {"A": RING, "B": RING + STG, "C": RING + 2 * STG, "D": RING + 3 * STG, "F": 30720}
    SMAP = ["A", "B", "C", "D", "F", "A", "B", "C", "F", "A"]
    NCH0 = 25
    a(f"""
    s_lshl_b32 s49, s5, 4
    s_add_u32 s49, s48, s49
    s_mul_i32 s49, s49, 1280
    s_lshr_b32 s51, s6, 1
    s_lshl_b32 s51, s51, 7
    s_and_b32 s52, s6, 1
    s_mul_i32 s53, s52, {8*1280}
    s_add_u32 s51, s51, s53
    s_add_u32 s51, s51, s49
    s_lshr_b32 s54, s2, 3
    s_lshl_b32 s54, s54, 10
    s_waitcnt lgkmcnt(0)
    """)
    srd(a, 36, 8, 9, 2048 * 1280)
    a.c("lines no other CU of this XCD is asking for yet: x16 pieces w+4j, one KB of wk / wv (L2 warm-up), gate")
    for j in range(5):
        a(f"s_add_u32 m0, s50, {L_X16 + 4096*j}\ns_add_u32 s53, s51, {256*j}\nbuffer_load_dwordx4 v2, s[36:39], s53 offen lds")
        if j == 0:
            srd(a, 28, 24, 25, WS_END)
            a(f"""
            s_cmp_ge_u32 s6, 2
            s_cbranch_scc1 L_LA2
            s_cmp_eq_u32 s6, 0
            s_cselect_b32 s12, s12, s14
            s_cselect_b32 s13, s13, s15
            s_cselect_b32 s18, s18, s20
            s_cselect_b32 s19, s19, s21
            s_cmp_eq_u32 s3, 0
            """)
            srd_sel(a, 40, 12, 18, 25600)
            a(f"""
            buffer_load_dwordx4 v[248:251], v3, s[40:43], s54 offen
            s_branch L_LA3
            L_LA2:
            """)
            srd(a, 40, 64, 65, 1280)
            a(f"""
            s_lshl_b32 s53, s52, 10
            s_add_u32 m0, s53, {L_G}
            s_nop 0
            buffer_load_dwordx4 v3, s[40:43], s53 offen lds
            L_LA3:
            """)
    a(f"s_mov_b32 s53, {FL_EPOCH}\nbuffer_load_dword v9, v4, s[28:31], s53 offen sc1")
    if opt("cpf"):
        a.c("bring this kernel's own code into L2: 1 KB per workgroup of the XCD round (wave 2)")
        a(f"""
        s_cmp_eq_u32 s6, 2
        s_cbranch_scc0 L_NCPF
        s_getpc_b64 s[56:57]
        L_PCREF:
        s_sub_u32 s56, s56, L_PCREF-{N}
        s_subb_u32 s57, s57, 0
        v_add_u32 v7, s54, v3
        v_min_u32 v7, L_END-{N}-16, v7
        global_load_dwordx4 v[248:251], v7, s[56:57]
        L_NCPF:
        """)
    a.c("KV fragment addresses (wave: 0 K lo, 1 K hi + gate, 2 V lo, 3 V hi)")
    a(f"""
    v_and_b32 v5, 15, v0
    v_lshrrev_b32 v6, 4, v0
    v_and_b32 v7, 7, v0
    v_xor_b32 v7, v7, v6
    v_lshlrev_b32 v7, 4, v7
    v_lshl_add_u32 v10, v5, 7, v7
    v_add_u32 v14, {L_X16}, v10
    v_xor_b32 v15, 64, v14
    v_bfe_u32 v7, v0, 2, 2
    v_lshl_add_u32 v7, v6, 3, v7
    v_mul_u32_u24 v7, 40, v7
    v_and_b32 v8, 3, v0
    v_lshlrev_b32 v8, 3, v8
    s_cmp_eq_u32 s52, 0
    s_cselect_b32 s56, -1, 0
    s_cselect_b32 s57, 0, 32
    v_and_b32 v8, s56, v8
    s_cmp_lt_u32 s6, 2
    s_cselect_b32 s56, 0, {L_WV}
    s_add_u32 s57, s57, s56
    v_add3_u32 v18, v7, v8, s57
    v_lshlrev_b32 v19, 4, v6
    v_add_u32 v19, {L_G}, v19
    """)
    for i in range(8): a(f"v_mov_b32 v{20+i}, 0")
    ACC = 112; FR = 32; KVF = 152
    BASES = [SLOT["F"], SLOT["B"], SLOT["D"]]
    AXR = [232, 234, 236]; AWR = [238, 239, 240]
    def base_of(slot):
        o = SLOT[slot]
        i = max(k for k in range(3) if BASES[k] <= o)
        return i, o - BASES[i]
    a.c("Q-projection addresses and accumulators (set up while the loads fly)")
    a(f"""
    s_lshl_b32 s7, s6, 12
    v_add_u32 v11, s7, v10
    v_lshrrev_b32 v7, 1, v6
    v_lshlrev_b32 v7, 4, v7
    v_and_b32 v8, 1, v6
    v_lshl_add_u32 v7, v8, 2, v7
    v_bfe_u32 v8, v0, 2, 2
    v_add_u32 v7, v7, v8
    v_mul_u32_u24 v7, 160, v7
    v_and_b32 v8, 3, v0
    v_mul_u32_u24 v8, 40, v8
    v_add_u32 v7, v7, v8
    """)
    for k in range(3):
        a(f"v_add_u32 v{AXR[k]}, {BASES[k]}, v11\nv_xor_b32 v{AXR[k]+1}, 64, v{AXR[k]}\nv_add_u32 v{AWR[k]}, {BASES[k] + XB}, v7")
    for i in range(40): a(f"v_mov_b32 v{ACC+i}, 0")
    for i in (218, 219, 228, 229, 230, 231): a(f"v_mov_b32 v{i}, 0")
    a.c("K/V/gate store addresses: v12 (+ s58), exec mask s[60:61]; gate: v13 (+ s62), s63 = -+log2e")
    a(f"""
    s_lshl_b32 s58, s4, 2
    s_lshr_b32 s59, s5, 1
    s_add_u32 s58, s58, s59
    s_mul_i32 s58, s58, 2560
    s_mul_i32 s59, s3, {KV_BYTES}
    s_add_u32 s58, s58, s59
    s_and_b32 s59, s5, 1
    s_lshl_b32 s62, s3, 11
    s_add_u32 s62, s62, s48
    s_lshl_b32 s63, s5, 4
    s_add_u32 s62, s62, s63
    s_lshl_b32 s62, s62, 2
    s_add_u32 s62, s62, {WS_G}
    v_lshlrev_b32 v13, 2, v5
    s_lshl_b32 s63, s3, 31
    s_xor_b32 s63, s63, {LOG2E | 0x80000000}
    v_lshrrev_b32 v7, 1, v6
    v_and_b32 v8, 1, v6
    s_mov_b32 s27, {QSCALE}
    s_cmp_eq_u32 s6, 1
    s_cbranch_scc1 L_AD1
    s_cmp_ge_u32 s6, 2
    s_cbranch_scc1 L_AD2
    s_lshl_b32 s59, s59, 8
    s_add_u32 s58, s58, s59
    v_lshlrev_b32 v7, 9, v7
    v_lshl_add_u32 v7, v5, 4, v7
    v_lshl_add_u32 v12, v8, 3, v7
    s_mov_b64 s[60:61], -1
    s_branch L_AD3
    L_AD1:
    s_lshl_b32 s59, s59, 7
    s_add_u32 s58, s58, s59
    s_add_u32 s58, s58, 1024
    v_lshlrev_b32 v12, 3, v5
    s_mov_b64 s[60:61], 0xffff
    s_branch L_AD3
    L_AD2:
    s_mul_i32 s59, s59, 640
    s_add_u32 s58, s58, s59
    s_lshl_b32 s59, s52, 8
    s_add_u32 s58, s58, s59
    s_add_u32 s58, s58, 1280
    v_mul_u32_u24 v7, 320, v7
    v_lshl_add_u32 v7, v5, 4, v7
    v_lshl_add_u32 v12, v8, 3, v7
    s_cmp_eq_u32 s52, 0
    s_cselect_b32 s60, -1, 0x000f000f
    s_mov_b32 s61, s60
    s_mov_b32 s27, 1.0
    L_AD3:
    """)
    def kv_loop(kind, pre):
        per = 4 if kind == "G" else 3
        nb = 3 if kind == "G" else 5
        ring = nb + 1
        def rd(k):
            f = KVF + 12 * (k % ring)
            r = [f"ds_read_b128 {vr(f,4)}, v{14 + (k & 1)} offset:{(k >> 1) * 2048}"]
            for hf in range(2):
                r.append(f"ds_read_b64_tr_b16 {vr(f+4+2*hf,2)}, v18 offset:{(32*k + 4*hf)*40}")
            if kind == "G": r.append(f"ds_read_b128 {vr(f+8,4)}, v19 offset:{64*k}")
            return r
        def mm(k):
            f = KVF + 12 * (k % ring)
            if kind == "V": r = [f"v_mfma_f32_16x16x32_bf16 v[20:23], {vr(f,4)}, {vr(f+4,4)}, v[20:23]"]
            else: r = [f"v_mfma_f32_16x16x32_bf16 v[20:23], {vr(f+4,4)}, {vr(f,4)}, v[20:23]"]
            if kind == "G": r.append(f"v_mfma_f32_16x16x32_bf16 v[24:27], {vr(f+8,4)}, {vr(f,4)}, v[24:27]")
            return r
        for k in range(nb):
            for x in rd(k): a(x)
        for k in range(20):
            ahead = min(k + nb, 20) - (k + 1)
            a(f"s_waitcnt lgkmcnt({ahead * per})")
            for x in mm(k): a(x)
            if k + nb < 20:
                for x in rd(k + nb): a(x)
    def reads(s, ks):
        bi, base = base_of(SMAP[s])
        ax = AXR[bi] + ks; aw = AWR[bi]; f = FR + 28 * ks
        r = [f"ds_read_b128 {vr(f+4*rt,4)}, v{ax} offset:{base + rt*2048}" for rt in range(2)]
        for ct in range(5):
            for hf in range(2):
                r.append(f"ds_read_b64_tr_b16 {vr(f+8+4*ct+2*hf,2)}, v{aw} offset:{base + (32*ks + 8*hf)*160 + 8*ct}")
        return r
    def mf(ks, ct):
        f = FR + 28 * ks
        return [f"v_mfma_f32_16x16x32_bf16 {vr(ACC+(rt*5+ct)*4,4)}, {vr(f+8+4*ct,4)}, {vr(f+4*rt,4)}, {vr(ACC+(rt*5+ct)*4,4)}" for rt in range(2)]
    def stage(s):
        r0 = reads(s, 0); r1 = reads(s, 1)
        if s == 0:
            for x in r0: a(x)
        else:
            k = 0
            for ct in range(5):
                n = [4, 3, 3, 2, 0][ct]
                for x in r0[k:k+n]: a(x)
                k += n
                for x in mf(1, ct): a(x)
        issued1 = 0
        plan = [4, 4, 3, 1, 0]
        for ct in range(5):
            a(f"s_waitcnt lgkmcnt({(12 - (4 + 2*ct)) + issued1})")
            for x in mf(0, ct): a(x)
            for x in r1[issued1:issued1 + plan[ct]]: a(x)
            issued1 += plan[ct]
        a("s_waitcnt lgkmcnt(0)")
    PUB = optv("pub", 4)
    nb_ = [0]
    def cbar():
        i = nb_[0]; nb_[0] += 1
        if i == PUB: a("s_waitcnt vmcnt(0)")
        a("s_barrier")
        if opt("probeB"):
            stamp(a, 1 + i if i < 10 else 11); a("s_waitcnt lgkmcnt(0)")
            if i == 10: a("s_branch L_FIN2")
        if i == PUB:
            a.c("publish this workgroup's K/V slice (wave 0, one lane)")
            a(f"""
            s_cmp_eq_u32 s6, 0
            s_cbranch_scc0 L_NOPUB
            s_bfe_u32 s56, s2, 0x50001
            s_lshl_b32 s56, s56, 7
            s_lshl_b32 s57, s3, 12
            s_add_u32 s56, s56, s57
            s_lshr_b32 s57, s2, 6
            s_lshl_b32 s57, s57, 2
            s_add_u32 s56, s56, s57
            s_add_u32 s56, s56, {FL_KV}
            """)
            flag_store(a, "s56", 7, 4)
            a("L_NOPUB:")
    a("s_waitcnt vmcnt(0)")
    cbar()
    if not opt("probeB"):
        stamp(a, 1)
        if PROF: a("s_waitcnt lgkmcnt(0)")
    a("v_readfirstlane_b32 s34, v9")
    a("s_cmp_eq_u32 s6, 1\ns_cbranch_scc1 L_KV_G\ns_cmp_ge_u32 s6, 2\ns_cbranch_scc1 L_KV_V")
    kv_loop("K", None)
    a("s_branch L_KV_E\nL_KV_G:")
    kv_loop("G", None)
    a("""
    s_nop 7
    v_mul_f32 v24, s63, v24
    v_exp_f32 v24, v24
    s_nop 0
    v_add_f32 v24, 1.0, v24
    v_rcp_f32 v24, v24
    s_mov_b64 exec, 0xffff
    buffer_store_dword v24, v13, s[28:31], s62 offen sc1
    s_mov_b64 exec, -1
    s_branch L_KV_E
    L_KV_V:
    """)
    kv_loop("V", None)
    a("L_KV_E:")
    a.c("tag = f(epoch); the softmax scale rides on K")
    a("""
    s_mul_i32 s34, s34, 0x9e3779b1
    s_add_u32 s34, s34, 0x7f4a7c15
    s_nop 5
    v_mul_f32 v20, s27, v20
    v_mul_f32 v21, s27, v21
    v_mul_f32 v22, s27, v22
    v_mul_f32 v23, s27, v23
    v_cvt_pk_bf16_f32 v28, v20, v21
    v_cvt_pk_bf16_f32 v29, v22, v23
    s_mov_b64 exec, s[60:61]
    buffer_store_dwordx2 v[28:29], v12, s[28:31], s58 offen sc1
    s_mov_b64 exec, -1
    """)
    if not opt("probeB"):
        stamp(a, 2)
        if PROF: a("s_waitcnt lgkmcnt(0)")
    for s in range(10):
        cbar(); stage(s)
    for rt in range(2):
        for ct in range(5): a(mf(1, ct)[rt])
    stamp(a, 3)
    a.c("Q epilogue: pack, write fragments to LDS [w][head rg][1280]")
    a(f"""
    s_mul_i32 s7, s6, 5120
    s_add_u32 s7, s7, {L_QX}
    v_mul_u32_u24 v7, 1280, v6
    v_add_u32 v7, s7, v7
    v_lshl_add_u32 v8, v5, 3, v7
    v_lshl_add_u32 v7, v5, 4, v7
    """)
    for rt in range(2):
        P = FR + 12 * rt
        for i in range(10): a(f"v_cvt_pk_bf16_f32 v{P+i}, v{ACC+rt*20+2*i}, v{ACC+rt*20+2*i+1}")
        a(f"ds_write_b128 v7, {vr(P,4)} offset:{rt*256}")
        a(f"ds_write_b128 v7, {vr(P+4,4)} offset:{512+rt*256}")
        a(f"ds_write_b64 v8, {vr(P+8,2)} offset:{1024+rt*128}")
    a("s_branch L_ATT")

    a("L_LOADER:")
    a.c("Wq DMA source offsets for 3 instrs: q=64i+l, p=q/10, c=q%10, src row = swap bits 2,3 of p")
    for i in range(3):
        a(f"""
        v_add_u32 v5, {64*i}, v0
        v_mul_u32_u24 v6, 6554, v5
        v_lshrrev_b32 v6, 16, v6
        v_mul_u32_u24 v7, 10, v6
        v_sub_u32 v7, v5, v7
        v_and_b32 v5, 0x13, v6
        v_and_b32 v8, 4, v6
        v_lshl_or_b32 v5, v8, 1, v5
        v_and_b32 v8, 8, v6
        v_lshrrev_b32 v8, 1, v8
        v_or_b32 v5, v5, v8
        v_mul_u32_u24 v5, 1280, v5
        v_lshl_add_u32 v{10+i}, v7, 4, v5
        """)
    a.c("s33 = k-chunk rotation (0,3,5,8): workgroups sharing Wq columns start at different k")
    a(f"""
    s_sub_u32 s7, s6, 4
    s_lshl_b32 s49, s7, 5
    s_add_u32 s48, s48, s49
    s_mul_i32 s48, s48, 1280
    s_mul_i32 s49, s5, 160
    s_mul_i32 s54, s7, {16*1280}
    s_add_u32 s49, s49, s54
    s_lshl_b32 s54, s7, 12
    s_mul_i32 s51, s7, 2560
    s_add_u32 s51, s51, {XB}
    s_mul_i32 s33, s33, 5
    s_add_u32 s33, s33, 1
    s_lshr_b32 s33, s33, 1
    s_lshl_b32 s50, s7, 10
    s_waitcnt lgkmcnt(0)
    s_cmp_eq_u32 s3, 0
    """)
    srd_sel(a, 72, 10, 16, 640 * 1280)
    srd_sel(a, 40, 12, 18, 25600)
    srd_sel(a, 44, 14, 20, 25600)
    Q_ = []
    def kchunk(s):
        a(f"s_add_u32 s55, s33, {s}\ns_cmp_ge_u32 s55, 10\ns_cselect_b32 s56, 10, 0\ns_sub_u32 s55, s55, s56")
    def issue_x(s):
        kchunk(s)
        a("s_lshl_b32 s55, s55, 7\ns_add_u32 s55, s55, s48")
        for i in range(4):
            a(f"s_add_u32 m0, s54, {SLOT[SMAP[s]] + 1024*i}\ns_add_u32 s56, s55, {i*8*1280}")
            a("buffer_load_dwordx4 v2, s[36:39], s56 offen lds")
        Q_.append((f"X{s}", 4))
    def issue_w(s):
        kchunk(s)
        a(f"s_mul_i32 s55, s55, {64*1280}\ns_add_u32 s55, s55, s49")
        for i in range(3):
            a(f"s_add_u32 m0, s51, {SLOT[SMAP[s]] + 1024*i}")
            a("s_mov_b32 exec_hi, 0" if i == 2 else "s_nop 0")
            a(f"buffer_load_dwordx4 v{10+i}, s[72:75], s55 offen lds")
        a("s_mov_b32 exec_hi, -1")
        Q_.append((f"W{s}", 3))
    def issue_st(s): issue_w(s); issue_x(s)
    def issue_small():
        a.c("wk / wv: KB lw+4j; the 7th round only exists for lw = 0 (others take a zero-length detour through the same count)")
        for j in range(6):
            a(f"s_add_u32 m0, s50, {L_WK + 4096*j}\ns_add_u32 s53, s50, {4096*j}\nbuffer_load_dwordx4 v3, s[40:43], s53 offen lds")
            a(f"s_add_u32 m0, s50, {L_WV + 4096*j}\ns_nop 0\nbuffer_load_dwordx4 v3, s[44:47], s53 offen lds")
        a.c("last KB: 256 B per loader wave")
        a(f"""
        s_lshl_b32 s53, s7, 8
        s_add_u32 s53, s53, {24*1024}
        s_mov_b64 exec, 0xffff
        s_add_u32 m0, s53, {L_WK}
        s_nop 0
        buffer_load_dwordx4 v3, s[40:43], s53 offen lds
        s_add_u32 m0, s53, {L_WV}
        s_nop 0
        buffer_load_dwordx4 v3, s[44:47], s53 offen lds
        s_mov_b64 exec, -1
        """)
        Q_.append(("SM", 14))
    def younger(name):
        i = [n for n, _ in Q_].index(name)
        return sum(c for _, c in Q_[i+1:])
    lb_ = [0]
    def lbar(name, extra5=0):
        i = lb_[0]; lb_[0] += 1
        n = younger(name)
        if opt("probeB"): stamp(a, 1 + i if i < 10 else 11)
        if extra5:
            a(f"s_cmp_eq_u32 s6, 5\ns_cbranch_scc0 L_LW{i}\ns_waitcnt vmcnt({n+extra5})\ns_branch L_LX{i}\nL_LW{i}:\ns_waitcnt vmcnt({n})\nL_LX{i}:")
        else:
            a(f"s_waitcnt vmcnt({n})")
        a("s_barrier")
    issue_w(0)
    srd(a, 36, 8, 9, 2048 * 1280)
    srd(a, 28, 24, 25, WS_END)
    issue_w(1); issue_w(2)
    a(f"s_mov_b32 s53, {FL_EPOCH}\nbuffer_load_dword v9, v4, s[28:31], s53 offen sc1")
    RL = 152; RA = RL + 64; RS = RA + 12
    a.c("wo re-layout job (wave 5): cb = wg&7, G = 5*(wg>>3) + l/10, octet = l%10 (50 lanes); addresses now, data later")
    for i in [2, 3] + list(range(12, 20)): a(f"v_mov_b32 v{RA+i}, 0")
    a("s_cmp_eq_u32 s6, 5\ns_cbranch_scc0 L_NORL")
    t = RL + 32
    U = RA + 11
    a(f"""
    s_lshr_b32 s56, s2, 3
    s_mul_i32 s56, s56, 5
    s_and_b32 s57, s2, 7
    s_mul_i32 s32, s57, 160
    s_lshr_b32 s35, s2, 7
    s_mul_i32 s35, s35, {40*1280}
    s_add_u32 s32, s32, s35
    v_mul_u32_u24 v{U}, 6554, v0
    v_lshrrev_b32 v{U}, 16, v{U}
    v_mul_u32_u24 v{RA}, 10, v{U}
    v_sub_u32 v{RA}, v0, v{RA}
    v_add_u32 v{t}, s56, v{U}
    v_and_b32 v{RA+1}, 1, v{t}
    v_lshrrev_b32 v{RA+2}, 1, v{t}
    v_lshlrev_b32 v{RA+2}, 3, v{RA+2}
    """)
    for e in range(8):
        a(f"""
        v_add_u32 v{t}, {e}, v{RA+2}
        v_mul_u32_u24 v{t+1}, 6554, v{t}
        v_lshrrev_b32 v{t+1}, 16, v{t+1}
        v_mul_u32_u24 v{t+2}, 10, v{t+1}
        v_sub_u32 v{t+2}, v{t}, v{t+2}
        v_and_b32 v{t}, 14, v{t+1}
        v_and_b32 v{t+1}, 1, v{t+1}
        v_lshl_add_u32 v{t+1}, v{t}, 1, v{t+1}
        v_mul_u32_u24 v{t+1}, 20, v{t+1}
        v_and_b32 v{t}, 3, v{t+2}
        v_add_u32 v{t+1}, v{t+1}, v{t}
        v_lshrrev_b32 v{t}, 2, v{t+2}
        v_lshl_add_u32 v{t+1}, v{t}, 3, v{t+1}
        v_lshrrev_b32 v{t}, 3, v{t+2}
        v_sub_u32 v{t}, 2, v{t}
        v_lshlrev_b32 v{t}, v{t}, v{RA+1}
        v_add_u32 v{t+1}, v{t+1}, v{t}
        v_mul_u32_u24 v{t+1}, 1280, v{t+1}
        v_lshl_add_u32 v{RS+e}, v{RA}, 4, v{t+1}
        """)
    for z in range(2):
        a(f"""
        v_lshlrev_b32 v{t+2}, 1, v{RA}
        v_add_u32 v{t+2}, {z}, v{t+2}
        v_mul_u32_u24 v{t}, 52, v{t+2}
        v_lshrrev_b32 v{t}, 8, v{t}
        v_mul_u32_u24 v{t+3}, 5, v{t}
        v_sub_u32 v{t+3}, v{t+2}, v{t+3}
        v_mul_u32_u24 v{t+3}, 40960, v{t+3}
        v_lshl_add_u32 v{t+3}, v{U}, 8, v{t+3}
        v_lshl_add_u32 v{RA+2+z}, v{t}, 6, v{t+3}
        """)
    a(f"""
    s_mul_i32 s35, s57, {5*40960}
    s_lshl_b32 s56, s56, 8
    s_add_u32 s35, s35, s56
    s_add_u32 s35, s35, {WS_WO}
    L_NORL:
    v_and_b32 v13, 31, v0
    v_lshlrev_b32 v13, 7, v13
    s_lshl_b32 s57, s3, 12
    s_add_u32 s57, s57, {FL_KV}
    s_mul_i32 s18, s3, {KV_BYTES}
    """)
    issue_small(); issue_x(0)
    if not opt("probeB"): stamp(a, 1)
    lbar("SM")
    a("v_readfirstlane_b32 s34, v9")
    issue_x(1); issue_x(2)
    a("s_mul_i32 s34, s34, 0x9e3779b1\ns_add_u32 s34, s34, 0x7f4a7c15")
    if not opt("probeB"): stamp(a, 2)
    lbar("X0"); issue_st(3)
    if opt("dbl"): issue_st(4)
    lbar("X1")
    if not opt("dbl"): issue_st(4)
    if opt("dbl"):
        issue_st(5); lbar("X2"); issue_st(6); lbar("X3"); issue_st(7); lbar("X4"); lbar("X5"); issue_st(8); lbar("X6"); issue_st(9); lbar("X7")
    else:
        lbar("X2"); issue_st(5); lbar("X3"); issue_st(6); lbar("X4"); issue_st(7); lbar("X5"); issue_st(8); lbar("X6"); issue_st(9); lbar("X7")
    a.c("wave 4: one look at the K/V flags; if complete, fetch the first tiles of the image early")
    def chunk0():
        for r in range(NCH0):
            a(f"s_mov_b32 m0, {1024*r}\ns_add_u32 s20, s18, {1024*r}")
            a("buffer_load_dwordx4 v3, s[28:31], s20 offen sc1 lds")
    a("""
    s_cmp_eq_u32 s6, 4
    s_cbranch_scc0 L_N4
    s_mov_b32 exec_hi, 0
    buffer_load_dwordx4 v[16:19], v13, s[28:31], s57 offen sc1
    s_waitcnt vmcnt(1)
    s_barrier
    s_waitcnt vmcnt(0)
    v_cmp_ne_u32 vcc, s34, v16
    v_cmp_ne_u32 s[58:59], s34, v17
    s_or_b64 vcc, vcc, s[58:59]
    v_cmp_ne_u32 s[58:59], s34, v18
    s_or_b64 vcc, vcc, s[58:59]
    v_cmp_ne_u32 s[58:59], s34, v19
    s_or_b64 vcc, vcc, s[58:59]
    s_mov_b32 exec_hi, -1
    s_cmp_eq_u64 vcc, 0
    s_cbranch_scc1 L_EARLY
    s_barrier
    s_mov_b32 s20, -1
    s_mov_b32 s21, 0
    """)
    if opt("probeB"): a("s_branch L_FIN")
    stamp(a, 3)
    poll(a, "L_PKV", 13, "s57", 4, 16, mask="s[20:21]", preloaded=False)
    stamp(a, 4)
    chunk0()
    a("s_branch L_ATT\nL_EARLY:")
    for r in range(8):
        a(f"s_mov_b32 m0, {1024*r}\ns_add_u32 s20, s18, {1024*r}")
        a("buffer_load_dwordx4 v3, s[28:31], s20 offen sc1 lds")
    a("s_barrier")
    if opt("probeB"): a("s_branch L_FIN")
    stamp(a, 3); stamp(a, 4)
    for r in range(8, NCH0):
        a(f"s_mov_b32 m0, {1024*r}\ns_add_u32 s20, s18, {1024*r}")
        a("buffer_load_dwordx4 v3, s[28:31], s20 offen sc1 lds")
    a("s_branch L_ATT\nL_N4:")
    lbar("X8")
    lbar("X9")
    if opt("probeB"): a("s_branch L_FIN2")
    stamp(a, 3)

    Q1 = [4, 12]; Q2 = [8, 16]
    AK1, AK2, AV, IDX, G = 1, 2, 3, 10, 11
    T0, T1, T2, T3 = 18, 19, 20, 21
    M = [22, 23]
    KF1 = [24, 32]; KF2 = [28, 36]
    VF = [40, 48]
    O = [56, 72]
    S = [88, 104, 120, 136]
    WO = 152; PT = 252; OA = 30
    a("L_ATT:")
    a.c("s12 = rt32 ; s13 = hp ; s14 = bh0")
    a(f"""
    s_and_b32 s15, s6, 3
    s_lshl_b32 s13, s4, 2
    s_add_u32 s12, s15, s13
    s_lshr_b32 s13, s6, 2
    s_lshl_b32 s14, s3, 5
    s_lshl_b32 s16, s5, 2
    s_add_u32 s14, s14, s16
    s_lshl_b32 s16, s13, 1
    s_add_u32 s14, s14, s16
    s_mul_i32 s15, s15, 5120
    s_mul_i32 s16, s13, 2560
    s_add_u32 s15, s15, s16
    s_add_u32 s15, s15, {L_QX}
    v_lshlrev_b32 v{AK1}, 4, v0
    v_and_b32 v{T0}, 31, v0
    v_lshrrev_b32 v{T1}, 5, v0
    v_lshlrev_b32 v{AK2}, 3, v{T0}
    v_lshl_add_u32 v{AK2}, v{T1}, 2, v{AK2}
    v_add_u32 v{T2}, s15, v{AK1}
    v_add_u32 v{T3}, s15, v{AK2}
    s_waitcnt lgkmcnt(0)
    s_barrier
    ds_read_b128 {vr(Q1[0],4)}, v{T2}
    ds_read_b32 v{Q2[0]}, v{T3} offset:1024
    ds_read_b128 {vr(Q1[1],4)}, v{T2} offset:1280
    ds_read_b32 v{Q2[1]}, v{T3} offset:2304
    v_cmp_lt_u32 vcc, 19, v{T0}
    v_subrev_u32 v{T2}, 2, v{T0}
    v_mul_u32_u24 v{AV}, 20, v{T1}
    v_cndmask_b32 v{T2}, v{T0}, v{T2}, vcc
    v_add_lshl_u32 v{AV}, v{AV}, v{T2}, 4
    v_mov_b32 v{IDX}, 0xdddddddd
    s_mov_b32 s36, 0x0033ffff
    s_mov_b32 s37, 0x0033ffff
    s_mov_b32 s38, 0
    s_mov_b32 s39, -1
    s_mov_b32 s40, 0xffff0000
    s_mov_b32 s41, 1
    s_mov_b32 s42, 1
    s_mov_b32 s45, 0xffff
    """)
    for b in range(2):
        a(f"v_mov_b32 v{KF2[b]+1}, 0x3f803f80")
        for i in range(8): a(f"v_mov_b32 v{VF[b]+i}, 0")
    a("s_mov_b32 exec_lo, 0x00440000\ns_mov_b32 exec_hi, 0x00440000")
    for b in range(2):
        for i in range(8): a(f"v_mov_b32 v{VF[b]+i}, 0x3f803f80")
    a("s_mov_b64 exec, -1")
    a("s_cmp_eq_u32 s6, 4\ns_cbranch_scc0 L_BQ2\ns_waitcnt vmcnt(0)\nL_BQ2:\ns_waitcnt lgkmcnt(0)\ns_barrier")
    stamp(a, 5)
    a.c("gate factor of this lane's row")
    a(f"""
    s_lshl_b32 s17, s3, 6
    s_add_u32 s17, s17, s12
    s_lshl_b32 s17, s17, 7
    s_add_u32 s17, s17, {WS_G}
    v_lshlrev_b32 v{T2}, 2, v{T0}
    buffer_load_dword v{G}, v{T2}, s[28:31], s17 offen sc1
    """)
    a.c("O address (v30 + s26): rt16 = 2*rt32 + (row>>4) ; G = 2f + h ; f0 = floor(20*block/8), block = 16hp + 8branch + hg")
    a(f"""
    s_mul_i32 s26, s12, 81920
    s_lshl_b32 s27, s13, 1
    s_add_u32 s27, s27, s3
    s_lshl_b32 s27, s27, 3
    s_add_u32 s27, s27, s5
    s_mul_i32 s27, s27, 5
    s_lshr_b32 s27, s27, 1
    s_lshl_b32 s27, s27, 9
    s_add_u32 s26, s26, s27
    s_add_u32 s26, s26, {WS_O}
    v_lshrrev_b32 v{OA}, 4, v{T0}
    v_mul_u32_u24 v{OA}, 40960, v{OA}
    v_lshl_add_u32 v{OA}, v{T1}, 8, v{OA}
    v_and_b32 v{T3}, 15, v0
    v_lshl_add_u32 v{OA}, v{T3}, 4, v{OA}
    s_cmp_eq_u32 s13, 0
    s_cbranch_scc1 L_RETRY
    """)
    a.c("waves 4-7: rest of the K/V image")
    a(f"s_add_u32 s19, s50, {1024*(NCH0-1)}\ns_add_u32 s18, s18, s19")
    for r in range(34):
        if r == 0: a("s_cmp_eq_u32 s6, 4\ns_cbranch_scc1 L_SK0")
        a(f"s_add_u32 m0, s19, {4096*r}\ns_add_u32 s20, s18, {4096*r}")
        a(f"buffer_load_dwordx4 v{AK1}, s[28:31], s20 offen sc1 lds")
        if r == 0: a("L_SK0:")
    a("s_cmp_eq_u32 s6, 5\ns_cbranch_scc0 L_RETRY\ns_bitcmp0_b32 s2, 6")
    srd_sel(a, 72, 68, 22, 640 * 1280)
    a("s_mov_b32 exec_hi, 0x3ffff")
    for e in range(8):
        a(f"buffer_load_dwordx4 {vr(RL+4*e,4)}, v{RS+e}, s[72:75], s32 offen")
    a("s_mov_b32 exec_hi, -1")
    a("L_RETRY:")
    a(f"v_mov_b32 v{T2}, v{AK1}\nv_mov_b32 v{T3}, v{AK2}\ns_mov_b32 s43, s41")
    for j in range(2):
        a(f"v_mov_b32 v{Q2[j]+1}, 0\nv_mov_b32 v{M[j]}, 0xff800000")
    a("L_MAXL:")
    a(f"ds_read_b128 {vr(KF1[0],4)}, v{T2}\nds_read_b32 v{KF2[0]}, v{T3} offset:1024")
    a(f"v_add_u32 v{T2}, 2560, v{T2}\nv_add_u32 v{T3}, 2560, v{T3}")
    for i in range(16): a(f"v_mov_b32 v{S[3]+i}, 0")
    a("s_waitcnt lgkmcnt(0)")
    for j in range(2):
        a(f"v_mfma_f32_32x32x16_bf16 {vr(S[j],16)}, {vr(KF1[0],4)}, {vr(Q1[j],4)}, 0")
        for i in range(8): a(f"v_mov_b32 v{O[j]+i}, 0")
        a(f"v_mfma_f32_32x32x8_bf16 {vr(S[j],16)}, {vr(KF2[0],2)}, {vr(Q2[j],2)}, {vr(S[j],16)}")
        for i in range(8, 16): a(f"v_mov_b32 v{O[j]+i}, 0")
    for j in range(2):
        for i in range(8):
            a(f"v_max3_f32 v{M[j]}, v{S[j]+2*i}, v{S[j]+2*i+1}, v{M[j]}")
    a("s_sub_u32 s43, s43, 1\ns_cmp_lg_u32 s43, 0\ns_cbranch_scc1 L_MAXL")
    def rdK(b, off):
        return [f"ds_read_b128 {vr(KF1[b],4)}, v{AK1} offset:{off}", f"ds_read_b32 v{KF2[b]}, v{AK2} offset:{off+1024}"]
    def rdV(b, off):
        return ["s_mov_b64 exec, s[36:37]",
                f"ds_read_b128 {vr(VF[b],4)}, v{AV} offset:{off+1280}", f"ds_read_b128 {vr(VF[b]+4,4)}, v{AV} offset:{off+1920}",
                "s_mov_b64 exec, -1"]
    TA = [S[2], S[2] + 1]; TB = [S[2] + 2, S[2] + 3]
    for j in range(2): a(f"v_mov_b32 v{TA[j]}, v{M[j]}")
    for x in rdK(0, 0) + rdK(1, 2560) + rdV(1, 0): a(x)
    a.c("-m split into bf16 pieces that ride in the spare k-slots; first pass keeps only the leading piece (s45)")
    seq = ["v_permlane32_swap_b32 v{m}, v{ta}", "s_nop 0", "v_max_f32 v{m}, v{m}, v{ta}", "v_xor_b32 v{m}, 0x80000000, v{m}",
           "v_and_b32 v{ta}, s40, v{m}", "v_sub_f32 v{tb}, v{m}, v{ta}", "v_lshrrev_b32 v{ta}, 16, v{ta}",
           "v_and_or_b32 v{ta}, v{tb}, s40, v{ta}", "v_and_b32 v{m}, s40, v{tb}", "v_sub_f32 v{tb}, v{tb}, v{m}",
           "v_and_b32 v{tb}, s40, v{tb}", "v_cndmask_b32 v{ta}, v{ta}, v{tb}, s[38:39]", "v_and_b32 v{q}, s45, v{ta}"]
    for x in seq:
        for j in range(2):
            if x == "s_nop 0" and j == 1: continue
            a(x.format(m=M[j], ta=TA[j], tb=TB[j], q=Q2[j] + 1))
    a("s_waitcnt lgkmcnt(0)")
    def qk1(u, kb): return f"v_mfma_f32_32x32x16_bf16 {vr(S[u%4],16)}, {vr(KF1[kb],4)}, {vr(Q1[u%2],4)}, 0"
    def qk2(u, kb): return f"v_mfma_f32_32x32x8_bf16 {vr(S[u%4],16)}, {vr(KF2[kb],2)}, {vr(Q2[u%2],2)}, {vr(S[u%4],16)}"
    def pv(u, vb, i): return f"v_smfmac_f32_32x32x32_bf16 {vr(O[u%2],16)}, {vr(VF[vb]+4*i,4)}, {vr(S[u%4]+8*i,8)}, v{IDX}"
    a(qk1(0, 0)); a(qk2(0, 0))
    a.c("waves 4-7 (first pass): image complete -> S1 now; waves 0-3 meet it after their first 8 tiles")
    a(f"""
    s_mov_b32 s44, 8
    s_and_b32 s43, s42, s13
    s_cmp_eq_u32 s43, 0
    s_cbranch_scc1 L_NOS1
    s_waitcnt vmcnt(8)
    s_cmp_eq_u32 s6, 5
    s_cbranch_scc1 L_S1
    s_waitcnt vmcnt(0)
    L_S1:
    s_barrier
    s_setprio 3
    s_branch L_PR
    L_NOS1:
    s_setprio 2
    L_PR:
    s_nop 6
    """)
    stamp(a, 6)
    a(".p2align 6\nL_LOOP:")
    for t in range(8):
        for j in range(2):
            u = 2 * t + j
            b = (t + j) % 2
            ex = [f"v_exp_f32 v{S[u%4]+i}, v{S[u%4]+i}" for i in range(16)]
            extra = [[], [], [], []]
            if j == 1:
                a("s_waitcnt lgkmcnt(0)")
                extra[0] = rdK(t % 2, (t + 2) * 2560)
                extra[1] = rdV(t % 2, (t + 1) * 2560)
            ms = [qk1(u + 1, b), qk2(u + 1, b), pv(u - 1, b, 0), pv(u - 1, b, 1)]
            for g in range(4):
                a(ms[g])
                for x in ex[4 * g:4 * g + 2]: a(x)
                for x in extra[g]: a(x)
                for x in ex[4 * g + 2:4 * g + 4]: a(x)
    a(f"v_add_u32 v{AK1}, 20480, v{AK1}\nv_add_u32 v{AK2}, 20480, v{AK2}\nv_add_u32 v{AV}, 20480, v{AV}")
    a(f"""
    s_lshl_b32 s43, s13, 4
    s_add_u32 s43, s43, s44
    s_cmp_eq_u32 s43, {16 + optv("nl", 3)}
    s_cbranch_scc0 L_P1
    s_setprio 1
    L_P1:
    s_cmp_eq_u32 s42, 0
    s_cbranch_scc1 L_NEXT
    s_cmp_eq_u32 s44, 8
    s_cbranch_scc0 L_E0
    s_cmp_eq_u32 s13, 0
    s_cbranch_scc0 L_RL2
    s_barrier
    s_branch L_NEXT
    L_RL2:
    s_cmp_eq_u32 s6, 5
    s_cbranch_scc0 L_POIS
    s_mov_b32 s56, 0x05040100
    s_mov_b32 s57, 0x07060302
    s_mov_b32 exec_hi, 0x3ffff
    s_waitcnt vmcnt(0)
    """)
    a.c("wo re-layout: 8x8 16-bit transposition in registers")
    for c in range(8):
        for r in range(4):
            a(f"v_perm_b32 v{RL+32+4*c+r}, v{RL+4*(2*r+1)+c//2}, v{RL+4*(2*r)+c//2}, {'s56' if c % 2 == 0 else 's57'}")
        a(f"buffer_store_dwordx4 {vr(RL+32+4*c,4)}, v{RA+2+c//4}, s[28:31], s35 offen offset:{(c%4)*16} sc1")
    a("s_mov_b32 exec_hi, -1\ns_branch L_NEXT\nL_POIS:")
    a.c("waves 4,6,7: mark this workgroup's share of the O hand-off buffer as not yet written (rt16 = 8rb + i, slice 8*branch+hg); one KB column each")
    a(f"""
    s_mul_i32 s55, s4, {8*40960}
    s_lshl_b32 s56, s3, 3
    s_add_u32 s56, s56, s5
    s_mul_i32 s56, s56, 2560
    s_add_u32 s55, s55, s56
    s_add_u32 s55, s55, {WS_O}
    s_sub_u32 s56, s6, 5
    s_max_i32 s56, s56, 0
    s_lshl_b32 s56, s56, 10
    s_add_u32 s55, s55, s56
    v_lshlrev_b32 v{T2}, 4, v0
    v_mov_b32 v{PT}, -1
    v_mov_b32 v{PT+1}, -1
    v_mov_b32 v{PT+2}, -1
    v_mov_b32 v{PT+3}, -1
    s_cmp_eq_u32 s6, 7
    s_cselect_b32 exec_hi, 0, -1
    """)
    for i in range(8):
        a(f"buffer_store_dwordx4 {vr(PT,4)}, v{T2}, s[28:31], s55 offen sc1\ns_add_u32 s55, s55, 40960")
    a(f"""
    s_mov_b32 exec_hi, -1
    s_branch L_NEXT
    L_E0:
    s_cmp_eq_u32 s43, {16 + 6}
    s_cbranch_scc0 L_E1
    s_lshl_b32 s56, s2, 2
    s_add_u32 s56, s56, s6
    s_lshl_b32 s56, s56, 2
    s_add_u32 s56, s56, {FL_W - 16}
    v_mov_b32 v{T3}, 0
    s_waitcnt vmcnt(0)
    """)
    flag_store(a, "s56", T2, T3)
    a.c("flags to see: lanes 0-31 the workgroups that re-lay this tile's Wo columns, lanes 32-63 the row group")
    a(f"""
    s_branch L_NEXT
    L_E1:
    s_cmp_eq_u32 s44, 4
    s_cbranch_scc0 L_E2
    v_lshl_add_u32 v{T2}, v{T0}, 3, s5
    v_and_b32 v{T3}, 14, v0
    v_lshlrev_b32 v{T3}, 4, v{T3}
    v_and_or_b32 v{T3}, v0, 1, v{T3}
    s_and_b32 s57, s2, 0x1e
    v_or_b32 v{T3}, s57, v{T3}
    v_cndmask_b32 v{T2}, v{T2}, v{T3}, s[38:39]
    v_lshlrev_b32 v{T2}, 4, v{T2}
    s_mov_b32 s57, {FL_W}
    buffer_load_dwordx4 {vr(PT,4)}, v{T2}, s[28:31], s57 offen sc1
    s_branch L_NEXT
    L_E2:
    s_cmp_eq_u32 s44, 3
    s_cbranch_scc0 L_NEXT
    """)
    poll(a, "L_PW", T2, "s57", 4, PT, sleep=8)
    a.c("prefetch this wave's Wo fragments: [cb=hg][ct][f32 = 5w+st]")
    a(f"""
    s_mul_i32 s56, s5, {5*40960}
    s_mul_i32 s57, s6, 5120
    s_add_u32 s56, s56, s57
    s_add_u32 s56, s56, {WS_WO}
    v_lshlrev_b32 v{T2}, 4, v0
    v_add_u32 v{T3}, 4096, v{T2}
    """)
    for ct in range(5):
        for st in range(5):
            av = T2 if st < 4 else T3
            a(f"buffer_load_dwordx4 {vr(WO+(st*5+ct)*4,4)}, v{av}, s[28:31], s56 offen offset:{(st%4)*1024} sc1")
        if ct < 4: a("s_add_u32 s56, s56, 40960")
    a("L_NEXT:")
    a("s_sub_u32 s44, s44, 1\ns_cmp_lg_u32 s44, 0\ns_cbranch_scc1 L_LOOP")
    stamp(a, 7)
    a(pv(15, 0, 0)); a(pv(15, 0, 1))
    a(f"""
    s_setprio 3
    v_subrev_u32 v{AK1}, {KV_BYTES}, v{AK1}
    v_subrev_u32 v{AK2}, {KV_BYTES}, v{AK2}
    v_subrev_u32 v{AV}, {KV_BYTES}, v{AV}
    s_mov_b32 s46, {f32bits(2.0**-40)}
    s_mov_b32 s47, {f32bits(2.0**40)}
    s_mov_b32 s42, 0
    s_mov_b32 s23, -2
    s_nop 3
    s_waitcnt vmcnt(0) lgkmcnt(0)
    """)
    a.c("run-time safety check of the stand-in max: row sums must lie in [2^-40, 2^40], else redo with the true max")
    a(f"""
    v_cmp_le_f32 s[48:49], s46, v{O[0]+10}
    v_cmp_ge_f32 s[50:51], s47, v{O[0]+10}
    v_cmp_le_f32 s[52:53], s46, v{O[1]+10}
    v_cmp_ge_f32 s[54:55], s47, v{O[1]+10}
    v_rcp_f32 v{M[0]}, v{O[0]+10}
    v_rcp_f32 v{M[1]}, v{O[1]+10}
    s_and_b64 s[48:49], s[48:49], s[50:51]
    s_and_b64 s[52:53], s[52:53], s[54:55]
    s_and_b64 s[48:49], s[48:49], s[52:53]
    s_cmp_eq_u64 s[48:49], -1
    s_cbranch_scc1 L_OK
    s_cmp_eq_u32 s41, 64
    s_cbranch_scc1 L_OK
    s_mov_b32 s41, 64
    s_mov_b32 s45, -1
    s_branch L_RETRY
    L_OK:
    v_mul_f32 v{M[0]}, v{M[0]}, v{G}
    v_mul_f32 v{M[1]}, v{M[1]}, v{G}
    """)
    P = S[0]
    for j in range(2):
        for i in range(10): a(f"v_mul_f32 v{O[j]+i}, v{O[j]+i}, v{M[j]}")
        for i in range(5): a(f"v_cvt_pk_bf16_f32 v{P+5*j+i}, v{O[j]+2*i}, v{O[j]+2*i+1}")
    for i in range(10): a(f"v_min_u32 v{P+i}, s23, v{P+i}")
    a(f"""
    s_and_b32 s21, s5, 1
    s_cbranch_scc1 L_ST1
    buffer_store_dwordx4 {vr(P,4)}, v{OA}, s[28:31], s26 offen sc1
    buffer_store_dwordx4 {vr(P+4,4)}, v{OA}, s[28:31], s26 offen offset:512 sc1
    buffer_store_dwordx2 {vr(P+8,2)}, v{OA}, s[28:31], s26 offen offset:1024 sc1
    s_branch L_ST2
    L_ST1:
    buffer_store_dwordx2 {vr(P,2)}, v{OA}, s[28:31], s26 offen offset:8 sc1
    buffer_store_dwordx4 {vr(P+2,4)}, v{OA}, s[28:31], s26 offen offset:512 sc1
    buffer_store_dwordx4 {vr(P+6,4)}, v{OA}, s[28:31], s26 offen offset:1024 sc1
    L_ST2:
    s_setprio {optv("pe", 0)}
    """)
    OF = 16
    EA = [96, 116, 16, 36]
    a.c("phase E: tile rows 64*(2rb+branch).., columns 80*hg.. ; wave = K eighth")
    a(f"""
    s_lshl_b32 s16, s4, 1
    s_add_u32 s16, s16, s3
    v_mov_b32 v2, s34
    v_mov_b32 v3, 0
    v_lshlrev_b32 v5, 4, v0
    v_add_u32 v6, 4096, v5
    s_mul_i32 s17, s16, {4*40960}
    s_mul_i32 s18, s6, 5120
    s_add_u32 s17, s17, s18
    s_add_u32 s17, s17, {WS_O}
    v_add_u32 v7, s18, v5
    s_mov_b32 s21, s17
    """)
    a.c("row tiles are taken in an order rotated by hg: the CUs that share these rows miss on different lines")
    for i in range(4):
        a(f"s_add_u32 s22, s5, {i}\ns_and_b32 s22, s22, 3\ns_mul_i32 s22, s22, 40960\ns_add_u32 s{17+i}, s21, s22\nv_add_u32 v{8+i}, s22, v7")
    srd(a, 72, 66, 67, 2048 * 1280)
    a.c("out address (waves 0-3): row = 64*(2rb+branch) + 16w + n ; byte = row*1280 + hg*160 + rg*40")
    a(f"""
    s_mul_i32 s22, s6, 40960
    v_add_u32 v12, s22, v5
    s_lshl_b32 s22, s16, 6
    s_lshl_b32 s21, s6, 4
    s_add_u32 s22, s22, s21
    s_mul_i32 s22, s22, 1280
    s_mul_i32 s21, s5, 160
    s_add_u32 s22, s22, s21
    v_and_b32 v13, 15, v0
    v_mul_u32_u24 v13, 1280, v13
    v_lshrrev_b32 v14, 4, v0
    v_mul_u32_u24 v14, 40, v14
    v_add_u32 v13, v13, v14
    s_mov_b32 s60, {SPIN}
    """)
    def oload(rt, sc=" sc1"):
        for st in range(5):
            av = 5 if st < 4 else 6
            a(f"buffer_load_dwordx4 {vr(OF+(rt*5+st)*4,4)}, v{av}, s[28:31], s{17+rt} offen offset:{(st%4)*1024}{sc}")
    def ewrites(rt):
        return [f"ds_write_b128 v{8+rt}, {vr(EA[rt]+4*ct,4)} offset:{ct*1024}" for ct in range(5)]
    def egemm(tag, wr, bar=-1):
        for rt in range(4):
            if rt == bar: a("s_barrier")
            a(f"L_CH{tag}{rt}:\ns_waitcnt vmcnt({15 - 5*rt})")
            a.c("hand-off check: no word may still hold the not-yet-written mark")
            b = OF + rt * 20
            a(f"v_max3_u32 v15, v{b}, v{b+1}, v{b+2}\nv_max3_u32 v4, v{b+3}, v{b+4}, v{b+5}")
            for i in range(6, 20, 4):
                a(f"v_max3_u32 v15, v{b+i}, v{b+i+1}, v15")
                if i + 2 < 20: a(f"v_max3_u32 v4, v{b+i+2}, v{b+i+3}, v4")
            a(f"""
            v_max_u32 v15, v15, v4
            v_cmp_eq_u32 vcc, -1, v15
            s_cmp_eq_u64 vcc, 0
            s_cbranch_scc1 L_GO{tag}{rt}
            s_cmp_eq_u32 s60, 0
            s_cbranch_scc1 L_GO{tag}{rt}
            s_sub_u32 s60, s60, 1
            s_waitcnt vmcnt(0)
            s_sleep {optv("slp", 4)}
            """)
            for r2 in range(rt, 4): oload(r2)
            a(f"s_branch L_CH{tag}{rt}\nL_GO{tag}{rt}:")
            if wr and rt >= 1:
                for x in ewrites(rt - 1): a(x)
            for st in range(5):
                for ct in range(5):
                    d = vr(EA[rt] + 4 * ct, 4)
                    a(f"v_mfma_f32_16x16x32_bf16 {d}, {vr(WO+(st*5+ct)*4,4)}, {vr(OF+(rt*5+st)*4,4)}, {'0' if st == 0 else d}")
    def retries():
        if PROF: a(f"s_waitcnt lgkmcnt(0)\ns_sub_u32 s84, {SPIN}, s60\ns_mul_i32 s84, s84, 100\ns_add_u32 s84, s84, s76")
    a.c("every wave of this workgroup is past its last K/V read: LDS can be reused")
    a("s_barrier")
    if not opt("noack"): a("s_waitcnt vmcnt(0)")
    else: a(f"s_sleep {optv('dly', 4)}")
    stamp(a, 8)
    for rt in range(4): oload(rt)
    if PROF: a("s_waitcnt lgkmcnt(0)")
    a("s_cmp_eq_u32 s13, 0\ns_cbranch_scc1 L_ELEAD")
    egemm("B", True, optv("bar", 2))
    stamp(a, 10); retries()
    a("s_waitcnt lgkmcnt(5)\ns_nop 6")
    for x in ewrites(3): a(x)
    a("s_waitcnt lgkmcnt(0)\ns_barrier\ns_branch L_FIN")
    a("L_ELEAD:\ns_setprio 2")
    egemm("A", True)
    stamp(a, 9); retries()
    a("s_waitcnt lgkmcnt(5)\ns_nop 6")
    for x in ewrites(3): a(x)
    a("s_waitcnt lgkmcnt(0)\ns_barrier")
    R = 56
    def rsum(src0, keep):
        for src in range(4):
            for c in range(5):
                a(f"ds_read_b128 {vr(R+src*20+4*c,4)}, v12 offset:{(src0+src)*5120+c*1024}")
            if src == 1: a("s_waitcnt lgkmcnt(4)")
        a("s_waitcnt lgkmcnt(10)")
        for i in range(20): a(f"v_add_f32 v{R+i}, v{R+i}, v{R+20+i}")
        if keep:
            for i in range(20): a(f"v_add_f32 v{R+i}, v{R+i}, v{16+i}")
        a("s_waitcnt lgkmcnt(0)")
        for i in range(20): a(f"v_add_f32 v{R+40+i}, v{R+40+i}, v{R+60+i}")
        for i in range(20): a(f"v_add_f32 v{16+i}, v{R+i}, v{R+40+i}")
    rsum(0, False)
    a("s_barrier")
    stamp(a, 10)
    if PROF: a("s_waitcnt lgkmcnt(0)")
    rsum(4, True)
    for i in range(10): a(f"v_cvt_pk_bf16_f32 v{40+i}, v{16+2*i}, v{16+2*i+1}")
    a("""
    buffer_store_dwordx4 v[40:43], v13, s[72:75], s22 offen
    buffer_store_dwordx4 v[44:47], v13, s[72:75], s22 offen offset:16
    buffer_store_dwordx2 v[48:49], v13, s[72:75], s22 offen offset:32
    """)
    a.c("workgroup 0 advances the epoch: every workgroup has read it by now")
    a(f"""
    s_or_b32 s21, s2, s6
    s_cmp_eq_u32 s21, 0
    s_cbranch_scc0 L_FIN
    s_mov_b32 s21, {FL_EPOCH}
    s_mov_b64 exec, 1
    buffer_store_dword v2, v3, s[28:31], s21 offen sc1
    """)
    a("L_FIN:")
    if PROF: a("s_waitcnt vmcnt(0)")
    stamp(a, 11)
    a("L_FIN2:")
    stamp_flush(a)
    pf = optv("padfrom", -1)
    if pf >= 0:
        a(f"""
        s_cmp_ge_u32 s6, 4
        s_cbranch_scc1 L_END
        L_PAD:
        s_memrealtime s[58:59]
        s_waitcnt lgkmcnt(0)
        s_sub_u32 s58, s58, s{76+2*pf}
        s_cmp_lt_u32 s58, 10000
        s_cbranch_scc1 L_PAD
        """)
    a("L_END:\ns_endpgm")
    return f""".p2align 6
.amdhsa_kernel {N}
  .amdhsa_next_free_vgpr 256
  .amdhsa_next_free_sgpr 102
  .amdhsa_accum_offset 256
  .amdhsa_group_segment_fixed_size 0
  .amdhsa_kernarg_size 112
  .amdhsa_user_sgpr_count 2
  .amdhsa_user_sgpr_kernarg_segment_ptr 1
  .amdhsa_system_sgpr_workgroup_id_x 1
.end_amdhsa_kernel
"""

def main():
    ref = open(f"cdna_kernels/{NAME}.s.ref").read().split("\n")
    head = [l for l in ref if l.startswith(";") and "@launch" not in l]
    a = Asm()
    kd = gen(a)
    out = "\n".join(head) + "\n"
    out += "; @launch grid=(256,1,1) block=(512,1,1) lds=163840\n"
    out += '.amdgcn_target "amdgcn-amd-amdhsa--gfx950"\n.text\n'
    out += a.text().replace("offen sc1 lds", "offen lds") if opt("plainKV") else a.text()
    out += '.section .rodata,"a"\n' + kd
    path = ARGS[0] if ARGS and not ARGS[0].startswith("--") else f"cdna_kernels/{NAME}.s"
    open(path, "w").write(out)
main()
```

```python
import math, struct, sys

NAME = "gated_mix__grouped_kv_mqa__grouped_kv_mqa__prompt"
ARGS = sys.argv[1:]
def opt(n): return ("--" + n) in ARGS
def optv(n, d):
    for x in ARGS:
        if x.startswith("--" + n + "="): return int(x.split("=")[1])
    return d

KV_BYTES = 163840
WS_KV   = 0
WS_G    = 2 * KV_BYTES
WS_O    = WS_G + 16384
O_BYTES = 128 * 40 * 1024
WS_WO   = WS_O + O_BYTES
WO_BYTES = 8 * 5 * 40 * 1024
WS_FL   = WS_WO + WO_BYTES
FL_EPOCH = WS_FL
FL_KV   = WS_FL + 256
FL_W    = FL_KV + 8192
WS_END  = FL_W + 4096

def f32bits(x):
    return struct.unpack("<I", struct.pack("<f", x))[0]
QSCALE = f32bits((20 ** -0.5) * math.log2(math.e))
LOG2E = f32bits(math.log2(math.e))

class Asm:
    def __init__(self): self.l = []
    def __call__(self, s):
        for line in s.split("\n"):
            line = line.strip()
            if line: self.l.append(("" if line.endswith(":") else "  ") + line)
    def c(self, s): self.l.append("  ; " + s)
    def text(self): return "\n".join(self.l) + "\n"

def vr(b, n=1): return f"v{b}" if n == 1 else f"v[{b}:{b+n-1}]"

def srd(a, d, lo, hi, nbytes):
    a(f"s_mov_b32 s{d}, s{lo}\ns_mov_b32 s{d+1}, s{hi}\ns_mov_b32 s{d+2}, {nbytes}\ns_mov_b32 s{d+3}, 0x00020000")
def srd_sel(a, d, lo0, lo1, nbytes):
    a(f"s_cselect_b32 s{d}, s{lo0}, s{lo1}\ns_cselect_b32 s{d+1}, s{lo0+1}, s{lo1+1}\ns_mov_b32 s{d+2}, {nbytes}\ns_mov_b32 s{d+3}, 0x00020000")

PROF = opt("prof")
PROF_BASE = 16 << 20
NST = 12
def stamp(a, i):
    if PROF: a(f"s_memrealtime s[{76+2*i}:{77+2*i}]")
def stamp_flush(a):
    if not PROF: return
    a("s_waitcnt lgkmcnt(0)\ns_mov_b64 exec, 1")
    a(f"s_lshl_b32 s62, s2, 3\ns_add_u32 s62, s62, s6\ns_lshl_b32 s62, s62, 6\ns_add_u32 s62, s62, {PROF_BASE}")
    a("s_mov_b32 s30, 0x2000000\nv_mov_b32 v0, 0")
    for i in range(NST):
        a(f"v_mov_b32 v2, s{76+2*i}\nbuffer_store_dword v2, v0, s[28:31], s62 offen offset:{4*i}\ns_nop 1")

SPIN = 200000
def poll(a, lbl, addr_v, soff, width, tmp, mask=None, preloaded=True, sleep=1):
    ld = {1: "dword", 2: "dwordx2", 4: "dwordx4"}[width]
    a(f"s_mov_b32 s60, {SPIN}")
    if mask is not None: a(f"s_mov_b64 exec, {mask}")
    if preloaded: a(f"s_branch {lbl}_chk")
    a(f"{lbl}_ld:")
    a(f"buffer_load_{ld} {vr(tmp,width)}, v{addr_v}, s[28:31], {soff} offen sc1")
    a(f"{lbl}_chk:\ns_waitcnt vmcnt(0)")
    a(f"v_cmp_ne_u32 vcc, s34, v{tmp}")
    for i in range(1, width):
        a(f"v_cmp_ne_u32 s[58:59], s34, v{tmp+i}\ns_or_b64 vcc, vcc, s[58:59]")
    a(f"s_sub_u32 s60, s60, 1\ns_cbranch_scc1 {lbl}_ok")
    a(f"s_cmp_eq_u64 vcc, 0\ns_cbranch_scc1 {lbl}_ok\ns_sleep {sleep}\ns_branch {lbl}_ld\n{lbl}_ok:")
    if mask is not None: a("s_mov_b64 exec, -1")

def flag_store(a, soff, vtmp, vzero):
    a(f"v_mov_b32 v{vtmp}, s34\ns_mov_b64 exec, 1\nbuffer_store_dword v{vtmp}, v{vzero}, s[28:31], {soff} offen sc1\ns_mov_b64 exec, -1")

def gen(a):
    N = NAME + "_kernel"
    STG = 26624; XB = 16384
    L_WK = 0; L_WV = 25600; L_G = 51200; RING = 57344
    L_X16 = RING + 3 * STG
    L_QX = 143360
    a(f".globl {N}\n.p2align 8\n.type {N},@function\n{N}:")
    a("s_cmp_ge_u32 s2, 256\ns_cbranch_scc1 L_END")
    a("""
    s_load_dwordx8 s[8:15], s[0:1], 0
    s_load_dwordx8 s[16:23], s[0:1], 48
    s_load_dwordx2 s[24:25], s[0:1], 104
    s_load_dwordx4 s[64:67], s[0:1], 80
    s_load_dwordx2 s[68:69], s[0:1], 32
    """)
    stamp(a, 0)
    a.c("s3 = branch, s4 = rb (128-row block), s5 = hg (head group), s6 = wave, s33 = rb&3")
    a(f"""
    v_lshrrev_b32 v1, 6, v0
    v_and_b32 v0, 63, v0
    s_and_b32 s3, s2, 1
    s_xor_b32 s3, s3, {1 if opt("swapbr") else 0}
    v_readfirstlane_b32 s6, v1
    s_lshr_b32 s4, s2, 1
    s_and_b32 s4, s4, 3
    s_lshl_b32 s4, s4, 2
    s_lshr_b32 s33, s2, 3
    s_and_b32 s33, s33, 3
    s_add_u32 s4, s4, s33
    s_lshr_b32 s5, s2, 5
    v_lshlrev_b32 v3, 4, v0
    v_lshrrev_b32 v5, 3, v0
    v_and_b32 v6, 7, v0
    v_xor_b32 v6, v6, v5
    v_lshlrev_b32 v6, 4, v6
    v_mul_u32_u24 v2, 1280, v5
    v_add_u32 v2, v2, v6
    v_mov_b32 v4, 0
    s_lshl_b32 s48, s4, 7
    s_lshl_b32 s50, s6, 10
    s_cmp_ge_u32 s6, 4
    s_cbranch_scc1 L_LOADER
    """)
    SLOT = {"A": RING, "B": RING + STG, "C": RING + 2 * STG, "D": RING + 3 * STG, "F": 30720}
    SMAP = ["A", "B", "C", "D", "F", "A", "B", "C", "F", "A"]
    NCH0 = 25
    a(f"""
    s_lshl_b32 s49, s5, 4
    s_add_u32 s49, s48, s49
    s_mul_i32 s49, s49, 1280
    s_lshr_b32 s51, s6, 1
    s_lshl_b32 s51, s51, 7
    s_and_b32 s52, s6, 1
    s_mul_i32 s53, s52, {8*1280}
    s_add_u32 s51, s51, s53
    s_add_u32 s51, s51, s49
    s_lshr_b32 s54, s2, 3
    s_lshl_b32 s54, s54, 10
    s_waitcnt lgkmcnt(0)
    """)
    srd(a, 36, 8, 9, 2048 * 1280)
    a.c("lines no other CU of this XCD is asking for yet: x16 pieces w+4j, one KB of wk / wv (L2 warm-up), gate")
    for j in range(5):
        a(f"s_add_u32 m0, s50, {L_X16 + 4096*j}\ns_add_u32 s53, s51, {256*j}\nbuffer_load_dwordx4 v2, s[36:39], s53 offen lds")
        if j == 0:
            srd(a, 28, 24, 25, WS_END)
            a(f"""
            s_cmp_ge_u32 s6, 2
            s_cbranch_scc1 L_LA2
            s_cmp_eq_u32 s6, 0
            s_cselect_b32 s12, s12, s14
            s_cselect_b32 s13, s13, s15
            s_cselect_b32 s18, s18, s20
            s_cselect_b32 s19, s19, s21
            s_cmp_eq_u32 s3, 0
            """)
            srd_sel(a, 40, 12, 18, 25600)
            a(f"""
            buffer_load_dwordx4 v[248:251], v3, s[40:43], s54 offen
            s_branch L_LA3
            L_LA2:
            """)
            srd(a, 40, 64, 65, 1280)
            a(f"""
            s_lshl_b32 s53, s52, 10
            s_add_u32 m0, s53, {L_G}
            s_nop 0
            buffer_load_dwordx4 v3, s[40:43], s53 offen lds
            L_LA3:
            """)
    a(f"s_mov_b32 s53, {FL_EPOCH}\nbuffer_load_dword v9, v4, s[28:31], s53 offen sc1")
    if opt("cpf"):
        a.c("bring this kernel's own code into L2: 1 KB per workgroup of the XCD round (wave 2)")
        a(f"""
        s_cmp_eq_u32 s6, 2
        s_cbranch_scc0 L_NCPF
        s_getpc_b64 s[56:57]
        L_PCREF:
        s_sub_u32 s56, s56, L_PCREF-{N}
        s_subb_u32 s57, s57, 0
        v_add_u32 v7, s54, v3
        v_min_u32 v7, L_END-{N}-16, v7
        global_load_dwordx4 v[248:251], v7, s[56:57]
        L_NCPF:
        """)
    a.c("KV fragment addresses (wave: 0 K lo, 1 K hi + gate, 2 V lo, 3 V hi)")
    a(f"""
    v_and_b32 v5, 15, v0
    v_lshrrev_b32 v6, 4, v0
    v_and_b32 v7, 7, v0
    v_xor_b32 v7, v7, v6
    v_lshlrev_b32 v7, 4, v7
    v_lshl_add_u32 v10, v5, 7, v7
    v_add_u32 v14, {L_X16}, v10
    v_xor_b32 v15, 64, v14
    v_bfe_u32 v7, v0, 2, 2
    v_lshl_add_u32 v7, v6, 3, v7
    v_mul_u32_u24 v7, 40, v7
    v_and_b32 v8, 3, v0
    v_lshlrev_b32 v8, 3, v8
    s_cmp_eq_u32 s52, 0
    s_cselect_b32 s56, -1, 0
    s_cselect_b32 s57, 0, 32
    v_and_b32 v8, s56, v8
    s_cmp_lt_u32 s6, 2
    s_cselect_b32 s56, 0, {L_WV}
    s_add_u32 s57, s57, s56
    v_add3_u32 v18, v7, v8, s57
    v_lshlrev_b32 v19, 4, v6
    v_add_u32 v19, {L_G}, v19
    """)
    for i in range(8): a(f"v_mov_b32 v{20+i}, 0")
    ACC = 112; FR = 32; KVF = 152
    BASES = [SLOT["F"], SLOT["B"], SLOT["D"]]
    AXR = [232, 234, 236]; AWR = [238, 239, 240]
    def base_of(slot):
        o = SLOT[slot]
        i = max(k for k in range(3) if BASES[k] <= o)
        return i, o - BASES[i]
    a.c("Q-projection addresses and accumulators (set up while the loads fly)")
    a(f"""
    s_lshl_b32 s7, s6, 12
    v_add_u32 v11, s7, v10
    v_lshrrev_b32 v7, 1, v6
    v_lshlrev_b32 v7, 4, v7
    v_and_b32 v8, 1, v6
    v_lshl_add_u32 v7, v8, 2, v7
    v_bfe_u32 v8, v0, 2, 2
    v_add_u32 v7, v7, v8
    v_mul_u32_u24 v7, 160, v7
    v_and_b32 v8, 3, v0
    v_mul_u32_u24 v8, 40, v8
    v_add_u32 v7, v7, v8
    """)
    for k in range(3):
        a(f"v_add_u32 v{AXR[k]}, {BASES[k]}, v11\nv_xor_b32 v{AXR[k]+1}, 64, v{AXR[k]}\nv_add_u32 v{AWR[k]}, {BASES[k] + XB}, v7")
    for i in range(40): a(f"v_mov_b32 v{ACC+i}, 0")
    for i in (218, 219, 228, 229, 230, 231): a(f"v_mov_b32 v{i}, 0")
    a.c("K/V/gate store addresses: v12 (+ s58), exec mask s[60:61]; gate: v13 (+ s62), s63 = -+log2e")
    a(f"""
    s_lshl_b32 s58, s4, 2
    s_lshr_b32 s59, s5, 1
    s_add_u32 s58, s58, s59
    s_mul_i32 s58, s58, 2560
    s_mul_i32 s59, s3, {KV_BYTES}
    s_add_u32 s58, s58, s59
    s_and_b32 s59, s5, 1
    s_lshl_b32 s62, s3, 11
    s_add_u32 s62, s62, s48
    s_lshl_b32 s63, s5, 4
    s_add_u32 s62, s62, s63
    s_lshl_b32 s62, s62, 2
    s_add_u32 s62, s62, {WS_G}
    v_lshlrev_b32 v13, 2, v5
    s_lshl_b32 s63, s3, 31
    s_xor_b32 s63, s63, {LOG2E | 0x80000000}
    v_lshrrev_b32 v7, 1, v6
    v_and_b32 v8, 1, v6
    s_mov_b32 s27, {QSCALE}
    s_cmp_eq_u32 s6, 1
    s_cbranch_scc1 L_AD1
    s_cmp_ge_u32 s6, 2
    s_cbranch_scc1 L_AD2
    s_lshl_b32 s59, s59, 8
    s_add_u32 s58, s58, s59
    v_lshlrev_b32 v7, 9, v7
    v_lshl_add_u32 v7, v5, 4, v7
    v_lshl_add_u32 v12, v8, 3, v7
    s_mov_b64 s[60:61], -1
    s_branch L_AD3
    L_AD1:
    s_lshl_b32 s59, s59, 7
    s_add_u32 s58, s58, s59
    s_add_u32 s58, s58, 1024
    v_lshlrev_b32 v12, 3, v5
    s_mov_b64 s[60:61], 0xffff
    s_branch L_AD3
    L_AD2:
    s_mul_i32 s59, s59, 640
    s_add_u32 s58, s58, s59
    s_lshl_b32 s59, s52, 8
    s_add_u32 s58, s58, s59
    s_add_u32 s58, s58, 1280
    v_mul_u32_u24 v7, 320, v7
    v_lshl_add_u32 v7, v5, 4, v7
    v_lshl_add_u32 v12, v8, 3, v7
    s_cmp_eq_u32 s52, 0
    s_cselect_b32 s60, -1, 0x000f000f
    s_mov_b32 s61, s60
    s_mov_b32 s27, 1.0
    L_AD3:
    """)
    def kv_loop(kind, pre):
        per = 4 if kind == "G" else 3
        nb = 3 if kind == "G" else 5
        ring = nb + 1
        def rd(k):
            f = KVF + 12 * (k % ring)
            r = [f"ds_read_b128 {vr(f,4)}, v{14 + (k & 1)} offset:{(k >> 1) * 2048}"]
            for hf in range(2):
                r.append(f"ds_read_b64_tr_b16 {vr(f+4+2*hf,2)}, v18 offset:{(32*k + 4*hf)*40}")
            if kind == "G": r.append(f"ds_read_b128 {vr(f+8,4)}, v19 offset:{64*k}")
            return r
        def mm(k):
            f = KVF + 12 * (k % ring)
            if kind == "V": r = [f"v_mfma_f32_16x16x32_bf16 v[20:23], {vr(f,4)}, {vr(f+4,4)}, v[20:23]"]
            else: r = [f"v_mfma_f32_16x16x32_bf16 v[20:23], {vr(f+4,4)}, {vr(f,4)}, v[20:23]"]
            if kind == "G": r.append(f"v_mfma_f32_16x16x32_bf16 v[24:27], {vr(f+8,4)}, {vr(f,4)}, v[24:27]")
            return r
        for k in range(nb):
            for x in rd(k): a(x)
        for k in range(20):
            ahead = min(k + nb, 20) - (k + 1)
            a(f"s_waitcnt lgkmcnt({ahead * per})")
            for x in mm(k): a(x)
            if k + nb < 20:
                for x in rd(k + nb): a(x)
    def reads(s, ks):
        bi, base = base_of(SMAP[s])
        ax = AXR[bi] + ks; aw = AWR[bi]; f = FR + 28 * ks
        r = [f"ds_read_b128 {vr(f+4*rt,4)}, v{ax} offset:{base + rt*2048}" for rt in range(2)]
        for ct in range(5):
            for hf in range(2):
                r.append(f"ds_read_b64_tr_b16 {vr(f+8+4*ct+2*hf,2)}, v{aw} offset:{base + (32*ks + 8*hf)*160 + 8*ct}")
        return r
    def mf(ks, ct):
        f = FR + 28 * ks
        return [f"v_mfma_f32_16x16x32_bf16 {vr(ACC+(rt*5+ct)*4,4)}, {vr(f+8+4*ct,4)}, {vr(f+4*rt,4)}, {vr(ACC+(rt*5+ct)*4,4)}" for rt in range(2)]
    def stage(s):
        r0 = reads(s, 0); r1 = reads(s, 1)
        if s == 0:
            for x in r0: a(x)
        else:
            k = 0
            for ct in range(5):
                n = [4, 3, 3, 2, 0][ct]
                for x in r0[k:k+n]: a(x)
                k += n
                for x in mf(1, ct): a(x)
        issued1 = 0
        plan = [4, 4, 3, 1, 0]
        for ct in range(5):
            a(f"s_waitcnt lgkmcnt({(12 - (4 + 2*ct)) + issued1})")
            for x in mf(0, ct): a(x)
            for x in r1[issued1:issued1 + plan[ct]]: a(x)
            issued1 += plan[ct]
        a("s_waitcnt lgkmcnt(0)")
    PUB = optv("pub", 4)
    nb_ = [0]
    def cbar():
        i = nb_[0]; nb_[0] += 1
        if i == PUB: a("s_waitcnt vmcnt(0)")
        a("s_barrier")
        if opt("probeB"):
            stamp(a, 1 + i if i < 10 else 11); a("s_waitcnt lgkmcnt(0)")
            if i == 10: a("s_branch L_FIN2")
        if i == PUB:
            a.c("publish this workgroup's K/V slice (wave 0, one lane)")
            a(f"""
            s_cmp_eq_u32 s6, 0
            s_cbranch_scc0 L_NOPUB
            s_bfe_u32 s56, s2, 0x50001
            s_lshl_b32 s56, s56, 7
            s_lshl_b32 s57, s3, 12
            s_add_u32 s56, s56, s57
            s_lshr_b32 s57, s2, 6
            s_lshl_b32 s57, s57, 2
            s_add_u32 s56, s56, s57
            s_add_u32 s56, s56, {FL_KV}
            """)
            flag_store(a, "s56", 7, 4)
            a("L_NOPUB:")
    a("s_waitcnt vmcnt(0)")
    cbar()
    if not opt("probeB"):
        stamp(a, 1)
        if PROF: a("s_waitcnt lgkmcnt(0)")
    a("v_readfirstlane_b32 s34, v9")
    a("s_cmp_eq_u32 s6, 1\ns_cbranch_scc1 L_KV_G\ns_cmp_ge_u32 s6, 2\ns_cbranch_scc1 L_KV_V")
    kv_loop("K", None)
    a("s_branch L_KV_E\nL_KV_G:")
    kv_loop("G", None)
    a("""
    s_nop 7
    v_mul_f32 v24, s63, v24
    v_exp_f32 v24, v24
    s_nop 0
    v_add_f32 v24, 1.0, v24
    v_rcp_f32 v24, v24
    s_mov_b64 exec, 0xffff
    buffer_store_dword v24, v13, s[28:31], s62 offen sc1
    s_mov_b64 exec, -1
    s_branch L_KV_E
    L_KV_V:
    """)
    kv_loop("V", None)
    a("L_KV_E:")
    a.c("tag = f(epoch); the softmax scale rides on K")
    a("""
    s_mul_i32 s34, s34, 0x9e3779b1
    s_add_u32 s34, s34, 0x7f4a7c15
    s_nop 5
    v_mul_f32 v20, s27, v20
    v_mul_f32 v21, s27, v21
    v_mul_f32 v22, s27, v22
    v_mul_f32 v23, s27, v23
    v_cvt_pk_bf16_f32 v28, v20, v21
    v_cvt_pk_bf16_f32 v29, v22, v23
    s_mov_b64 exec, s[60:61]
    buffer_store_dwordx2 v[28:29], v12, s[28:31], s58 offen sc1
    s_mov_b64 exec, -1
    """)
    if not opt("probeB"):
        stamp(a, 2)
        if PROF: a("s_waitcnt lgkmcnt(0)")
    for s in range(10):
        cbar(); stage(s)
    for rt in range(2):
        for ct in range(5): a(mf(1, ct)[rt])
    stamp(a, 3)
    a.c("Q epilogue: pack, write fragments to LDS [w][head rg][1280]")
    a(f"""
    s_mul_i32 s7, s6, 5120
    s_add_u32 s7, s7, {L_QX}
    v_mul_u32_u24 v7, 1280, v6
    v_add_u32 v7, s7, v7
    v_lshl_add_u32 v8, v5, 3, v7
    v_lshl_add_u32 v7, v5, 4, v7
    """)
    for rt in range(2):
        P = FR + 12 * rt
        for i in range(10): a(f"v_cvt_pk_bf16_f32 v{P+i}, v{ACC+rt*20+2*i}, v{ACC+rt*20+2*i+1}")
        a(f"ds_write_b128 v7, {vr(P,4)} offset:{rt*256}")
        a(f"ds_write_b128 v7, {vr(P+4,4)} offset:{512+rt*256}")
        a(f"ds_write_b64 v8, {vr(P+8,2)} offset:{1024+rt*128}")
    a("s_branch L_ATT")

    a("L_LOADER:")
    a.c("Wq DMA source offsets for 3 instrs: q=64i+l, p=q/10, c=q%10, src row = swap bits 2,3 of p")
    for i in range(3):
        a(f"""
        v_add_u32 v5, {64*i}, v0
        v_mul_u32_u24 v6, 6554, v5
        v_lshrrev_b32 v6, 16, v6
        v_mul_u32_u24 v7, 10, v6
        v_sub_u32 v7, v5, v7
        v_and_b32 v5, 0x13, v6
        v_and_b32 v8, 4, v6
        v_lshl_or_b32 v5, v8, 1, v5
        v_and_b32 v8, 8, v6
        v_lshrrev_b32 v8, 1, v8
        v_or_b32 v5, v5, v8
        v_mul_u32_u24 v5, 1280, v5
        v_lshl_add_u32 v{10+i}, v7, 4, v5
        """)
    a.c("s33 = k-chunk rotation (0,3,5,8): workgroups sharing Wq columns start at different k")
    a(f"""
    s_sub_u32 s7, s6, 4
    s_lshl_b32 s49, s7, 5
    s_add_u32 s48, s48, s49
    s_mul_i32 s48, s48, 1280
    s_mul_i32 s49, s5, 160
    s_mul_i32 s54, s7, {16*1280}
    s_add_u32 s49, s49, s54
    s_lshl_b32 s54, s7, 12
    s_mul_i32 s51, s7, 2560
    s_add_u32 s51, s51, {XB}
    s_mul_i32 s33, s33, 5
    s_add_u32 s33, s33, 1
    s_lshr_b32 s33, s33, 1
    s_lshl_b32 s50, s7, 10
    s_waitcnt lgkmcnt(0)
    s_cmp_eq_u32 s3, 0
    """)
    srd_sel(a, 72, 10, 16, 640 * 1280)
    srd_sel(a, 40, 12, 18, 25600)
    srd_sel(a, 44, 14, 20, 25600)
    Q_ = []
    def kchunk(s):
        a(f"s_add_u32 s55, s33, {s}\ns_cmp_ge_u32 s55, 10\ns_cselect_b32 s56, 10, 0\ns_sub_u32 s55, s55, s56")
    def issue_x(s):
        kchunk(s)
        a("s_lshl_b32 s55, s55, 7\ns_add_u32 s55, s55, s48")
        for i in range(4):
            a(f"s_add_u32 m0, s54, {SLOT[SMAP[s]] + 1024*i}\ns_add_u32 s56, s55, {i*8*1280}")
            a("buffer_load_dwordx4 v2, s[36:39], s56 offen lds")
        Q_.append((f"X{s}", 4))
    def issue_w(s):
        kchunk(s)
        a(f"s_mul_i32 s55, s55, {64*1280}\ns_add_u32 s55, s55, s49")
        for i in range(3):
            a(f"s_add_u32 m0, s51, {SLOT[SMAP[s]] + 1024*i}")
            a("s_mov_b32 exec_hi, 0" if i == 2 else "s_nop 0")
            a(f"buffer_load_dwordx4 v{10+i}, s[72:75], s55 offen lds")
        a("s_mov_b32 exec_hi, -1")
        Q_.append((f"W{s}", 3))
    def issue_st(s): issue_w(s); issue_x(s)
    def issue_small():
        a.c("wk / wv: KB lw+4j; the 7th round only exists for lw = 0 (others take a zero-length detour through the same count)")
        for j in range(6):
            a(f"s_add_u32 m0, s50, {L_WK + 4096*j}\ns_add_u32 s53, s50, {4096*j}\nbuffer_load_dwordx4 v3, s[40:43], s53 offen lds")
            a(f"s_add_u32 m0, s50, {L_WV + 4096*j}\ns_nop 0\nbuffer_load_dwordx4 v3, s[44:47], s53 offen lds")
        a.c("last KB: 256 B per loader wave")
        a(f"""
        s_lshl_b32 s53, s7, 8
        s_add_u32 s53, s53, {24*1024}
        s_mov_b64 exec, 0xffff
        s_add_u32 m0, s53, {L_WK}
        s_nop 0
        buffer_load_dwordx4 v3, s[40:43], s53 offen lds
        s_add_u32 m0, s53, {L_WV}
        s_nop 0
        buffer_load_dwordx4 v3, s[44:47], s53 offen lds
        s_mov_b64 exec, -1
        """)
        Q_.append(("SM", 14))
    def younger(name):
        i = [n for n, _ in Q_].index(name)
        return sum(c for _, c in Q_[i+1:])
    lb_ = [0]
    def lbar(name, extra5=0):
        i = lb_[0]; lb_[0] += 1
        n = younger(name)
        if opt("probeB"): stamp(a, 1 + i if i < 10 else 11)
        if extra5:
            a(f"s_cmp_eq_u32 s6, 5\ns_cbranch_scc0 L_LW{i}\ns_waitcnt vmcnt({n+extra5})\ns_branch L_LX{i}\nL_LW{i}:\ns_waitcnt vmcnt({n})\nL_LX{i}:")
        else:
            a(f"s_waitcnt vmcnt({n})")
        a("s_barrier")
    issue_w(0)
    srd(a, 36, 8, 9, 2048 * 1280)
    srd(a, 28, 24, 25, WS_END)
    issue_w(1); issue_w(2)
    a(f"s_mov_b32 s53, {FL_EPOCH}\nbuffer_load_dword v9, v4, s[28:31], s53 offen sc1")
    RL = 152; RA = RL + 64; RS = RA + 12
    a.c("wo re-layout job (wave 5): cb = wg&7, G = 5*(wg>>3) + l/10, octet = l%10 (50 lanes); addresses now, data later")
    for i in [2, 3] + list(range(12, 20)): a(f"v_mov_b32 v{RA+i}, 0")
    a("s_cmp_eq_u32 s6, 5\ns_cbranch_scc0 L_NORL")
    t = RL + 32
    U = RA + 11
    a(f"""
    s_lshr_b32 s56, s2, 3
    s_mul_i32 s56, s56, 5
    s_and_b32 s57, s2, 7
    s_mul_i32 s32, s57, 160
    s_lshr_b32 s35, s2, 7
    s_mul_i32 s35, s35, {40*1280}
    s_add_u32 s32, s32, s35
    v_mul_u32_u24 v{U}, 6554, v0
    v_lshrrev_b32 v{U}, 16, v{U}
    v_mul_u32_u24 v{RA}, 10, v{U}
    v_sub_u32 v{RA}, v0, v{RA}
    v_add_u32 v{t}, s56, v{U}
    v_and_b32 v{RA+1}, 1, v{t}
    v_lshrrev_b32 v{RA+2}, 1, v{t}
    v_lshlrev_b32 v{RA+2}, 3, v{RA+2}
    """)
    for e in range(8):
        a(f"""
        v_add_u32 v{t}, {e}, v{RA+2}
        v_mul_u32_u24 v{t+1}, 6554, v{t}
        v_lshrrev_b32 v{t+1}, 16, v{t+1}
        v_mul_u32_u24 v{t+2}, 10, v{t+1}
        v_sub_u32 v{t+2}, v{t}, v{t+2}
        v_and_b32 v{t}, 14, v{t+1}
        v_and_b32 v{t+1}, 1, v{t+1}
        v_lshl_add_u32 v{t+1}, v{t}, 1, v{t+1}
        v_mul_u32_u24 v{t+1}, 20, v{t+1}
        v_and_b32 v{t}, 3, v{t+2}
        v_add_u32 v{t+1}, v{t+1}, v{t}
        v_lshrrev_b32 v{t}, 2, v{t+2}
        v_lshl_add_u32 v{t+1}, v{t}, 3, v{t+1}
        v_lshrrev_b32 v{t}, 3, v{t+2}
        v_sub_u32 v{t}, 2, v{t}
        v_lshlrev_b32 v{t}, v{t}, v{RA+1}
        v_add_u32 v{t+1}, v{t+1}, v{t}
        v_mul_u32_u24 v{t+1}, 1280, v{t+1}
        v_lshl_add_u32 v{RS+e}, v{RA}, 4, v{t+1}
        """)
    for z in range(2):
        a(f"""
        v_lshlrev_b32 v{t+2}, 1, v{RA}
        v_add_u32 v{t+2}, {z}, v{t+2}
        v_mul_u32_u24 v{t}, 52, v{t+2}
        v_lshrrev_b32 v{t}, 8, v{t}
        v_mul_u32_u24 v{t+3}, 5, v{t}
        v_sub_u32 v{t+3}, v{t+2}, v{t+3}
        v_mul_u32_u24 v{t+3}, 40960, v{t+3}
        v_lshl_add_u32 v{t+3}, v{U}, 8, v{t+3}
        v_lshl_add_u32 v{RA+2+z}, v{t}, 6, v{t+3}
        """)
    a(f"""
    s_mul_i32 s35, s57, {5*40960}
    s_lshl_b32 s56, s56, 8
    s_add_u32 s35, s35, s56
    s_add_u32 s35, s35, {WS_WO}
    L_NORL:
    v_and_b32 v13, 31, v0
    v_lshlrev_b32 v13, 7, v13
    s_lshl_b32 s57, s3, 12
    s_add_u32 s57, s57, {FL_KV}
    s_mul_i32 s18, s3, {KV_BYTES}
    """)
    issue_small(); issue_x(0)
    if not opt("probeB"): stamp(a, 1)
    lbar("SM")
    a("v_readfirstlane_b32 s34, v9")
    issue_x(1); issue_x(2)
    a("s_mul_i32 s34, s34, 0x9e3779b1\ns_add_u32 s34, s34, 0x7f4a7c15")
    if not opt("probeB"): stamp(a, 2)
    lbar("X0"); issue_st(3)
    if opt("dbl"): issue_st(4)
    lbar("X1")
    if not opt("dbl"): issue_st(4)
    if opt("dbl"):
        issue_st(5); lbar("X2"); issue_st(6); lbar("X3"); issue_st(7); lbar("X4"); lbar("X5"); issue_st(8); lbar("X6"); issue_st(9); lbar("X7")
    else:
        lbar("X2"); issue_st(5); lbar("X3"); issue_st(6); lbar("X4"); issue_st(7); lbar("X5"); issue_st(8); lbar("X6"); issue_st(9); lbar("X7")
    a.c("wave 4: one look at the K/V flags; if complete, fetch the first tiles of the image early")
    def chunk0():
        for r in range(NCH0):
            a(f"s_mov_b32 m0, {1024*r}\ns_add_u32 s20, s18, {1024*r}")
            a("buffer_load_dwordx4 v3, s[28:31], s20 offen sc1 lds")
    a("""
    s_cmp_eq_u32 s6, 4
    s_cbranch_scc0 L_N4
    s_mov_b32 exec_hi, 0
    buffer_load_dwordx4 v[16:19], v13, s[28:31], s57 offen sc1
    s_waitcnt vmcnt(1)
    s_barrier
    s_waitcnt vmcnt(0)
    v_cmp_ne_u32 vcc, s34, v16
    v_cmp_ne_u32 s[58:59], s34, v17
    s_or_b64 vcc, vcc, s[58:59]
    v_cmp_ne_u32 s[58:59], s34, v18
    s_or_b64 vcc, vcc, s[58:59]
    v_cmp_ne_u32 s[58:59], s34, v19
    s_or_b64 vcc, vcc, s[58:59]
    s_mov_b32 exec_hi, -1
    s_cmp_eq_u64 vcc, 0
    s_cbranch_scc1 L_EARLY
    s_barrier
    s_mov_b32 s20, -1
    s_mov_b32 s21, 0
    """)
    if opt("probeB"): a("s_branch L_FIN")
    stamp(a, 3)
    poll(a, "L_PKV", 13, "s57", 4, 16, mask="s[20:21]", preloaded=False)
    stamp(a, 4)
    chunk0()
    a("s_branch L_ATT\nL_EARLY:")
    for r in range(8):
        a(f"s_mov_b32 m0, {1024*r}\ns_add_u32 s20, s18, {1024*r}")
        a("buffer_load_dwordx4 v3, s[28:31], s20 offen sc1 lds")
    a("s_barrier")
    if opt("probeB"): a("s_branch L_FIN")
    stamp(a, 3); stamp(a, 4)
    for r in range(8, NCH0):
        a(f"s_mov_b32 m0, {1024*r}\ns_add_u32 s20, s18, {1024*r}")
        a("buffer_load_dwordx4 v3, s[28:31], s20 offen sc1 lds")
    a("s_branch L_ATT\nL_N4:")
    lbar("X8")
    lbar("X9")
    if opt("probeB"): a("s_branch L_FIN2")
    stamp(a, 3)

    Q1 = [4, 12]; Q2 = [8, 16]
    AK1, AK2, AV, IDX, G = 1, 2, 3, 10, 11
    T0, T1, T2, T3 = 18, 19, 20, 21
    M = [22, 23]
    KF1 = [24, 32]; KF2 = [28, 36]
    VF = [40, 48]
    O = [56, 72]
    S = [88, 104, 120, 136]
    WO = 152; PT = 252; OA = 30
    a("L_ATT:")
    a.c("s12 = rt32 ; s13 = hp ; s14 = bh0")
    a(f"""
    s_and_b32 s15, s6, 3
    s_lshl_b32 s13, s4, 2
    s_add_u32 s12, s15, s13
    s_lshr_b32 s13, s6, 2
    s_lshl_b32 s14, s3, 5
    s_lshl_b32 s16, s5, 2
    s_add_u32 s14, s14, s16
    s_lshl_b32 s16, s13, 1
    s_add_u32 s14, s14, s16
    s_mul_i32 s15, s15, 5120
    s_mul_i32 s16, s13, 2560
    s_add_u32 s15, s15, s16
    s_add_u32 s15, s15, {L_QX}
    v_lshlrev_b32 v{AK1}, 4, v0
    v_and_b32 v{T0}, 31, v0
    v_lshrrev_b32 v{T1}, 5, v0
    v_lshlrev_b32 v{AK2}, 3, v{T0}
    v_lshl_add_u32 v{AK2}, v{T1}, 2, v{AK2}
    v_add_u32 v{T2}, s15, v{AK1}
    v_add_u32 v{T3}, s15, v{AK2}
    s_waitcnt lgkmcnt(0)
    s_barrier
    ds_read_b128 {vr(Q1[0],4)}, v{T2}
    ds_read_b32 v{Q2[0]}, v{T3} offset:1024
    ds_read_b128 {vr(Q1[1],4)}, v{T2} offset:1280
    ds_read_b32 v{Q2[1]}, v{T3} offset:2304
    v_cmp_lt_u32 vcc, 19, v{T0}
    v_subrev_u32 v{T2}, 2, v{T0}
    v_mul_u32_u24 v{AV}, 20, v{T1}
    v_cndmask_b32 v{T2}, v{T0}, v{T2}, vcc
    v_add_lshl_u32 v{AV}, v{AV}, v{T2}, 4
    v_mov_b32 v{IDX}, 0xdddddddd
    s_mov_b32 s36, 0x0033ffff
    s_mov_b32 s37, 0x0033ffff
    s_mov_b32 s38, 0
    s_mov_b32 s39, -1
    s_mov_b32 s40, 0xffff0000
    s_mov_b32 s41, 1
    s_mov_b32 s42, 1
    s_mov_b32 s45, 0xffff
    """)
    for b in range(2):
        a(f"v_mov_b32 v{KF2[b]+1}, 0x3f803f80")
        for i in range(8): a(f"v_mov_b32 v{VF[b]+i}, 0")
    a("s_mov_b32 exec_lo, 0x00440000\ns_mov_b32 exec_hi, 0x00440000")
    for b in range(2):
        for i in range(8): a(f"v_mov_b32 v{VF[b]+i}, 0x3f803f80")
    a("s_mov_b64 exec, -1")
    a("s_cmp_eq_u32 s6, 4\ns_cbranch_scc0 L_BQ2\ns_waitcnt vmcnt(0)\nL_BQ2:\ns_waitcnt lgkmcnt(0)\ns_barrier")
    stamp(a, 5)
    a.c("gate factor of this lane's row")
    a(f"""
    s_lshl_b32 s17, s3, 6
    s_add_u32 s17, s17, s12
    s_lshl_b32 s17, s17, 7
    s_add_u32 s17, s17, {WS_G}
    v_lshlrev_b32 v{T2}, 2, v{T0}
    buffer_load_dword v{G}, v{T2}, s[28:31], s17 offen sc1
    """)
    a.c("O address (v30 + s26): rt16 = 2*rt32 + (row>>4) ; G = 2f + h ; f0 = floor(20*block/8), block = 16hp + 8branch + hg")
    a(f"""
    s_mul_i32 s26, s12, 81920
    s_lshl_b32 s27, s13, 1
    s_add_u32 s27, s27, s3
    s_lshl_b32 s27, s27, 3
    s_add_u32 s27, s27, s5
    s_mul_i32 s27, s27, 5
    s_lshr_b32 s27, s27, 1
    s_lshl_b32 s27, s27, 9
    s_add_u32 s26, s26, s27
    s_add_u32 s26, s26, {WS_O}
    v_lshrrev_b32 v{OA}, 4, v{T0}
    v_mul_u32_u24 v{OA}, 40960, v{OA}
    v_lshl_add_u32 v{OA}, v{T1}, 8, v{OA}
    v_and_b32 v{T3}, 15, v0
    v_lshl_add_u32 v{OA}, v{T3}, 4, v{OA}
    s_cmp_eq_u32 s13, 0
    s_cbranch_scc1 L_RETRY
    """)
    a.c("waves 4-7: rest of the K/V image")
    a(f"s_add_u32 s19, s50, {1024*(NCH0-1)}\ns_add_u32 s18, s18, s19")
    for r in range(34):
        if r == 0: a("s_cmp_eq_u32 s6, 4\ns_cbranch_scc1 L_SK0")
        a(f"s_add_u32 m0, s19, {4096*r}\ns_add_u32 s20, s18, {4096*r}")
        a(f"buffer_load_dwordx4 v{AK1}, s[28:31], s20 offen sc1 lds")
        if r == 0: a("L_SK0:")
    a("s_cmp_eq_u32 s6, 5\ns_cbranch_scc0 L_RETRY\ns_bitcmp0_b32 s2, 6")
    srd_sel(a, 72, 68, 22, 640 * 1280)
    a("s_mov_b32 exec_hi, 0x3ffff")
    for e in range(8):
        a(f"buffer_load_dwordx4 {vr(RL+4*e,4)}, v{RS+e}, s[72:75], s32 offen")
    a("s_mov_b32 exec_hi, -1")
    a("L_RETRY:")
    a(f"v_mov_b32 v{T2}, v{AK1}\nv_mov_b32 v{T3}, v{AK2}\ns_mov_b32 s43, s41")
    for j in range(2):
        a(f"v_mov_b32 v{Q2[j]+1}, 0\nv_mov_b32 v{M[j]}, 0xff800000")
    a("L_MAXL:")
    a(f"ds_read_b128 {vr(KF1[0],4)}, v{T2}\nds_read_b32 v{KF2[0]}, v{T3} offset:1024")
    a(f"v_add_u32 v{T2}, 2560, v{T2}\nv_add_u32 v{T3}, 2560, v{T3}")
    for i in range(16): a(f"v_mov_b32 v{S[3]+i}, 0")
    a("s_waitcnt lgkmcnt(0)")
    for j in range(2):
        a(f"v_mfma_f32_32x32x16_bf16 {vr(S[j],16)}, {vr(KF1[0],4)}, {vr(Q1[j],4)}, 0")
        for i in range(8): a(f"v_mov_b32 v{O[j]+i}, 0")
        a(f"v_mfma_f32_32x32x8_bf16 {vr(S[j],16)}, {vr(KF2[0],2)}, {vr(Q2[j],2)}, {vr(S[j],16)}")
        for i in range(8, 16): a(f"v_mov_b32 v{O[j]+i}, 0")
    for j in range(2):
        for i in range(8):
            a(f"v_max3_f32 v{M[j]}, v{S[j]+2*i}, v{S[j]+2*i+1}, v{M[j]}")
    a("s_sub_u32 s43, s43, 1\ns_cmp_lg_u32 s43, 0\ns_cbranch_scc1 L_MAXL")
    def rdK(b, off):
        return [f"ds_read_b128 {vr(KF1[b],4)}, v{AK1} offset:{off}", f"ds_read_b32 v{KF2[b]}, v{AK2} offset:{off+1024}"]
    def rdV(b, off):
        return ["s_mov_b64 exec, s[36:37]",
                f"ds_read_b128 {vr(VF[b],4)}, v{AV} offset:{off+1280}", f"ds_read_b128 {vr(VF[b]+4,4)}, v{AV} offset:{off+1920}",
                "s_mov_b64 exec, -1"]
    TA = [S[2], S[2] + 1]; TB = [S[2] + 2, S[2] + 3]
    for j in range(2): a(f"v_mov_b32 v{TA[j]}, v{M[j]}")
    for x in rdK(0, 0) + rdK(1, 2560) + rdV(1, 0): a(x)
    a.c("-m split into bf16 pieces that ride in the spare k-slots; first pass keeps only the leading piece (s45)")
    seq = ["v_permlane32_swap_b32 v{m}, v{ta}", "s_nop 0", "v_max_f32 v{m}, v{m}, v{ta}", "v_xor_b32 v{m}, 0x80000000, v{m}",
           "v_and_b32 v{ta}, s40, v{m}", "v_sub_f32 v{tb}, v{m}, v{ta}", "v_lshrrev_b32 v{ta}, 16, v{ta}",
           "v_and_or_b32 v{ta}, v{tb}, s40, v{ta}", "v_and_b32 v{m}, s40, v{tb}", "v_sub_f32 v{tb}, v{tb}, v{m}",
           "v_and_b32 v{tb}, s40, v{tb}", "v_cndmask_b32 v{ta}, v{ta}, v{tb}, s[38:39]", "v_and_b32 v{q}, s45, v{ta}"]
    for x in seq:
        for j in range(2):
            if x == "s_nop 0" and j == 1: continue
            a(x.format(m=M[j], ta=TA[j], tb=TB[j], q=Q2[j] + 1))
    a("s_waitcnt lgkmcnt(0)")
    def qk1(u, kb): return f"v_mfma_f32_32x32x16_bf16 {vr(S[u%4],16)}, {vr(KF1[kb],4)}, {vr(Q1[u%2],4)}, 0"
    def qk2(u, kb): return f"v_mfma_f32_32x32x8_bf16 {vr(S[u%4],16)}, {vr(KF2[kb],2)}, {vr(Q2[u%2],2)}, {vr(S[u%4],16)}"
    def pv(u, vb, i): return f"v_smfmac_f32_32x32x32_bf16 {vr(O[u%2],16)}, {vr(VF[vb]+4*i,4)}, {vr(S[u%4]+8*i,8)}, v{IDX}"
    a(qk1(0, 0)); a(qk2(0, 0))
    a.c("waves 4-7 (first pass): image complete -> S1 now; waves 0-3 meet it after their first 8 tiles")
    a(f"""
    s_mov_b32 s44, 8
    s_and_b32 s43, s42, s13
    s_cmp_eq_u32 s43, 0
    s_cbranch_scc1 L_NOS1
    s_waitcnt vmcnt(8)
    s_cmp_eq_u32 s6, 5
    s_cbranch_scc1 L_S1
    s_waitcnt vmcnt(0)
    L_S1:
    s_barrier
    s_setprio 3
    s_branch L_PR
    L_NOS1:
    s_setprio 2
    L_PR:
    s_nop 6
    """)
    stamp(a, 6)
    a(".p2align 6\nL_LOOP:")
    for t in range(8):
        for j in range(2):
            u = 2 * t + j
            b = (t + j) % 2
            ex = [f"v_exp_f32 v{S[u%4]+i}, v{S[u%4]+i}" for i in range(16)]
            extra = [[], [], [], []]
            if j == 1:
                a("s_waitcnt lgkmcnt(0)")
                extra[0] = rdK(t % 2, (t + 2) * 2560)
                extra[1] = rdV(t % 2, (t + 1) * 2560)
            ms = [qk1(u + 1, b), qk2(u + 1, b), pv(u - 1, b, 0), pv(u - 1, b, 1)]
            for g in range(4):
                a(ms[g])
                for x in ex[4 * g:4 * g + 2]: a(x)
                for x in extra[g]: a(x)
                for x in ex[4 * g + 2:4 * g + 4]: a(x)
    a(f"v_add_u32 v{AK1}, 20480, v{AK1}\nv_add_u32 v{AK2}, 20480, v{AK2}\nv_add_u32 v{AV}, 20480, v{AV}")
    a(f"""
    s_lshl_b32 s43, s13, 4
    s_add_u32 s43, s43, s44
    s_cmp_eq_u32 s43, {16 + optv("nl", 3)}
    s_cbranch_scc0 L_P1
    s_setprio 1
    L_P1:
    s_cmp_eq_u32 s42, 0
    s_cbranch_scc1 L_NEXT
    s_cmp_eq_u32 s44, 8
    s_cbranch_scc0 L_E0
    s_cmp_eq_u32 s13, 0
    s_cbranch_scc0 L_RL2
    s_barrier
    s_branch L_NEXT
    L_RL2:
    s_cmp_eq_u32 s6, 5
    s_cbranch_scc0 L_POIS
    s_mov_b32 s56, 0x05040100
    s_mov_b32 s57, 0x07060302
    s_mov_b32 exec_hi, 0x3ffff
    s_waitcnt vmcnt(0)
    """)
    a.c("wo re-layout: 8x8 16-bit transposition in registers")
    for c in range(8):
        for r in range(4):
            a(f"v_perm_b32 v{RL+32+4*c+r}, v{RL+4*(2*r+1)+c//2}, v{RL+4*(2*r)+c//2}, {'s56' if c % 2 == 0 else 's57'}")
        a(f"buffer_store_dwordx4 {vr(RL+32+4*c,4)}, v{RA+2+c//4}, s[28:31], s35 offen offset:{(c%4)*16} sc1")
    a("s_mov_b32 exec_hi, -1\ns_branch L_NEXT\nL_POIS:")
    a.c("waves 4,6,7: mark this workgroup's share of the O hand-off buffer as not yet written (rt16 = 8rb + i, slice 8*branch+hg); one KB column each")
    a(f"""
    s_mul_i32 s55, s4, {8*40960}
    s_lshl_b32 s56, s3, 3
    s_add_u32 s56, s56, s5
    s_mul_i32 s56, s56, 2560
    s_add_u32 s55, s55, s56
    s_add_u32 s55, s55, {WS_O}
    s_sub_u32 s56, s6, 5
    s_max_i32 s56, s56, 0
    s_lshl_b32 s56, s56, 10
    s_add_u32 s55, s55, s56
    v_lshlrev_b32 v{T2}, 4, v0
    v_mov_b32 v{PT}, -1
    v_mov_b32 v{PT+1}, -1
    v_mov_b32 v{PT+2}, -1
    v_mov_b32 v{PT+3}, -1
    s_cmp_eq_u32 s6, 7
    s_cselect_b32 exec_hi, 0, -1
    """)
    for i in range(8):
        a(f"buffer_store_dwordx4 {vr(PT,4)}, v{T2}, s[28:31], s55 offen sc1\ns_add_u32 s55, s55, 40960")
    a(f"""
    s_mov_b32 exec_hi, -1
    s_branch L_NEXT
    L_E0:
    s_cmp_eq_u32 s43, {16 + 6}
    s_cbranch_scc0 L_E1
    s_lshl_b32 s56, s2, 2
    s_add_u32 s56, s56, s6
    s_lshl_b32 s56, s56, 2
    s_add_u32 s56, s56, {FL_W - 16}
    v_mov_b32 v{T3}, 0
    s_waitcnt vmcnt(0)
    """)
    flag_store(a, "s56", T2, T3)
    a.c("flags to see: lanes 0-31 the workgroups that re-lay this tile's Wo columns, lanes 32-63 the row group")
    a(f"""
    s_branch L_NEXT
    L_E1:
    s_cmp_eq_u32 s44, 4
    s_cbranch_scc0 L_E2
    v_lshl_add_u32 v{T2}, v{T0}, 3, s5
    v_and_b32 v{T3}, 14, v0
    v_lshlrev_b32 v{T3}, 4, v{T3}
    v_and_or_b32 v{T3}, v0, 1, v{T3}
    s_and_b32 s57, s2, 0x1e
    v_or_b32 v{T3}, s57, v{T3}
    v_cndmask_b32 v{T2}, v{T2}, v{T3}, s[38:39]
    v_lshlrev_b32 v{T2}, 4, v{T2}
    s_mov_b32 s57, {FL_W}
    buffer_load_dwordx4 {vr(PT,4)}, v{T2}, s[28:31], s57 offen sc1
    s_branch L_NEXT
    L_E2:
    s_cmp_eq_u32 s44, 3
    s_cbranch_scc0 L_NEXT
    """)
    poll(a, "L_PW", T2, "s57", 4, PT, sleep=8)
    a.c("prefetch this wave's Wo fragments: [cb=hg][ct][f32 = 5w+st]")
    a(f"""
    s_mul_i32 s56, s5, {5*40960}
    s_mul_i32 s57, s6, 5120
    s_add_u32 s56, s56, s57
    s_add_u32 s56, s56, {WS_WO}
    v_lshlrev_b32 v{T2}, 4, v0
    v_add_u32 v{T3}, 4096, v{T2}
    """)
    for ct in range(5):
        for st in range(5):
            av = T2 if st < 4 else T3
            a(f"buffer_load_dwordx4 {vr(WO+(st*5+ct)*4,4)}, v{av}, s[28:31], s56 offen offset:{(st%4)*1024} sc1")
        if ct < 4: a("s_add_u32 s56, s56, 40960")
    a("L_NEXT:")
    a("s_sub_u32 s44, s44, 1\ns_cmp_lg_u32 s44, 0\ns_cbranch_scc1 L_LOOP")
    stamp(a, 7)
    a(pv(15, 0, 0)); a(pv(15, 0, 1))
    a(f"""
    s_setprio 3
    v_subrev_u32 v{AK1}, {KV_BYTES}, v{AK1}
    v_subrev_u32 v{AK2}, {KV_BYTES}, v{AK2}
    v_subrev_u32 v{AV}, {KV_BYTES}, v{AV}
    s_mov_b32 s46, {f32bits(2.0**-40)}
    s_mov_b32 s47, {f32bits(2.0**40)}
    s_mov_b32 s42, 0
    s_mov_b32 s23, -2
    s_nop 3
    s_waitcnt vmcnt(0) lgkmcnt(0)
    """)
    a.c("run-time safety check of the stand-in max: row sums must lie in [2^-40, 2^40], else redo with the true max")
    a(f"""
    v_cmp_le_f32 s[48:49], s46, v{O[0]+10}
    v_cmp_ge_f32 s[50:51], s47, v{O[0]+10}
    v_cmp_le_f32 s[52:53], s46, v{O[1]+10}
    v_cmp_ge_f32 s[54:55], s47, v{O[1]+10}
    v_rcp_f32 v{M[0]}, v{O[0]+10}
    v_rcp_f32 v{M[1]}, v{O[1]+10}
    s_and_b64 s[48:49], s[48:49], s[50:51]
    s_and_b64 s[52:53], s[52:53], s[54:55]
    s_and_b64 s[48:49], s[48:49], s[52:53]
    s_cmp_eq_u64 s[48:49], -1
    s_cbranch_scc1 L_OK
    s_cmp_eq_u32 s41, 64
    s_cbranch_scc1 L_OK
    s_mov_b32 s41, 64
    s_mov_b32 s45, -1
    s_branch L_RETRY
    L_OK:
    v_mul_f32 v{M[0]}, v{M[0]}, v{G}
    v_mul_f32 v{M[1]}, v{M[1]}, v{G}
    """)
    P = S[0]
    for j in range(2):
        for i in range(10): a(f"v_mul_f32 v{O[j]+i}, v{O[j]+i}, v{M[j]}")
        for i in range(5): a(f"v_cvt_pk_bf16_f32 v{P+5*j+i}, v{O[j]+2*i}, v{O[j]+2*i+1}")
    for i in range(10): a(f"v_min_u32 v{P+i}, s23, v{P+i}")
    a(f"""
    s_and_b32 s21, s5, 1
    s_cbranch_scc1 L_ST1
    buffer_store_dwordx4 {vr(P,4)}, v{OA}, s[28:31], s26 offen sc1
    buffer_store_dwordx4 {vr(P+4,4)}, v{OA}, s[28:31], s26 offen offset:512 sc1
    buffer_store_dwordx2 {vr(P+8,2)}, v{OA}, s[28:31], s26 offen offset:1024 sc1
    s_branch L_ST2
    L_ST1:
    buffer_store_dwordx2 {vr(P,2)}, v{OA}, s[28:31], s26 offen offset:8 sc1
    buffer_store_dwordx4 {vr(P+2,4)}, v{OA}, s[28:31], s26 offen offset:512 sc1
    buffer_store_dwordx4 {vr(P+6,4)}, v{OA}, s[28:31], s26 offen offset:1024 sc1
    L_ST2:
    s_setprio {optv("pe", 0)}
    """)
    OF = 16
    EA = [96, 116, 16, 36]
    a.c("phase E: tile rows 64*(2rb+branch).., columns 80*hg.. ; wave = K eighth")
    a(f"""
    s_lshl_b32 s16, s4, 1
    s_add_u32 s16, s16, s3
    v_mov_b32 v2, s34
    v_mov_b32 v3, 0
    v_lshlrev_b32 v5, 4, v0
    v_add_u32 v6, 4096, v5
    s_mul_i32 s17, s16, {4*40960}
    s_mul_i32 s18, s6, 5120
    s_add_u32 s17, s17, s18
    s_add_u32 s17, s17, {WS_O}
    v_add_u32 v7, s18, v5
    s_mov_b32 s21, s17
    """)
    a.c("row tiles are taken in an order rotated by hg: the CUs that share these rows miss on different lines")
    for i in range(4):
        a(f"s_add_u32 s22, s5, {i}\ns_and_b32 s22, s22, 3\ns_mul_i32 s22, s22, 40960\ns_add_u32 s{17+i}, s21, s22\nv_add_u32 v{8+i}, s22, v7")
    srd(a, 72, 66, 67, 2048 * 1280)
    a.c("out address (waves 0-3): row = 64*(2rb+branch) + 16w + n ; byte = row*1280 + hg*160 + rg*40")
    a(f"""
    s_mul_i32 s22, s6, 40960
    v_add_u32 v12, s22, v5
    s_lshl_b32 s22, s16, 6
    s_lshl_b32 s21, s6, 4
    s_add_u32 s22, s22, s21
    s_mul_i32 s22, s22, 1280
    s_mul_i32 s21, s5, 160
    s_add_u32 s22, s22, s21
    v_and_b32 v13, 15, v0
    v_mul_u32_u24 v13, 1280, v13
    v_lshrrev_b32 v14, 4, v0
    v_mul_u32_u24 v14, 40, v14
    v_add_u32 v13, v13, v14
    s_mov_b32 s60, {SPIN}
    """)
    def oload(rt, sc=" sc1"):
        for st in range(5):
            av = 5 if st < 4 else 6
            a(f"buffer_load_dwordx4 {vr(OF+(rt*5+st)*4,4)}, v{av}, s[28:31], s{17+rt} offen offset:{(st%4)*1024}{sc}")
    def ewrites(rt):
        return [f"ds_write_b128 v{8+rt}, {vr(EA[rt]+4*ct,4)} offset:{ct*1024}" for ct in range(5)]
    def egemm(tag, wr, bar=-1):
        for rt in range(4):
            if rt == bar: a("s_barrier")
            a(f"L_CH{tag}{rt}:\ns_waitcnt vmcnt({15 - 5*rt})")
            a.c("hand-off check: no word may still hold the not-yet-written mark")
            b = OF + rt * 20
            a(f"v_max3_u32 v15, v{b}, v{b+1}, v{b+2}\nv_max3_u32 v4, v{b+3}, v{b+4}, v{b+5}")
            for i in range(6, 20, 4):
                a(f"v_max3_u32 v15, v{b+i}, v{b+i+1}, v15")
                if i + 2 < 20: a(f"v_max3_u32 v4, v{b+i+2}, v{b+i+3}, v4")
            a(f"""
            v_max_u32 v15, v15, v4
            v_cmp_eq_u32 vcc, -1, v15
            s_cmp_eq_u64 vcc, 0
            s_cbranch_scc1 L_GO{tag}{rt}
            s_cmp_eq_u32 s60, 0
            s_cbranch_scc1 L_GO{tag}{rt}
            s_sub_u32 s60, s60, 1
            s_waitcnt vmcnt(0)
            s_sleep {optv("slp", 4)}
            """)
            for r2 in range(rt, 4): oload(r2)
            a(f"s_branch L_CH{tag}{rt}\nL_GO{tag}{rt}:")
            if wr and rt >= 1:
                for x in ewrites(rt - 1): a(x)
            for st in range(5):
                for ct in range(5):
                    d = vr(EA[rt] + 4 * ct, 4)
                    a(f"v_mfma_f32_16x16x32_bf16 {d}, {vr(WO+(st*5+ct)*4,4)}, {vr(OF+(rt*5+st)*4,4)}, {'0' if st == 0 else d}")
    def retries():
        if PROF: a(f"s_waitcnt lgkmcnt(0)\ns_sub_u32 s84, {SPIN}, s60\ns_mul_i32 s84, s84, 100\ns_add_u32 s84, s84, s76")
    a.c("every wave of this workgroup is past its last K/V read: LDS can be reused")
    a("s_barrier")
    if not opt("noack"): a("s_waitcnt vmcnt(0)")
    else: a(f"s_sleep {optv('dly', 4)}")
    stamp(a, 8)
    for rt in range(4): oload(rt)
    if PROF: a("s_waitcnt lgkmcnt(0)")
    a("s_cmp_eq_u32 s13, 0\ns_cbranch_scc1 L_ELEAD")
    egemm("B", True, optv("bar", 2))
    stamp(a, 10); retries()
    a("s_waitcnt lgkmcnt(5)\ns_nop 6")
    for x in ewrites(3): a(x)
    a("s_waitcnt lgkmcnt(0)\ns_barrier\ns_branch L_FIN")
    a("L_ELEAD:\ns_setprio 2")
    egemm("A", True)
    stamp(a, 9); retries()
    a("s_waitcnt lgkmcnt(5)\ns_nop 6")
    for x in ewrites(3): a(x)
    a("s_waitcnt lgkmcnt(0)\ns_barrier")
    R = 56
    def rsum(src0, keep):
        for src in range(4):
            for c in range(5):
                a(f"ds_read_b128 {vr(R+src*20+4*c,4)}, v12 offset:{(src0+src)*5120+c*1024}")
            if src == 1: a("s_waitcnt lgkmcnt(4)")
        a("s_waitcnt lgkmcnt(10)")
        for i in range(20): a(f"v_add_f32 v{R+i}, v{R+i}, v{R+20+i}")
        if keep:
            for i in range(20): a(f"v_add_f32 v{R+i}, v{R+i}, v{16+i}")
        a("s_waitcnt lgkmcnt(0)")
        for i in range(20): a(f"v_add_f32 v{R+40+i}, v{R+40+i}, v{R+60+i}")
        for i in range(20): a(f"v_add_f32 v{16+i}, v{R+i}, v{R+40+i}")
    rsum(0, False)
    a("s_barrier")
    stamp(a, 10)
    if PROF: a("s_waitcnt lgkmcnt(0)")
    rsum(4, True)
    for i in range(10): a(f"v_cvt_pk_bf16_f32 v{40+i}, v{16+2*i}, v{16+2*i+1}")
    a("""
    buffer_store_dwordx4 v[40:43], v13, s[72:75], s22 offen
    buffer_store_dwordx4 v[44:47], v13, s[72:75], s22 offen offset:16
    buffer_store_dwordx2 v[48:49], v13, s[72:75], s22 offen offset:32
    """)
    a.c("workgroup 0 advances the epoch: every workgroup has read it by now")
    a(f"""
    s_or_b32 s21, s2, s6
    s_cmp_eq_u32 s21, 0
    s_cbranch_scc0 L_FIN
    s_mov_b32 s21, {FL_EPOCH}
    s_mov_b64 exec, 1
    buffer_store_dword v2, v3, s[28:31], s21 offen sc1
    """)
    a("L_FIN:")
    if PROF: a("s_waitcnt vmcnt(0)")
    stamp(a, 11)
    a("L_FIN2:")
    stamp_flush(a)
    pf = optv("padfrom", -1)
    if pf >= 0:
        a(f"""
        s_cmp_ge_u32 s6, 4
        s_cbranch_scc1 L_END
        s_cmp_lt_u32 s2, {optv("padlo", 0)}
        s_cbranch_scc1 L_END
        s_cmp_gt_u32 s2, {optv("padhi", 255)}
        s_cbranch_scc1 L_END
        L_PAD:
        s_memrealtime s[58:59]
        s_waitcnt lgkmcnt(0)
        s_sub_u32 s58, s58, s{76+2*pf}
        s_cmp_lt_u32 s58, 10000
        s_cbranch_scc1 L_PAD
        """)
    a("L_END:\ns_endpgm")
    return f""".p2align 6
.amdhsa_kernel {N}
  .amdhsa_next_free_vgpr 256
  .amdhsa_next_free_sgpr 102
  .amdhsa_accum_offset 256
  .amdhsa_group_segment_fixed_size 0
  .amdhsa_kernarg_size 112
  .amdhsa_user_sgpr_count 2
  .amdhsa_user_sgpr_kernarg_segment_ptr 1
  .amdhsa_system_sgpr_workgroup_id_x 1
.end_amdhsa_kernel
"""

def main():
    ref = open(f"cdna_kernels/{NAME}.s.ref").read().split("\n")
    head = [l for l in ref if l.startswith(";") and "@launch" not in l]
    a = Asm()
    kd = gen(a)
    out = "\n".join(head) + "\n"
    out += "; @launch grid=(256,1,1) block=(512,1,1) lds=163840\n"
    out += '.amdgcn_target "amdgcn-amd-amdhsa--gfx950"\n.text\n'
    out += a.text().replace("offen sc1 lds", "offen lds") if opt("plainKV") else a.text()
    out += '.section .rodata,"a"\n' + kd
    path = ARGS[0] if ARGS and not ARGS[0].startswith("--") else f"cdna_kernels/{NAME}.s"
    open(path, "w").write(out)
main()
```

```python
import math, struct, sys

NAME = "gated_mix__grouped_kv_mqa__grouped_kv_mqa__prompt"
ARGS = sys.argv[1:]
def opt(n): return ("--" + n) in ARGS
def optv(n, d):
    for x in ARGS:
        if x.startswith("--" + n + "="): return int(x.split("=")[1])
    return d

KV_BYTES = 163840
WS_KV   = 0
WS_G    = 2 * KV_BYTES
WS_O    = WS_G + 16384
O_BYTES = 128 * 40 * 1024
WS_WO   = WS_O + O_BYTES
WO_BYTES = 8 * 5 * 40 * 1024
WS_FL   = WS_WO + WO_BYTES
FL_EPOCH = WS_FL
FL_KV   = WS_FL + 256
FL_W    = FL_KV + 8192
WS_END  = FL_W + 4096

def f32bits(x):
    return struct.unpack("<I", struct.pack("<f", x))[0]
QSCALE = f32bits((20 ** -0.5) * math.log2(math.e))
LOG2E = f32bits(math.log2(math.e))

class Asm:
    def __init__(self): self.l = []
    def __call__(self, s):
        for line in s.split("\n"):
            line = line.strip()
            if line: self.l.append(("" if line.endswith(":") else "  ") + line)
    def c(self, s): self.l.append("  ; " + s)
    def text(self): return "\n".join(self.l) + "\n"

def vr(b, n=1): return f"v{b}" if n == 1 else f"v[{b}:{b+n-1}]"

def srd(a, d, lo, hi, nbytes):
    a(f"s_mov_b32 s{d}, s{lo}\ns_mov_b32 s{d+1}, s{hi}\ns_mov_b32 s{d+2}, {nbytes}\ns_mov_b32 s{d+3}, 0x00020000")
def srd_sel(a, d, lo0, lo1, nbytes):
    a(f"s_cselect_b32 s{d}, s{lo0}, s{lo1}\ns_cselect_b32 s{d+1}, s{lo0+1}, s{lo1+1}\ns_mov_b32 s{d+2}, {nbytes}\ns_mov_b32 s{d+3}, 0x00020000")

PROF = opt("prof")
PROF_BASE = 16 << 20
NST = 12
def stamp(a, i, wait=False):
    if PROF and not (opt("iters") and i >= 7):
        a(f"s_memrealtime s[{76+2*i}:{77+2*i}]")
        if wait: a("s_waitcnt lgkmcnt(0)")
def stamp_flush(a):
    if not PROF: return
    a("s_waitcnt lgkmcnt(0)\ns_mov_b64 exec, 1")
    a(f"s_lshl_b32 s62, s2, 3\ns_add_u32 s62, s62, s6\ns_lshl_b32 s62, s62, 6\ns_add_u32 s62, s62, {PROF_BASE}")
    a("s_mov_b32 s30, 0x2000000\nv_mov_b32 v0, 0")
    for i in range(NST):
        a(f"v_mov_b32 v2, s{76+2*i}\nbuffer_store_dword v2, v0, s[28:31], s62 offen offset:{4*i}\ns_nop 1")

SPIN = 200000
def poll(a, lbl, addr_v, soff, width, tmp, mask=None, preloaded=True, sleep=1):
    ld = {1: "dword", 2: "dwordx2", 4: "dwordx4"}[width]
    a(f"s_mov_b32 s60, {SPIN}")
    if mask is not None: a(f"s_mov_b64 exec, {mask}")
    if preloaded: a(f"s_branch {lbl}_chk")
    a(f"{lbl}_ld:")
    a(f"buffer_load_{ld} {vr(tmp,width)}, v{addr_v}, s[28:31], {soff} offen sc1")
    a(f"{lbl}_chk:\ns_waitcnt vmcnt(0)")
    a(f"v_cmp_ne_u32 vcc, s34, v{tmp}")
    for i in range(1, width):
        a(f"v_cmp_ne_u32 s[58:59], s34, v{tmp+i}\ns_or_b64 vcc, vcc, s[58:59]")
    a(f"s_sub_u32 s60, s60, 1\ns_cbranch_scc1 {lbl}_ok")
    a(f"s_cmp_eq_u64 vcc, 0\ns_cbranch_scc1 {lbl}_ok\ns_sleep {sleep}\ns_branch {lbl}_ld\n{lbl}_ok:")
    if mask is not None: a("s_mov_b64 exec, -1")

def flag_store(a, soff, vtmp, vzero):
    a(f"v_mov_b32 v{vtmp}, s34\ns_mov_b64 exec, 1\nbuffer_store_dword v{vtmp}, v{vzero}, s[28:31], {soff} offen sc1\ns_mov_b64 exec, -1")
def mk_tag(a):
    a("s_mul_i32 s34, s34, 0x9e3779b1\ns_add_u32 s34, s34, 0x7f4a7c15")

def gen(a):
    N = NAME + "_kernel"
    STG = 26624; XB = 16384
    L_WK = 0; L_WV = 25600; L_G = 51200; RING = 57344
    L_X16 = RING + 3 * STG
    L_QX = 143360
    SLOT = {"A": RING, "B": RING + STG, "C": RING + 2 * STG, "D": RING + 3 * STG, "F": 30720}
    SMAP = ["A", "B", "C", "A", "D", "F", "B", "C", "A", "F"]
    NCH0 = 25
    Q1 = [4, 12]; Q2 = [8, 16]
    IDX, G = 10, 11
    T2, T3 = 20, 21
    M = [22, 23]
    KF1 = [24, 32]; KF2 = [28, 36]
    OA, IMG, T0, T1 = 30, 31, 38, 39
    VF = [40, 48]
    O = [56, 72]
    S = [88, 104, 120, 136]
    AK1, AK2, AV, AQ1, AQ2 = 88, 89, 90, 91, 92
    WO = 152; PT = 252

    def att_init():
        a.c("attention constants and accumulators; s12 = rt32, s13 = hp, s26 + v30 = O address")
        a(f"""
        s_and_b32 s15, s6, 3
        s_lshl_b32 s13, s4, 2
        s_add_u32 s12, s15, s13
        s_lshr_b32 s13, s6, 2
        s_mul_i32 s15, s15, 5120
        s_mul_i32 s14, s13, 2560
        s_add_u32 s15, s15, s14
        s_add_u32 s15, s15, {L_QX}
        v_and_b32 v{T0}, 31, v0
        v_lshrrev_b32 v{T1}, 5, v0
        v_lshlrev_b32 v{AK2}, 3, v{T0}
        v_lshl_add_u32 v{AK2}, v{T1}, 2, v{AK2}
        v_add_u32 v{AQ1}, s15, v3
        v_add_u32 v{AQ2}, s15, v{AK2}
        v_cmp_lt_u32 vcc, 19, v{T0}
        v_subrev_u32 v{AK1}, 2, v{T0}
        v_mul_u32_u24 v{AV}, 20, v{T1}
        v_cndmask_b32 v{AK1}, v{T0}, v{AK1}, vcc
        v_add_lshl_u32 v{AV}, v{AV}, v{AK1}, 4
        s_mul_i32 s26, s12, 81920
        s_lshl_b32 s14, s13, 1
        s_add_u32 s14, s14, s3
        s_lshl_b32 s14, s14, 3
        s_add_u32 s14, s14, s5
        s_mul_i32 s14, s14, 5
        s_lshr_b32 s14, s14, 1
        s_lshl_b32 s14, s14, 9
        s_add_u32 s26, s26, s14
        s_add_u32 s26, s26, {WS_O}
        v_lshrrev_b32 v{OA}, 4, v{T0}
        v_mul_u32_u24 v{OA}, 40960, v{OA}
        v_lshl_add_u32 v{OA}, v{T1}, 8, v{OA}
        v_and_b32 v{AK1}, 15, v0
        v_lshl_add_u32 v{OA}, v{AK1}, 4, v{OA}
        s_mul_i32 s14, s3, {KV_BYTES}
        v_add_u32 v{IMG}, s14, v3
        s_lshl_b32 s14, s3, 6
        s_add_u32 s14, s14, s12
        s_lshl_b32 s14, s14, 7
        s_add_u32 s14, s14, {WS_G}
        """)
        for b in range(2):
            a(f"v_mov_b32 v{KF2[b]+1}, 0x3f803f80")
            for i in range(8): a(f"v_mov_b32 v{VF[b]+i}, 0")
        a("s_mov_b32 exec_lo, 0x00440000\ns_mov_b32 exec_hi, 0x00440000")
        for b in range(2):
            for i in range(8): a(f"v_mov_b32 v{VF[b]+i}, 0x3f803f80")
        a("s_mov_b64 exec, -1")
        for i in range(32): a(f"v_mov_b32 v{O[0]+i}, 0")
        for i in range(16): a(f"v_mov_b32 v{S[3]+i}, 0")

    a(f".globl {N}\n.p2align 8\n.type {N},@function\n{N}:")
    a("s_cmp_ge_u32 s2, 256\ns_cbranch_scc1 L_END")
    a("""
    s_load_dwordx8 s[8:15], s[0:1], 0
    s_load_dwordx8 s[16:23], s[0:1], 48
    s_load_dwordx2 s[24:25], s[0:1], 104
    s_load_dwordx4 s[64:67], s[0:1], 80
    s_load_dwordx2 s[68:69], s[0:1], 32
    """)
    stamp(a, 0)
    a.c("s3 = branch, s4 = rb (128-row block), s5 = hg (head group), s6 = wave, s33 = rb&3")
    a("""
    v_lshrrev_b32 v1, 6, v0
    v_and_b32 v0, 63, v0
    s_and_b32 s3, s2, 1
    v_readfirstlane_b32 s6, v1
    s_lshr_b32 s4, s2, 1
    s_and_b32 s4, s4, 3
    s_lshl_b32 s4, s4, 2
    s_lshr_b32 s33, s2, 3
    s_and_b32 s33, s33, 3
    s_add_u32 s4, s4, s33
    s_lshr_b32 s5, s2, 5
    v_lshlrev_b32 v3, 4, v0
    v_lshrrev_b32 v5, 3, v0
    v_and_b32 v6, 7, v0
    v_xor_b32 v6, v6, v5
    v_lshlrev_b32 v6, 4, v6
    v_mul_u32_u24 v2, 1280, v5
    v_add_u32 v2, v2, v6
    v_mov_b32 v4, 0
    s_lshl_b32 s48, s4, 7
    s_lshl_b32 s50, s6, 10
    s_cmp_ge_u32 s6, 4
    s_cbranch_scc1 L_LOADER
    """)
    a(f"""
    s_lshl_b32 s49, s5, 4
    s_add_u32 s49, s48, s49
    s_mul_i32 s49, s49, 1280
    s_lshr_b32 s51, s6, 1
    s_lshl_b32 s51, s51, 7
    s_and_b32 s52, s6, 1
    s_mul_i32 s53, s52, {8*1280}
    s_add_u32 s51, s51, s53
    s_add_u32 s51, s51, s49
    s_lshr_b32 s54, s2, 3
    s_lshl_b32 s54, s54, 10
    s_waitcnt lgkmcnt(0)
    """)
    srd(a, 36, 8, 9, 2048 * 1280)
    a.c("lines no other CU of this XCD is asking for yet: x16 pieces w+4j, one KB of wk / wv (L2 warm-up), gate")
    for j in range(5):
        a(f"s_add_u32 m0, s50, {L_X16 + 4096*j}\ns_add_u32 s53, s51, {256*j}\nbuffer_load_dwordx4 v2, s[36:39], s53 offen lds")
        if j == 0:
            srd(a, 28, 24, 25, WS_END)
            a(f"""
            s_cmp_ge_u32 s6, 2
            s_cbranch_scc1 L_LA2
            s_cmp_eq_u32 s6, 0
            s_cselect_b32 s12, s12, s14
            s_cselect_b32 s13, s13, s15
            s_cselect_b32 s18, s18, s20
            s_cselect_b32 s19, s19, s21
            s_cmp_eq_u32 s3, 0
            """)
            srd_sel(a, 40, 12, 18, 25600)
            a(f"""
            buffer_load_dwordx4 v[96:99], v3, s[40:43], s54 offen
            s_branch L_LA3
            L_LA2:
            """)
            srd(a, 40, 64, 65, 1280)
            a(f"""
            s_lshl_b32 s53, s52, 10
            s_add_u32 m0, s53, {L_G}
            s_nop 0
            buffer_load_dwordx4 v3, s[40:43], s53 offen lds
            L_LA3:
            """)
    a(f"s_mov_b32 s53, {FL_EPOCH}\nbuffer_load_dword v9, v4, s[28:31], s53 offen sc1")
    a.c("bring this kernel's own code into L2: 1 KB per workgroup of the XCD round (wave 2)")
    a(f"""
    s_cmp_eq_u32 s6, 2
    s_cbranch_scc0 L_NCPF
    s_getpc_b64 s[56:57]
    L_PCREF:
    s_sub_u32 s56, s56, L_PCREF-{N}
    s_subb_u32 s57, s57, 0
    v_add_u32 v7, s54, v3
    v_min_u32 v7, L_END-{N}-16, v7
    global_load_dwordx4 v[96:99], v7, s[56:57]
    L_NCPF:
    """)
    att_init()
    FR = 152; ACC = 208; KVF = 100
    KVR = [100, 112, 124, 152, 164]
    BASES = [SLOT["F"], SLOT["B"], SLOT["D"]]
    AXR = [248, 250, 252]; AWR = [254, 255, 1]
    def base_of(slot):
        o = SLOT[slot]
        i = max(k for k in range(3) if BASES[k] <= o)
        return i, o - BASES[i]
    a.c("K/V fragment addresses (wave: 0 K d0-15, 1 K and V d16-19, 2 V d0-15, 3 gate)")
    a(f"""
    v_and_b32 v5, 15, v0
    v_lshrrev_b32 v6, 4, v0
    v_and_b32 v7, 7, v0
    v_xor_b32 v7, v7, v6
    v_lshlrev_b32 v7, 4, v7
    v_lshl_add_u32 v10, v5, 7, v7
    v_add_u32 v14, {L_X16}, v10
    v_xor_b32 v15, 64, v14
    v_bfe_u32 v7, v0, 2, 2
    v_lshl_add_u32 v7, v6, 3, v7
    v_mul_u32_u24 v18, 40, v7
    s_lshl_b32 s7, s6, 12
    v_add_u32 v11, s7, v10
    v_lshrrev_b32 v7, 1, v6
    v_lshlrev_b32 v7, 4, v7
    v_and_b32 v8, 1, v6
    v_lshl_add_u32 v7, v8, 2, v7
    v_bfe_u32 v8, v0, 2, 2
    v_add_u32 v7, v7, v8
    v_mul_u32_u24 v7, 160, v7
    v_and_b32 v8, 3, v0
    v_mul_u32_u24 v8, 40, v8
    v_add_u32 v7, v7, v8
    """)
    for k in range(3):
        a(f"v_add_u32 v{AXR[k]}, {BASES[k]}, v11\nv_xor_b32 v{AXR[k]+1}, 64, v{AXR[k]}\nv_add_u32 v{AWR[k]}, {BASES[k] + XB}, v7")
    a.c("store addresses: K -> v12 + s58, V -> v13 + s59, gate -> v12 + s58")
    a(f"""
    s_lshl_b32 s58, s4, 2
    s_lshr_b32 s59, s5, 1
    s_add_u32 s58, s58, s59
    s_mul_i32 s58, s58, 2560
    s_mul_i32 s59, s3, {KV_BYTES}
    s_add_u32 s58, s58, s59
    s_and_b32 s60, s5, 1
    s_mul_i32 s59, s60, 640
    s_add_u32 s59, s59, s58
    s_add_u32 s59, s59, 1280
    v_lshrrev_b32 v7, 1, v6
    v_and_b32 v8, 1, v6
    v_mul_u32_u24 v13, 320, v7
    v_lshl_add_u32 v13, v5, 4, v13
    v_lshl_add_u32 v13, v8, 3, v13
    v_lshlrev_b32 v12, 9, v7
    v_lshl_add_u32 v12, v5, 4, v12
    v_lshl_add_u32 v12, v8, 3, v12
    v_and_b32 v7, 3, v0
    s_mov_b32 s27, {QSCALE}
    s_cmp_eq_u32 s6, 1
    s_cbranch_scc1 L_AD1
    s_cmp_eq_u32 s6, 3
    s_cbranch_scc1 L_AD3
    s_lshl_b32 s60, s60, 8
    s_add_u32 s58, s58, s60
    s_mul_i32 s60, s6, {L_WV // 2}
    v_lshl_add_u32 v18, v7, 3, v18
    v_add_u32 v18, s60, v18
    s_branch L_AD4
    L_AD1:
    s_lshl_b32 s60, s60, 7
    s_add_u32 s58, s58, s60
    s_add_u32 s58, s58, 1024
    s_add_u32 s59, s59, {12*16}
    v_lshlrev_b32 v12, 3, v5
    v_and_b32 v7, 1, v0
    v_mul_u32_u24 v7, {L_WV}, v7
    v_add3_u32 v18, v18, v7, 32
    s_branch L_AD4
    L_AD3:
    s_lshl_b32 s58, s3, 11
    s_add_u32 s58, s58, s48
    s_lshl_b32 s60, s5, 4
    s_add_u32 s58, s58, s60
    s_lshl_b32 s58, s58, 2
    s_add_u32 s58, s58, {WS_G}
    v_lshlrev_b32 v12, 2, v5
    s_lshl_b32 s27, s3, 31
    s_xor_b32 s27, s27, {LOG2E | 0x80000000}
    v_lshlrev_b32 v18, 4, v6
    v_add_u32 v18, {L_G}, v18
    L_AD4:
    """)
    def kv_loop(kind):
        per = 2 if kind == "G" else 3
        nb = 4; ring = 5
        def rd(k):
            f = KVR[k % ring]
            r = [f"ds_read_b128 {vr(f,4)}, v{14 + (k & 1)} offset:{(k >> 1) * 2048}"]
            if kind == "G": r.append(f"ds_read_b128 {vr(f+4,4)}, v18 offset:{64*k}")
            else:
                for hf in range(2):
                    r.append(f"ds_read_b64_tr_b16 {vr(f+4+2*hf,2)}, v18 offset:{(32*k + 4*hf)*40}")
            return r
        def mm(k):
            f = KVR[k % ring]; r = []
            c1 = "0" if k == 0 else "v[20:23]"; c2 = "0" if k == 0 else "v[24:27]"
            if kind in "KHG": r.append(f"v_mfma_f32_16x16x32_bf16 v[20:23], {vr(f+4,4)}, {vr(f,4)}, {c1}")
            if kind in "VH": r.append(f"v_mfma_f32_16x16x32_bf16 v[24:27], {vr(f,4)}, {vr(f+4,4)}, {c2}")
            return r
        for k in range(nb):
            for x in rd(k): a(x)
        for k in range(20):
            ahead = min(k + nb, 20) - (k + 1)
            a(f"s_waitcnt lgkmcnt({ahead * per})")
            for x in mm(k): a(x)
            if k + nb < 20:
                for x in rd(k + nb): a(x)
    def reads(s, ks):
        bi, base = base_of(SMAP[s])
        ax = AXR[bi] + ks; aw = AWR[bi]; f = FR + 28 * ks
        r = [f"ds_read_b128 {vr(f+4*rt,4)}, v{ax} offset:{base + rt*2048}" for rt in range(2)]
        for ct in range(5):
            for hf in range(2):
                r.append(f"ds_read_b64_tr_b16 {vr(f+8+4*ct+2*hf,2)}, v{aw} offset:{base + (32*ks + 8*hf)*160 + 8*ct}")
        return r
    def mf(ks, ct, first=False):
        f = FR + 28 * ks
        return [f"v_mfma_f32_16x16x32_bf16 {vr(ACC+(rt*5+ct)*4,4)}, {vr(f+8+4*ct,4)}, {vr(f+4*rt,4)}, {'0' if first else vr(ACC+(rt*5+ct)*4,4)}" for rt in range(2)]
    def stage(s):
        r0 = reads(s, 0); r1 = reads(s, 1)
        if s == 0:
            for x in r0: a(x)
        else:
            k = 0
            for ct in range(5):
                n = [4, 3, 3, 2, 0][ct]
                for x in r0[k:k+n]: a(x)
                k += n
                for x in mf(1, ct): a(x)
        issued1 = 0
        plan = [4, 4, 3, 1, 0]
        for ct in range(5):
            a(f"s_waitcnt lgkmcnt({(12 - (4 + 2*ct)) + issued1})")
            for x in mf(0, ct, s == 0): a(x)
            for x in r1[issued1:issued1 + plan[ct]]: a(x)
            issued1 += plan[ct]
        a("s_waitcnt lgkmcnt(0)")
    PUB = optv("pub", 5)
    nb_ = [0]
    def cbar():
        i = nb_[0]; nb_[0] += 1
        if i == PUB: a("s_waitcnt vmcnt(0)")
        a("s_barrier")
        if opt("probeB"):
            stamp(a, 1 + i, True)
            if i == 10: a("s_branch L_FIN2")
        if i == PUB:
            a.c("publish this workgroup's K/V slice (wave 0, one lane)")
            a(f"""
            s_cmp_eq_u32 s6, 0
            s_cbranch_scc0 L_NOPUB
            s_bfe_u32 s56, s2, 0x50001
            s_lshl_b32 s56, s56, 7
            s_lshl_b32 s57, s3, 12
            s_add_u32 s56, s56, s57
            s_lshr_b32 s57, s2, 6
            s_lshl_b32 s57, s57, 2
            s_add_u32 s56, s56, s57
            s_add_u32 s56, s56, {FL_KV}
            """)
            flag_store(a, "s56", 7, 4)
            a("L_NOPUB:")
    cbar()
    if not opt("probeB"): stamp(a, 1, True)
    stage(0)
    a("s_waitcnt vmcnt(0)")
    cbar()
    a("v_readfirstlane_b32 s34, v9")
    a("s_cmp_eq_u32 s6, 1\ns_cbranch_scc1 L_KV_H\ns_cmp_eq_u32 s6, 2\ns_cbranch_scc1 L_KV_V\ns_cmp_eq_u32 s6, 3\ns_cbranch_scc1 L_KV_G")
    kst = """
    v_mul_f32 v20, s27, v20
    v_mul_f32 v21, s27, v21
    v_mul_f32 v22, s27, v22
    v_mul_f32 v23, s27, v23
    v_cvt_pk_bf16_f32 v16, v20, v21
    v_cvt_pk_bf16_f32 v17, v22, v23
    """
    kv_loop("K")
    a.c("the softmax scale rides on K")
    a("s_nop 7" + kst + "buffer_store_dwordx2 v[16:17], v12, s[28:31], s58 offen sc1\ns_branch L_KV_E\nL_KV_H:")
    kv_loop("H")
    a("s_nop 6" + kst + """
    v_cvt_pk_bf16_f32 v18, v24, v25
    v_cvt_pk_bf16_f32 v19, v26, v27
    s_mov_b64 exec, 0xffff
    buffer_store_dwordx2 v[16:17], v12, s[28:31], s58 offen sc1
    s_mov_b32 exec_lo, 0x00f000f0
    s_mov_b32 exec_hi, 0x00f000f0
    buffer_store_dwordx2 v[18:19], v13, s[28:31], s59 offen sc1
    s_mov_b64 exec, -1
    s_branch L_KV_E
    L_KV_G:
    """)
    kv_loop("G")
    a("""
    s_nop 7
    v_mul_f32 v20, s27, v20
    v_exp_f32 v20, v20
    s_nop 0
    v_add_f32 v20, 1.0, v20
    v_rcp_f32 v20, v20
    s_mov_b64 exec, 0xffff
    buffer_store_dword v20, v12, s[28:31], s58 offen sc1
    s_mov_b64 exec, -1
    s_branch L_KV_E
    L_KV_V:
    """)
    kv_loop("V")
    a("""
    s_nop 7
    v_cvt_pk_bf16_f32 v18, v24, v25
    v_cvt_pk_bf16_f32 v19, v26, v27
    buffer_store_dwordx2 v[18:19], v13, s[28:31], s59 offen sc1
    L_KV_E:
    """)
    mk_tag(a)
    a(f"""
    s_mul_i32 s7, s6, 5120
    s_add_u32 s7, s7, {L_QX}
    v_mul_u32_u24 v12, 1280, v6
    v_add_u32 v12, s7, v12
    v_lshl_add_u32 v13, v5, 3, v12
    v_lshl_add_u32 v12, v5, 4, v12
    """)
    if not opt("probeB"): stamp(a, 2, True)
    for s in range(1, 10):
        cbar(); stage(s)
    for rt in range(2):
        for ct in range(5): a(mf(1, ct)[rt])
    stamp(a, 3)
    a.c("Q epilogue: pack, write fragments to LDS [w][head rg][1280]")
    a("s_nop 2")
    for rt in range(2):
        P = 100 + 12 * rt
        for i in range(10): a(f"v_cvt_pk_bf16_f32 v{P+i}, v{ACC+rt*20+2*i}, v{ACC+rt*20+2*i+1}")
        a(f"ds_write_b128 v12, {vr(P,4)} offset:{rt*256}")
        a(f"ds_write_b128 v12, {vr(P+4,4)} offset:{512+rt*256}")
        a(f"ds_write_b64 v13, {vr(P+8,2)} offset:{1024+rt*128}")
    a("s_branch L_ATT")

    a("L_LOADER:")
    a.c("Wq DMA source offsets for 3 instrs: q=64i+l, p=q/10, c=q%10, src row = swap bits 2,3 of p")
    for i in range(3):
        a(f"""
        v_add_u32 v5, {64*i}, v0
        v_mul_u32_u24 v6, 6554, v5
        v_lshrrev_b32 v6, 16, v6
        v_mul_u32_u24 v7, 10, v6
        v_sub_u32 v7, v5, v7
        v_and_b32 v5, 0x13, v6
        v_and_b32 v8, 4, v6
        v_lshl_or_b32 v5, v8, 1, v5
        v_and_b32 v8, 8, v6
        v_lshrrev_b32 v8, 1, v8
        v_or_b32 v5, v5, v8
        v_mul_u32_u24 v5, 1280, v5
        v_lshl_add_u32 v{10+i}, v7, 4, v5
        """)
    a.c("s33 = k-chunk rotation (0,3,5,8): workgroups sharing Wq columns start at different k")
    a(f"""
    s_sub_u32 s7, s6, 4
    s_lshl_b32 s49, s7, 5
    s_add_u32 s48, s48, s49
    s_mul_i32 s48, s48, 1280
    s_mul_i32 s49, s5, 160
    s_mul_i32 s54, s7, {16*1280}
    s_add_u32 s49, s49, s54
    s_lshl_b32 s54, s7, 12
    s_mul_i32 s51, s7, 2560
    s_add_u32 s51, s51, {XB}
    s_mul_i32 s33, s33, 5
    s_add_u32 s33, s33, 1
    s_lshr_b32 s33, s33, 1
    s_lshl_b32 s50, s7, 10
    s_waitcnt lgkmcnt(0)
    s_cmp_eq_u32 s3, 0
    """)
    srd_sel(a, 72, 10, 16, 640 * 1280)
    srd_sel(a, 40, 12, 18, 25600)
    srd_sel(a, 44, 14, 20, 25600)
    Q_ = []
    def kchunk(s):
        return f"s_add_u32 s55, s33, {s}\ns_cmp_ge_u32 s55, 10\ns_cselect_b32 s56, 10, 0\ns_sub_u32 s55, s55, s56\n"
    def items_x(s):
        r = []
        for i in range(4):
            t = (kchunk(s) + "s_lshl_b32 s55, s55, 7\ns_add_u32 s55, s55, s48\n") if i == 0 else ""
            t += f"s_add_u32 m0, s54, {SLOT[SMAP[s]] + 1024*i}\ns_add_u32 s56, s55, {i*8*1280}\nbuffer_load_dwordx4 v2, s[36:39], s56 offen lds"
            r.append((f"X{s}", t))
        return r
    def items_w(s):
        r = []
        for i in range(3):
            t = (kchunk(s) + f"s_mul_i32 s55, s55, {64*1280}\ns_add_u32 s55, s55, s49\n") if i == 0 else ""
            t += f"s_add_u32 m0, s51, {SLOT[SMAP[s]] + 1024*i}\n" + ("s_mov_b32 exec_hi, 0\n" if i == 2 else "s_nop 0\n")
            t += f"buffer_load_dwordx4 v{10+i}, s[72:75], s55 offen lds" + ("\ns_mov_b32 exec_hi, -1" if i == 2 else "")
            r.append((f"W{s}", t))
        return r
    def items_small():
        r = []
        for j in range(6):
            r.append(("SM", f"s_add_u32 m0, s50, {L_WK + 4096*j}\ns_add_u32 s53, s50, {4096*j}\nbuffer_load_dwordx4 v3, s[40:43], s53 offen lds"))
            r.append(("SM", f"s_add_u32 m0, s50, {L_WV + 4096*j}\ns_nop 0\nbuffer_load_dwordx4 v3, s[44:47], s53 offen lds"))
        r.append(("SM", f"s_lshl_b32 s53, s7, 8\ns_add_u32 s53, s53, {24*1024}\ns_mov_b64 exec, 0xffff\ns_add_u32 m0, s53, {L_WK}\ns_nop 0\nbuffer_load_dwordx4 v3, s[40:43], s53 offen lds"))
        r.append(("SM", f"s_add_u32 m0, s53, {L_WV}\ns_nop 0\nbuffer_load_dwordx4 v3, s[44:47], s53 offen lds\ns_mov_b64 exec, -1"))
        return r
    def emit(items):
        for n, t in items:
            a(t); Q_.append(n)
    def younger(name):
        i = max(k for k, n in enumerate(Q_) if n == name)
        return len(Q_) - 1 - i
    lb_ = [0]
    def lbar(name):
        i = lb_[0]; lb_[0] += 1
        if opt("probeB"): stamp(a, 1 + i)
        a(f"s_waitcnt vmcnt({younger(name)})\ns_barrier")
    emit(items_w(0))
    srd(a, 36, 8, 9, 2048 * 1280)
    srd(a, 28, 24, 25, WS_END)
    emit(items_w(1) + items_w(2))
    a(f"s_mov_b32 s53, {FL_EPOCH}\nbuffer_load_dword v9, v4, s[28:31], s53 offen sc1")
    att_init()
    RL = 152; RA = RL + 64; RS = RA + 12
    a.c("wo re-layout job (wave 5): cb = wg&7, G = 5*(wg>>3) + l/10, octet = l%10 (50 lanes); addresses now, data later")
    for i in [2, 3] + list(range(12, 20)): a(f"v_mov_b32 v{RA+i}, 0")
    a("s_cmp_eq_u32 s6, 5\ns_cbranch_scc0 L_NORL")
    t = RL + 32
    U = RA + 11
    a(f"""
    s_lshr_b32 s56, s2, 3
    s_mul_i32 s56, s56, 5
    s_and_b32 s57, s2, 7
    s_mul_i32 s32, s57, 160
    s_lshr_b32 s35, s2, 7
    s_mul_i32 s35, s35, {40*1280}
    s_add_u32 s32, s32, s35
    v_mul_u32_u24 v{U}, 6554, v0
    v_lshrrev_b32 v{U}, 16, v{U}
    v_mul_u32_u24 v{RA}, 10, v{U}
    v_sub_u32 v{RA}, v0, v{RA}
    v_add_u32 v{t}, s56, v{U}
    v_and_b32 v{RA+1}, 1, v{t}
    v_lshrrev_b32 v{RA+2}, 1, v{t}
    v_lshlrev_b32 v{RA+2}, 3, v{RA+2}
    """)
    for e in range(8):
        a(f"""
        v_add_u32 v{t}, {e}, v{RA+2}
        v_mul_u32_u24 v{t+1}, 6554, v{t}
        v_lshrrev_b32 v{t+1}, 16, v{t+1}
        v_mul_u32_u24 v{t+2}, 10, v{t+1}
        v_sub_u32 v{t+2}, v{t}, v{t+2}
        v_and_b32 v{t}, 14, v{t+1}
        v_and_b32 v{t+1}, 1, v{t+1}
        v_lshl_add_u32 v{t+1}, v{t}, 1, v{t+1}
        v_mul_u32_u24 v{t+1}, 20, v{t+1}
        v_and_b32 v{t}, 3, v{t+2}
        v_add_u32 v{t+1}, v{t+1}, v{t}
        v_lshrrev_b32 v{t}, 2, v{t+2}
        v_lshl_add_u32 v{t+1}, v{t}, 3, v{t+1}
        v_lshrrev_b32 v{t}, 3, v{t+2}
        v_sub_u32 v{t}, 2, v{t}
        v_lshlrev_b32 v{t}, v{t}, v{RA+1}
        v_add_u32 v{t+1}, v{t+1}, v{t}
        v_mul_u32_u24 v{t+1}, 1280, v{t+1}
        v_lshl_add_u32 v{RS+e}, v{RA}, 4, v{t+1}
        """)
    for z in range(2):
        a(f"""
        v_lshlrev_b32 v{t+2}, 1, v{RA}
        v_add_u32 v{t+2}, {z}, v{t+2}
        v_mul_u32_u24 v{t}, 52, v{t+2}
        v_lshrrev_b32 v{t}, 8, v{t}
        v_mul_u32_u24 v{t+3}, 5, v{t}
        v_sub_u32 v{t+3}, v{t+2}, v{t+3}
        v_mul_u32_u24 v{t+3}, 40960, v{t+3}
        v_lshl_add_u32 v{t+3}, v{U}, 8, v{t+3}
        v_lshl_add_u32 v{RA+2+z}, v{t}, 6, v{t+3}
        """)
    a(f"""
    s_mul_i32 s35, s57, {5*40960}
    s_lshl_b32 s56, s56, 8
    s_add_u32 s35, s35, s56
    s_add_u32 s35, s35, {WS_WO}
    L_NORL:
    v_lshlrev_b32 v13, 7, v{T0}
    s_lshl_b32 s57, s3, 12
    s_add_u32 s57, s57, {FL_KV}
    """)
    sm = items_small()
    NSA = optv("nsa", 6)
    emit(items_x(0) + sm[:NSA])
    if not opt("probeB"): stamp(a, 1)
    lbar("X0")
    a("v_readfirstlane_b32 s34, v9")
    emit(sm[NSA:] + items_x(1))
    mk_tag(a)
    lbar("SM")
    emit(items_x(2) + items_w(3) + items_x(3))
    if not opt("probeB"): stamp(a, 2)
    rest = []
    for s in range(4, 10): rest += items_w(s) + items_x(s)
    PER = optv("per", 6)
    for r in range(2, 9):
        lbar(f"X{r-1}")
        n = PER if r < 8 else len(rest)
        chunk = rest[:n]; rest = rest[n:]
        for nme, _ in chunk:
            s = int(nme[1:]); prev = [p for p in range(s) if SMAP[p] == SMAP[s]]
            if prev: assert r >= (prev[-1] + 2 if prev[-1] > 0 else 1), (nme, r)
        emit(chunk)
    a.c("wave 4: one look at the K/V flags; if complete, fetch the first tiles of the image early")
    def img(r): a(f"s_mov_b32 m0, {1024*r}\ns_mov_b32 s20, {1024*r}\nbuffer_load_dwordx4 v{IMG}, s[28:31], s20 offen sc1 lds")
    a(f"""
    s_cmp_eq_u32 s6, 4
    s_cbranch_scc0 L_N4
    s_mov_b32 exec_hi, 0
    buffer_load_dwordx4 v[16:19], v13, s[28:31], s57 offen sc1
    s_waitcnt vmcnt({younger("X8") + 1})
    s_barrier
    s_waitcnt vmcnt(0)
    v_cmp_ne_u32 vcc, s34, v16
    v_cmp_ne_u32 s[58:59], s34, v17
    s_or_b64 vcc, vcc, s[58:59]
    v_cmp_ne_u32 s[58:59], s34, v18
    s_or_b64 vcc, vcc, s[58:59]
    v_cmp_ne_u32 s[58:59], s34, v19
    s_or_b64 vcc, vcc, s[58:59]
    s_mov_b32 exec_hi, -1
    s_cmp_eq_u64 vcc, 0
    s_cbranch_scc1 L_EARLY
    s_barrier
    s_mov_b32 s20, -1
    s_mov_b32 s21, 0
    """)
    if opt("probeB"): a("s_branch L_FIN2")
    stamp(a, 3)
    poll(a, "L_PKV", 13, "s57", 4, 16, mask="s[20:21]", preloaded=False)
    stamp(a, 4)
    NE = optv("ne", 6)
    for r in range(NE): img(r)
    a("s_branch L_LATE\nL_EARLY:")
    for r in range(NE): img(r)
    a("s_barrier")
    if opt("probeB"): a("s_branch L_FIN2")
    stamp(a, 3); stamp(a, 4)
    a("L_LATE:")
    for r in range(NE, NCH0): img(r)
    a(f"s_waitcnt vmcnt({NCH0 - 5})\ns_branch L_ATT\nL_N4:")
    lbar("X8")
    lbar("X9")
    if opt("probeB"): a("s_branch L_FIN2")
    stamp(a, 3)

    pAK1, pAK2, pAV = AK1, AK2, AV
    AK1, AK2, AV = 3, 2, 1
    def rdK(b, off):
        return [f"ds_read_b128 {vr(KF1[b],4)}, v{AK1} offset:{off}", f"ds_read_b32 v{KF2[b]}, v{AK2} offset:{off+1024}"]
    def rdV(b, off):
        return ["s_mov_b64 exec, s[36:37]",
                f"ds_read_b128 {vr(VF[b],4)}, v{AV} offset:{off+1280}", f"ds_read_b128 {vr(VF[b]+4,4)}, v{AV} offset:{off+1920}",
                "s_mov_b64 exec, -1"]
    def qk1(u, kb): return f"v_mfma_f32_32x32x16_bf16 {vr(S[u%4],16)}, {vr(KF1[kb],4)}, {vr(Q1[u%2],4)}, 0"
    def qk2(u, kb): return f"v_mfma_f32_32x32x8_bf16 {vr(S[u%4],16)}, {vr(KF2[kb],2)}, {vr(Q2[u%2],2)}, {vr(S[u%4],16)}"
    def pv(u, vb, i): return f"v_smfmac_f32_32x32x32_bf16 {vr(O[u%2],16)}, {vr(VF[vb]+4*i,4)}, {vr(S[u%4]+8*i,8)}, v{IDX}"
    a("L_ATT:")
    a(f"""
    v_mov_b32 v{AK2}, v{pAK2}
    v_mov_b32 v{AV}, v{pAV}
    v_mov_b32 v{IDX}, 0xdddddddd
    v_mov_b32 v{Q2[0]+1}, 0
    v_mov_b32 v{Q2[1]+1}, 0
    v_lshlrev_b32 v{T2}, 2, v{T0}
    s_mov_b32 s36, 0x0033ffff
    s_mov_b32 s37, 0x0033ffff
    s_mov_b32 s38, 0
    s_mov_b32 s39, -1
    s_mov_b32 s42, 1
    s_mov_b32 s44, 8
    s_waitcnt lgkmcnt(0)
    s_barrier
    ds_read_b128 {vr(Q1[0],4)}, v{AQ1}
    ds_read_b32 v{Q2[0]}, v{AQ2} offset:1024
    ds_read_b128 {vr(Q1[1],4)}, v{AQ1} offset:1280
    ds_read_b32 v{Q2[1]}, v{AQ2} offset:2304
    """)
    for x in rdK(0, 0) + rdK(1, 2560) + rdV(1, 0): a(x)
    a(f"buffer_load_dword v{G}, v{T2}, s[28:31], s14 offen sc1")
    stamp(a, 5, True)
    a.c("stand-in for the row max: the max over the first 32 keys")
    a("s_waitcnt lgkmcnt(4)")
    a(f"v_mfma_f32_32x32x16_bf16 {vr(S[2],16)}, {vr(KF1[0],4)}, {vr(Q1[0],4)}, 0")
    a(f"v_mfma_f32_32x32x16_bf16 {vr(S[1],16)}, {vr(KF1[0],4)}, {vr(Q1[1],4)}, 0")
    a("s_cmp_eq_u32 s6, 4\ns_cbranch_scc0 L_BQ2\ns_waitcnt vmcnt(1)\nL_BQ2:\ns_barrier\ns_nop 6")
    a(f"v_mfma_f32_32x32x8_bf16 {vr(S[0],16)}, {vr(KF2[0],2)}, {vr(Q2[0],2)}, {vr(S[2],16)}")
    a(f"v_mfma_f32_32x32x8_bf16 {vr(S[1],16)}, {vr(KF2[0],2)}, {vr(Q2[1],2)}, {vr(S[1],16)}")
    a("s_nop 10")
    for j in range(2):
        a(f"v_max3_f32 v{M[j]}, v{S[j]}, v{S[j]+1}, v{S[j]+2}\nv_max3_f32 v{T2+j}, v{S[j]+3}, v{S[j]+4}, v{S[j]+5}")
        for i in range(6, 16, 4):
            a(f"v_max3_f32 v{M[j]}, v{S[j]+i}, v{S[j]+i+1}, v{M[j]}")
            if i + 2 < 16: a(f"v_max3_f32 v{T2+j}, v{S[j]+i+2}, v{S[j]+i+3}, v{T2+j}")
        a(f"v_max_f32 v{M[j]}, v{M[j]}, v{T2+j}\nv_mov_b32 v{T2+j}, v{M[j]}")
        if j == 0: a("s_nop 1")
        else: a(f"v_mfma_f32_32x32x8_bf16 {vr(S[0],16)}, {vr(KF2[0],2)}, {vr(Q2[0],2)}, {vr(S[2],16)}\ns_nop 0")
        a(f"""
        v_permlane32_swap_b32 v{M[j]}, v{T2+j}
        s_nop 0
        v_min_f32 v{M[j]}, -v{M[j]}, -v{T2+j}
        v_lshrrev_b32 v{M[j]}, 16, v{M[j]}
        v_cndmask_b32 v{Q2[j]+1}, v{M[j]}, 0, s[38:39]
        """)
    a(f"""
    s_cmp_eq_u32 s13, 0
    s_cbranch_scc0 L_LAG0
    s_setprio 2
    s_waitcnt lgkmcnt(0)
    s_nop 2
    s_branch L_PR
    L_LAG0:
    """)
    a.c("waves 4-7: rest of the K/V image, side jobs, then S1 (waves 0-3 meet it after their first 8 tiles)")
    a(f"s_add_u32 s19, s50, {1024*(NCH0-1)}")
    for r in range(34):
        a(f"s_add_u32 m0, s19, {4096*r}\ns_add_u32 s20, s19, {4096*r}\nbuffer_load_dwordx4 v{IMG}, s[28:31], s20 offen sc1 lds")
    a("s_cmp_eq_u32 s6, 5\ns_cbranch_scc0 L_POIS\ns_bitcmp0_b32 s2, 6")
    srd_sel(a, 72, 68, 22, 640 * 1280)
    a("s_mov_b32 exec_hi, 0x3ffff")
    for e in range(8):
        a(f"buffer_load_dwordx4 {vr(RL+4*e,4)}, v{RS+e}, s[72:75], s32 offen")
    a("s_branch L_S1\nL_POIS:")
    a.c("waves 4,6,7: mark this workgroup's share of the O hand-off buffer as not yet written (rt16 = 8rb + i, slice 8*branch+hg); one KB column each")
    a(f"""
    s_mul_i32 s55, s4, {8*40960}
    s_lshl_b32 s56, s3, 3
    s_add_u32 s56, s56, s5
    s_mul_i32 s56, s56, 2560
    s_add_u32 s55, s55, s56
    s_add_u32 s55, s55, {WS_O}
    s_sub_u32 s56, s6, 5
    s_max_i32 s56, s56, 0
    s_lshl_b32 s56, s56, 10
    s_add_u32 s55, s55, s56
    v_mov_b32 v{PT}, -1
    v_mov_b32 v{PT+1}, -1
    v_mov_b32 v{PT+2}, -1
    v_mov_b32 v{PT+3}, -1
    s_cmp_eq_u32 s6, 7
    s_cselect_b32 exec_hi, 0, -1
    """)
    for i in range(8):
        a(f"buffer_store_dwordx4 {vr(PT,4)}, v{AK1}, s[28:31], s55 offen sc1\ns_add_u32 s55, s55, 40960")
    a("""
    L_S1:
    s_mov_b32 exec_hi, -1
    s_waitcnt vmcnt(8) lgkmcnt(0)
    s_barrier
    s_setprio 3
    L_PR:
    """)
    stamp(a, 6)
    if opt("cyc"): a("s_memtime s[80:81]")
    if opt("iters"): a("s_memtime s[94:95]\ns_waitcnt lgkmcnt(0)")
    a(".p2align 6\nL_LOOP:")
    for t in range(8):
        for j in range(2):
            u = 2 * t + j
            b = (t + j) % 2
            ex = [f"v_exp_f32 v{S[u%4]+i}, v{S[u%4]+i}" for i in range(16)]
            extra = [[], [], [], []]
            if j == 1:
                a("s_waitcnt lgkmcnt(0)")
                extra[0] = rdK(t % 2, (t + 2) * 2560)
                extra[1] = rdV(t % 2, (t + 1) * 2560)
            ms = [qk1(u + 1, b), qk2(u + 1, b), pv(u - 1, b, 0), pv(u - 1, b, 1)]
            for g in range(4):
                a(ms[g])
                for x in ex[4 * g:4 * g + 2]: a(x)
                for x in extra[g]: a(x)
                for x in ex[4 * g + 2:4 * g + 4]: a(x)
            if t == optv("nlt", 3) and j == 1 and optv("nlh", 0):
                a(f"s_cmp_eq_u32 s43, {16 + optv('nlh', 0) + 1}\ns_cbranch_scc0 L_PH\ns_setprio 1\nL_PH:")
    a(f"v_add_u32 v{AK1}, 20480, v{AK1}\nv_add_u32 v{AK2}, 20480, v{AK2}\nv_add_u32 v{AV}, 20480, v{AV}")
    a(f"""
    s_lshl_b32 s43, s13, 4
    s_add_u32 s43, s43, s44
    s_cmp_eq_u32 s43, {16 + optv("nl", 3)}
    s_cbranch_scc0 L_P1
    s_setprio 1
    L_P1:
    s_cmp_eq_u32 s42, 0
    s_cbranch_scc1 L_NEXT
    s_cmp_eq_u32 s44, 8
    s_cbranch_scc0 L_E0
    s_cmp_eq_u32 s13, 0
    s_cbranch_scc0 L_RL2
    s_barrier
    s_branch L_NEXT
    L_RL2:
    s_cmp_eq_u32 s6, 5
    s_cbranch_scc0 L_NEXT
    s_mov_b32 s56, 0x05040100
    s_mov_b32 s57, 0x07060302
    s_mov_b32 exec_hi, 0x3ffff
    s_waitcnt vmcnt(0)
    """)
    a.c("wo re-layout: 8x8 16-bit transposition in registers")
    for c in range(8):
        for r in range(4):
            a(f"v_perm_b32 v{RL+32+4*c+r}, v{RL+4*(2*r+1)+c//2}, v{RL+4*(2*r)+c//2}, {'s56' if c % 2 == 0 else 's57'}")
        a(f"buffer_store_dwordx4 {vr(RL+32+4*c,4)}, v{RA+2+c//4}, s[28:31], s35 offen offset:{(c%4)*16} sc1")
    a(f"""
    s_mov_b32 exec_hi, -1
    s_branch L_NEXT
    L_E0:
    s_cmp_eq_u32 s43, {16 + 6}
    s_cbranch_scc0 L_E1
    s_lshl_b32 s56, s2, 2
    s_add_u32 s56, s56, s6
    s_lshl_b32 s56, s56, 2
    s_add_u32 s56, s56, {FL_W - 16}
    v_mov_b32 v{T3}, 0
    s_waitcnt vmcnt(0)
    """)
    flag_store(a, "s56", T2, T3)
    a.c("flags to see: lanes 0-31 the workgroups that re-lay this tile's Wo columns, lanes 32-63 the row group")
    a(f"""
    s_branch L_NEXT
    L_E1:
    s_cmp_eq_u32 s44, 4
    s_cbranch_scc0 L_E2
    v_lshl_add_u32 v{T2}, v{T0}, 3, s5
    v_and_b32 v{T3}, 14, v0
    v_lshlrev_b32 v{T3}, 4, v{T3}
    v_and_or_b32 v{T3}, v0, 1, v{T3}
    s_and_b32 s57, s2, 0x1e
    v_or_b32 v{T3}, s57, v{T3}
    v_cndmask_b32 v{T2}, v{T2}, v{T3}, s[38:39]
    v_lshlrev_b32 v{T2}, 4, v{T2}
    s_mov_b32 s57, {FL_W}
    buffer_load_dwordx4 {vr(PT,4)}, v{T2}, s[28:31], s57 offen sc1
    s_branch L_NEXT
    L_E2:
    s_cmp_eq_u32 s44, 3
    s_cbranch_scc0 L_NEXT
    """)
    poll(a, "L_PW", T2, "s57", 4, PT, sleep=8)
    a.c("prefetch this wave's Wo fragments: [cb=hg][ct][f32 = 5w+st]")
    a(f"""
    s_mul_i32 s56, s5, {5*40960}
    s_mul_i32 s57, s6, 5120
    s_add_u32 s56, s56, s57
    s_add_u32 s56, s56, {WS_WO}
    v_lshlrev_b32 v{T2}, 4, v0
    v_add_u32 v{T3}, 4096, v{T2}
    """)
    for ct in range(5):
        for st in range(5):
            av = T2 if st < 4 else T3
            a(f"buffer_load_dwordx4 {vr(WO+(st*5+ct)*4,4)}, v{av}, s[28:31], s56 offen offset:{(st%4)*1024} sc1")
        if ct < 4: a("s_add_u32 s56, s56, 40960")
    a("L_NEXT:")
    if opt("iters"):
        for k in range(1, 9): a(f"s_mov_b32 s{76+2*k}, s{76+2*(k+1)}")
        a("s_memtime s[94:95]\ns_waitcnt lgkmcnt(0)")
    a("s_sub_u32 s44, s44, 1\ns_cmp_lg_u32 s44, 0\ns_cbranch_scc1 L_LOOP")
    stamp(a, 7)
    if opt("cyc"): a("s_memtime s[82:83]")
    a(pv(15, 0, 0)); a(pv(15, 0, 1))
    a.c("phase E addresses: tile rows 64*(2rb+branch).., columns 80*hg.. ; wave = K eighth; row tiles in an order rotated by hg")
    a(f"""
    s_setprio 3
    s_mov_b32 s46, {f32bits(2.0**-40)}
    s_mov_b32 s47, {f32bits(2.0**40)}
    s_mov_b32 s23, -2
    s_lshl_b32 s16, s4, 1
    s_add_u32 s16, s16, s3
    s_mul_i32 s21, s16, {4*40960}
    s_mul_i32 s40, s6, 5120
    s_add_u32 s21, s21, s40
    s_add_u32 s21, s21, {WS_O}
    """)
    for i in range(4):
        a(f"s_add_u32 s22, s5, {i}\ns_and_b32 s22, s22, 3\ns_mul_i32 s22, s22, 40960\ns_add_u32 s{17+i}, s21, s22\ns_add_u32 s{8+i}, s22, s40")
    a("s_waitcnt vmcnt(0) lgkmcnt(0)")
    a.c("run-time safety check of the stand-in max: row sums must lie in [2^-40, 2^40], else redo with the true max")
    a(f"""
    v_cmp_le_f32 s[48:49], s46, v{O[0]+10}
    v_cmp_ge_f32 s[50:51], s47, v{O[0]+10}
    v_cmp_le_f32 s[52:53], s46, v{O[1]+10}
    v_cmp_ge_f32 s[54:55], s47, v{O[1]+10}
    v_rcp_f32 v{M[0]}, v{O[0]+10}
    v_rcp_f32 v{M[1]}, v{O[1]+10}
    s_and_b64 s[48:49], s[48:49], s[50:51]
    s_and_b64 s[52:53], s[52:53], s[54:55]
    s_and_b64 s[48:49], s[48:49], s[52:53]
    s_cmp_eq_u64 s[48:49], -1
    s_cbranch_scc0 L_BAD
    L_OK:
    v_mul_f32 v{M[0]}, v{M[0]}, v{G}
    v_mul_f32 v{M[1]}, v{M[1]}, v{G}
    """)
    P = S[3]
    for j in range(2):
        for i in range(10): a(f"v_mul_f32 v{O[j]+i}, v{O[j]+i}, v{M[j]}")
        for i in range(5): a(f"v_cvt_pk_bf16_f32 v{P+5*j+i}, v{O[j]+2*i}, v{O[j]+2*i+1}")
    for i in range(10): a(f"v_min_u32 v{P+i}, s23, v{P+i}")
    a(f"""
    s_and_b32 s21, s5, 1
    s_cbranch_scc1 L_ST1
    buffer_store_dwordx4 {vr(P,4)}, v{OA}, s[28:31], s26 offen sc1
    buffer_store_dwordx4 {vr(P+4,4)}, v{OA}, s[28:31], s26 offen offset:512 sc1
    buffer_store_dwordx2 {vr(P+8,2)}, v{OA}, s[28:31], s26 offen offset:1024 sc1
    s_branch L_ST2
    L_ST1:
    buffer_store_dwordx2 {vr(P,2)}, v{OA}, s[28:31], s26 offen offset:8 sc1
    buffer_store_dwordx4 {vr(P+2,4)}, v{OA}, s[28:31], s26 offen offset:512 sc1
    buffer_store_dwordx4 {vr(P+6,4)}, v{OA}, s[28:31], s26 offen offset:1024 sc1
    L_ST2:
    s_setprio 0
    """)
    OF = 16
    EA = [96, 116, 16, 36]
    srd(a, 72, 66, 67, 2048 * 1280)
    a.c("out address (waves 0-3): row = 64*(2rb+branch) + 16w + n ; byte = row*1280 + hg*160 + rg*40")
    a(f"""
    v_mov_b32 v2, s34
    v_mov_b32 v3, 0
    v_lshlrev_b32 v5, 4, v0
    v_add_u32 v6, 4096, v5
    v_add_u32 v8, s8, v5
    v_add_u32 v9, s9, v5
    v_add_u32 v10, s10, v5
    v_add_u32 v11, s11, v5
    s_mul_i32 s22, s6, 40960
    v_add_u32 v12, s22, v5
    s_lshl_b32 s22, s16, 6
    s_lshl_b32 s21, s6, 4
    s_add_u32 s22, s22, s21
    s_mul_i32 s22, s22, 1280
    s_mul_i32 s21, s5, 160
    s_add_u32 s22, s22, s21
    v_and_b32 v13, 15, v0
    v_mul_u32_u24 v13, 1280, v13
    v_lshrrev_b32 v14, 4, v0
    v_mul_u32_u24 v14, 40, v14
    v_add_u32 v13, v13, v14
    s_mov_b32 s60, {SPIN}
    """)
    def oload(rt):
        for st in range(5):
            av = 5 if st < 4 else 6
            a(f"buffer_load_dwordx4 {vr(OF+(rt*5+st)*4,4)}, v{av}, s[28:31], s{17+rt} offen offset:{(st%4)*1024} sc1")
    def ewrites(rt):
        return [f"ds_write_b128 v{8+rt}, {vr(EA[rt]+4*ct,4)} offset:{ct*1024}" for ct in range(5)]
    def egemm(tag, bar=-1):
        for rt in range(4):
            if rt == bar: a("s_barrier")
            a(f"L_CH{tag}{rt}:\ns_waitcnt vmcnt({15 - 5*rt})")
            a.c("hand-off check: no word may still hold the not-yet-written mark")
            b = OF + rt * 20
            a(f"v_max3_u32 v15, v{b}, v{b+1}, v{b+2}\nv_max3_u32 v4, v{b+3}, v{b+4}, v{b+5}")
            for i in range(6, 20, 4):
                a(f"v_max3_u32 v15, v{b+i}, v{b+i+1}, v15")
                if i + 2 < 20: a(f"v_max3_u32 v4, v{b+i+2}, v{b+i+3}, v4")
            a(f"""
            v_max_u32 v15, v15, v4
            v_cmp_eq_u32 vcc, -1, v15
            s_cmp_eq_u64 vcc, 0
            s_cbranch_scc1 L_GO{tag}{rt}
            s_cmp_eq_u32 s60, 0
            s_cbranch_scc1 L_GO{tag}{rt}
            s_sub_u32 s60, s60, 1
            s_waitcnt vmcnt(0)
            s_sleep {optv("slp", 4)}
            """)
            for r2 in range(rt, 4): oload(r2)
            a(f"s_branch L_CH{tag}{rt}\nL_GO{tag}{rt}:")
            w = ewrites(rt - 1) if rt >= 1 else []
            for st in range(5):
                for ct in range(5):
                    d = vr(EA[rt] + 4 * ct, 4)
                    a(f"v_mfma_f32_16x16x32_bf16 {d}, {vr(WO+(st*5+ct)*4,4)}, {vr(OF+(rt*5+st)*4,4)}, {'0' if st == 0 else d}")
                if w: a(w[st])
    def retries():
        if PROF and not opt("iters"): a(f"s_waitcnt lgkmcnt(0)\ns_sub_u32 s84, {SPIN}, s60\ns_mul_i32 s84, s84, 100\ns_add_u32 s84, s84, s76")
    a.c("every wave of this workgroup is past its last K/V read: LDS can be reused")
    a("s_barrier")
    if not opt("noack"): a("s_waitcnt vmcnt(0)")
    stamp(a, 8)
    for rt in range(4): oload(rt)
    if PROF: a("s_waitcnt lgkmcnt(0)")
    a("s_cmp_eq_u32 s13, 0\ns_cbranch_scc1 L_ELEAD")
    egemm("B", optv("bar", 3))
    stamp(a, 10); retries()
    a("s_waitcnt lgkmcnt(5)\ns_nop 6")
    for x in ewrites(3): a(x)
    a("s_waitcnt lgkmcnt(0)\ns_barrier\ns_branch L_FIN")
    a("L_ELEAD:\ns_setprio 2")
    egemm("A")
    stamp(a, 9); retries()
    a("s_waitcnt lgkmcnt(5)\ns_nop 6")
    for x in ewrites(3): a(x)
    a("s_waitcnt lgkmcnt(0)\ns_barrier")
    R = 56
    def rsum(src0, keep):
        for src in range(4):
            for c in range(5):
                a(f"ds_read_b128 {vr(R+src*20+4*c,4)}, v12 offset:{(src0+src)*5120+c*1024}")
            if src == 1: a("s_waitcnt lgkmcnt(4)")
        a("s_waitcnt lgkmcnt(10)")
        for i in range(20): a(f"v_add_f32 v{R+i}, v{R+i}, v{R+20+i}")
        if keep:
            for i in range(20): a(f"v_add_f32 v{R+i}, v{R+i}, v{16+i}")
        a("s_waitcnt lgkmcnt(0)")
        for i in range(20): a(f"v_add_f32 v{R+40+i}, v{R+40+i}, v{R+60+i}")
        for i in range(20): a(f"v_add_f32 v{16+i}, v{R+i}, v{R+40+i}")
    rsum(0, False)
    a("s_barrier")
    stamp(a, 10, True)
    rsum(4, True)
    for i in range(10): a(f"v_cvt_pk_bf16_f32 v{40+i}, v{16+2*i}, v{16+2*i+1}")
    a("""
    buffer_store_dwordx4 v[40:43], v13, s[72:75], s22 offen
    buffer_store_dwordx4 v[44:47], v13, s[72:75], s22 offen offset:16
    buffer_store_dwordx2 v[48:49], v13, s[72:75], s22 offen offset:32
    """)
    a.c("workgroup 0 advances the epoch: every workgroup has read it by now")
    a(f"""
    s_or_b32 s21, s2, s6
    s_cmp_eq_u32 s21, 0
    s_cbranch_scc0 L_FIN
    s_mov_b32 s21, {FL_EPOCH}
    s_mov_b64 exec, 1
    buffer_store_dword v2, v3, s[28:31], s21 offen sc1
    L_FIN:
    """)
    if PROF: a("s_waitcnt vmcnt(0)")
    stamp(a, 11)
    a("L_FIN2:")
    stamp_flush(a)
    a("s_endpgm")
    a("L_BAD:")
    a.c("second (and last) pass: exact row max over all keys, then the same loop again")
    a(f"""
    s_cmp_eq_u32 s42, 0
    s_cbranch_scc1 L_OK
    s_mov_b32 s42, 0
    s_mov_b32 s40, 0xffff0000
    s_mov_b32 s43, 64
    v_subrev_u32 v{AK1}, {KV_BYTES}, v{AK1}
    v_subrev_u32 v{AK2}, {KV_BYTES}, v{AK2}
    v_subrev_u32 v{AV}, {KV_BYTES}, v{AV}
    v_mov_b32 v{T2}, v{AK1}
    v_mov_b32 v{T3}, v{AK2}
    """)
    for j in range(2):
        a(f"v_mov_b32 v{Q2[j]+1}, 0\nv_mov_b32 v{M[j]}, 0xff800000")
    for i in range(32): a(f"v_mov_b32 v{O[0]+i}, 0")
    for i in range(16): a(f"v_mov_b32 v{S[3]+i}, 0")
    a("L_MAXL:")
    a(f"ds_read_b128 {vr(KF1[0],4)}, v{T2}\nds_read_b32 v{KF2[0]}, v{T3} offset:1024")
    a(f"v_add_u32 v{T2}, 2560, v{T2}\nv_add_u32 v{T3}, 2560, v{T3}\ns_waitcnt lgkmcnt(0)")
    for j in range(2): a(qk1(j, 0)); a(qk2(j, 0))
    a("s_nop 11")
    for j in range(2):
        for i in range(8):
            a(f"v_max3_f32 v{M[j]}, v{S[j]+2*i}, v{S[j]+2*i+1}, v{M[j]}")
    a("s_sub_u32 s43, s43, 1\ns_cmp_lg_u32 s43, 0\ns_cbranch_scc1 L_MAXL")
    for x in rdK(0, 0) + rdK(1, 2560) + rdV(1, 0): a(x)
    a.c("-m split exactly into three bf16 pieces that ride in the spare k-slots")
    for j in range(2):
        a(f"""
        v_mov_b32 v{T2}, v{M[j]}
        s_nop 1
        v_permlane32_swap_b32 v{M[j]}, v{T2}
        s_nop 1
        v_min_f32 v{M[j]}, -v{M[j]}, -v{T2}
        v_and_b32 v{T2}, s40, v{M[j]}
        v_sub_f32 v{T3}, v{M[j]}, v{T2}
        v_lshrrev_b32 v{T2}, 16, v{T2}
        v_and_or_b32 v{T2}, v{T3}, s40, v{T2}
        v_and_b32 v{M[j]}, s40, v{T3}
        v_sub_f32 v{T3}, v{T3}, v{M[j]}
        v_and_b32 v{T3}, s40, v{T3}
        v_cndmask_b32 v{Q2[j]+1}, v{T2}, v{T3}, s[38:39]
        """)
    a("s_waitcnt lgkmcnt(0)\ns_nop 0")
    a(qk1(0, 0)); a(qk2(0, 0))
    a("s_mov_b32 s44, 8\ns_setprio 1\ns_nop 9\ns_branch L_LOOP")
    a("L_END:\ns_endpgm")
    return f""".p2align 6
.amdhsa_kernel {N}
  .amdhsa_next_free_vgpr 256
  .amdhsa_next_free_sgpr 102
  .amdhsa_accum_offset 256
  .amdhsa_group_segment_fixed_size 0
  .amdhsa_kernarg_size 112
  .amdhsa_user_sgpr_count 2
  .amdhsa_user_sgpr_kernarg_segment_ptr 1
  .amdhsa_system_sgpr_workgroup_id_x 1
.end_amdhsa_kernel
"""

def main():
    ref = open(f"cdna_kernels/{NAME}.s.ref").read().split("\n")
    head = [l for l in ref if l.startswith(";") and "@launch" not in l]
    a = Asm()
    kd = gen(a)
    out = "\n".join(head) + "\n"
    out += "; @launch grid=(256,1,1) block=(512,1,1) lds=163840\n"
    out += '.amdgcn_target "amdgcn-amd-amdhsa--gfx950"\n.text\n'
    out += a.text()
    out += '.section .rodata,"a"\n' + kd
    path = ARGS[0] if ARGS and not ARGS[0].startswith("--") else f"cdna_kernels/{NAME}.s"
    open(path, "w").write(out)
main()
```

```python
import math, struct, sys

NAME = "gated_mix__grouped_kv_mqa__grouped_kv_mqa__prompt"
ARGS = sys.argv[1:]
def opt(n): return ("--" + n) in ARGS
def optv(n, d):
    for x in ARGS:
        if x.startswith("--" + n + "="): return int(x.split("=")[1])
    return d

KV_BYTES = 163840
WS_KV   = 0
WS_G    = 2 * KV_BYTES
WS_O    = WS_G + 16384
O_BYTES = 128 * 40 * 1024
WS_WO   = WS_O + O_BYTES
WO_BYTES = 8 * 5 * 40 * 1024
WS_FL   = WS_WO + WO_BYTES
FL_EPOCH = WS_FL
FL_KV   = WS_FL + 256
FL_W    = FL_KV + 8192
WS_END  = FL_W + 4096

def f32bits(x):
    return struct.unpack("<I", struct.pack("<f", x))[0]
QSCALE = f32bits((20 ** -0.5) * math.log2(math.e))
LOG2E = f32bits(math.log2(math.e))

class Asm:
    def __init__(self): self.l = []
    def __call__(self, s):
        for line in s.split("\n"):
            line = line.strip()
            if line: self.l.append(("" if line.endswith(":") else "  ") + line)
    def c(self, s): self.l.append("  ; " + s)
    def text(self): return "\n".join(self.l) + "\n"

def vr(b, n=1): return f"v{b}" if n == 1 else f"v[{b}:{b+n-1}]"

def srd(a, d, lo, hi, nbytes):
    a(f"s_mov_b32 s{d}, s{lo}\ns_mov_b32 s{d+1}, s{hi}\ns_mov_b32 s{d+2}, {nbytes}\ns_mov_b32 s{d+3}, 0x00020000")
def srd_sel(a, d, lo0, lo1, nbytes):
    a(f"s_cselect_b32 s{d}, s{lo0}, s{lo1}\ns_cselect_b32 s{d+1}, s{lo0+1}, s{lo1+1}\ns_mov_b32 s{d+2}, {nbytes}\ns_mov_b32 s{d+3}, 0x00020000")

PROF = opt("prof")
PROF_BASE = 16 << 20
NST = 12
def stamp(a, i, wait=False):
    if PROF and not (opt("iters") and i >= 7):
        a(f"s_memrealtime s[{76+2*i}:{77+2*i}]")
        if wait: a("s_waitcnt lgkmcnt(0)")
def stamp_flush(a):
    if not PROF: return
    a("s_waitcnt lgkmcnt(0)\ns_mov_b64 exec, 1")
    a(f"s_lshl_b32 s62, s2, 3\ns_add_u32 s62, s62, s6\ns_lshl_b32 s62, s62, 6\ns_add_u32 s62, s62, {PROF_BASE}")
    a("s_mov_b32 s30, 0x2000000\nv_mov_b32 v0, 0")
    for i in range(NST):
        a(f"v_mov_b32 v2, s{76+2*i}\nbuffer_store_dword v2, v0, s[28:31], s62 offen offset:{4*i}\ns_nop 1")

SPIN = 200000
def poll(a, lbl, addr_v, soff, width, tmp, mask=None, preloaded=True, sleep=1):
    ld = {1: "dword", 2: "dwordx2", 4: "dwordx4"}[width]
    a(f"s_mov_b32 s60, {SPIN}")
    if mask is not None: a(f"s_mov_b64 exec, {mask}")
    if preloaded: a(f"s_branch {lbl}_chk")
    a(f"{lbl}_ld:")
    a(f"buffer_load_{ld} {vr(tmp,width)}, v{addr_v}, s[28:31], {soff} offen sc1")
    a(f"{lbl}_chk:\ns_waitcnt vmcnt(0)")
    a(f"v_cmp_ne_u32 vcc, s34, v{tmp}")
    for i in range(1, width):
        a(f"v_cmp_ne_u32 s[58:59], s34, v{tmp+i}\ns_or_b64 vcc, vcc, s[58:59]")
    a(f"s_sub_u32 s60, s60, 1\ns_cbranch_scc1 {lbl}_ok")
    a(f"s_cmp_eq_u64 vcc, 0\ns_cbranch_scc1 {lbl}_ok\ns_sleep {sleep}\ns_branch {lbl}_ld\n{lbl}_ok:")
    if mask is not None: a("s_mov_b64 exec, -1")

def flag_store(a, soff, vtmp, vzero):
    a(f"v_mov_b32 v{vtmp}, s34\ns_mov_b64 exec, 1\nbuffer_store_dword v{vtmp}, v{vzero}, s[28:31], {soff} offen sc1\ns_mov_b64 exec, -1")
def mk_tag(a):
    a("s_mul_i32 s34, s34, 0x9e3779b1\ns_add_u32 s34, s34, 0x7f4a7c15")

def gen(a):
    N = NAME + "_kernel"
    STG = 26624; XB = 16384
    L_WK = 0; L_WV = 25600; L_G = 51200; RING = 57344
    L_X16 = RING + 3 * STG
    L_QX = 143360
    SLOT = {"A": RING, "B": RING + STG, "C": RING + 2 * STG, "D": RING + 3 * STG, "F": 30720}
    SMAP = ["A", "B", "C", "A", "D", "F", "B", "C", "A", "F"]
    NCH0 = 25
    Q1 = [4, 12]; Q2 = [8, 16]
    IDX, G = 10, 11
    T2, T3 = 20, 21
    M = [22, 23]
    KF1 = [24, 32]; KF2 = [28, 36]
    OA, IMG, T0, T1 = 30, 31, 38, 39
    VF = [40, 48]
    O = [56, 72]
    S = [88, 104, 120, 136]
    AK1, AK2, AV, AQ1, AQ2 = 88, 89, 90, 91, 92
    WO = 152; PT = 252

    def att_init():
        a.c("attention constants and accumulators; s12 = rt32, s13 = hp, s26 + v30 = O address")
        a(f"""
        s_and_b32 s15, s6, 3
        s_lshl_b32 s13, s4, 2
        s_add_u32 s12, s15, s13
        s_lshr_b32 s13, s6, 2
        s_mul_i32 s15, s15, 5120
        s_mul_i32 s14, s13, 2560
        s_add_u32 s15, s15, s14
        s_add_u32 s15, s15, {L_QX}
        v_and_b32 v{T0}, 31, v0
        v_lshrrev_b32 v{T1}, 5, v0
        v_lshlrev_b32 v{AK2}, 3, v{T0}
        v_lshl_add_u32 v{AK2}, v{T1}, 2, v{AK2}
        v_add_u32 v{AQ1}, s15, v3
        v_add_u32 v{AQ2}, s15, v{AK2}
        v_mul_u32_u24 v{AV}, 20, v{T1}
        v_add_lshl_u32 v{AV}, v{AV}, v{T0}, 4
        s_mul_i32 s26, s12, 81920
        s_lshl_b32 s14, s13, 1
        s_add_u32 s14, s14, s3
        s_lshl_b32 s14, s14, 3
        s_add_u32 s14, s14, s5
        s_mul_i32 s14, s14, 1280
        s_add_u32 s26, s26, s14
        s_add_u32 s26, s26, {WS_O}
        v_lshrrev_b32 v{OA}, 4, v{T0}
        v_mul_u32_u24 v{OA}, 40960, v{OA}
        v_lshl_add_u32 v{OA}, v{T1}, 8, v{OA}
        v_and_b32 v{AK1}, 15, v0
        v_lshl_add_u32 v{OA}, v{AK1}, 4, v{OA}
        s_mul_i32 s14, s3, {KV_BYTES}
        v_add_u32 v{IMG}, s14, v3
        s_lshl_b32 s14, s3, 6
        s_add_u32 s14, s14, s12
        s_lshl_b32 s14, s14, 7
        s_add_u32 s14, s14, {WS_G}
        """)
        for b in range(2):
            a(f"v_mov_b32 v{KF2[b]+1}, 0x3f803f80")
            for i in range(8): a(f"v_mov_b32 v{VF[b]+i}, 0")
        a("s_mov_b32 exec_lo, 0x01100000\ns_mov_b32 exec_hi, 0x01100000")
        for b in range(2):
            for i in range(8): a(f"v_mov_b32 v{VF[b]+i}, 0x3f803f80")
        a("s_mov_b64 exec, -1")
        for i in range(32): a(f"v_mov_b32 v{O[0]+i}, 0")
        for i in range(16): a(f"v_mov_b32 v{S[3]+i}, 0")

    a(f".globl {N}\n.p2align 8\n.type {N},@function\n{N}:")
    a("s_cmp_ge_u32 s2, 256\ns_cbranch_scc1 L_END")
    a("""
    s_load_dwordx8 s[8:15], s[0:1], 0
    s_load_dwordx8 s[16:23], s[0:1], 48
    s_load_dwordx2 s[24:25], s[0:1], 104
    s_load_dwordx4 s[64:67], s[0:1], 80
    s_load_dwordx2 s[68:69], s[0:1], 32
    """)
    stamp(a, 0)
    a.c("s3 = branch, s4 = rb (128-row block), s5 = hg (head group), s6 = wave, s33 = rb&3")
    a("""
    v_lshrrev_b32 v1, 6, v0
    v_and_b32 v0, 63, v0
    s_and_b32 s3, s2, 1
    v_readfirstlane_b32 s6, v1
    s_lshr_b32 s4, s2, 1
    s_and_b32 s4, s4, 3
    s_lshl_b32 s4, s4, 2
    s_lshr_b32 s33, s2, 3
    s_and_b32 s33, s33, 3
    s_add_u32 s4, s4, s33
    s_lshr_b32 s5, s2, 5
    v_lshlrev_b32 v3, 4, v0
    v_lshrrev_b32 v5, 3, v0
    v_and_b32 v6, 7, v0
    v_xor_b32 v6, v6, v5
    v_lshlrev_b32 v6, 4, v6
    v_mul_u32_u24 v2, 1280, v5
    v_add_u32 v2, v2, v6
    v_mov_b32 v4, 0
    s_lshl_b32 s48, s4, 7
    s_lshl_b32 s50, s6, 10
    s_cmp_ge_u32 s6, 4
    s_cbranch_scc1 L_LOADER
    """)
    a(f"""
    s_lshl_b32 s49, s5, 4
    s_add_u32 s49, s48, s49
    s_mul_i32 s49, s49, 1280
    s_lshr_b32 s51, s6, 1
    s_lshl_b32 s51, s51, 7
    s_and_b32 s52, s6, 1
    s_mul_i32 s53, s52, {8*1280}
    s_add_u32 s51, s51, s53
    s_add_u32 s51, s51, s49
    s_lshr_b32 s54, s2, 3
    s_lshl_b32 s54, s54, 10
    s_waitcnt lgkmcnt(0)
    """)
    srd(a, 36, 8, 9, 2048 * 1280)
    a.c("lines no other CU of this XCD is asking for yet: x16 pieces w+4j, one KB of wk / wv (L2 warm-up), gate")
    for j in range(5):
        a(f"s_add_u32 m0, s50, {L_X16 + 4096*j}\ns_add_u32 s53, s51, {256*j}\nbuffer_load_dwordx4 v2, s[36:39], s53 offen lds")
        if j == 0:
            srd(a, 28, 24, 25, WS_END)
            a(f"""
            s_cmp_ge_u32 s6, 2
            s_cbranch_scc1 L_LA2
            s_cmp_eq_u32 s6, 0
            s_cselect_b32 s12, s12, s14
            s_cselect_b32 s13, s13, s15
            s_cselect_b32 s18, s18, s20
            s_cselect_b32 s19, s19, s21
            s_cmp_eq_u32 s3, 0
            """)
            srd_sel(a, 40, 12, 18, 25600)
            a(f"""
            buffer_load_dwordx4 v[96:99], v3, s[40:43], s54 offen
            s_branch L_LA3
            L_LA2:
            """)
            srd(a, 40, 64, 65, 1280)
            a(f"""
            s_lshl_b32 s53, s52, 10
            s_add_u32 m0, s53, {L_G}
            s_nop 0
            buffer_load_dwordx4 v3, s[40:43], s53 offen lds
            L_LA3:
            """)
    a(f"s_mov_b32 s53, {FL_EPOCH}\nbuffer_load_dword v9, v4, s[28:31], s53 offen sc1")
    a.c("bring this kernel's own code into L2: 1 KB per workgroup of the XCD round (wave 2)")
    a(f"""
    s_cmp_eq_u32 s6, 2
    s_cbranch_scc0 L_NCPF
    s_getpc_b64 s[56:57]
    L_PCREF:
    s_sub_u32 s56, s56, L_PCREF-{N}
    s_subb_u32 s57, s57, 0
    v_add_u32 v7, s54, v3
    v_min_u32 v7, L_END-{N}-16, v7
    global_load_dwordx4 v[96:99], v7, s[56:57]
    L_NCPF:
    """)
    att_init()
    FR = 152; ACC = 208; KVF = 100
    KVR = [100, 112, 124, 152, 164]
    BASES = [SLOT["F"], SLOT["B"], SLOT["D"]]
    AXR = [248, 250, 252]; AWR = [254, 255, 1]
    def base_of(slot):
        o = SLOT[slot]
        i = max(k for k in range(3) if BASES[k] <= o)
        return i, o - BASES[i]
    a.c("K/V fragment addresses (wave: 0 K d0-15, 1 K and V d16-19, 2 V d0-15, 3 gate)")
    a(f"""
    v_and_b32 v5, 15, v0
    v_lshrrev_b32 v6, 4, v0
    v_and_b32 v7, 7, v0
    v_xor_b32 v7, v7, v6
    v_lshlrev_b32 v7, 4, v7
    v_lshl_add_u32 v10, v5, 7, v7
    v_add_u32 v14, {L_X16}, v10
    v_xor_b32 v15, 64, v14
    v_bfe_u32 v7, v0, 2, 2
    v_lshl_add_u32 v7, v6, 3, v7
    v_mul_u32_u24 v18, 40, v7
    s_lshl_b32 s7, s6, 12
    v_add_u32 v11, s7, v10
    v_lshrrev_b32 v7, 1, v6
    v_lshlrev_b32 v7, 4, v7
    v_and_b32 v8, 1, v6
    v_lshl_add_u32 v7, v8, 2, v7
    v_bfe_u32 v8, v0, 2, 2
    v_add_u32 v7, v7, v8
    v_mul_u32_u24 v7, 160, v7
    v_and_b32 v8, 3, v0
    v_mul_u32_u24 v8, 40, v8
    v_add_u32 v7, v7, v8
    """)
    for k in range(3):
        a(f"v_add_u32 v{AXR[k]}, {BASES[k]}, v11\nv_xor_b32 v{AXR[k]+1}, 64, v{AXR[k]}\nv_add_u32 v{AWR[k]}, {BASES[k] + XB}, v7")
    a.c("store addresses: K -> v12 + s58, V -> v13 + s59, gate -> v12 + s58")
    a(f"""
    s_lshl_b32 s58, s4, 2
    s_lshr_b32 s59, s5, 1
    s_add_u32 s58, s58, s59
    s_mul_i32 s58, s58, 2560
    s_mul_i32 s59, s3, {KV_BYTES}
    s_add_u32 s58, s58, s59
    s_and_b32 s60, s5, 1
    s_mul_i32 s59, s60, 640
    s_add_u32 s59, s59, s58
    s_add_u32 s59, s59, 1280
    v_lshrrev_b32 v7, 1, v6
    v_and_b32 v8, 1, v6
    v_mul_u32_u24 v13, 320, v7
    v_lshl_add_u32 v13, v5, 4, v13
    v_lshl_add_u32 v13, v8, 3, v13
    v_lshlrev_b32 v12, 9, v7
    v_lshl_add_u32 v12, v5, 4, v12
    v_lshl_add_u32 v12, v8, 3, v12
    v_and_b32 v7, 3, v0
    s_mov_b32 s27, {QSCALE}
    s_cmp_eq_u32 s6, 1
    s_cbranch_scc1 L_AD1
    s_cmp_eq_u32 s6, 3
    s_cbranch_scc1 L_AD3
    s_lshl_b32 s60, s60, 8
    s_add_u32 s58, s58, s60
    s_mul_i32 s60, s6, {L_WV // 2}
    v_lshl_add_u32 v18, v7, 3, v18
    v_add_u32 v18, s60, v18
    s_branch L_AD4
    L_AD1:
    s_lshl_b32 s60, s60, 7
    s_add_u32 s58, s58, s60
    s_add_u32 s58, s58, 1024
    s_add_u32 s59, s59, {12*16}
    v_lshlrev_b32 v12, 3, v5
    v_and_b32 v7, 1, v0
    v_mul_u32_u24 v7, {L_WV}, v7
    v_add3_u32 v18, v18, v7, 32
    s_branch L_AD4
    L_AD3:
    s_lshl_b32 s58, s3, 11
    s_add_u32 s58, s58, s48
    s_lshl_b32 s60, s5, 4
    s_add_u32 s58, s58, s60
    s_lshl_b32 s58, s58, 2
    s_add_u32 s58, s58, {WS_G}
    v_lshlrev_b32 v12, 2, v5
    s_lshl_b32 s27, s3, 31
    s_xor_b32 s27, s27, {LOG2E | 0x80000000}
    v_lshlrev_b32 v18, 4, v6
    v_add_u32 v18, {L_G}, v18
    L_AD4:
    """)
    def kv_loop(kind):
        per = 2 if kind == "G" else 3
        nb = 4; ring = 5
        def rd(k):
            f = KVR[k % ring]
            r = [f"ds_read_b128 {vr(f,4)}, v{14 + (k & 1)} offset:{(k >> 1) * 2048}"]
            if kind == "G": r.append(f"ds_read_b128 {vr(f+4,4)}, v18 offset:{64*k}")
            else:
                for hf in range(2):
                    r.append(f"ds_read_b64_tr_b16 {vr(f+4+2*hf,2)}, v18 offset:{(32*k + 4*hf)*40}")
            return r
        def mm(k):
            f = KVR[k % ring]; r = []
            c1 = "0" if k == 0 else "v[20:23]"; c2 = "0" if k == 0 else "v[24:27]"
            if kind in "KHG": r.append(f"v_mfma_f32_16x16x32_bf16 v[20:23], {vr(f+4,4)}, {vr(f,4)}, {c1}")
            if kind in "VH": r.append(f"v_mfma_f32_16x16x32_bf16 v[24:27], {vr(f,4)}, {vr(f+4,4)}, {c2}")
            return r
        for k in range(nb):
            for x in rd(k): a(x)
        for k in range(20):
            ahead = min(k + nb, 20) - (k + 1)
            a(f"s_waitcnt lgkmcnt({ahead * per})")
            for x in mm(k): a(x)
            if k + nb < 20:
                for x in rd(k + nb): a(x)
    def reads(s, ks):
        bi, base = base_of(SMAP[s])
        ax = AXR[bi] + ks; aw = AWR[bi]; f = FR + 28 * ks
        r = [f"ds_read_b128 {vr(f+4*rt,4)}, v{ax} offset:{base + rt*2048}" for rt in range(2)]
        for ct in range(5):
            for hf in range(2):
                r.append(f"ds_read_b64_tr_b16 {vr(f+8+4*ct+2*hf,2)}, v{aw} offset:{base + (32*ks + 8*hf)*160 + 8*ct}")
        return r
    def mf(ks, ct, first=False):
        f = FR + 28 * ks
        return [f"v_mfma_f32_16x16x32_bf16 {vr(ACC+(rt*5+ct)*4,4)}, {vr(f+8+4*ct,4)}, {vr(f+4*rt,4)}, {'0' if first else vr(ACC+(rt*5+ct)*4,4)}" for rt in range(2)]
    def stage(s):
        r0 = reads(s, 0); r1 = reads(s, 1)
        if s == 0:
            for x in r0: a(x)
        else:
            k = 0
            for ct in range(5):
                n = [4, 3, 3, 2, 0][ct]
                for x in r0[k:k+n]: a(x)
                k += n
                for x in mf(1, ct): a(x)
        issued1 = 0
        plan = [4, 4, 3, 1, 0]
        for ct in range(5):
            a(f"s_waitcnt lgkmcnt({(12 - (4 + 2*ct)) + issued1})")
            for x in mf(0, ct, s == 0): a(x)
            for x in r1[issued1:issued1 + plan[ct]]: a(x)
            issued1 += plan[ct]
        a("s_waitcnt lgkmcnt(0)")
    PUB = optv("pub", 5)
    nb_ = [0]
    def cbar():
        i = nb_[0]; nb_[0] += 1
        if i == PUB: a("s_waitcnt vmcnt(0)")
        a("s_barrier")
        if opt("probeB"):
            stamp(a, 1 + i, True)
            if i == 10: a("s_branch L_FIN2")
        if i == PUB:
            a.c("publish this workgroup's K/V slice (wave 0, one lane)")
            a(f"""
            s_cmp_eq_u32 s6, 0
            s_cbranch_scc0 L_NOPUB
            s_bfe_u32 s56, s2, 0x50001
            s_lshl_b32 s56, s56, 7
            s_lshl_b32 s57, s3, 12
            s_add_u32 s56, s56, s57
            s_lshr_b32 s57, s2, 6
            s_lshl_b32 s57, s57, 2
            s_add_u32 s56, s56, s57
            s_add_u32 s56, s56, {FL_KV}
            """)
            flag_store(a, "s56", 7, 4)
            a("L_NOPUB:")
    cbar()
    if not opt("probeB"): stamp(a, 1, True)
    stage(0)
    a("s_waitcnt vmcnt(0)")
    cbar()
    a("v_readfirstlane_b32 s34, v9")
    a("s_cmp_eq_u32 s6, 1\ns_cbranch_scc1 L_KV_H\ns_cmp_eq_u32 s6, 2\ns_cbranch_scc1 L_KV_V\ns_cmp_eq_u32 s6, 3\ns_cbranch_scc1 L_KV_G")
    kst = """
    v_mul_f32 v20, s27, v20
    v_mul_f32 v21, s27, v21
    v_mul_f32 v22, s27, v22
    v_mul_f32 v23, s27, v23
    v_cvt_pk_bf16_f32 v16, v20, v21
    v_cvt_pk_bf16_f32 v17, v22, v23
    """
    kv_loop("K")
    a.c("the softmax scale rides on K")
    a("s_nop 7" + kst + "buffer_store_dwordx2 v[16:17], v12, s[28:31], s58 offen sc1\ns_branch L_KV_E\nL_KV_H:")
    kv_loop("H")
    a("s_nop 6" + kst + """
    v_cvt_pk_bf16_f32 v18, v24, v25
    v_cvt_pk_bf16_f32 v19, v26, v27
    s_mov_b64 exec, 0xffff
    buffer_store_dwordx2 v[16:17], v12, s[28:31], s58 offen sc1
    s_mov_b32 exec_lo, 0x00f000f0
    s_mov_b32 exec_hi, 0x00f000f0
    buffer_store_dwordx2 v[18:19], v13, s[28:31], s59 offen sc1
    s_mov_b64 exec, -1
    s_branch L_KV_E
    L_KV_G:
    """)
    kv_loop("G")
    a("""
    s_nop 7
    v_mul_f32 v20, s27, v20
    v_exp_f32 v20, v20
    s_nop 0
    v_add_f32 v20, 1.0, v20
    v_rcp_f32 v20, v20
    s_mov_b64 exec, 0xffff
    buffer_store_dword v20, v12, s[28:31], s58 offen sc1
    s_mov_b64 exec, -1
    s_branch L_KV_E
    L_KV_V:
    """)
    kv_loop("V")
    a("""
    s_nop 7
    v_cvt_pk_bf16_f32 v18, v24, v25
    v_cvt_pk_bf16_f32 v19, v26, v27
    buffer_store_dwordx2 v[18:19], v13, s[28:31], s59 offen sc1
    L_KV_E:
    """)
    mk_tag(a)
    a(f"""
    s_mul_i32 s7, s6, 5120
    s_add_u32 s7, s7, {L_QX}
    v_mul_u32_u24 v12, 1280, v6
    v_add_u32 v12, s7, v12
    v_lshl_add_u32 v13, v5, 3, v12
    v_lshl_add_u32 v12, v5, 4, v12
    """)
    if not opt("probeB"): stamp(a, 2, True)
    for s in range(1, 10):
        cbar(); stage(s)
    for rt in range(2):
        for ct in range(5): a(mf(1, ct)[rt])
    stamp(a, 3)
    a.c("Q epilogue: pack, write fragments to LDS [w][head rg][1280]")
    a("s_nop 2")
    for rt in range(2):
        P = 100 + 12 * rt
        for i in range(10): a(f"v_cvt_pk_bf16_f32 v{P+i}, v{ACC+rt*20+2*i}, v{ACC+rt*20+2*i+1}")
        a(f"ds_write_b128 v12, {vr(P,4)} offset:{rt*256}")
        a(f"ds_write_b128 v12, {vr(P+4,4)} offset:{512+rt*256}")
        a(f"ds_write_b64 v13, {vr(P+8,2)} offset:{1024+rt*128}")
    a("s_branch L_ATT")

    a("L_LOADER:")
    a.c("Wq DMA source offsets for 3 instrs: q=64i+l, p=q/10, c=q%10, src row = swap bits 2,3 of p")
    for i in range(3):
        a(f"""
        v_add_u32 v5, {64*i}, v0
        v_mul_u32_u24 v6, 6554, v5
        v_lshrrev_b32 v6, 16, v6
        v_mul_u32_u24 v7, 10, v6
        v_sub_u32 v7, v5, v7
        v_and_b32 v5, 0x13, v6
        v_and_b32 v8, 4, v6
        v_lshl_or_b32 v5, v8, 1, v5
        v_and_b32 v8, 8, v6
        v_lshrrev_b32 v8, 1, v8
        v_or_b32 v5, v5, v8
        v_mul_u32_u24 v5, 1280, v5
        v_lshl_add_u32 v{10+i}, v7, 4, v5
        """)
    a.c("s33 = k-chunk rotation (0,3,5,8): workgroups sharing Wq columns start at different k")
    a(f"""
    s_sub_u32 s7, s6, 4
    s_lshl_b32 s49, s7, 5
    s_add_u32 s48, s48, s49
    s_mul_i32 s48, s48, 1280
    s_mul_i32 s49, s5, 160
    s_mul_i32 s54, s7, {16*1280}
    s_add_u32 s49, s49, s54
    s_lshl_b32 s54, s7, 12
    s_mul_i32 s51, s7, 2560
    s_add_u32 s51, s51, {XB}
    s_mul_i32 s33, s33, 5
    s_add_u32 s33, s33, 1
    s_lshr_b32 s33, s33, 1
    s_lshl_b32 s50, s7, 10
    s_waitcnt lgkmcnt(0)
    s_cmp_eq_u32 s3, 0
    """)
    srd_sel(a, 72, 10, 16, 640 * 1280)
    srd_sel(a, 40, 12, 18, 25600)
    srd_sel(a, 44, 14, 20, 25600)
    Q_ = []
    def kchunk(s):
        return f"s_add_u32 s55, s33, {s}\ns_cmp_ge_u32 s55, 10\ns_cselect_b32 s56, 10, 0\ns_sub_u32 s55, s55, s56\n"
    def items_x(s):
        r = []
        for i in range(4):
            t = (kchunk(s) + "s_lshl_b32 s55, s55, 7\ns_add_u32 s55, s55, s48\n") if i == 0 else ""
            t += f"s_add_u32 m0, s54, {SLOT[SMAP[s]] + 1024*i}\ns_add_u32 s56, s55, {i*8*1280}\nbuffer_load_dwordx4 v2, s[36:39], s56 offen lds"
            r.append((f"X{s}", t))
        return r
    def items_w(s):
        r = []
        for i in range(3):
            t = (kchunk(s) + f"s_mul_i32 s55, s55, {64*1280}\ns_add_u32 s55, s55, s49\n") if i == 0 else ""
            t += f"s_add_u32 m0, s51, {SLOT[SMAP[s]] + 1024*i}\n" + ("s_mov_b32 exec_hi, 0\n" if i == 2 else "s_nop 0\n")
            t += f"buffer_load_dwordx4 v{10+i}, s[72:75], s55 offen lds" + ("\ns_mov_b32 exec_hi, -1" if i == 2 else "")
            r.append((f"W{s}", t))
        return r
    def items_small():
        r = []
        for j in range(6):
            r.append(("SM", f"s_add_u32 m0, s50, {L_WK + 4096*j}\ns_add_u32 s53, s50, {4096*j}\nbuffer_load_dwordx4 v3, s[40:43], s53 offen lds"))
            r.append(("SM", f"s_add_u32 m0, s50, {L_WV + 4096*j}\ns_nop 0\nbuffer_load_dwordx4 v3, s[44:47], s53 offen lds"))
        r.append(("SM", f"s_lshl_b32 s53, s7, 8\ns_add_u32 s53, s53, {24*1024}\ns_mov_b64 exec, 0xffff\ns_add_u32 m0, s53, {L_WK}\ns_nop 0\nbuffer_load_dwordx4 v3, s[40:43], s53 offen lds"))
        r.append(("SM", f"s_add_u32 m0, s53, {L_WV}\ns_nop 0\nbuffer_load_dwordx4 v3, s[44:47], s53 offen lds\ns_mov_b64 exec, -1"))
        return r
    def emit(items):
        for n, t in items:
            a(t); Q_.append(n)
    def younger(name):
        i = max(k for k, n in enumerate(Q_) if n == name)
        return len(Q_) - 1 - i
    lb_ = [0]
    def lbar(name):
        i = lb_[0]; lb_[0] += 1
        if opt("probeB"): stamp(a, 1 + i)
        a(f"s_waitcnt vmcnt({younger(name)})\ns_barrier")
    emit(items_w(0))
    srd(a, 36, 8, 9, 2048 * 1280)
    srd(a, 28, 24, 25, WS_END)
    emit(items_w(1) + items_w(2))
    a(f"s_mov_b32 s53, {FL_EPOCH}\nbuffer_load_dword v9, v4, s[28:31], s53 offen sc1")
    att_init()
    RL = 152; RA = RL + 64; RS = RA + 12
    a.c("wo re-layout job (wave 5): cb = wg&7, head pair wg>>3, piece u = l/10, octet = l%10 (50 lanes); rows (u<4) 20(u>>1)+4(u&1)+{0..3,8..11}, (u=4) 16+{0..3,20..23}")
    for i in [2, 3, 12, 13]: a(f"v_mov_b32 v{RA+i}, 0")
    a("s_cmp_eq_u32 s6, 5\ns_cbranch_scc0 L_NORL")
    t = RL + 32
    U = RA + 11
    a(f"""
    s_lshr_b32 s56, s2, 3
    s_and_b32 s35, s56, 7
    s_lshl_b32 s35, s35, 1
    s_lshr_b32 s57, s2, 7
    s_add_u32 s35, s35, s57
    s_mul_i32 s35, s35, {40*1280}
    s_mul_i32 s56, s56, 5
    s_and_b32 s57, s2, 7
    s_mul_i32 s32, s57, 160
    s_add_u32 s32, s32, s35
    v_mul_u32_u24 v{U}, 6554, v0
    v_lshrrev_b32 v{U}, 16, v{U}
    v_mul_u32_u24 v{RA}, 10, v{U}
    v_sub_u32 v{RA}, v0, v{RA}
    v_lshrrev_b32 v{t}, 1, v{U}
    v_mul_u32_u24 v{t}, 20, v{t}
    v_and_b32 v{t+1}, 1, v{U}
    v_lshl_add_u32 v{t}, v{t+1}, 2, v{t}
    v_cmp_eq_u32 vcc, 4, v{U}
    v_mov_b32 v{t+1}, 8
    s_nop 0
    v_cndmask_b32 v{t}, v{t}, 16, vcc
    v_cndmask_b32 v{t+1}, v{t+1}, 20, vcc
    v_add_u32 v{t+1}, v{t}, v{t+1}
    v_mul_u32_u24 v{t}, 1280, v{t}
    v_mul_u32_u24 v{t+1}, 1280, v{t+1}
    v_lshl_add_u32 v{RS}, v{RA}, 4, v{t}
    v_lshl_add_u32 v{RS+1}, v{RA}, 4, v{t+1}
    """)
    a.c("destination of the two 4-column chunks: octet o<8: ct = 2(o>>2)+z, rg = o&3 ; o>=8: ct = 4, rg = 2(o&1)+z")
    a(f"""
    v_cmp_lt_u32 vcc, 7, v{RA}
    v_lshrrev_b32 v{t}, 2, v{RA}
    v_mul_u32_u24 v{t}, 81920, v{t}
    v_lshl_add_u32 v{t}, v{U}, 8, v{t}
    v_and_b32 v{t+1}, 3, v{RA}
    v_lshlrev_b32 v{t+2}, 1, v{t+1}
    v_cndmask_b32 v{t+1}, v{t+1}, v{t+2}, vcc
    v_lshl_add_u32 v{RA+2}, v{t+1}, 6, v{t}
    v_mov_b32 v{t+1}, 40960
    v_cndmask_b32 v{t+1}, v{t+1}, 64, vcc
    v_add_u32 v{RA+3}, v{RA+2}, v{t+1}
    """)
    a(f"""
    s_mul_i32 s35, s57, {5*40960}
    s_lshl_b32 s56, s56, 8
    s_add_u32 s35, s35, s56
    s_add_u32 s35, s35, {WS_WO}
    L_NORL:
    v_lshlrev_b32 v13, 7, v{T0}
    s_lshl_b32 s57, s3, 12
    s_add_u32 s57, s57, {FL_KV}
    """)
    sm = items_small()
    NSA = optv("nsa", 6)
    emit(items_x(0) + sm[:NSA])
    if not opt("probeB"): stamp(a, 1)
    lbar("X0")
    a("v_readfirstlane_b32 s34, v9")
    emit(sm[NSA:] + items_x(1))
    mk_tag(a)
    lbar("SM")
    emit(items_x(2) + items_w(3) + items_x(3))
    if not opt("probeB"): stamp(a, 2)
    rest = []
    for s in range(4, 10): rest += items_w(s) + items_x(s)
    PER = optv("per", 6)
    for r in range(2, 9):
        lbar(f"X{r-1}")
        n = PER if r < 8 else len(rest)
        chunk = rest[:n]; rest = rest[n:]
        for nme, _ in chunk:
            s = int(nme[1:]); prev = [p for p in range(s) if SMAP[p] == SMAP[s]]
            if prev: assert r >= (prev[-1] + 2 if prev[-1] > 0 else 1), (nme, r)
        emit(chunk)
    a.c("wave 4: one look at the K/V flags; if complete, fetch the first tiles of the image early")
    def img(r): a(f"s_mov_b32 m0, {1024*r}\ns_mov_b32 s20, {1024*r}\nbuffer_load_dwordx4 v{IMG}, s[28:31], s20 offen sc1 lds")
    a(f"""
    s_cmp_eq_u32 s6, 4
    s_cbranch_scc0 L_N4
    s_mov_b32 exec_hi, 0
    buffer_load_dwordx4 v[16:19], v13, s[28:31], s57 offen sc1
    s_waitcnt vmcnt({younger("X8") + 1})
    s_barrier
    s_waitcnt vmcnt(0)
    v_cmp_ne_u32 vcc, s34, v16
    v_cmp_ne_u32 s[58:59], s34, v17
    s_or_b64 vcc, vcc, s[58:59]
    v_cmp_ne_u32 s[58:59], s34, v18
    s_or_b64 vcc, vcc, s[58:59]
    v_cmp_ne_u32 s[58:59], s34, v19
    s_or_b64 vcc, vcc, s[58:59]
    s_mov_b32 exec_hi, -1
    s_cmp_eq_u64 vcc, 0
    s_cbranch_scc1 L_EARLY
    s_barrier
    s_mov_b32 s20, -1
    s_mov_b32 s21, 0
    """)
    if opt("probeB"): a("s_branch L_FIN2")
    stamp(a, 3)
    poll(a, "L_PKV", 13, "s57", 4, 16, mask="s[20:21]", preloaded=False)
    stamp(a, 4)
    NE = optv("ne", 6)
    for r in range(NE): img(r)
    a("s_branch L_LATE\nL_EARLY:")
    for r in range(NE): img(r)
    a("s_barrier")
    if opt("probeB"): a("s_branch L_FIN2")
    stamp(a, 3); stamp(a, 4)
    a("L_LATE:")
    NX = optv("nx", 0)
    for r in list(range(NE, NCH0)) + list(range(56, 56 + NX)): img(r)
    a(f"s_waitcnt vmcnt({NCH0 + NX - 5})\ns_branch L_ATT\nL_N4:")
    lbar("X8")
    lbar("X9")
    if opt("probeB"): a("s_branch L_FIN2")
    stamp(a, 3)

    pAK1, pAK2, pAV = AK1, AK2, AV
    AK1, AK2, AV = 3, 2, 1
    def rdK(b, off):
        return [f"ds_read_b128 {vr(KF1[b],4)}, v{AK1} offset:{off}", f"ds_read_b32 v{KF2[b]}, v{AK2} offset:{off+1024}"]
    def rdV(b, off):
        return ["s_mov_b64 exec, s[36:37]",
                f"ds_read_b128 {vr(VF[b],4)}, v{AV} offset:{off+1280}", f"ds_read_b128 {vr(VF[b]+4,4)}, v{AV} offset:{off+1920}",
                "s_mov_b64 exec, -1"]
    def qk1(u, kb): return f"v_mfma_f32_32x32x16_bf16 {vr(S[u%4],16)}, {vr(KF1[kb],4)}, {vr(Q1[u%2],4)}, 0"
    def qk2(u, kb): return f"v_mfma_f32_32x32x8_bf16 {vr(S[u%4],16)}, {vr(KF2[kb],2)}, {vr(Q2[u%2],2)}, {vr(S[u%4],16)}"
    def pv(u, vb, i): return f"v_smfmac_f32_32x32x32_bf16 {vr(O[u%2],16)}, {vr(VF[vb]+4*i,4)}, {vr(S[u%4]+8*i,8)}, v{IDX}"
    a("L_ATT:")
    a(f"""
    v_mov_b32 v{AK2}, v{pAK2}
    v_mov_b32 v{AV}, v{pAV}
    v_mov_b32 v{IDX}, 0xdddddddd
    v_mov_b32 v{Q2[0]+1}, 0
    v_mov_b32 v{Q2[1]+1}, 0
    v_lshlrev_b32 v{T2}, 2, v{T0}
    s_mov_b32 s36, 0x000fffff
    s_mov_b32 s37, 0x000fffff
    s_mov_b32 s38, 0
    s_mov_b32 s39, -1
    s_mov_b32 s42, 1
    s_mov_b32 s44, 8
    s_waitcnt lgkmcnt(0)
    s_barrier
    ds_read_b128 {vr(Q1[0],4)}, v{AQ1}
    ds_read_b32 v{Q2[0]}, v{AQ2} offset:1024
    ds_read_b128 {vr(Q1[1],4)}, v{AQ1} offset:1280
    ds_read_b32 v{Q2[1]}, v{AQ2} offset:2304
    """)
    for x in rdK(0, 0) + rdK(1, 2560) + rdV(1, 0): a(x)
    a(f"buffer_load_dword v{G}, v{T2}, s[28:31], s14 offen sc1")
    stamp(a, 5, True)
    a.c("stand-in for the row max: the max over the first 32 keys")
    a("s_waitcnt lgkmcnt(4)")
    a(f"v_mfma_f32_32x32x16_bf16 {vr(S[2],16)}, {vr(KF1[0],4)}, {vr(Q1[0],4)}, 0")
    a(f"v_mfma_f32_32x32x16_bf16 {vr(S[1],16)}, {vr(KF1[0],4)}, {vr(Q1[1],4)}, 0")
    a("s_cmp_eq_u32 s6, 4\ns_cbranch_scc0 L_BQ2\ns_waitcnt vmcnt(" + str(NX + 1) + ")\nL_BQ2:\ns_barrier\ns_nop 6")
    a(f"v_mfma_f32_32x32x8_bf16 {vr(S[0],16)}, {vr(KF2[0],2)}, {vr(Q2[0],2)}, {vr(S[2],16)}")
    a(f"v_mfma_f32_32x32x8_bf16 {vr(S[1],16)}, {vr(KF2[0],2)}, {vr(Q2[1],2)}, {vr(S[1],16)}")
    a("s_nop 10")
    for j in range(2):
        a(f"v_max3_f32 v{M[j]}, v{S[j]}, v{S[j]+1}, v{S[j]+2}\nv_max3_f32 v{T2+j}, v{S[j]+3}, v{S[j]+4}, v{S[j]+5}")
        for i in range(6, 16, 4):
            a(f"v_max3_f32 v{M[j]}, v{S[j]+i}, v{S[j]+i+1}, v{M[j]}")
            if i + 2 < 16: a(f"v_max3_f32 v{T2+j}, v{S[j]+i+2}, v{S[j]+i+3}, v{T2+j}")
        a(f"v_max_f32 v{M[j]}, v{M[j]}, v{T2+j}\nv_mov_b32 v{T2+j}, v{M[j]}")
        if j == 0: a("s_nop 1")
        else: a(f"v_mfma_f32_32x32x8_bf16 {vr(S[0],16)}, {vr(KF2[0],2)}, {vr(Q2[0],2)}, {vr(S[2],16)}\ns_nop 0")
        a(f"""
        v_permlane32_swap_b32 v{M[j]}, v{T2+j}
        s_nop 0
        v_min_f32 v{M[j]}, -v{M[j]}, -v{T2+j}
        v_lshrrev_b32 v{M[j]}, 16, v{M[j]}
        v_cndmask_b32 v{Q2[j]+1}, v{M[j]}, 0, s[38:39]
        """)
    a(f"""
    s_cmp_eq_u32 s13, 0
    s_cbranch_scc0 L_LAG0
    s_setprio 2
    s_waitcnt lgkmcnt(0)
    s_nop 2
    s_branch L_PR
    L_LAG0:
    """)
    a.c("waves 4-7: rest of the K/V image, side jobs, then S1 (waves 0-3 meet it after their first 8 tiles)")
    def rl_loads():
        a("s_bitcmp0_b32 s2, 6")
        srd_sel(a, 72, 68, 22, 640 * 1280)
        a("s_mov_b32 exec_hi, 0x3ffff")
        for e in range(8):
            a(f"buffer_load_dwordx4 {vr(RL+4*e,4)}, v{RS+e//4}, s[72:75], s32 offen offset:{(e%4)*1280}")
    def rl_stores():
        a("s_mov_b32 s56, 0x05040100\ns_mov_b32 s57, 0x07060302\ns_mov_b32 exec_hi, 0x3ffff")
        a.c("wo re-layout: 8x8 16-bit transposition in registers")
        for c in range(8):
            for r in range(4):
                a(f"v_perm_b32 v{RL+32+4*c+r}, v{RL+4*(2*r+1)+c//2}, v{RL+4*(2*r)+c//2}, {'s56' if c % 2 == 0 else 's57'}")
            a(f"buffer_store_dwordx4 {vr(RL+32+4*c,4)}, v{RA+2+c//4}, s[28:31], s35 offen offset:{(c%4)*16} sc1")
    RLE = False
    if RLE:
        a("s_cmp_eq_u32 s6, 5\ns_cbranch_scc0 L_NRL")
        rl_loads()
        a("s_mov_b32 exec_hi, -1\nL_NRL:")
    quads = [k for k in range(24, 160, 4) if not (56 <= k < 56 + NX)]
    for k in quads:
        a(f"s_add_u32 m0, s50, {1024*k}\ns_add_u32 s20, s50, {1024*k}\nbuffer_load_dwordx4 v{IMG}, s[28:31], s20 offen sc1 lds")
    a("s_cmp_eq_u32 s6, 5\ns_cbranch_scc0 L_POIS")
    if RLE:
        a(f"s_waitcnt vmcnt({len(quads)})")
        rl_stores()
    else: rl_loads()
    a("s_branch L_S1\nL_POIS:")
    a.c("waves 4,6,7: mark this workgroup's share of the O hand-off buffer as not yet written (rt16 = 8rb + i, slice 8*branch+hg); one KB column each")
    a(f"""
    s_mul_i32 s55, s4, {8*40960}
    s_lshl_b32 s56, s3, 3
    s_add_u32 s56, s56, s5
    s_mul_i32 s56, s56, 2560
    s_add_u32 s55, s55, s56
    s_add_u32 s55, s55, {WS_O}
    s_sub_u32 s56, s6, 5
    s_max_i32 s56, s56, 0
    s_lshl_b32 s56, s56, 10
    s_add_u32 s55, s55, s56
    v_mov_b32 v{PT}, -1
    v_mov_b32 v{PT+1}, -1
    v_mov_b32 v{PT+2}, -1
    v_mov_b32 v{PT+3}, -1
    s_cmp_eq_u32 s6, 7
    s_cselect_b32 exec_hi, 0, -1
    """)
    for i in range(8):
        a(f"buffer_store_dwordx4 {vr(PT,4)}, v{AK1}, s[28:31], s55 offen sc1\ns_add_u32 s55, s55, 40960")
    a("""
    L_S1:
    s_mov_b32 exec_hi, -1
    s_waitcnt vmcnt(8) lgkmcnt(0)
    s_barrier
    s_setprio 3
    L_PR:
    """)
    stamp(a, 6)
    if opt("cyc"): a("s_memtime s[80:81]")
    if opt("iters"): a("s_memtime s[94:95]\ns_waitcnt lgkmcnt(0)")
    a(".p2align 6\nL_LOOP:")
    for t in range(8):
        for j in range(2):
            u = 2 * t + j
            b = (t + j) % 2
            ex = [f"v_exp_f32 v{S[u%4]+i}, v{S[u%4]+i}" for i in range(16)]
            extra = [[], [], [], []]
            if j == 1:
                a("s_waitcnt lgkmcnt(0)")
                extra[0] = rdK(t % 2, (t + 2) * 2560)
                extra[1] = rdV(t % 2, (t + 1) * 2560)
            ms = [qk1(u + 1, b), qk2(u + 1, b), pv(u - 1, b, 0), pv(u - 1, b, 1)]
            for g in range(4):
                a(ms[g])
                for x in ex[4 * g:4 * g + 2]: a(x)
                for x in extra[g]: a(x)
                for x in ex[4 * g + 2:4 * g + 4]: a(x)
            if t == optv("nlt", 3) and j == 1 and optv("nlh", 0):
                a(f"s_cmp_eq_u32 s43, {16 + optv('nlh', 0) + 1}\ns_cbranch_scc0 L_PH\ns_setprio 1\nL_PH:")
    a(f"v_add_u32 v{AK1}, 20480, v{AK1}\nv_add_u32 v{AK2}, 20480, v{AK2}\nv_add_u32 v{AV}, 20480, v{AV}")
    a(f"""
    s_lshl_b32 s43, s13, 4
    s_add_u32 s43, s43, s44
    s_cmp_eq_u32 s43, {16 + optv("nl", 3)}
    s_cbranch_scc0 L_P1
    s_setprio 1
    L_P1:
    s_cmp_eq_u32 s42, 0
    s_cbranch_scc1 L_NEXT
    s_cmp_eq_u32 s44, 8
    s_cbranch_scc0 L_E0
    s_cmp_eq_u32 s13, 0
    s_cbranch_scc0 L_RL2
    s_barrier
    s_branch L_NEXT
    L_RL2:
    """)
    if not RLE:
        a("s_cmp_eq_u32 s6, 5\ns_cbranch_scc0 L_NEXT\ns_waitcnt vmcnt(0)")
        rl_stores()
        a("s_mov_b32 exec_hi, -1")
    a(f"""
    s_branch L_NEXT
    L_E0:
    s_cmp_eq_u32 s43, {16 + 6}
    s_cbranch_scc0 L_E1
    s_lshl_b32 s56, s2, 2
    s_add_u32 s56, s56, s6
    s_lshl_b32 s56, s56, 2
    s_add_u32 s56, s56, {FL_W - 16}
    v_mov_b32 v{T3}, 0
    s_waitcnt vmcnt(0)
    """)
    flag_store(a, "s56", T2, T3)
    a.c("flags to see: lanes 0-31 the workgroups that re-lay this tile's Wo columns, lanes 32-63 the row group")
    a(f"""
    s_branch L_NEXT
    L_E1:
    s_cmp_eq_u32 s44, 4
    s_cbranch_scc0 L_E2
    v_lshl_add_u32 v{T2}, v{T0}, 3, s5
    v_and_b32 v{T3}, 14, v0
    v_lshlrev_b32 v{T3}, 4, v{T3}
    v_and_or_b32 v{T3}, v0, 1, v{T3}
    s_and_b32 s57, s2, 0x1e
    v_or_b32 v{T3}, s57, v{T3}
    v_cndmask_b32 v{T2}, v{T2}, v{T3}, s[38:39]
    v_lshlrev_b32 v{T2}, 4, v{T2}
    s_mov_b32 s57, {FL_W}
    buffer_load_dwordx4 {vr(PT,4)}, v{T2}, s[28:31], s57 offen sc1
    s_branch L_NEXT
    L_E2:
    s_cmp_eq_u32 s44, 3
    s_cbranch_scc0 L_NEXT
    """)
    poll(a, "L_PW", T2, "s57", 4, PT, sleep=8)
    if opt("touch"):
        a.c("touch this tile's lines of the output (address translation and L2 are warm when the final stores come)")
        srd(a, 72, 66, 67, 2048 * 1280)
        a(f"""
        s_lshl_b32 s56, s4, 1
        s_add_u32 s56, s56, s3
        s_mul_i32 s56, s56, {64*1280}
        s_mul_i32 s57, s5, 160
        s_add_u32 s56, s56, s57
        s_and_b32 s57, s6, 3
        s_mul_i32 s57, s57, 52
        s_add_u32 s56, s56, s57
        v_mul_u32_u24 v{T2}, 1280, v0
        buffer_load_dword v{PT}, v{T2}, s[72:75], s56 offen
        """)
    a.c("prefetch this wave's Wo fragments: [cb=hg][ct][f32 = 5w+st]")
    a(f"""
    s_mul_i32 s56, s5, {5*40960}
    s_mul_i32 s57, s6, 5120
    s_add_u32 s56, s56, s57
    s_add_u32 s56, s56, {WS_WO}
    v_lshlrev_b32 v{T2}, 4, v0
    v_add_u32 v{T3}, 4096, v{T2}
    """)
    for ct in range(5):
        for st in range(5):
            av = T2 if st < 4 else T3
            a(f"buffer_load_dwordx4 {vr(WO+(st*5+ct)*4,4)}, v{av}, s[28:31], s56 offen offset:{(st%4)*1024} sc1")
        if ct < 4: a("s_add_u32 s56, s56, 40960")
    a("L_NEXT:")
    if opt("iters"):
        for k in range(1, 9): a(f"s_mov_b32 s{76+2*k}, s{76+2*(k+1)}")
        a("s_memtime s[94:95]\ns_waitcnt lgkmcnt(0)")
    a("s_sub_u32 s44, s44, 1\ns_cmp_lg_u32 s44, 0\ns_cbranch_scc1 L_LOOP")
    stamp(a, 7)
    if opt("cyc"): a("s_memtime s[82:83]")
    a(pv(15, 0, 0)); a(pv(15, 0, 1))
    a.c("phase E addresses: tile rows 64*(2rb+branch).., columns 80*hg.. ; wave = K eighth; row tiles in an order rotated by hg")
    a(f"""
    s_setprio 3
    s_mov_b32 s46, {f32bits(2.0**-40)}
    s_mov_b32 s47, {f32bits(2.0**40)}
    s_mov_b32 s23, -2
    s_lshl_b32 s16, s4, 1
    s_add_u32 s16, s16, s3
    s_mul_i32 s21, s16, {4*40960}
    s_mul_i32 s40, s6, 5120
    s_add_u32 s21, s21, s40
    s_add_u32 s21, s21, {WS_O}
    """)
    for i in range(4):
        a(f"s_add_u32 s22, s5, {i}\ns_and_b32 s22, s22, 3\ns_mul_i32 s22, s22, 40960\ns_add_u32 s{17+i}, s21, s22\ns_add_u32 s{8+i}, s22, s40")
    a("s_waitcnt vmcnt(0) lgkmcnt(0)")
    a.c("run-time safety check of the stand-in max: row sums must lie in [2^-40, 2^40], else redo with the true max")
    a(f"""
    v_cndmask_b32 v{M[0]}, v{O[0]+12}, v{O[0]+8}, s[38:39]
    v_cndmask_b32 v{M[1]}, v{O[1]+12}, v{O[1]+8}, s[38:39]
    v_cmp_le_f32 s[48:49], s46, v{M[0]}
    v_cmp_ge_f32 s[50:51], s47, v{M[0]}
    v_cmp_le_f32 s[52:53], s46, v{M[1]}
    v_cmp_ge_f32 s[54:55], s47, v{M[1]}
    v_rcp_f32 v{M[0]}, v{M[0]}
    v_rcp_f32 v{M[1]}, v{M[1]}
    s_and_b64 s[48:49], s[48:49], s[50:51]
    s_and_b64 s[52:53], s[52:53], s[54:55]
    s_and_b64 s[48:49], s[48:49], s[52:53]
    s_cmp_eq_u64 s[48:49], -1
    s_cbranch_scc0 L_BAD
    L_OK:
    v_mul_f32 v{M[0]}, v{M[0]}, v{G}
    v_mul_f32 v{M[1]}, v{M[1]}, v{G}
    """)
    P = S[3]
    for j in range(2):
        for i in range(12): a(f"v_mul_f32 v{O[j]+i}, v{O[j]+i}, v{M[j]}")
        for i in range(4): a(f"v_cvt_pk_bf16_f32 v{P+4*j+i}, v{O[j]+2*i}, v{O[j]+2*i+1}")
        for i in range(2): a(f"v_cvt_pk_bf16_f32 v{P+8+2*j+i}, v{O[j]+8+2*i}, v{O[j]+8+2*i+1}")
        for i in range(4): a(f"v_min_u32 v{P+4*j+i}, s23, v{P+4*j+i}")
        a(f"buffer_store_dwordx4 {vr(P+4*j,4)}, v{OA}, s[28:31], s26 offen offset:{512*j} sc1")
    for i in range(4): a(f"v_min_u32 v{P+8+i}, s23, v{P+8+i}")
    a(f"""
    s_mov_b32 exec_hi, 0
    buffer_store_dwordx4 {vr(P+8,4)}, v{OA}, s[28:31], s26 offen offset:1024 sc1
    s_mov_b32 exec_hi, -1
    s_setprio 0
    """)
    OF = 16
    EA = [96, 116, 16, 36]
    srd(a, 72, 66, 67, 2048 * 1280)
    a.c("partial sums change lanes on their way through LDS: writer (n, rg) -> slot 4n + (rg ^ ((n>>1)&3)); reader lane = 4*row + rg")
    a.c("out address (waves 0-3): row = 64*(2rb+branch) + 16w + (l>>2) ; columns 8rg.., 32+8rg.., 64+4rg..")
    a(f"""
    v_mov_b32 v2, s34
    v_mov_b32 v3, 0
    v_lshlrev_b32 v5, 4, v0
    v_add_u32 v6, 4096, v5
    v_and_b32 v13, 15, v0
    v_lshrrev_b32 v14, 4, v0
    v_bfe_u32 v12, v0, 1, 2
    v_xor_b32 v14, v14, v12
    v_lshl_add_u32 v14, v13, 2, v14
    v_lshlrev_b32 v14, 4, v14
    v_add_u32 v8, s8, v14
    v_add_u32 v9, s9, v14
    v_add_u32 v10, s10, v14
    v_add_u32 v11, s11, v14
    v_bfe_u32 v12, v0, 3, 2
    v_xor_b32 v12, v12, v0
    s_mul_i32 s22, s6, 40960
    v_lshl_add_u32 v12, v12, 4, s22
    s_lshl_b32 s22, s16, 6
    s_lshl_b32 s21, s6, 4
    s_add_u32 s22, s22, s21
    s_mul_i32 s22, s22, 1280
    s_mul_i32 s21, s5, 160
    s_add_u32 s22, s22, s21
    v_lshrrev_b32 v13, 2, v0
    v_mul_u32_u24 v13, 1280, v13
    v_and_b32 v14, 3, v0
    v_lshl_add_u32 v7, v14, 3, v13
    v_lshl_add_u32 v13, v14, 4, v13
    s_mov_b32 s60, {SPIN}
    """)
    def oload(rt):
        for st in range(5):
            av = 5 if st < 4 else 6
            a(f"buffer_load_dwordx4 {vr(OF+(rt*5+st)*4,4)}, v{av}, s[28:31], s{17+rt} offen offset:{(st%4)*1024} sc1")
    def ewrites(rt):
        return [f"ds_write_b128 v{8+rt}, {vr(EA[rt]+4*ct,4)} offset:{ct*1024}" for ct in range(5)]
    def egemm(tag, bar=-1, wr=True):
        for rt in range(4):
            if rt == bar: a("s_barrier")
            a(f"L_CH{tag}{rt}:")
            b = OF + rt * 20
            w = ewrites(rt - 1) if rt >= 1 and wr else []
            a.c("MFMAs run ahead of the hand-off check (no word may still hold the not-yet-written mark); a failed check redoes the block")
            for st in range(5):
                a(f"s_waitcnt vmcnt({19 - 5*rt - st})")
                f = b + 4 * st
                chk = [f"v_max3_u32 v15, v{f}, v{f+1}, v{f+2}" if st == 0 else f"v_max3_u32 v15, v{f}, v{f+1}, v15",
                       f"v_max_u32 v15, v{f+3}, v15" if st == 0 else f"v_max3_u32 v15, v{f+2}, v{f+3}, v15"]
                if st == 4: chk += ["v_cmp_eq_u32 vcc, -1, v15"]
                for ct in range(5):
                    d = vr(EA[rt] + 4 * ct, 4)
                    a(f"v_mfma_f32_16x16x32_bf16 {d}, {vr(WO+(st*5+ct)*4,4)}, {vr(f,4)}, {'0' if st == 0 else d}")
                    if ct < len(chk): a(chk[ct])
                    if w and st >= 1 and ct == 3: a(w[st - 1])
                    if w and st == 4 and ct == 4: a(w[4])
            a(f"""
            s_cmp_eq_u64 vcc, 0
            s_cbranch_scc1 L_GO{tag}{rt}
            s_cmp_eq_u32 s60, 0
            s_cbranch_scc1 L_GO{tag}{rt}
            s_sub_u32 s60, s60, 1
            s_waitcnt vmcnt(0) lgkmcnt(0)
            s_sleep {optv("slp", 4)}
            """)
            for r2 in range(rt, 4): oload(r2)
            a(f"s_branch L_CH{tag}{rt}\nL_GO{tag}{rt}:")
            if opt("probeE"): stamp(a, [1, 2, 3, 5][rt])
    def retries():
        if PROF and not opt("iters"): a(f"s_waitcnt lgkmcnt(0)\ns_sub_u32 s84, {SPIN}, s60\ns_mul_i32 s84, s84, 100\ns_add_u32 s84, s84, s76")
    a("s_cmp_eq_u32 s13, 0\ns_cbranch_scc1 L_ELEAD")
    a.c("every wave of this workgroup is past its last K/V read at this barrier: LDS can be reused")
    if not opt("asym"): a("s_barrier")
    if not opt("noack"): a("s_waitcnt vmcnt(0)")
    elif optv("dly", 0): a(f"s_sleep {optv('dly', 0)}")
    stamp(a, 8)
    for rt in range(4): oload(rt)
    if opt("asym"): a("s_barrier")
    if opt("probeE"): stamp(a, 6)
    if PROF: a("s_waitcnt lgkmcnt(0)")
    egemm("B", optv("bar", 3))
    stamp(a, 10); retries()
    a("s_waitcnt lgkmcnt(0)\ns_nop 6" if opt("probeE") else "s_waitcnt lgkmcnt(5)\ns_nop 6")
    for x in ewrites(3): a(x)
    a("s_waitcnt lgkmcnt(0)\ns_barrier\ns_branch L_FIN")
    a("L_ELEAD:")
    if not opt("asym") and not opt("leadfirst"): a("s_barrier")
    a("s_waitcnt vmcnt(0)")
    stamp(a, 8)
    for rt in range(4): oload(rt)
    if opt("probeE"): stamp(a, 6)
    if PROF: a("s_waitcnt lgkmcnt(0)")
    if opt("asym"):
        egemm("A", wr=False)
        stamp(a, 9); retries()
        a("s_barrier\ns_setprio 2\ns_waitcnt lgkmcnt(0)\ns_nop 4")
        for rt in range(4):
            for x in ewrites(rt): a(x)
            if rt == 1: a("s_waitcnt lgkmcnt(4)")
    else:
        if opt("leadfirst"): a("s_barrier")
        a("s_setprio 2")
        egemm("A")
        stamp(a, 9); retries()
        a("s_waitcnt lgkmcnt(0)\ns_nop 6" if opt("probeE") else "s_waitcnt lgkmcnt(5)\ns_nop 6")
        for x in ewrites(3): a(x)
    a("s_waitcnt lgkmcnt(0)\ns_barrier")
    R = 56
    def rsum(src0, keep):
        for src in range(4):
            for c in range(5):
                a(f"ds_read_b128 {vr(R+src*20+4*c,4)}, v12 offset:{(src0+src)*5120+c*1024}")
            if src == 1: a("s_waitcnt lgkmcnt(4)")
        a("s_waitcnt lgkmcnt(10)")
        for i in range(20): a(f"v_add_f32 v{R+i}, v{R+i}, v{R+20+i}")
        if keep:
            for i in range(20): a(f"v_add_f32 v{R+i}, v{R+i}, v{16+i}")
        a("s_waitcnt lgkmcnt(0)")
        for i in range(20): a(f"v_add_f32 v{R+40+i}, v{R+40+i}, v{R+60+i}")
        for i in range(20): a(f"v_add_f32 v{16+i}, v{R+i}, v{R+40+i}")
    rsum(0, False)
    a("s_barrier")
    stamp(a, 10, True)
    rsum(4, True)
    for i in range(10): a(f"v_cvt_pk_bf16_f32 v{40+i}, v{16+2*i}, v{16+2*i+1}")
    a("""
    buffer_store_dwordx4 v[40:43], v13, s[72:75], s22 offen
    buffer_store_dwordx4 v[44:47], v13, s[72:75], s22 offen offset:64
    buffer_store_dwordx2 v[48:49], v7, s[72:75], s22 offen offset:128
    """)
    a.c("workgroup 0 advances the epoch: every workgroup has read it by now")
    a(f"""
    s_or_b32 s21, s2, s6
    s_cmp_eq_u32 s21, 0
    s_cbranch_scc0 L_FIN
    s_mov_b32 s21, {FL_EPOCH}
    s_mov_b64 exec, 1
    buffer_store_dword v2, v3, s[28:31], s21 offen sc1
    L_FIN:
    """)
    if PROF: a("s_waitcnt vmcnt(0)")
    stamp(a, 11)
    a("L_FIN2:")
    stamp_flush(a)
    a("s_endpgm")
    a("L_BAD:")
    a.c("second (and last) pass: exact row max over all keys, then the same loop again")
    a(f"""
    s_cmp_eq_u32 s42, 0
    s_cbranch_scc1 L_OK
    s_mov_b32 s42, 0
    s_mov_b32 s40, 0xffff0000
    s_mov_b32 s43, 64
    v_subrev_u32 v{AK1}, {KV_BYTES}, v{AK1}
    v_subrev_u32 v{AK2}, {KV_BYTES}, v{AK2}
    v_subrev_u32 v{AV}, {KV_BYTES}, v{AV}
    v_mov_b32 v{T2}, v{AK1}
    v_mov_b32 v{T3}, v{AK2}
    """)
    for j in range(2):
        a(f"v_mov_b32 v{Q2[j]+1}, 0\nv_mov_b32 v{M[j]}, 0xff800000")
    for i in range(32): a(f"v_mov_b32 v{O[0]+i}, 0")
    for i in range(16): a(f"v_mov_b32 v{S[3]+i}, 0")
    a("L_MAXL:")
    a(f"ds_read_b128 {vr(KF1[0],4)}, v{T2}\nds_read_b32 v{KF2[0]}, v{T3} offset:1024")
    a(f"v_add_u32 v{T2}, 2560, v{T2}\nv_add_u32 v{T3}, 2560, v{T3}\ns_waitcnt lgkmcnt(0)")
    for j in range(2): a(qk1(j, 0)); a(qk2(j, 0))
    a("s_nop 11")
    for j in range(2):
        for i in range(8):
            a(f"v_max3_f32 v{M[j]}, v{S[j]+2*i}, v{S[j]+2*i+1}, v{M[j]}")
    a("s_sub_u32 s43, s43, 1\ns_cmp_lg_u32 s43, 0\ns_cbranch_scc1 L_MAXL")
    for x in rdK(0, 0) + rdK(1, 2560) + rdV(1, 0): a(x)
    a.c("-m split exactly into three bf16 pieces that ride in the spare k-slots")
    for j in range(2):
        a(f"""
        v_mov_b32 v{T2}, v{M[j]}
        s_nop 1
        v_permlane32_swap_b32 v{M[j]}, v{T2}
        s_nop 1
        v_min_f32 v{M[j]}, -v{M[j]}, -v{T2}
        v_and_b32 v{T2}, s40, v{M[j]}
        v_sub_f32 v{T3}, v{M[j]}, v{T2}
        v_lshrrev_b32 v{T2}, 16, v{T2}
        v_and_or_b32 v{T2}, v{T3}, s40, v{T2}
        v_and_b32 v{M[j]}, s40, v{T3}
        v_sub_f32 v{T3}, v{T3}, v{M[j]}
        v_and_b32 v{T3}, s40, v{T3}
        v_cndmask_b32 v{Q2[j]+1}, v{T2}, v{T3}, s[38:39]
        """)
    a("s_waitcnt lgkmcnt(0)\ns_nop 0")
    a(qk1(0, 0)); a(qk2(0, 0))
    a("s_mov_b32 s44, 8\ns_setprio 1\ns_nop 9\ns_branch L_LOOP")
    a("L_END:\ns_endpgm")
    return f""".p2align 6
.amdhsa_kernel {N}
  .amdhsa_next_free_vgpr 256
  .amdhsa_next_free_sgpr 102
  .amdhsa_accum_offset 256
  .amdhsa_group_segment_fixed_size 0
  .amdhsa_kernarg_size 112
  .amdhsa_user_sgpr_count 2
  .amdhsa_user_sgpr_kernarg_segment_ptr 1
  .amdhsa_system_sgpr_workgroup_id_x 1
.end_amdhsa_kernel
"""

def main():
    ref = open(f"cdna_kernels/{NAME}.s.ref").read().split("\n")
    head = [l for l in ref if l.startswith(";") and "@launch" not in l]
    a = Asm()
    kd = gen(a)
    out = "\n".join(head) + "\n"
    out += "; @launch grid=(256,1,1) block=(512,1,1) lds=163840\n"
    out += '.amdgcn_target "amdgcn-amd-amdhsa--gfx950"\n.text\n'
    t = a.text()
    if opt("outsc1"): t = "\n".join(l + " sc1" if "buffer_store" in l and "s[72:75]" in l else l for l in t.split("\n"))
    if opt("outnt"): t = "\n".join(l + " nt" if "buffer_store" in l and "s[72:75]" in l else l for l in t.split("\n"))
    out += t
    out += '.section .rodata,"a"\n' + kd
    path = ARGS[0] if ARGS and not ARGS[0].startswith("--") else f"cdna_kernels/{NAME}.s"
    open(path, "w").write(out)
main()
```

```python
import math, struct, sys

NAME = "gated_mix__grouped_kv_mqa__grouped_kv_mqa__prompt"
ARGS = sys.argv[1:]
def opt(n): return ("--" + n) in ARGS
def optv(n, d):
    for x in ARGS:
        if x.startswith("--" + n + "="): return int(x.split("=")[1])
    return d

KV_BYTES = 163840
WS_KV   = 0
WS_G    = 2 * KV_BYTES
WS_O    = WS_G + 16384
O_BYTES = 128 * 40 * 1024
WS_WO   = WS_O + O_BYTES
WO_BYTES = 8 * 5 * 40 * 1024
WS_FL   = WS_WO + WO_BYTES
FL_EPOCH = WS_FL
FL_KV   = WS_FL + 256
FL_W    = FL_KV + 8192
WS_END  = FL_W + 4096

def f32bits(x):
    return struct.unpack("<I", struct.pack("<f", x))[0]
QSCALE = f32bits((20 ** -0.5) * math.log2(math.e))
LOG2E = f32bits(math.log2(math.e))

class Asm:
    def __init__(self): self.l = []
    def __call__(self, s):
        for line in s.split("\n"):
            line = line.strip()
            if line: self.l.append(("" if line.endswith(":") else "  ") + line)
    def c(self, s): self.l.append("  ; " + s)
    def text(self): return "\n".join(self.l) + "\n"

def vr(b, n=1): return f"v{b}" if n == 1 else f"v[{b}:{b+n-1}]"

def srd(a, d, lo, hi, nbytes):
    a(f"s_mov_b32 s{d}, s{lo}\ns_mov_b32 s{d+1}, s{hi}\ns_mov_b32 s{d+2}, {nbytes}\ns_mov_b32 s{d+3}, 0x00020000")
def srd_sel(a, d, lo0, lo1, nbytes):
    a(f"s_cselect_b32 s{d}, s{lo0}, s{lo1}\ns_cselect_b32 s{d+1}, s{lo0+1}, s{lo1+1}\ns_mov_b32 s{d+2}, {nbytes}\ns_mov_b32 s{d+3}, 0x00020000")

PROF = opt("prof")
PROF_BASE = 16 << 20
NST = 12
def stamp(a, i, wait=False):
    if PROF and not (opt("iters") and i >= 7):
        a(f"s_memrealtime s[{76+2*i}:{77+2*i}]")
        if wait: a("s_waitcnt lgkmcnt(0)")
def stamp_flush(a):
    if not PROF: return
    a("s_waitcnt lgkmcnt(0)\ns_mov_b64 exec, 1")
    a(f"s_lshl_b32 s62, s2, 3\ns_add_u32 s62, s62, s6\ns_lshl_b32 s62, s62, 6\ns_add_u32 s62, s62, {PROF_BASE}")
    a("s_mov_b32 s30, 0x2000000\nv_mov_b32 v0, 0")
    for i in range(NST):
        a(f"v_mov_b32 v2, s{76+2*i}\nbuffer_store_dword v2, v0, s[28:31], s62 offen offset:{4*i}\ns_nop 1")

SPIN = 200000
def poll(a, lbl, addr_v, soff, width, tmp, mask=None, preloaded=True, sleep=1):
    ld = {1: "dword", 2: "dwordx2", 4: "dwordx4"}[width]
    a(f"s_mov_b32 s60, {SPIN}")
    if mask is not None: a(f"s_mov_b64 exec, {mask}")
    if preloaded: a(f"s_branch {lbl}_chk")
    a(f"{lbl}_ld:")
    a(f"buffer_load_{ld} {vr(tmp,width)}, v{addr_v}, s[28:31], {soff} offen sc1")
    a(f"{lbl}_chk:\ns_waitcnt vmcnt(0)")
    a(f"v_cmp_ne_u32 vcc, s34, v{tmp}")
    for i in range(1, width):
        a(f"v_cmp_ne_u32 s[58:59], s34, v{tmp+i}\ns_or_b64 vcc, vcc, s[58:59]")
    a(f"s_sub_u32 s60, s60, 1\ns_cbranch_scc1 {lbl}_ok")
    a(f"s_cmp_eq_u64 vcc, 0\ns_cbranch_scc1 {lbl}_ok\ns_sleep {sleep}\ns_branch {lbl}_ld\n{lbl}_ok:")
    if mask is not None: a("s_mov_b64 exec, -1")

def flag_store(a, soff, vtmp, vzero):
    a(f"v_mov_b32 v{vtmp}, s34\ns_mov_b64 exec, 1\nbuffer_store_dword v{vtmp}, v{vzero}, s[28:31], {soff} offen sc1\ns_mov_b64 exec, -1")
def mk_tag(a):
    a("s_mul_i32 s34, s34, 0x9e3779b1\ns_add_u32 s34, s34, 0x7f4a7c15")

def gen(a):
    N = NAME + "_kernel"
    STG = 26624; XB = 16384
    L_WK = 0; L_WV = 25600; L_G = 51200; RING = 57344
    L_X16 = RING + 3 * STG
    L_QX = 143360
    SLOT = {"A": RING, "B": RING + STG, "C": RING + 2 * STG, "D": RING + 3 * STG, "F": 30720}
    SMAP = ["A", "B", "C", "A", "D", "F", "B", "C", "A", "F"]
    NCH0 = 25
    Q1 = [4, 12]; Q2 = [8, 16]
    IDX, G = 10, 11
    T2, T3 = 20, 21
    M = [22, 23]
    KF1 = [24, 32]; KF2 = [28, 36]
    OA, IMG, T0, T1 = 30, 31, 38, 39
    VF = [40, 48]
    O = [56, 72]
    S = [88, 104, 120, 136]
    AK1, AK2, AV, AQ1, AQ2 = 88, 89, 90, 91, 92
    WO = 152; PT = 252

    def att_init():
        a.c("attention constants and accumulators; s12 = rt32, s13 = hp, s26 + v30 = O address")
        a(f"""
        s_and_b32 s15, s6, 3
        s_lshl_b32 s13, s4, 2
        s_add_u32 s12, s15, s13
        s_lshr_b32 s13, s6, 2
        s_mul_i32 s15, s15, 5120
        s_mul_i32 s14, s13, 2560
        s_add_u32 s15, s15, s14
        s_add_u32 s15, s15, {L_QX}
        v_and_b32 v{T0}, 31, v0
        v_lshrrev_b32 v{T1}, 5, v0
        v_lshlrev_b32 v{AK2}, 3, v{T0}
        v_lshl_add_u32 v{AK2}, v{T1}, 2, v{AK2}
        v_add_u32 v{AQ1}, s15, v3
        v_add_u32 v{AQ2}, s15, v{AK2}
        v_mul_u32_u24 v{AV}, 20, v{T1}
        v_add_lshl_u32 v{AV}, v{AV}, v{T0}, 4
        s_mul_i32 s26, s12, 81920
        s_lshl_b32 s14, s13, 1
        s_add_u32 s14, s14, s3
        s_lshl_b32 s14, s14, 3
        s_add_u32 s14, s14, s5
        s_mul_i32 s14, s14, 1280
        s_add_u32 s26, s26, s14
        s_add_u32 s26, s26, {WS_O}
        v_lshrrev_b32 v{OA}, 4, v{T0}
        v_mul_u32_u24 v{OA}, 40960, v{OA}
        v_lshl_add_u32 v{OA}, v{T1}, 8, v{OA}
        v_and_b32 v{AK1}, 15, v0
        v_lshl_add_u32 v{OA}, v{AK1}, 4, v{OA}
        s_mul_i32 s14, s3, {KV_BYTES}
        v_add_u32 v{IMG}, s14, v3
        s_lshl_b32 s14, s3, 6
        s_add_u32 s14, s14, s12
        s_lshl_b32 s14, s14, 7
        s_add_u32 s14, s14, {WS_G}
        """)
        for b in range(2):
            a(f"v_mov_b32 v{KF2[b]+1}, 0x3f803f80")
            for i in range(8): a(f"v_mov_b32 v{VF[b]+i}, 0")
        a("s_mov_b32 exec_lo, 0x01100000\ns_mov_b32 exec_hi, 0x01100000")
        for b in range(2):
            for i in range(8): a(f"v_mov_b32 v{VF[b]+i}, 0x3f803f80")
        a("s_mov_b64 exec, -1")
        for i in range(32): a(f"v_mov_b32 v{O[0]+i}, 0")
        for i in range(16): a(f"v_mov_b32 v{S[3]+i}, 0")

    a(f".globl {N}\n.p2align 8\n.type {N},@function\n{N}:")
    a("s_cmp_ge_u32 s2, 256\ns_cbranch_scc1 L_END")
    a("""
    s_load_dwordx8 s[8:15], s[0:1], 0
    s_load_dwordx8 s[16:23], s[0:1], 48
    s_load_dwordx2 s[24:25], s[0:1], 104
    s_load_dwordx4 s[64:67], s[0:1], 80
    s_load_dwordx2 s[68:69], s[0:1], 32
    """)
    stamp(a, 0)
    a.c("s3 = branch, s4 = rb (128-row block), s5 = hg (head group), s6 = wave, s33 = rb&3")
    a("""
    v_lshrrev_b32 v1, 6, v0
    v_and_b32 v0, 63, v0
    s_and_b32 s3, s2, 1
    v_readfirstlane_b32 s6, v1
    s_lshr_b32 s4, s2, 1
    s_and_b32 s4, s4, 3
    s_lshl_b32 s4, s4, 2
    s_lshr_b32 s33, s2, 3
    s_and_b32 s33, s33, 3
    s_add_u32 s4, s4, s33
    s_lshr_b32 s5, s2, 5
    v_lshlrev_b32 v3, 4, v0
    v_lshrrev_b32 v5, 3, v0
    v_and_b32 v6, 7, v0
    v_xor_b32 v6, v6, v5
    v_lshlrev_b32 v6, 4, v6
    v_mul_u32_u24 v2, 1280, v5
    v_add_u32 v2, v2, v6
    v_mov_b32 v4, 0
    s_lshl_b32 s48, s4, 7
    s_lshl_b32 s50, s6, 10
    s_cmp_ge_u32 s6, 4
    s_cbranch_scc1 L_LOADER
    """)
    a(f"""
    s_lshl_b32 s49, s5, 4
    s_add_u32 s49, s48, s49
    s_mul_i32 s49, s49, 1280
    s_lshr_b32 s51, s6, 1
    s_lshl_b32 s51, s51, 7
    s_and_b32 s52, s6, 1
    s_mul_i32 s53, s52, {8*1280}
    s_add_u32 s51, s51, s53
    s_add_u32 s51, s51, s49
    s_lshr_b32 s54, s2, 3
    s_lshl_b32 s54, s54, 10
    s_waitcnt lgkmcnt(0)
    """)
    srd(a, 36, 8, 9, 2048 * 1280)
    a.c("lines no other CU of this XCD is asking for yet: x16 pieces w+4j, one KB of wk / wv (L2 warm-up), gate")
    for j in range(5):
        a(f"s_add_u32 m0, s50, {L_X16 + 4096*j}\ns_add_u32 s53, s51, {256*j}\nbuffer_load_dwordx4 v2, s[36:39], s53 offen lds")
        if j == 0:
            srd(a, 28, 24, 25, WS_END)
            a(f"""
            s_cmp_ge_u32 s6, 2
            s_cbranch_scc1 L_LA2
            s_cmp_eq_u32 s6, 0
            s_cselect_b32 s12, s12, s14
            s_cselect_b32 s13, s13, s15
            s_cselect_b32 s18, s18, s20
            s_cselect_b32 s19, s19, s21
            s_cmp_eq_u32 s3, 0
            """)
            srd_sel(a, 40, 12, 18, 25600)
            a(f"""
            buffer_load_dwordx4 v[96:99], v3, s[40:43], s54 offen
            s_branch L_LA3
            L_LA2:
            """)
            srd(a, 40, 64, 65, 1280)
            a(f"""
            s_lshl_b32 s53, s52, 10
            s_add_u32 m0, s53, {L_G}
            s_nop 0
            buffer_load_dwordx4 v3, s[40:43], s53 offen lds
            L_LA3:
            """)
    a(f"s_mov_b32 s53, {FL_EPOCH}\nbuffer_load_dword v9, v4, s[28:31], s53 offen sc1")
    if opt("cpf"):
        a.c("bring this kernel's own code into L2: 1 KB per workgroup of the XCD round (wave 2)")
        a(f"""
        s_cmp_eq_u32 s6, 2
        s_cbranch_scc0 L_NCPF
        s_getpc_b64 s[56:57]
        L_PCREF:
        s_sub_u32 s56, s56, L_PCREF-{N}
        s_subb_u32 s57, s57, 0
        v_add_u32 v7, s54, v3
        v_min_u32 v7, L_END-{N}-16, v7
        global_load_dwordx4 v[96:99], v7, s[56:57]
        L_NCPF:
        """)
    att_init()
    FR = 152; ACC = 208; KVF = 100
    KVR = [100, 112, 124, 152, 164]
    BASES = [SLOT["F"], SLOT["B"], SLOT["D"]]
    AXR = [248, 250, 252]; AWR = [254, 255, 1]
    def base_of(slot):
        o = SLOT[slot]
        i = max(k for k in range(3) if BASES[k] <= o)
        return i, o - BASES[i]
    a.c("K/V fragment addresses (wave: 0 K d0-15, 1 K and V d16-19, 2 V d0-15, 3 gate)")
    a(f"""
    v_and_b32 v5, 15, v0
    v_lshrrev_b32 v6, 4, v0
    v_and_b32 v7, 7, v0
    v_xor_b32 v7, v7, v6
    v_lshlrev_b32 v7, 4, v7
    v_lshl_add_u32 v10, v5, 7, v7
    v_add_u32 v14, {L_X16}, v10
    v_xor_b32 v15, 64, v14
    v_bfe_u32 v7, v0, 2, 2
    v_lshl_add_u32 v7, v6, 3, v7
    v_mul_u32_u24 v18, 40, v7
    s_lshl_b32 s7, s6, 12
    v_add_u32 v11, s7, v10
    v_lshrrev_b32 v7, 1, v6
    v_lshlrev_b32 v7, 4, v7
    v_and_b32 v8, 1, v6
    v_lshl_add_u32 v7, v8, 2, v7
    v_bfe_u32 v8, v0, 2, 2
    v_add_u32 v7, v7, v8
    v_mul_u32_u24 v7, 160, v7
    v_and_b32 v8, 3, v0
    v_mul_u32_u24 v8, 40, v8
    v_add_u32 v7, v7, v8
    """)
    for k in range(3):
        a(f"v_add_u32 v{AXR[k]}, {BASES[k]}, v11\nv_xor_b32 v{AXR[k]+1}, 64, v{AXR[k]}\nv_add_u32 v{AWR[k]}, {BASES[k] + XB}, v7")
    a.c("store addresses: K -> v12 + s58, V -> v13 + s59, gate -> v12 + s58")
    a(f"""
    s_lshl_b32 s58, s4, 2
    s_lshr_b32 s59, s5, 1
    s_add_u32 s58, s58, s59
    s_mul_i32 s58, s58, 2560
    s_mul_i32 s59, s3, {KV_BYTES}
    s_add_u32 s58, s58, s59
    s_and_b32 s60, s5, 1
    s_mul_i32 s59, s60, 640
    s_add_u32 s59, s59, s58
    s_add_u32 s59, s59, 1280
    v_lshrrev_b32 v7, 1, v6
    v_and_b32 v8, 1, v6
    v_mul_u32_u24 v13, 320, v7
    v_lshl_add_u32 v13, v5, 4, v13
    v_lshl_add_u32 v13, v8, 3, v13
    v_lshlrev_b32 v12, 9, v7
    v_lshl_add_u32 v12, v5, 4, v12
    v_lshl_add_u32 v12, v8, 3, v12
    v_and_b32 v7, 3, v0
    s_mov_b32 s27, {QSCALE}
    s_cmp_eq_u32 s6, 1
    s_cbranch_scc1 L_AD1
    s_cmp_eq_u32 s6, 3
    s_cbranch_scc1 L_AD3
    s_lshl_b32 s60, s60, 8
    s_add_u32 s58, s58, s60
    s_mul_i32 s60, s6, {L_WV // 2}
    v_lshl_add_u32 v18, v7, 3, v18
    v_add_u32 v18, s60, v18
    s_branch L_AD4
    L_AD1:
    s_lshl_b32 s60, s60, 7
    s_add_u32 s58, s58, s60
    s_add_u32 s58, s58, 1024
    s_add_u32 s59, s59, {12*16}
    v_lshlrev_b32 v12, 3, v5
    v_and_b32 v7, 1, v0
    v_mul_u32_u24 v7, {L_WV}, v7
    v_add3_u32 v18, v18, v7, 32
    s_branch L_AD4
    L_AD3:
    s_lshl_b32 s58, s3, 11
    s_add_u32 s58, s58, s48
    s_lshl_b32 s60, s5, 4
    s_add_u32 s58, s58, s60
    s_lshl_b32 s58, s58, 2
    s_add_u32 s58, s58, {WS_G}
    v_lshlrev_b32 v12, 2, v5
    s_lshl_b32 s27, s3, 31
    s_xor_b32 s27, s27, {LOG2E | 0x80000000}
    v_lshlrev_b32 v18, 4, v6
    v_add_u32 v18, {L_G}, v18
    L_AD4:
    """)
    def kv_loop(kind):
        per = 2 if kind == "G" else 3
        nb = 4; ring = 5
        def rd(k):
            f = KVR[k % ring]
            r = [f"ds_read_b128 {vr(f,4)}, v{14 + (k & 1)} offset:{(k >> 1) * 2048}"]
            if kind == "G": r.append(f"ds_read_b128 {vr(f+4,4)}, v18 offset:{64*k}")
            else:
                for hf in range(2):
                    r.append(f"ds_read_b64_tr_b16 {vr(f+4+2*hf,2)}, v18 offset:{(32*k + 4*hf)*40}")
            return r
        def mm(k):
            f = KVR[k % ring]; r = []
            c1 = "0" if k == 0 else "v[20:23]"; c2 = "0" if k == 0 else "v[24:27]"
            if kind in "KHG": r.append(f"v_mfma_f32_16x16x32_bf16 v[20:23], {vr(f+4,4)}, {vr(f,4)}, {c1}")
            if kind in "VH": r.append(f"v_mfma_f32_16x16x32_bf16 v[24:27], {vr(f,4)}, {vr(f+4,4)}, {c2}")
            return r
        for k in range(nb):
            for x in rd(k): a(x)
        for k in range(20):
            ahead = min(k + nb, 20) - (k + 1)
            a(f"s_waitcnt lgkmcnt({ahead * per})")
            for x in mm(k): a(x)
            if k + nb < 20:
                for x in rd(k + nb): a(x)
    def reads(s, ks):
        bi, base = base_of(SMAP[s])
        ax = AXR[bi] + ks; aw = AWR[bi]; f = FR + 28 * ks
        r = [f"ds_read_b128 {vr(f+4*rt,4)}, v{ax} offset:{base + rt*2048}" for rt in range(2)]
        for ct in range(5):
            for hf in range(2):
                r.append(f"ds_read_b64_tr_b16 {vr(f+8+4*ct+2*hf,2)}, v{aw} offset:{base + (32*ks + 8*hf)*160 + 8*ct}")
        return r
    def mf(ks, ct, first=False):
        f = FR + 28 * ks
        return [f"v_mfma_f32_16x16x32_bf16 {vr(ACC+(rt*5+ct)*4,4)}, {vr(f+8+4*ct,4)}, {vr(f+4*rt,4)}, {'0' if first else vr(ACC+(rt*5+ct)*4,4)}" for rt in range(2)]
    def stage(s):
        r0 = reads(s, 0); r1 = reads(s, 1)
        if s == 0:
            for x in r0: a(x)
        else:
            k = 0
            for ct in range(5):
                n = [4, 3, 3, 2, 0][ct]
                for x in r0[k:k+n]: a(x)
                k += n
                for x in mf(1, ct): a(x)
        issued1 = 0
        plan = [4, 4, 3, 1, 0]
        for ct in range(5):
            a(f"s_waitcnt lgkmcnt({(12 - (4 + 2*ct)) + issued1})")
            for x in mf(0, ct, s == 0): a(x)
            for x in r1[issued1:issued1 + plan[ct]]: a(x)
            issued1 += plan[ct]
        a("s_waitcnt lgkmcnt(0)")
    PUB = optv("pub", 5)
    nb_ = [0]
    def cbar():
        i = nb_[0]; nb_[0] += 1
        if i == PUB: a("s_waitcnt vmcnt(0)")
        a("s_barrier")
        if opt("probeB"):
            stamp(a, 1 + i, True)
            if i == 10: a("s_branch L_FIN2")
        if i == PUB:
            a.c("publish this workgroup's K/V slice (wave 0, one lane)")
            a(f"""
            s_cmp_eq_u32 s6, 0
            s_cbranch_scc0 L_NOPUB
            s_bfe_u32 s56, s2, 0x50001
            s_lshl_b32 s56, s56, 7
            s_lshl_b32 s57, s3, 12
            s_add_u32 s56, s56, s57
            s_lshr_b32 s57, s2, 6
            s_lshl_b32 s57, s57, 2
            s_add_u32 s56, s56, s57
            s_add_u32 s56, s56, {FL_KV}
            """)
            flag_store(a, "s56", 7, 4)
            a("L_NOPUB:")
    cbar()
    if not opt("probeB"): stamp(a, 1, True)
    stage(0)
    a("s_waitcnt vmcnt(0)")
    cbar()
    a("v_readfirstlane_b32 s34, v9")
    a("s_cmp_eq_u32 s6, 1\ns_cbranch_scc1 L_KV_H\ns_cmp_eq_u32 s6, 2\ns_cbranch_scc1 L_KV_V\ns_cmp_eq_u32 s6, 3\ns_cbranch_scc1 L_KV_G")
    kst = """
    v_mul_f32 v20, s27, v20
    v_mul_f32 v21, s27, v21
    v_mul_f32 v22, s27, v22
    v_mul_f32 v23, s27, v23
    v_cvt_pk_bf16_f32 v16, v20, v21
    v_cvt_pk_bf16_f32 v17, v22, v23
    """
    kv_loop("K")
    a.c("the softmax scale rides on K")
    a("s_nop 7" + kst + "buffer_store_dwordx2 v[16:17], v12, s[28:31], s58 offen sc1\ns_branch L_KV_E\nL_KV_H:")
    kv_loop("H")
    a("s_nop 6" + kst + """
    v_cvt_pk_bf16_f32 v18, v24, v25
    v_cvt_pk_bf16_f32 v19, v26, v27
    s_mov_b64 exec, 0xffff
    buffer_store_dwordx2 v[16:17], v12, s[28:31], s58 offen sc1
    s_mov_b32 exec_lo, 0x00f000f0
    s_mov_b32 exec_hi, 0x00f000f0
    buffer_store_dwordx2 v[18:19], v13, s[28:31], s59 offen sc1
    s_mov_b64 exec, -1
    s_branch L_KV_E
    L_KV_G:
    """)
    kv_loop("G")
    a("""
    s_nop 7
    v_mul_f32 v20, s27, v20
    v_exp_f32 v20, v20
    s_nop 0
    v_add_f32 v20, 1.0, v20
    v_rcp_f32 v20, v20
    s_mov_b64 exec, 0xffff
    buffer_store_dword v20, v12, s[28:31], s58 offen sc1
    s_mov_b64 exec, -1
    s_branch L_KV_E
    L_KV_V:
    """)
    kv_loop("V")
    a("""
    s_nop 7
    v_cvt_pk_bf16_f32 v18, v24, v25
    v_cvt_pk_bf16_f32 v19, v26, v27
    buffer_store_dwordx2 v[18:19], v13, s[28:31], s59 offen sc1
    L_KV_E:
    """)
    mk_tag(a)
    a(f"""
    s_mul_i32 s7, s6, 5120
    s_add_u32 s7, s7, {L_QX}
    v_mul_u32_u24 v12, 1280, v6
    v_add_u32 v12, s7, v12
    v_lshl_add_u32 v13, v5, 3, v12
    v_lshl_add_u32 v12, v5, 4, v12
    """)
    if not opt("probeB"): stamp(a, 2, True)
    for s in range(1, 10):
        cbar(); stage(s)
    for rt in range(2):
        for ct in range(5): a(mf(1, ct)[rt])
    stamp(a, 3)
    a.c("Q epilogue: pack, write fragments to LDS [w][head rg][1280]")
    a("s_nop 2")
    for rt in range(2):
        P = 100 + 12 * rt
        for i in range(10): a(f"v_cvt_pk_bf16_f32 v{P+i}, v{ACC+rt*20+2*i}, v{ACC+rt*20+2*i+1}")
        a(f"ds_write_b128 v12, {vr(P,4)} offset:{rt*256}")
        a(f"ds_write_b128 v12, {vr(P+4,4)} offset:{512+rt*256}")
        a(f"ds_write_b64 v13, {vr(P+8,2)} offset:{1024+rt*128}")
    a("s_branch L_ATT")

    a("L_LOADER:")
    a.c("Wq DMA source offsets for 3 instrs: q=64i+l, p=q/10, c=q%10, src row = swap bits 2,3 of p")
    for i in range(3):
        a(f"""
        v_add_u32 v5, {64*i}, v0
        v_mul_u32_u24 v6, 6554, v5
        v_lshrrev_b32 v6, 16, v6
        v_mul_u32_u24 v7, 10, v6
        v_sub_u32 v7, v5, v7
        v_and_b32 v5, 0x13, v6
        v_and_b32 v8, 4, v6
        v_lshl_or_b32 v5, v8, 1, v5
        v_and_b32 v8, 8, v6
        v_lshrrev_b32 v8, 1, v8
        v_or_b32 v5, v5, v8
        v_mul_u32_u24 v5, 1280, v5
        v_lshl_add_u32 v{10+i}, v7, 4, v5
        """)
    a.c("s33 = k-chunk rotation (0,3,5,8): workgroups sharing Wq columns start at different k")
    a(f"""
    s_sub_u32 s7, s6, 4
    s_lshl_b32 s49, s7, 5
    s_add_u32 s48, s48, s49
    s_mul_i32 s48, s48, 1280
    s_mul_i32 s49, s5, 160
    s_mul_i32 s54, s7, {16*1280}
    s_add_u32 s49, s49, s54
    s_lshl_b32 s54, s7, 12
    s_mul_i32 s51, s7, 2560
    s_add_u32 s51, s51, {XB}
    s_mul_i32 s33, s33, 5
    s_add_u32 s33, s33, 1
    s_lshr_b32 s33, s33, 1
    s_lshl_b32 s50, s7, 10
    s_waitcnt lgkmcnt(0)
    s_cmp_eq_u32 s3, 0
    """)
    srd_sel(a, 72, 10, 16, 640 * 1280)
    srd_sel(a, 40, 12, 18, 25600)
    srd_sel(a, 44, 14, 20, 25600)
    Q_ = []
    def kchunk(s):
        return f"s_add_u32 s55, s33, {s}\ns_cmp_ge_u32 s55, 10\ns_cselect_b32 s56, 10, 0\ns_sub_u32 s55, s55, s56\n"
    def items_x(s):
        r = []
        for i in range(4):
            t = (kchunk(s) + "s_lshl_b32 s55, s55, 7\ns_add_u32 s55, s55, s48\n") if i == 0 else ""
            t += f"s_add_u32 m0, s54, {SLOT[SMAP[s]] + 1024*i}\ns_add_u32 s56, s55, {i*8*1280}\nbuffer_load_dwordx4 v2, s[36:39], s56 offen lds"
            r.append((f"X{s}", t))
        return r
    def items_w(s):
        r = []
        for i in range(3):
            t = (kchunk(s) + f"s_mul_i32 s55, s55, {64*1280}\ns_add_u32 s55, s55, s49\n") if i == 0 else ""
            t += f"s_add_u32 m0, s51, {SLOT[SMAP[s]] + 1024*i}\n" + ("s_mov_b32 exec_hi, 0\n" if i == 2 else "s_nop 0\n")
            t += f"buffer_load_dwordx4 v{10+i}, s[72:75], s55 offen lds" + ("\ns_mov_b32 exec_hi, -1" if i == 2 else "")
            r.append((f"W{s}", t))
        return r
    def items_small():
        r = []
        for j in range(6):
            r.append(("SM", f"s_add_u32 m0, s50, {L_WK + 4096*j}\ns_add_u32 s53, s50, {4096*j}\nbuffer_load_dwordx4 v3, s[40:43], s53 offen lds"))
            r.append(("SM", f"s_add_u32 m0, s50, {L_WV + 4096*j}\ns_nop 0\nbuffer_load_dwordx4 v3, s[44:47], s53 offen lds"))
        r.append(("SM", f"s_lshl_b32 s53, s7, 8\ns_add_u32 s53, s53, {24*1024}\ns_mov_b64 exec, 0xffff\ns_add_u32 m0, s53, {L_WK}\ns_nop 0\nbuffer_load_dwordx4 v3, s[40:43], s53 offen lds"))
        r.append(("SM", f"s_add_u32 m0, s53, {L_WV}\ns_nop 0\nbuffer_load_dwordx4 v3, s[44:47], s53 offen lds\ns_mov_b64 exec, -1"))
        return r
    def emit(items):
        for n, t in items:
            a(t); Q_.append(n)
    def younger(name):
        i = max(k for k, n in enumerate(Q_) if n == name)
        return len(Q_) - 1 - i
    lb_ = [0]
    def lbar(name):
        i = lb_[0]; lb_[0] += 1
        if opt("probeB"): stamp(a, 1 + i)
        a(f"s_waitcnt vmcnt({younger(name)})\ns_barrier")
    emit(items_w(0))
    srd(a, 36, 8, 9, 2048 * 1280)
    srd(a, 28, 24, 25, WS_END)
    emit(items_w(1) + items_w(2))
    a(f"s_mov_b32 s53, {FL_EPOCH}\nbuffer_load_dword v9, v4, s[28:31], s53 offen sc1")
    att_init()
    RL = 152; RA = RL + 64; RS = RA + 12
    a.c("wo re-layout job (wave 5): cb = wg&7, head pair wg>>3, piece u = l/10, octet = l%10 (50 lanes); rows (u<4) 20(u>>1)+4(u&1)+{0..3,8..11}, (u=4) 16+{0..3,20..23}")
    for i in [2, 3, 12, 13]: a(f"v_mov_b32 v{RA+i}, 0")
    a("s_cmp_eq_u32 s6, 5\ns_cbranch_scc0 L_NORL")
    t = RL + 32
    U = RA + 11
    a(f"""
    s_lshr_b32 s56, s2, 3
    s_and_b32 s35, s56, 7
    s_lshl_b32 s35, s35, 1
    s_lshr_b32 s57, s2, 7
    s_add_u32 s35, s35, s57
    s_mul_i32 s35, s35, {40*1280}
    s_mul_i32 s56, s56, 5
    s_and_b32 s57, s2, 7
    s_mul_i32 s32, s57, 160
    s_add_u32 s32, s32, s35
    v_mul_u32_u24 v{U}, 6554, v0
    v_lshrrev_b32 v{U}, 16, v{U}
    v_mul_u32_u24 v{RA}, 10, v{U}
    v_sub_u32 v{RA}, v0, v{RA}
    v_lshrrev_b32 v{t}, 1, v{U}
    v_mul_u32_u24 v{t}, 20, v{t}
    v_and_b32 v{t+1}, 1, v{U}
    v_lshl_add_u32 v{t}, v{t+1}, 2, v{t}
    v_cmp_eq_u32 vcc, 4, v{U}
    v_mov_b32 v{t+1}, 8
    s_nop 0
    v_cndmask_b32 v{t}, v{t}, 16, vcc
    v_cndmask_b32 v{t+1}, v{t+1}, 20, vcc
    v_add_u32 v{t+1}, v{t}, v{t+1}
    v_mul_u32_u24 v{t}, 1280, v{t}
    v_mul_u32_u24 v{t+1}, 1280, v{t+1}
    v_lshl_add_u32 v{RS}, v{RA}, 4, v{t}
    v_lshl_add_u32 v{RS+1}, v{RA}, 4, v{t+1}
    """)
    a.c("destination of the two 4-column chunks: octet o<8: ct = 2(o>>2)+z, rg = o&3 ; o>=8: ct = 4, rg = 2(o&1)+z")
    a(f"""
    v_cmp_lt_u32 vcc, 7, v{RA}
    v_lshrrev_b32 v{t}, 2, v{RA}
    v_mul_u32_u24 v{t}, 81920, v{t}
    v_lshl_add_u32 v{t}, v{U}, 8, v{t}
    v_and_b32 v{t+1}, 3, v{RA}
    v_lshlrev_b32 v{t+2}, 1, v{t+1}
    v_cndmask_b32 v{t+1}, v{t+1}, v{t+2}, vcc
    v_lshl_add_u32 v{RA+2}, v{t+1}, 6, v{t}
    v_mov_b32 v{t+1}, 40960
    v_cndmask_b32 v{t+1}, v{t+1}, 64, vcc
    v_add_u32 v{RA+3}, v{RA+2}, v{t+1}
    """)
    a(f"""
    s_mul_i32 s35, s57, {5*40960}
    s_lshl_b32 s56, s56, 8
    s_add_u32 s35, s35, s56
    s_add_u32 s35, s35, {WS_WO}
    L_NORL:
    v_lshlrev_b32 v13, 7, v{T0}
    s_lshl_b32 s57, s3, 12
    s_add_u32 s57, s57, {FL_KV}
    """)
    sm = items_small()
    NSA = optv("nsa", 6)
    emit(items_x(0) + sm[:NSA])
    if not opt("probeB"): stamp(a, 1)
    lbar("X0")
    a("v_readfirstlane_b32 s34, v9")
    emit(sm[NSA:] + items_x(1))
    mk_tag(a)
    lbar("SM")
    emit(items_x(2) + items_w(3) + items_x(3))
    if not opt("probeB"): stamp(a, 2)
    rest = []
    for s in range(4, 10): rest += items_w(s) + items_x(s)
    PER = optv("per", 6)
    for r in range(2, 9):
        lbar(f"X{r-1}")
        n = PER if r < 8 else len(rest)
        chunk = rest[:n]; rest = rest[n:]
        for nme, _ in chunk:
            s = int(nme[1:]); prev = [p for p in range(s) if SMAP[p] == SMAP[s]]
            if prev: assert r >= (prev[-1] + 2 if prev[-1] > 0 else 1), (nme, r)
        emit(chunk)
    a.c("wave 4: one look at the K/V flags; if complete, fetch the first tiles of the image early")
    def img(r): a(f"s_mov_b32 m0, {1024*r}\ns_mov_b32 s20, {1024*r}\nbuffer_load_dwordx4 v{IMG}, s[28:31], s20 offen sc1 lds")
    a(f"""
    s_cmp_eq_u32 s6, 4
    s_cbranch_scc0 L_N4
    s_mov_b32 exec_hi, 0
    buffer_load_dwordx4 v[16:19], v13, s[28:31], s57 offen sc1
    s_waitcnt vmcnt({younger("X8") + 1})
    s_barrier
    s_waitcnt vmcnt(0)
    v_cmp_ne_u32 vcc, s34, v16
    v_cmp_ne_u32 s[58:59], s34, v17
    s_or_b64 vcc, vcc, s[58:59]
    v_cmp_ne_u32 s[58:59], s34, v18
    s_or_b64 vcc, vcc, s[58:59]
    v_cmp_ne_u32 s[58:59], s34, v19
    s_or_b64 vcc, vcc, s[58:59]
    s_mov_b32 exec_hi, -1
    s_cmp_eq_u64 vcc, 0
    s_cbranch_scc1 L_EARLY
    s_barrier
    s_mov_b32 s20, -1
    s_mov_b32 s21, 0
    """)
    if opt("probeB"): a("s_branch L_FIN2")
    stamp(a, 3)
    poll(a, "L_PKV", 13, "s57", 4, 16, mask="s[20:21]", preloaded=False)
    stamp(a, 4)
    NE = optv("ne", 6)
    for r in range(NE): img(r)
    a("s_branch L_LATE\nL_EARLY:")
    for r in range(NE): img(r)
    a("s_barrier")
    if opt("probeB"): a("s_branch L_FIN2")
    stamp(a, 3); stamp(a, 4)
    a("L_LATE:")
    NX = optv("nx", 0)
    for r in list(range(NE, NCH0)) + list(range(56, 56 + NX)): img(r)
    a(f"s_waitcnt vmcnt({NCH0 + NX - 5})\ns_branch L_ATT\nL_N4:")
    lbar("X8")
    lbar("X9")
    if opt("probeB"): a("s_branch L_FIN2")
    stamp(a, 3)

    pAK1, pAK2, pAV = AK1, AK2, AV
    AK1, AK2, AV = 3, 2, 1
    def rdK(b, off):
        return [f"ds_read_b128 {vr(KF1[b],4)}, v{AK1} offset:{off}", f"ds_read_b32 v{KF2[b]}, v{AK2} offset:{off+1024}"]
    def rdV(b, off):
        return ["s_mov_b64 exec, s[36:37]",
                f"ds_read_b128 {vr(VF[b],4)}, v{AV} offset:{off+1280}", f"ds_read_b128 {vr(VF[b]+4,4)}, v{AV} offset:{off+1920}",
                "s_mov_b64 exec, -1"]
    def qk1(u, kb): return f"v_mfma_f32_32x32x16_bf16 {vr(S[u%4],16)}, {vr(KF1[kb],4)}, {vr(Q1[u%2],4)}, 0"
    def qk2(u, kb): return f"v_mfma_f32_32x32x8_bf16 {vr(S[u%4],16)}, {vr(KF2[kb],2)}, {vr(Q2[u%2],2)}, {vr(S[u%4],16)}"
    def pv(u, vb, i): return f"v_smfmac_f32_32x32x32_bf16 {vr(O[u%2],16)}, {vr(VF[vb]+4*i,4)}, {vr(S[u%4]+8*i,8)}, v{IDX}"
    a("L_ATT:")
    a(f"""
    v_mov_b32 v{AK2}, v{pAK2}
    v_mov_b32 v{AV}, v{pAV}
    v_mov_b32 v{IDX}, 0xdddddddd
    v_mov_b32 v{Q2[0]+1}, 0
    v_mov_b32 v{Q2[1]+1}, 0
    v_lshlrev_b32 v{T2}, 2, v{T0}
    s_mov_b32 s36, 0x000fffff
    s_mov_b32 s37, 0x000fffff
    s_mov_b32 s38, 0
    s_mov_b32 s39, -1
    s_mov_b32 s42, 1
    s_mov_b32 s44, 8
    s_waitcnt lgkmcnt(0)
    s_barrier
    ds_read_b128 {vr(Q1[0],4)}, v{AQ1}
    ds_read_b32 v{Q2[0]}, v{AQ2} offset:1024
    ds_read_b128 {vr(Q1[1],4)}, v{AQ1} offset:1280
    ds_read_b32 v{Q2[1]}, v{AQ2} offset:2304
    """)
    for x in rdK(0, 0) + rdK(1, 2560) + rdV(1, 0): a(x)
    a(f"buffer_load_dword v{G}, v{T2}, s[28:31], s14 offen sc1")
    stamp(a, 5, True)
    a.c("stand-in for the row max: the max over the first 32 keys")
    a("s_waitcnt lgkmcnt(4)")
    a(f"v_mfma_f32_32x32x16_bf16 {vr(S[2],16)}, {vr(KF1[0],4)}, {vr(Q1[0],4)}, 0")
    a(f"v_mfma_f32_32x32x16_bf16 {vr(S[1],16)}, {vr(KF1[0],4)}, {vr(Q1[1],4)}, 0")
    a("s_cmp_eq_u32 s6, 4\ns_cbranch_scc0 L_BQ2\ns_waitcnt vmcnt(" + str(NX + 1) + ")\nL_BQ2:\ns_barrier\ns_nop 6")
    a(f"v_mfma_f32_32x32x8_bf16 {vr(S[0],16)}, {vr(KF2[0],2)}, {vr(Q2[0],2)}, {vr(S[2],16)}")
    a(f"v_mfma_f32_32x32x8_bf16 {vr(S[1],16)}, {vr(KF2[0],2)}, {vr(Q2[1],2)}, {vr(S[1],16)}")
    a("s_nop 10")
    for j in range(2):
        a(f"v_max3_f32 v{M[j]}, v{S[j]}, v{S[j]+1}, v{S[j]+2}\nv_max3_f32 v{T2+j}, v{S[j]+3}, v{S[j]+4}, v{S[j]+5}")
        for i in range(6, 16, 4):
            a(f"v_max3_f32 v{M[j]}, v{S[j]+i}, v{S[j]+i+1}, v{M[j]}")
            if i + 2 < 16: a(f"v_max3_f32 v{T2+j}, v{S[j]+i+2}, v{S[j]+i+3}, v{T2+j}")
        a(f"v_max_f32 v{M[j]}, v{M[j]}, v{T2+j}\nv_mov_b32 v{T2+j}, v{M[j]}")
        if j == 0: a("s_nop 1")
        else: a(f"v_mfma_f32_32x32x8_bf16 {vr(S[0],16)}, {vr(KF2[0],2)}, {vr(Q2[0],2)}, {vr(S[2],16)}\ns_nop 0")
        a(f"""
        v_permlane32_swap_b32 v{M[j]}, v{T2+j}
        s_nop 0
        v_min_f32 v{M[j]}, -v{M[j]}, -v{T2+j}
        v_lshrrev_b32 v{M[j]}, 16, v{M[j]}
        v_cndmask_b32 v{Q2[j]+1}, v{M[j]}, 0, s[38:39]
        """)
    a(f"""
    s_cmp_eq_u32 s13, 0
    s_cbranch_scc0 L_LAG0
    s_setprio 2
    s_waitcnt lgkmcnt(0)
    s_nop 2
    s_branch L_PR
    L_LAG0:
    """)
    a.c("waves 4-7: rest of the K/V image, side jobs, then S1 (waves 0-3 meet it after their first 8 tiles)")
    def rl_loads():
        a("s_bitcmp0_b32 s2, 6")
        srd_sel(a, 72, 68, 22, 640 * 1280)
        a("s_mov_b32 exec_hi, 0x3ffff")
        for e in range(8):
            a(f"buffer_load_dwordx4 {vr(RL+4*e,4)}, v{RS+e//4}, s[72:75], s32 offen offset:{(e%4)*1280}")
    def rl_stores():
        a("s_mov_b32 s56, 0x05040100\ns_mov_b32 s57, 0x07060302\ns_mov_b32 exec_hi, 0x3ffff")
        a.c("wo re-layout: 8x8 16-bit transposition in registers")
        for c in range(8):
            for r in range(4):
                a(f"v_perm_b32 v{RL+32+4*c+r}, v{RL+4*(2*r+1)+c//2}, v{RL+4*(2*r)+c//2}, {'s56' if c % 2 == 0 else 's57'}")
            a(f"buffer_store_dwordx4 {vr(RL+32+4*c,4)}, v{RA+2+c//4}, s[28:31], s35 offen offset:{(c%4)*16} sc1")
    RLE = False
    if RLE:
        a("s_cmp_eq_u32 s6, 5\ns_cbranch_scc0 L_NRL")
        rl_loads()
        a("s_mov_b32 exec_hi, -1\nL_NRL:")
    quads = [k for k in range(24, 160, 4) if not (56 <= k < 56 + NX)]
    for k in quads:
        a(f"s_add_u32 m0, s50, {1024*k}\ns_add_u32 s20, s50, {1024*k}\nbuffer_load_dwordx4 v{IMG}, s[28:31], s20 offen sc1 lds")
    a("s_cmp_eq_u32 s6, 5\ns_cbranch_scc0 L_POIS")
    if RLE:
        a(f"s_waitcnt vmcnt({len(quads)})")
        rl_stores()
    else: rl_loads()
    a("s_branch L_S1\nL_POIS:")
    a.c("waves 4,6,7: mark this workgroup's share of the O hand-off buffer as not yet written (rt16 = 8rb + i, slice 8*branch+hg); one KB column each")
    a(f"""
    s_mul_i32 s55, s4, {8*40960}
    s_lshl_b32 s56, s3, 3
    s_add_u32 s56, s56, s5
    s_mul_i32 s56, s56, 2560
    s_add_u32 s55, s55, s56
    s_add_u32 s55, s55, {WS_O}
    s_sub_u32 s56, s6, 5
    s_max_i32 s56, s56, 0
    s_lshl_b32 s56, s56, 10
    s_add_u32 s55, s55, s56
    v_mov_b32 v{PT}, -1
    v_mov_b32 v{PT+1}, -1
    v_mov_b32 v{PT+2}, -1
    v_mov_b32 v{PT+3}, -1
    s_cmp_eq_u32 s6, 7
    s_cselect_b32 exec_hi, 0, -1
    """)
    for i in range(8):
        a(f"buffer_store_dwordx4 {vr(PT,4)}, v{AK1}, s[28:31], s55 offen sc1\ns_add_u32 s55, s55, 40960")
    a("""
    L_S1:
    s_mov_b32 exec_hi, -1
    s_waitcnt vmcnt(8) lgkmcnt(0)
    s_barrier
    s_setprio 3
    L_PR:
    """)
    stamp(a, 6)
    if opt("cyc"): a("s_memtime s[80:81]")
    if opt("iters"): a("s_memtime s[94:95]\ns_waitcnt lgkmcnt(0)")
    a(".p2align 6\nL_LOOP:")
    for t in range(8):
        for j in range(2):
            u = 2 * t + j
            b = (t + j) % 2
            ex = [f"v_exp_f32 v{S[u%4]+i}, v{S[u%4]+i}" for i in range(16)]
            extra = [[], [], [], []]
            if j == 1:
                a("s_waitcnt lgkmcnt(0)")
                extra[0] = rdK(t % 2, (t + 2) * 2560)
                extra[1] = rdV(t % 2, (t + 1) * 2560)
            ms = [qk1(u + 1, b), qk2(u + 1, b), pv(u - 1, b, 0), pv(u - 1, b, 1)]
            for g in range(4):
                a(ms[g])
                for x in ex[4 * g:4 * g + 2]: a(x)
                for x in extra[g]: a(x)
                for x in ex[4 * g + 2:4 * g + 4]: a(x)
            if t == optv("nlt", 3) and j == 1 and optv("nlh", 0):
                a(f"s_cmp_eq_u32 s43, {16 + optv('nlh', 0) + 1}\ns_cbranch_scc0 L_PH\ns_setprio 1\nL_PH:")
    a(f"v_add_u32 v{AK1}, 20480, v{AK1}\nv_add_u32 v{AK2}, 20480, v{AK2}\nv_add_u32 v{AV}, 20480, v{AV}")
    a(f"""
    s_lshl_b32 s43, s13, 4
    s_add_u32 s43, s43, s44
    s_cmp_eq_u32 s43, {16 + optv("nl", 3)}
    s_cbranch_scc0 L_P1
    s_setprio 1
    L_P1:
    s_cmp_eq_u32 s42, 0
    s_cbranch_scc1 L_NEXT
    s_cmp_eq_u32 s44, 8
    s_cbranch_scc0 L_E0
    s_cmp_eq_u32 s13, 0
    s_cbranch_scc0 L_RL2
    s_barrier
    s_branch L_NEXT
    L_RL2:
    """)
    if not RLE:
        a("s_cmp_eq_u32 s6, 5\ns_cbranch_scc0 L_NEXT\ns_waitcnt vmcnt(0)")
        rl_stores()
        a("s_mov_b32 exec_hi, -1")
    a(f"""
    s_branch L_NEXT
    L_E0:
    s_cmp_eq_u32 s43, {16 + 6}
    s_cbranch_scc0 L_E1
    s_lshl_b32 s56, s2, 2
    s_add_u32 s56, s56, s6
    s_lshl_b32 s56, s56, 2
    s_add_u32 s56, s56, {FL_W - 16}
    v_mov_b32 v{T3}, 0
    s_waitcnt vmcnt(0)
    """)
    flag_store(a, "s56", T2, T3)
    a.c("flags to see: lanes 0-31 the workgroups that re-lay this tile's Wo columns, lanes 32-63 the row group")
    a(f"""
    s_branch L_NEXT
    L_E1:
    s_cmp_eq_u32 s44, 4
    s_cbranch_scc0 L_E2
    v_lshl_add_u32 v{T2}, v{T0}, 3, s5
    v_and_b32 v{T3}, 14, v0
    v_lshlrev_b32 v{T3}, 4, v{T3}
    v_and_or_b32 v{T3}, v0, 1, v{T3}
    s_and_b32 s57, s2, 0x1e
    v_or_b32 v{T3}, s57, v{T3}
    v_cndmask_b32 v{T2}, v{T2}, v{T3}, s[38:39]
    v_lshlrev_b32 v{T2}, 4, v{T2}
    s_mov_b32 s57, {FL_W}
    buffer_load_dwordx4 {vr(PT,4)}, v{T2}, s[28:31], s57 offen sc1
    s_branch L_NEXT
    L_E2:
    s_cmp_eq_u32 s44, 3
    s_cbranch_scc0 L_NEXT
    """)
    poll(a, "L_PW", T2, "s57", 4, PT, sleep=8)
    if opt("touch"):
        a.c("touch this tile's lines of the output (address translation and L2 are warm when the final stores come)")
        srd(a, 72, 66, 67, 2048 * 1280)
        a(f"""
        s_lshl_b32 s56, s4, 1
        s_add_u32 s56, s56, s3
        s_mul_i32 s56, s56, {64*1280}
        s_mul_i32 s57, s5, 160
        s_add_u32 s56, s56, s57
        s_and_b32 s57, s6, 3
        s_mul_i32 s57, s57, 52
        s_add_u32 s56, s56, s57
        v_mul_u32_u24 v{T2}, 1280, v0
        buffer_load_dword v{PT}, v{T2}, s[72:75], s56 offen
        """)
    a.c("prefetch this wave's Wo fragments: [cb=hg][ct][f32 = 5w+st]")
    a(f"""
    s_mul_i32 s56, s5, {5*40960}
    s_mul_i32 s57, s6, 5120
    s_add_u32 s56, s56, s57
    s_add_u32 s56, s56, {WS_WO}
    v_lshlrev_b32 v{T2}, 4, v0
    v_add_u32 v{T3}, 4096, v{T2}
    """)
    for ct in range(5):
        for st in range(5):
            av = T2 if st < 4 else T3
            a(f"buffer_load_dwordx4 {vr(WO+(st*5+ct)*4,4)}, v{av}, s[28:31], s56 offen offset:{(st%4)*1024} sc1")
        if ct < 4: a("s_add_u32 s56, s56, 40960")
    a("L_NEXT:")
    if opt("iters"):
        for k in range(1, 9): a(f"s_mov_b32 s{76+2*k}, s{76+2*(k+1)}")
        a("s_memtime s[94:95]\ns_waitcnt lgkmcnt(0)")
    a("s_sub_u32 s44, s44, 1\ns_cmp_lg_u32 s44, 0\ns_cbranch_scc1 L_LOOP")
    stamp(a, 7)
    if opt("cyc"): a("s_memtime s[82:83]")
    a(pv(15, 0, 0)); a(pv(15, 0, 1))
    a.c("phase E addresses: tile rows 64*(2rb+branch).., columns 80*hg.. ; wave = K eighth; row tiles in an order rotated by hg")
    a(f"""
    s_setprio 3
    s_mov_b32 s46, {f32bits(2.0**-40)}
    s_mov_b32 s47, {f32bits(2.0**40)}
    s_mov_b32 s23, -2
    s_lshl_b32 s16, s4, 1
    s_add_u32 s16, s16, s3
    s_mul_i32 s21, s16, {4*40960}
    s_mul_i32 s40, s6, 5120
    s_add_u32 s21, s21, s40
    s_add_u32 s21, s21, {WS_O}
    """)
    for i in range(4):
        a(f"s_add_u32 s22, s5, {i}\ns_and_b32 s22, s22, 3\ns_mul_i32 s22, s22, 40960\ns_add_u32 s{17+i}, s21, s22\ns_add_u32 s{8+i}, s22, s40")
    a("s_waitcnt vmcnt(0) lgkmcnt(0)")
    a.c("run-time safety check of the stand-in max: row sums must lie in [2^-40, 2^40], else redo with the true max")
    a(f"""
    v_cndmask_b32 v{M[0]}, v{O[0]+12}, v{O[0]+8}, s[38:39]
    v_cndmask_b32 v{M[1]}, v{O[1]+12}, v{O[1]+8}, s[38:39]
    v_cmp_le_f32 s[48:49], s46, v{M[0]}
    v_cmp_ge_f32 s[50:51], s47, v{M[0]}
    v_cmp_le_f32 s[52:53], s46, v{M[1]}
    v_cmp_ge_f32 s[54:55], s47, v{M[1]}
    v_rcp_f32 v{M[0]}, v{M[0]}
    v_rcp_f32 v{M[1]}, v{M[1]}
    s_and_b64 s[48:49], s[48:49], s[50:51]
    s_and_b64 s[52:53], s[52:53], s[54:55]
    s_and_b64 s[48:49], s[48:49], s[52:53]
    s_cmp_eq_u64 s[48:49], -1
    s_cbranch_scc0 L_BAD
    L_OK:
    v_mul_f32 v{M[0]}, v{M[0]}, v{G}
    v_mul_f32 v{M[1]}, v{M[1]}, v{G}
    """)
    P = S[3]
    for j in range(2):
        for i in range(12): a(f"v_mul_f32 v{O[j]+i}, v{O[j]+i}, v{M[j]}")
        for i in range(4): a(f"v_cvt_pk_bf16_f32 v{P+4*j+i}, v{O[j]+2*i}, v{O[j]+2*i+1}")
        for i in range(2): a(f"v_cvt_pk_bf16_f32 v{P+8+2*j+i}, v{O[j]+8+2*i}, v{O[j]+8+2*i+1}")
        for i in range(4): a(f"v_min_u32 v{P+4*j+i}, s23, v{P+4*j+i}")
        a(f"buffer_store_dwordx4 {vr(P+4*j,4)}, v{OA}, s[28:31], s26 offen offset:{512*j} sc1")
    for i in range(4): a(f"v_min_u32 v{P+8+i}, s23, v{P+8+i}")
    a(f"""
    s_mov_b32 exec_hi, 0
    buffer_store_dwordx4 {vr(P+8,4)}, v{OA}, s[28:31], s26 offen offset:1024 sc1
    """)
    if opt("dup"):
        a(f"buffer_store_dwordx4 {vr(P+8,4)}, v{OA}, s[28:31], s26 offen offset:1024\ns_mov_b32 exec_hi, -1")
        for j in range(2): a(f"buffer_store_dwordx4 {vr(P+4*j,4)}, v{OA}, s[28:31], s26 offen offset:{512*j}")
    a("s_mov_b32 exec_hi, -1\ns_setprio 0")
    OF = 16
    EA = [96, 116, 16, 36]
    srd(a, 72, 66, 67, 2048 * 1280)
    a.c("partial sums change lanes on their way through LDS: writer (n, rg) -> slot 4n + (rg ^ ((n>>1)&3)); reader lane = 4*row + rg")
    a.c("out address (waves 0-3): row = 64*(2rb+branch) + 16w + (l>>2) ; columns 8rg.., 32+8rg.., 64+4rg..")
    a(f"""
    v_mov_b32 v2, s34
    v_mov_b32 v3, 0
    v_lshlrev_b32 v5, 4, v0
    v_add_u32 v6, 4096, v5
    v_and_b32 v13, 15, v0
    v_lshrrev_b32 v14, 4, v0
    v_bfe_u32 v12, v0, 1, 2
    v_xor_b32 v14, v14, v12
    v_lshl_add_u32 v14, v13, 2, v14
    v_lshlrev_b32 v14, 4, v14
    v_add_u32 v8, s8, v14
    v_add_u32 v9, s9, v14
    v_add_u32 v10, s10, v14
    v_add_u32 v11, s11, v14
    v_bfe_u32 v12, v0, 3, 2
    v_xor_b32 v12, v12, v0
    s_mul_i32 s22, s6, 40960
    v_lshl_add_u32 v12, v12, 4, s22
    s_lshl_b32 s22, s16, 6
    s_lshl_b32 s21, s6, 4
    s_add_u32 s22, s22, s21
    s_mul_i32 s22, s22, 1280
    s_mul_i32 s21, s5, 160
    s_add_u32 s22, s22, s21
    v_lshrrev_b32 v13, 2, v0
    v_mul_u32_u24 v13, 1280, v13
    v_and_b32 v14, 3, v0
    v_lshl_add_u32 v7, v14, 3, v13
    v_lshl_add_u32 v13, v14, 4, v13
    s_mov_b32 s60, {SPIN}
    """)
    REQ = {"A": [int(c) for c in str(optv("reqa", 12344))], "B": [int(c) for c in str(optv("reqb", 12344))]}
    def oload(rt):
        for st in range(5):
            av = 5 if st < 4 else 6
            a(f"buffer_load_dwordx4 {vr(OF+(rt*5+st)*4,4)}, v{av}, s[28:31], s{17+rt} offen offset:{(st%4)*1024} sc1")
    def ewrites(rt):
        return [f"ds_write_b128 v{8+rt}, {vr(EA[rt]+4*ct,4)} offset:{ct*1024}" for ct in range(5)]
    def egemm(tag, bar=-1, wr=True):
        for rt in range(4):
            if rt == bar: a("s_barrier")
            a(f"L_CH{tag}{rt}:")
            b = OF + rt * 20
            w = ewrites(rt - 1) if rt >= 1 and wr else []
            a.c("MFMAs run ahead of the hand-off check (no word may still hold the not-yet-written mark); a failed check redoes the block")
            for st in range(5):
                if st == 0:
                    a(f"s_waitcnt vmcnt({4 + 5*(REQ[tag][rt] - rt - 1)})")
                    for r2 in range(REQ[tag][rt], REQ[tag][rt+1]): oload(r2)
                else: a(f"s_waitcnt vmcnt({4 - st + 5*(REQ[tag][rt+1] - rt - 1)})")
                f = b + 4 * st
                chk = [f"v_max3_u32 v15, v{f}, v{f+1}, v{f+2}" if st == 0 else f"v_max3_u32 v15, v{f}, v{f+1}, v15",
                       f"v_max_u32 v15, v{f+3}, v15" if st == 0 else f"v_max3_u32 v15, v{f+2}, v{f+3}, v15"]
                if st == 4: chk += ["v_cmp_eq_u32 vcc, -1, v15"]
                for ct in range(5):
                    d = vr(EA[rt] + 4 * ct, 4)
                    a(f"v_mfma_f32_16x16x32_bf16 {d}, {vr(WO+(st*5+ct)*4,4)}, {vr(f,4)}, {'0' if st == 0 else d}")
                    if ct < len(chk): a(chk[ct])
                    if w and st >= 1 and ct == 3: a(w[st - 1])
                    if w and st == 4 and ct == 4: a(w[4])
            a(f"""
            s_cmp_eq_u64 vcc, 0
            s_cbranch_scc1 L_GO{tag}{rt}
            s_cmp_eq_u32 s60, 0
            s_cbranch_scc1 L_GO{tag}{rt}
            s_sub_u32 s60, s60, 1
            s_waitcnt vmcnt(0) lgkmcnt(0)
            s_sleep {optv("slp", 4)}
            """)
            for r2 in range(rt, REQ[tag][rt]): oload(r2)
            a(f"s_branch L_CH{tag}{rt}\nL_GO{tag}{rt}:")
            if opt("probeE"): stamp(a, [1, 2, 3, 5][rt])
    def retries():
        if PROF and not opt("iters"): a(f"s_waitcnt lgkmcnt(0)\ns_sub_u32 s84, {SPIN}, s60\ns_mul_i32 s84, s84, 100\ns_add_u32 s84, s84, s76")
    a("s_cmp_eq_u32 s13, 0\ns_cbranch_scc1 L_ELEAD")
    a.c("every wave of this workgroup is past its last K/V read at this barrier: LDS can be reused")
    if not opt("asym"): a("s_barrier")
    if not opt("noack"): a("s_waitcnt vmcnt(0)")
    elif optv("dly", 0): a(f"s_sleep {optv('dly', 0)}")
    stamp(a, 8)
    for rt in range(REQ["B"][0]): oload(rt)
    if opt("asym"): a("s_barrier")
    if opt("probeE"): stamp(a, 6)
    if PROF: a("s_waitcnt lgkmcnt(0)")
    egemm("B", optv("bar", 3))
    stamp(a, 10); retries()
    a("s_waitcnt lgkmcnt(0)\ns_nop 6" if opt("probeE") else "s_waitcnt lgkmcnt(5)\ns_nop 6")
    for x in ewrites(3): a(x)
    a("s_waitcnt lgkmcnt(0)\ns_barrier\ns_branch L_FIN")
    a("L_ELEAD:")
    if not opt("asym") and not opt("leadfirst"): a("s_barrier")
    a("s_waitcnt vmcnt(0)")
    stamp(a, 8)
    for rt in range(REQ["A"][0]): oload(rt)
    if opt("probeE"): stamp(a, 6)
    if PROF: a("s_waitcnt lgkmcnt(0)")
    if opt("asym"):
        egemm("A", wr=False)
        stamp(a, 9); retries()
        a("s_barrier\ns_setprio 2\ns_waitcnt lgkmcnt(0)\ns_nop 4")
        for rt in range(4):
            for x in ewrites(rt): a(x)
            if rt == 1: a("s_waitcnt lgkmcnt(4)")
    else:
        if opt("leadfirst"): a("s_barrier")
        a(f"s_setprio {optv('ep', 0)}")
        egemm("A")
        stamp(a, 9); retries()
        a("s_waitcnt lgkmcnt(0)\ns_nop 6" if opt("probeE") else "s_waitcnt lgkmcnt(5)\ns_nop 6")
        for x in ewrites(3): a(x)
    a("s_waitcnt lgkmcnt(0)\ns_barrier")
    R = 56
    def rsum(src0, keep):
        for src in range(4):
            for c in range(5):
                a(f"ds_read_b128 {vr(R+src*20+4*c,4)}, v12 offset:{(src0+src)*5120+c*1024}")
            if src == 1: a("s_waitcnt lgkmcnt(4)")
        a("s_waitcnt lgkmcnt(10)")
        for i in range(20): a(f"v_add_f32 v{R+i}, v{R+i}, v{R+20+i}")
        if keep:
            for i in range(20): a(f"v_add_f32 v{R+i}, v{R+i}, v{16+i}")
        a("s_waitcnt lgkmcnt(0)")
        for i in range(20): a(f"v_add_f32 v{R+40+i}, v{R+40+i}, v{R+60+i}")
        for i in range(20): a(f"v_add_f32 v{16+i}, v{R+i}, v{R+40+i}")
    rsum(0, False)
    a("s_barrier")
    stamp(a, 10, True)
    rsum(4, True)
    for i in range(10): a(f"v_cvt_pk_bf16_f32 v{40+i}, v{16+2*i}, v{16+2*i+1}")
    a("""
    buffer_store_dwordx4 v[40:43], v13, s[72:75], s22 offen
    buffer_store_dwordx4 v[44:47], v13, s[72:75], s22 offen offset:64
    buffer_store_dwordx2 v[48:49], v7, s[72:75], s22 offen offset:128
    """)
    a.c("workgroup 0 advances the epoch: every workgroup has read it by now")
    a(f"""
    s_or_b32 s21, s2, s6
    s_cmp_eq_u32 s21, 0
    s_cbranch_scc0 L_FIN
    s_mov_b32 s21, {FL_EPOCH}
    s_mov_b64 exec, 1
    buffer_store_dword v2, v3, s[28:31], s21 offen sc1
    L_FIN:
    """)
    if PROF: a("s_waitcnt vmcnt(0)")
    stamp(a, 11)
    a("L_FIN2:")
    stamp_flush(a)
    a("s_endpgm")
    a("L_BAD:")
    a.c("second (and last) pass: exact row max over all keys, then the same loop again")
    a(f"""
    s_cmp_eq_u32 s42, 0
    s_cbranch_scc1 L_OK
    s_mov_b32 s42, 0
    s_mov_b32 s40, 0xffff0000
    s_mov_b32 s43, 64
    v_subrev_u32 v{AK1}, {KV_BYTES}, v{AK1}
    v_subrev_u32 v{AK2}, {KV_BYTES}, v{AK2}
    v_subrev_u32 v{AV}, {KV_BYTES}, v{AV}
    v_mov_b32 v{T2}, v{AK1}
    v_mov_b32 v{T3}, v{AK2}
    """)
    for j in range(2):
        a(f"v_mov_b32 v{Q2[j]+1}, 0\nv_mov_b32 v{M[j]}, 0xff800000")
    for i in range(32): a(f"v_mov_b32 v{O[0]+i}, 0")
    for i in range(16): a(f"v_mov_b32 v{S[3]+i}, 0")
    a("L_MAXL:")
    a(f"ds_read_b128 {vr(KF1[0],4)}, v{T2}\nds_read_b32 v{KF2[0]}, v{T3} offset:1024")
    a(f"v_add_u32 v{T2}, 2560, v{T2}\nv_add_u32 v{T3}, 2560, v{T3}\ns_waitcnt lgkmcnt(0)")
    for j in range(2): a(qk1(j, 0)); a(qk2(j, 0))
    a("s_nop 11")
    for j in range(2):
        for i in range(8):
            a(f"v_max3_f32 v{M[j]}, v{S[j]+2*i}, v{S[j]+2*i+1}, v{M[j]}")
    a("s_sub_u32 s43, s43, 1\ns_cmp_lg_u32 s43, 0\ns_cbranch_scc1 L_MAXL")
    for x in rdK(0, 0) + rdK(1, 2560) + rdV(1, 0): a(x)
    a.c("-m split exactly into three bf16 pieces that ride in the spare k-slots")
    for j in range(2):
        a(f"""
        v_mov_b32 v{T2}, v{M[j]}
        s_nop 1
        v_permlane32_swap_b32 v{M[j]}, v{T2}
        s_nop 1
        v_min_f32 v{M[j]}, -v{M[j]}, -v{T2}
        v_and_b32 v{T2}, s40, v{M[j]}
        v_sub_f32 v{T3}, v{M[j]}, v{T2}
        v_lshrrev_b32 v{T2}, 16, v{T2}
        v_and_or_b32 v{T2}, v{T3}, s40, v{T2}
        v_and_b32 v{M[j]}, s40, v{T3}
        v_sub_f32 v{T3}, v{T3}, v{M[j]}
        v_and_b32 v{T3}, s40, v{T3}
        v_cndmask_b32 v{Q2[j]+1}, v{T2}, v{T3}, s[38:39]
        """)
    a("s_waitcnt lgkmcnt(0)\ns_nop 0")
    a(qk1(0, 0)); a(qk2(0, 0))
    a("s_mov_b32 s44, 8\ns_setprio 1\ns_nop 9\ns_branch L_LOOP")
    a("L_END:\ns_endpgm")
    return f""".p2align 6
.amdhsa_kernel {N}
  .amdhsa_next_free_vgpr 256
  .amdhsa_next_free_sgpr 102
  .amdhsa_accum_offset 256
  .amdhsa_group_segment_fixed_size 0
  .amdhsa_kernarg_size 112
  .amdhsa_user_sgpr_count 2
  .amdhsa_user_sgpr_kernarg_segment_ptr 1
  .amdhsa_system_sgpr_workgroup_id_x 1
.end_amdhsa_kernel
"""

def main():
    ref = open(f"cdna_kernels/{NAME}.s.ref").read().split("\n")
    head = [l for l in ref if l.startswith(";") and "@launch" not in l]
    a = Asm()
    kd = gen(a)
    out = "\n".join(head) + "\n"
    out += "; @launch grid=(256,1,1) block=(512,1,1) lds=163840\n"
    out += '.amdgcn_target "amdgcn-amd-amdhsa--gfx950"\n.text\n'
    t = a.text()
    if opt("outsc1"): t = "\n".join(l + " sc1" if "buffer_store" in l and "s[72:75]" in l else l for l in t.split("\n"))
    if opt("outnt"): t = "\n".join(l + " nt" if "buffer_store" in l and "s[72:75]" in l else l for l in t.split("\n"))
    if opt("plainonly"): t = "\n".join(l.replace(" sc1", "") if "buffer_store" in l and "s26" in l else l for l in t.split("\n"))
    out += t
    out += '.section .rodata,"a"\n' + kd
    path = ARGS[0] if ARGS and not ARGS[0].startswith("--") else f"cdna_kernels/{NAME}.s"
    open(path, "w").write(out)
main()
```

```python
import math, struct, sys

NAME = "gated_mix__grouped_kv_mqa__grouped_kv_mqa__prompt"
ARGS = sys.argv[1:]
def opt(n): return ("--" + n) in ARGS
def optv(n, d):
    for x in ARGS:
        if x.startswith("--" + n + "="): return int(x.split("=")[1])
    return d

KV_BYTES = 163840
WS_KV   = 0
WS_G    = 2 * KV_BYTES
WS_O    = WS_G + 16384
O_BYTES = 128 * 40 * 1024
WS_WO   = WS_O + O_BYTES
WO_BYTES = 8 * 5 * 40 * 1024
WS_FL   = WS_WO + WO_BYTES
FL_EPOCH = WS_FL
FL_KV   = WS_FL + 256
FL_W    = FL_KV + 8192
WS_END  = FL_W + 4096

def f32bits(x):
    return struct.unpack("<I", struct.pack("<f", x))[0]
QSCALE = f32bits((20 ** -0.5) * math.log2(math.e))
LOG2E = f32bits(math.log2(math.e))

class Asm:
    def __init__(self): self.l = []
    def __call__(self, s):
        for line in s.split("\n"):
            line = line.strip()
            if line: self.l.append(("" if line.endswith(":") else "  ") + line)
    def c(self, s): self.l.append("  ; " + s)
    def text(self): return "\n".join(self.l) + "\n"

def vr(b, n=1): return f"v{b}" if n == 1 else f"v[{b}:{b+n-1}]"

def srd(a, d, lo, hi, nbytes):
    a(f"s_mov_b32 s{d}, s{lo}\ns_mov_b32 s{d+1}, s{hi}\ns_mov_b32 s{d+2}, {nbytes}\ns_mov_b32 s{d+3}, 0x00020000")
def srd_sel(a, d, lo0, lo1, nbytes):
    a(f"s_cselect_b32 s{d}, s{lo0}, s{lo1}\ns_cselect_b32 s{d+1}, s{lo0+1}, s{lo1+1}\ns_mov_b32 s{d+2}, {nbytes}\ns_mov_b32 s{d+3}, 0x00020000")

PROF = opt("prof")
PROF_BASE = 16 << 20
NST = 12
def stamp(a, i, wait=False):
    if PROF and not (opt("iters") and i >= 7):
        a(f"s_memrealtime s[{76+2*i}:{77+2*i}]")
        if wait: a("s_waitcnt lgkmcnt(0)")
def stamp_flush(a):
    if not PROF: return
    a("s_waitcnt lgkmcnt(0)\ns_mov_b64 exec, 1")
    a(f"s_lshl_b32 s62, s2, 3\ns_add_u32 s62, s62, s6\ns_lshl_b32 s62, s62, 6\ns_add_u32 s62, s62, {PROF_BASE}")
    a("s_mov_b32 s30, 0x2000000\nv_mov_b32 v0, 0")
    for i in range(NST):
        a(f"v_mov_b32 v2, s{76+2*i}\nbuffer_store_dword v2, v0, s[28:31], s62 offen offset:{4*i}\ns_nop 1")

SPIN = 200000
def poll(a, lbl, addr_v, soff, width, tmp, mask=None, preloaded=True, sleep=1):
    ld = {1: "dword", 2: "dwordx2", 4: "dwordx4"}[width]
    a(f"s_mov_b32 s60, {SPIN}")
    if mask is not None: a(f"s_mov_b64 exec, {mask}")
    if preloaded: a(f"s_branch {lbl}_chk")
    a(f"{lbl}_ld:")
    a(f"buffer_load_{ld} {vr(tmp,width)}, v{addr_v}, s[28:31], {soff} offen sc1")
    a(f"{lbl}_chk:\ns_waitcnt vmcnt(0)")
    a(f"v_cmp_ne_u32 vcc, s34, v{tmp}")
    for i in range(1, width):
        a(f"v_cmp_ne_u32 s[58:59], s34, v{tmp+i}\ns_or_b64 vcc, vcc, s[58:59]")
    a(f"s_sub_u32 s60, s60, 1\ns_cbranch_scc1 {lbl}_ok")
    a(f"s_cmp_eq_u64 vcc, 0\ns_cbranch_scc1 {lbl}_ok\ns_sleep {sleep}\ns_branch {lbl}_ld\n{lbl}_ok:")
    if mask is not None: a("s_mov_b64 exec, -1")

def flag_store(a, soff, vtmp, vzero):
    a(f"v_mov_b32 v{vtmp}, s34\ns_mov_b64 exec, 1\nbuffer_store_dword v{vtmp}, v{vzero}, s[28:31], {soff} offen sc1\ns_mov_b64 exec, -1")
def mk_tag(a):
    a("s_mul_i32 s34, s34, 0x9e3779b1\ns_add_u32 s34, s34, 0x7f4a7c15")

def gen(a):
    N = NAME + "_kernel"
    STG = 26624; XB = 16384
    L_WK = 0; L_WV = 25600; L_G = 51200; RING = 57344
    L_X16 = RING + 3 * STG
    L_QX = 143360
    SLOT = {"A": RING, "B": RING + STG, "C": RING + 2 * STG, "D": RING + 3 * STG, "F": 30720}
    SMAP = ["A", "B", "C", "A", "D", "F", "B", "C", "A", "F"]
    NCH0 = 25
    Q1 = [4, 12]; Q2 = [8, 16]
    IDX, G = 10, 11
    T2, T3 = 20, 21
    M = [22, 23]
    KF1 = [24, 32]; KF2 = [28, 36]
    OA, IMG, T0, T1 = 30, 31, 38, 39
    VF = [40, 48]
    O = [56, 72]
    S = [88, 104, 120, 136]
    AK1, AK2, AV, AQ1, AQ2 = 88, 89, 90, 91, 92
    WO = 152; PT = 252

    def att_init():
        a.c("attention constants and accumulators; s12 = rt32, s13 = hp, s26 + v30 = O address")
        a(f"""
        s_and_b32 s15, s6, 3
        s_lshl_b32 s13, s4, 2
        s_add_u32 s12, s15, s13
        s_lshr_b32 s13, s6, 2
        s_mul_i32 s15, s15, 5120
        s_mul_i32 s14, s13, 2560
        s_add_u32 s15, s15, s14
        s_add_u32 s15, s15, {L_QX}
        v_and_b32 v{T0}, 31, v0
        v_lshrrev_b32 v{T1}, 5, v0
        v_lshlrev_b32 v{AK2}, 3, v{T0}
        v_lshl_add_u32 v{AK2}, v{T1}, 2, v{AK2}
        v_add_u32 v{AQ1}, s15, v3
        v_add_u32 v{AQ2}, s15, v{AK2}
        v_mul_u32_u24 v{AV}, 20, v{T1}
        v_add_lshl_u32 v{AV}, v{AV}, v{T0}, 4
        s_mul_i32 s26, s12, 81920
        s_lshl_b32 s14, s13, 1
        s_add_u32 s14, s14, s3
        s_lshl_b32 s14, s14, 3
        s_add_u32 s14, s14, s5
        s_mul_i32 s14, s14, 1280
        s_add_u32 s26, s26, s14
        s_add_u32 s26, s26, {WS_O}
        v_lshrrev_b32 v{OA}, 4, v{T0}
        v_mul_u32_u24 v{OA}, 40960, v{OA}
        v_lshl_add_u32 v{OA}, v{T1}, 8, v{OA}
        v_and_b32 v{AK1}, 15, v0
        v_lshl_add_u32 v{OA}, v{AK1}, 4, v{OA}
        s_mul_i32 s14, s3, {KV_BYTES}
        v_add_u32 v{IMG}, s14, v3
        s_lshl_b32 s14, s3, 6
        s_add_u32 s14, s14, s12
        s_lshl_b32 s14, s14, 7
        s_add_u32 s14, s14, {WS_G}
        """)
        for b in range(2):
            a(f"v_mov_b32 v{KF2[b]+1}, 0x3f803f80")
            for i in range(8): a(f"v_mov_b32 v{VF[b]+i}, 0")
        a("s_mov_b32 exec_lo, 0x01100000\ns_mov_b32 exec_hi, 0x01100000")
        for b in range(2):
            for i in range(8): a(f"v_mov_b32 v{VF[b]+i}, 0x3f803f80")
        a("s_mov_b64 exec, -1")
        for i in range(32): a(f"v_mov_b32 v{O[0]+i}, 0")
        for i in range(16): a(f"v_mov_b32 v{S[3]+i}, 0")

    a(f".globl {N}\n.p2align 8\n.type {N},@function\n{N}:")
    a("s_cmp_ge_u32 s2, 256\ns_cbranch_scc1 L_END")
    a("""
    s_load_dwordx8 s[8:15], s[0:1], 0
    s_load_dwordx8 s[16:23], s[0:1], 48
    s_load_dwordx2 s[24:25], s[0:1], 104
    s_load_dwordx4 s[64:67], s[0:1], 80
    s_load_dwordx2 s[68:69], s[0:1], 32
    """)
    if not opt("nocpf"):
        a.c("bring this kernel's own code into L2 ahead of the instruction fetch: 2 KB per workgroup, 16 workgroups of an XCD round cover it")
        a(f"""
        s_getpc_b64 s[56:57]
        L_PCREF:
        s_lshl_b32 s58, s2, 8
        s_and_b32 s58, s58, 0x7800
        v_lshl_add_u32 v94, v0, 2, s58
        v_min_u32 v94, L_END-L_PCREF, v94
        v_mov_b32 v95, s57
        v_add_co_u32 v94, vcc, s56, v94
        s_nop 1
        v_addc_co_u32 v95, vcc, 0, v95, vcc
        global_load_dword v93, v[94:95], off
        """)
    stamp(a, 0)
    a.c("s3 = branch, s4 = rb (128-row block), s5 = hg (head group), s6 = wave, s33 = rb&3")
    a("""
    v_lshrrev_b32 v1, 6, v0
    v_and_b32 v0, 63, v0
    s_and_b32 s3, s2, 1
    v_readfirstlane_b32 s6, v1
    s_lshr_b32 s4, s2, 1
    s_and_b32 s4, s4, 3
    s_lshl_b32 s4, s4, 2
    s_lshr_b32 s33, s2, 3
    s_and_b32 s33, s33, 3
    s_add_u32 s4, s4, s33
    s_lshr_b32 s5, s2, 5
    v_lshlrev_b32 v3, 4, v0
    v_lshrrev_b32 v5, 3, v0
    v_and_b32 v6, 7, v0
    v_xor_b32 v6, v6, v5
    v_lshlrev_b32 v6, 4, v6
    v_mul_u32_u24 v2, 1280, v5
    v_add_u32 v2, v2, v6
    v_mov_b32 v4, 0
    s_lshl_b32 s48, s4, 7
    s_lshl_b32 s50, s6, 10
    s_cmp_lt_u32 s6, 4
    s_cbranch_scc1 L_COMP
    """)
    a.c("Wq DMA source offsets for 3 instrs: q=64i+l, p=q/10, c=q%10, src row = swap bits 2,3 of p")
    for i in range(3):
        a(f"""
        v_add_u32 v5, {64*i}, v0
        v_mul_u32_u24 v6, 6554, v5
        v_lshrrev_b32 v6, 16, v6
        v_mul_u32_u24 v7, 10, v6
        v_sub_u32 v7, v5, v7
        v_and_b32 v5, 0x13, v6
        v_and_b32 v8, 4, v6
        v_lshl_or_b32 v5, v8, 1, v5
        v_and_b32 v8, 8, v6
        v_lshrrev_b32 v8, 1, v8
        v_or_b32 v5, v5, v8
        v_mul_u32_u24 v5, 1280, v5
        v_lshl_add_u32 v{10+i}, v7, 4, v5
        """)
    a.c("s33 = k-chunk rotation (0,3,5,8): workgroups sharing Wq columns start at different k")
    a(f"""
    s_sub_u32 s7, s6, 4
    s_lshl_b32 s49, s7, 5
    s_add_u32 s48, s48, s49
    s_mul_i32 s48, s48, 1280
    s_mul_i32 s49, s5, 160
    s_mul_i32 s54, s7, {16*1280}
    s_add_u32 s49, s49, s54
    s_lshl_b32 s54, s7, 12
    s_mul_i32 s51, s7, 2560
    s_add_u32 s51, s51, {XB}
    s_mul_i32 s33, s33, 5
    s_add_u32 s33, s33, 1
    s_lshr_b32 s33, s33, 1
    s_lshl_b32 s50, s7, 10
    s_waitcnt lgkmcnt(0)
    s_cmp_eq_u32 s3, 0
    """)
    srd_sel(a, 72, 10, 16, 640 * 1280)
    srd_sel(a, 40, 12, 18, 25600)
    srd_sel(a, 44, 14, 20, 25600)
    Q_ = []
    def kchunk(s):
        return f"s_add_u32 s55, s33, {s}\ns_cmp_ge_u32 s55, 10\ns_cselect_b32 s56, 10, 0\ns_sub_u32 s55, s55, s56\n"
    def items_x(s):
        r = []
        for i in range(4):
            t = (kchunk(s) + "s_lshl_b32 s55, s55, 7\ns_add_u32 s55, s55, s48\n") if i == 0 else ""
            t += f"s_add_u32 m0, s54, {SLOT[SMAP[s]] + 1024*i}\ns_add_u32 s56, s55, {i*8*1280}\nbuffer_load_dwordx4 v2, s[36:39], s56 offen lds"
            r.append((f"X{s}", t))
        return r
    def items_w(s):
        r = []
        for i in range(3):
            t = (kchunk(s) + f"s_mul_i32 s55, s55, {64*1280}\ns_add_u32 s55, s55, s49\n") if i == 0 else ""
            t += f"s_add_u32 m0, s51, {SLOT[SMAP[s]] + 1024*i}\n" + ("s_mov_b32 exec_hi, 0\n" if i == 2 else "s_nop 0\n")
            t += f"buffer_load_dwordx4 v{10+i}, s[72:75], s55 offen lds" + ("\ns_mov_b32 exec_hi, -1" if i == 2 else "")
            r.append((f"W{s}", t))
        return r
    def items_small():
        r = []
        for j in range(6):
            r.append(("SM", f"s_add_u32 m0, s50, {L_WK + 4096*j}\ns_add_u32 s53, s50, {4096*j}\nbuffer_load_dwordx4 v3, s[40:43], s53 offen lds"))
            r.append(("SM", f"s_add_u32 m0, s50, {L_WV + 4096*j}\ns_nop 0\nbuffer_load_dwordx4 v3, s[44:47], s53 offen lds"))
        r.append(("SM", f"s_lshl_b32 s53, s7, 8\ns_add_u32 s53, s53, {24*1024}\ns_mov_b64 exec, 0xffff\ns_add_u32 m0, s53, {L_WK}\ns_nop 0\nbuffer_load_dwordx4 v3, s[40:43], s53 offen lds"))
        r.append(("SM", f"s_add_u32 m0, s53, {L_WV}\ns_nop 0\nbuffer_load_dwordx4 v3, s[44:47], s53 offen lds\ns_mov_b64 exec, -1"))
        return r
    def emit(items):
        for n, t in items:
            a(t); Q_.append(n)
    def younger(name):
        i = max(k for k, n in enumerate(Q_) if n == name)
        return len(Q_) - 1 - i
    lb_ = [0]
    def lbar(name):
        i = lb_[0]; lb_[0] += 1
        if opt("probeB"): stamp(a, 1 + i)
        a(f"s_waitcnt vmcnt({younger(name)})\ns_barrier")
    emit(items_w(0))
    srd(a, 36, 8, 9, 2048 * 1280)
    srd(a, 28, 24, 25, WS_END)
    emit(items_w(1) + items_w(2))
    a(f"s_mov_b32 s53, {FL_EPOCH}\nbuffer_load_dword v9, v4, s[28:31], s53 offen sc1")
    a("s_branch L_LOADER2\nL_COMP:")
    a(f"""
    s_lshl_b32 s49, s5, 4
    s_add_u32 s49, s48, s49
    s_mul_i32 s49, s49, 1280
    s_lshr_b32 s51, s6, 1
    s_lshl_b32 s51, s51, 7
    s_and_b32 s52, s6, 1
    s_mul_i32 s53, s52, {8*1280}
    s_add_u32 s51, s51, s53
    s_add_u32 s51, s51, s49
    s_lshr_b32 s54, s2, 3
    s_lshl_b32 s54, s54, 10
    s_waitcnt lgkmcnt(0)
    """)
    srd(a, 36, 8, 9, 2048 * 1280)
    a.c("lines no other CU of this XCD is asking for yet: x16 pieces w+4j, one KB of wk / wv (L2 warm-up), gate")
    for j in range(5):
        a(f"s_add_u32 m0, s50, {L_X16 + 4096*j}\ns_add_u32 s53, s51, {256*j}\nbuffer_load_dwordx4 v2, s[36:39], s53 offen lds")
        if j == 0:
            srd(a, 28, 24, 25, WS_END)
            a(f"""
            s_cmp_ge_u32 s6, 2
            s_cbranch_scc1 L_LA2
            s_cmp_eq_u32 s6, 0
            s_cselect_b32 s12, s12, s14
            s_cselect_b32 s13, s13, s15
            s_cselect_b32 s18, s18, s20
            s_cselect_b32 s19, s19, s21
            s_cmp_eq_u32 s3, 0
            """)
            srd_sel(a, 40, 12, 18, 25600)
            a(f"""
            buffer_load_dwordx4 v[96:99], v3, s[40:43], s54 offen
            s_branch L_LA3
            L_LA2:
            """)
            srd(a, 40, 64, 65, 1280)
            a(f"""
            s_lshl_b32 s53, s52, 10
            s_add_u32 m0, s53, {L_G}
            s_nop 0
            buffer_load_dwordx4 v3, s[40:43], s53 offen lds
            L_LA3:
            """)
    a(f"s_mov_b32 s53, {FL_EPOCH}\nbuffer_load_dword v9, v4, s[28:31], s53 offen sc1")
    att_init()
    FR = 152; ACC = 208; KVF = 100
    KVR = [100, 112, 124, 152, 164]
    BASES = [SLOT["F"], SLOT["B"], SLOT["D"]]
    AXR = [248, 250, 252]; AWR = [254, 255, 1]
    def base_of(slot):
        o = SLOT[slot]
        i = max(k for k in range(3) if BASES[k] <= o)
        return i, o - BASES[i]
    a.c("K/V fragment addresses (wave: 0 K d0-15, 1 K and V d16-19, 2 V d0-15, 3 gate)")
    a(f"""
    v_and_b32 v5, 15, v0
    v_lshrrev_b32 v6, 4, v0
    v_and_b32 v7, 7, v0
    v_xor_b32 v7, v7, v6
    v_lshlrev_b32 v7, 4, v7
    v_lshl_add_u32 v10, v5, 7, v7
    v_add_u32 v14, {L_X16}, v10
    v_xor_b32 v15, 64, v14
    v_bfe_u32 v7, v0, 2, 2
    v_lshl_add_u32 v7, v6, 3, v7
    v_mul_u32_u24 v18, 40, v7
    s_lshl_b32 s7, s6, 12
    v_add_u32 v11, s7, v10
    v_lshrrev_b32 v7, 1, v6
    v_lshlrev_b32 v7, 4, v7
    v_and_b32 v8, 1, v6
    v_lshl_add_u32 v7, v8, 2, v7
    v_bfe_u32 v8, v0, 2, 2
    v_add_u32 v7, v7, v8
    v_mul_u32_u24 v7, 160, v7
    v_and_b32 v8, 3, v0
    v_mul_u32_u24 v8, 40, v8
    v_add_u32 v7, v7, v8
    """)
    for k in range(3):
        a(f"v_add_u32 v{AXR[k]}, {BASES[k]}, v11\nv_xor_b32 v{AXR[k]+1}, 64, v{AXR[k]}\nv_add_u32 v{AWR[k]}, {BASES[k] + XB}, v7")
    a.c("store addresses: K -> v12 + s58, V -> v13 + s59, gate -> v12 + s58")
    a(f"""
    s_lshl_b32 s58, s4, 2
    s_lshr_b32 s59, s5, 1
    s_add_u32 s58, s58, s59
    s_mul_i32 s58, s58, 2560
    s_mul_i32 s59, s3, {KV_BYTES}
    s_add_u32 s58, s58, s59
    s_and_b32 s60, s5, 1
    s_mul_i32 s59, s60, 640
    s_add_u32 s59, s59, s58
    s_add_u32 s59, s59, 1280
    v_lshrrev_b32 v7, 1, v6
    v_and_b32 v8, 1, v6
    v_mul_u32_u24 v13, 320, v7
    v_lshl_add_u32 v13, v5, 4, v13
    v_lshl_add_u32 v13, v8, 3, v13
    v_lshlrev_b32 v12, 9, v7
    v_lshl_add_u32 v12, v5, 4, v12
    v_lshl_add_u32 v12, v8, 3, v12
    v_and_b32 v7, 3, v0
    s_mov_b32 s27, {QSCALE}
    s_cmp_eq_u32 s6, 1
    s_cbranch_scc1 L_AD1
    s_cmp_eq_u32 s6, 3
    s_cbranch_scc1 L_AD3
    s_lshl_b32 s60, s60, 8
    s_add_u32 s58, s58, s60
    s_mul_i32 s60, s6, {L_WV // 2}
    v_lshl_add_u32 v18, v7, 3, v18
    v_add_u32 v18, s60, v18
    s_branch L_AD4
    L_AD1:
    s_lshl_b32 s60, s60, 7
    s_add_u32 s58, s58, s60
    s_add_u32 s58, s58, 1024
    s_add_u32 s59, s59, {12*16}
    v_lshlrev_b32 v12, 3, v5
    v_and_b32 v7, 1, v0
    v_mul_u32_u24 v7, {L_WV}, v7
    v_add3_u32 v18, v18, v7, 32
    s_branch L_AD4
    L_AD3:
    s_lshl_b32 s58, s3, 11
    s_add_u32 s58, s58, s48
    s_lshl_b32 s60, s5, 4
    s_add_u32 s58, s58, s60
    s_lshl_b32 s58, s58, 2
    s_add_u32 s58, s58, {WS_G}
    v_lshlrev_b32 v12, 2, v5
    s_lshl_b32 s27, s3, 31
    s_xor_b32 s27, s27, {LOG2E | 0x80000000}
    v_lshlrev_b32 v18, 4, v6
    v_add_u32 v18, {L_G}, v18
    L_AD4:
    """)
    def kv_loop(kind):
        per = 2 if kind == "G" else 3
        nb = 4; ring = 5
        def rd(k):
            f = KVR[k % ring]
            r = [f"ds_read_b128 {vr(f,4)}, v{14 + (k & 1)} offset:{(k >> 1) * 2048}"]
            if kind == "G": r.append(f"ds_read_b128 {vr(f+4,4)}, v18 offset:{64*k}")
            else:
                for hf in range(2):
                    r.append(f"ds_read_b64_tr_b16 {vr(f+4+2*hf,2)}, v18 offset:{(32*k + 4*hf)*40}")
            return r
        def mm(k):
            f = KVR[k % ring]; r = []
            c1 = "0" if k == 0 else "v[20:23]"; c2 = "0" if k == 0 else "v[24:27]"
            if kind in "KHG": r.append(f"v_mfma_f32_16x16x32_bf16 v[20:23], {vr(f+4,4)}, {vr(f,4)}, {c1}")
            if kind in "VH": r.append(f"v_mfma_f32_16x16x32_bf16 v[24:27], {vr(f,4)}, {vr(f+4,4)}, {c2}")
            return r
        for k in range(nb):
            for x in rd(k): a(x)
        for k in range(20):
            ahead = min(k + nb, 20) - (k + 1)
            a(f"s_waitcnt lgkmcnt({ahead * per})")
            for x in mm(k): a(x)
            if k + nb < 20:
                for x in rd(k + nb): a(x)
    def reads(s, ks):
        bi, base = base_of(SMAP[s])
        ax = AXR[bi] + ks; aw = AWR[bi]; f = FR + 28 * ks
        r = [f"ds_read_b128 {vr(f+4*rt,4)}, v{ax} offset:{base + rt*2048}" for rt in range(2)]
        for ct in range(5):
            for hf in range(2):
                r.append(f"ds_read_b64_tr_b16 {vr(f+8+4*ct+2*hf,2)}, v{aw} offset:{base + (32*ks + 8*hf)*160 + 8*ct}")
        return r
    def mf(ks, ct, first=False):
        f = FR + 28 * ks
        return [f"v_mfma_f32_16x16x32_bf16 {vr(ACC+(rt*5+ct)*4,4)}, {vr(f+8+4*ct,4)}, {vr(f+4*rt,4)}, {'0' if first else vr(ACC+(rt*5+ct)*4,4)}" for rt in range(2)]
    def stage(s):
        r0 = reads(s, 0); r1 = reads(s, 1)
        if s == 0:
            for x in r0: a(x)
        else:
            k = 0
            for ct in range(5):
                n = [4, 3, 3, 2, 0][ct]
                for x in r0[k:k+n]: a(x)
                k += n
                for x in mf(1, ct): a(x)
        issued1 = 0
        plan = [4, 4, 3, 1, 0]
        for ct in range(5):
            a(f"s_waitcnt lgkmcnt({(12 - (4 + 2*ct)) + issued1})")
            for x in mf(0, ct, s == 0): a(x)
            for x in r1[issued1:issued1 + plan[ct]]: a(x)
            issued1 += plan[ct]
        a("s_waitcnt lgkmcnt(0)")
    PUB = optv("pub", 5)
    nb_ = [0]
    def cbar():
        i = nb_[0]; nb_[0] += 1
        if i == PUB: a("s_waitcnt vmcnt(0)")
        a("s_barrier")
        if opt("probeB"):
            stamp(a, 1 + i, True)
            if i == 10: a("s_branch L_FIN2")
        if i == PUB:
            a.c("publish this workgroup's K/V slice (wave 0, one lane)")
            a(f"""
            s_cmp_eq_u32 s6, 0
            s_cbranch_scc0 L_NOPUB
            s_bfe_u32 s56, s2, 0x50001
            s_lshl_b32 s56, s56, 7
            s_lshl_b32 s57, s3, 12
            s_add_u32 s56, s56, s57
            s_lshr_b32 s57, s2, 6
            s_lshl_b32 s57, s57, 2
            s_add_u32 s56, s56, s57
            s_add_u32 s56, s56, {FL_KV}
            """)
            flag_store(a, "s56", 7, 4)
            a("L_NOPUB:")
    cbar()
    if not opt("probeB"): stamp(a, 1, True)
    stage(0)
    a("s_waitcnt vmcnt(0)")
    cbar()
    a("v_readfirstlane_b32 s34, v9")
    a("s_cmp_eq_u32 s6, 1\ns_cbranch_scc1 L_KV_H\ns_cmp_eq_u32 s6, 2\ns_cbranch_scc1 L_KV_V\ns_cmp_eq_u32 s6, 3\ns_cbranch_scc1 L_KV_G")
    kst = """
    v_mul_f32 v20, s27, v20
    v_mul_f32 v21, s27, v21
    v_mul_f32 v22, s27, v22
    v_mul_f32 v23, s27, v23
    v_cvt_pk_bf16_f32 v16, v20, v21
    v_cvt_pk_bf16_f32 v17, v22, v23
    """
    kv_loop("K")
    a.c("the softmax scale rides on K")
    a("s_nop 7" + kst + "buffer_store_dwordx2 v[16:17], v12, s[28:31], s58 offen sc1\ns_branch L_KV_E\nL_KV_H:")
    kv_loop("H")
    a("s_nop 6" + kst + """
    v_cvt_pk_bf16_f32 v18, v24, v25
    v_cvt_pk_bf16_f32 v19, v26, v27
    s_mov_b64 exec, 0xffff
    buffer_store_dwordx2 v[16:17], v12, s[28:31], s58 offen sc1
    s_mov_b32 exec_lo, 0x00f000f0
    s_mov_b32 exec_hi, 0x00f000f0
    buffer_store_dwordx2 v[18:19], v13, s[28:31], s59 offen sc1
    s_mov_b64 exec, -1
    s_branch L_KV_E
    L_KV_G:
    """)
    kv_loop("G")
    a("""
    s_nop 7
    v_mul_f32 v20, s27, v20
    v_exp_f32 v20, v20
    s_nop 0
    v_add_f32 v20, 1.0, v20
    v_rcp_f32 v20, v20
    s_mov_b64 exec, 0xffff
    buffer_store_dword v20, v12, s[28:31], s58 offen sc1
    s_mov_b64 exec, -1
    s_branch L_KV_E
    L_KV_V:
    """)
    kv_loop("V")
    a("""
    s_nop 7
    v_cvt_pk_bf16_f32 v18, v24, v25
    v_cvt_pk_bf16_f32 v19, v26, v27
    buffer_store_dwordx2 v[18:19], v13, s[28:31], s59 offen sc1
    L_KV_E:
    """)
    mk_tag(a)
    a(f"""
    s_mul_i32 s7, s6, 5120
    s_add_u32 s7, s7, {L_QX}
    v_mul_u32_u24 v12, 1280, v6
    v_add_u32 v12, s7, v12
    v_lshl_add_u32 v13, v5, 3, v12
    v_lshl_add_u32 v12, v5, 4, v12
    """)
    if not opt("probeB"): stamp(a, 2, True)
    for s in range(1, 10):
        cbar(); stage(s)
    for rt in range(2):
        for ct in range(5): a(mf(1, ct)[rt])
    stamp(a, 3)
    a.c("Q epilogue: pack, write fragments to LDS [w][head rg][1280]")
    a("s_nop 2")
    for rt in range(2):
        P = 100 + 12 * rt
        for i in range(10): a(f"v_cvt_pk_bf16_f32 v{P+i}, v{ACC+rt*20+2*i}, v{ACC+rt*20+2*i+1}")
        a(f"ds_write_b128 v12, {vr(P,4)} offset:{rt*256}")
        a(f"ds_write_b128 v12, {vr(P+4,4)} offset:{512+rt*256}")
        a(f"ds_write_b64 v13, {vr(P+8,2)} offset:{1024+rt*128}")
    a("s_branch L_ATT")

    a("L_LOADER2:")
    att_init()
    RL = 152; RA = RL + 64; RS = RA + 12
    a.c("wo re-layout job (wave 5): cb = wg&7, head pair wg>>3, piece u = l/10, octet = l%10 (50 lanes); rows (u<4) 20(u>>1)+4(u&1)+{0..3,8..11}, (u=4) 16+{0..3,20..23}")
    for i in [2, 3, 12, 13]: a(f"v_mov_b32 v{RA+i}, 0")
    a("s_cmp_eq_u32 s6, 5\ns_cbranch_scc0 L_NORL")
    t = RL + 32
    U = RA + 11
    a(f"""
    s_lshr_b32 s56, s2, 3
    s_and_b32 s35, s56, 7
    s_lshl_b32 s35, s35, 1
    s_lshr_b32 s57, s2, 7
    s_add_u32 s35, s35, s57
    s_mul_i32 s35, s35, {40*1280}
    s_mul_i32 s56, s56, 5
    s_and_b32 s57, s2, 7
    s_mul_i32 s32, s57, 160
    s_add_u32 s32, s32, s35
    v_mul_u32_u24 v{U}, 6554, v0
    v_lshrrev_b32 v{U}, 16, v{U}
    v_mul_u32_u24 v{RA}, 10, v{U}
    v_sub_u32 v{RA}, v0, v{RA}
    v_lshrrev_b32 v{t}, 1, v{U}
    v_mul_u32_u24 v{t}, 20, v{t}
    v_and_b32 v{t+1}, 1, v{U}
    v_lshl_add_u32 v{t}, v{t+1}, 2, v{t}
    v_cmp_eq_u32 vcc, 4, v{U}
    v_mov_b32 v{t+1}, 8
    s_nop 0
    v_cndmask_b32 v{t}, v{t}, 16, vcc
    v_cndmask_b32 v{t+1}, v{t+1}, 20, vcc
    v_add_u32 v{t+1}, v{t}, v{t+1}
    v_mul_u32_u24 v{t}, 1280, v{t}
    v_mul_u32_u24 v{t+1}, 1280, v{t+1}
    v_lshl_add_u32 v{RS}, v{RA}, 4, v{t}
    v_lshl_add_u32 v{RS+1}, v{RA}, 4, v{t+1}
    """)
    a.c("destination of the two 4-column chunks: octet o<8: ct = 2(o>>2)+z, rg = o&3 ; o>=8: ct = 4, rg = 2(o&1)+z")
    a(f"""
    v_cmp_lt_u32 vcc, 7, v{RA}
    v_lshrrev_b32 v{t}, 2, v{RA}
    v_mul_u32_u24 v{t}, 81920, v{t}
    v_lshl_add_u32 v{t}, v{U}, 8, v{t}
    v_and_b32 v{t+1}, 3, v{RA}
    v_lshlrev_b32 v{t+2}, 1, v{t+1}
    v_cndmask_b32 v{t+1}, v{t+1}, v{t+2}, vcc
    v_lshl_add_u32 v{RA+2}, v{t+1}, 6, v{t}
    v_mov_b32 v{t+1}, 40960
    v_cndmask_b32 v{t+1}, v{t+1}, 64, vcc
    v_add_u32 v{RA+3}, v{RA+2}, v{t+1}
    """)
    a(f"""
    s_mul_i32 s35, s57, {5*40960}
    s_lshl_b32 s56, s56, 8
    s_add_u32 s35, s35, s56
    s_add_u32 s35, s35, {WS_WO}
    L_NORL:
    v_lshlrev_b32 v13, 7, v{T0}
    s_lshl_b32 s57, s3, 12
    s_add_u32 s57, s57, {FL_KV}
    """)
    sm = items_small()
    NSA = optv("nsa", 6)
    emit(items_x(0) + sm[:NSA])
    if not opt("probeB"): stamp(a, 1)
    lbar("X0")
    a("v_readfirstlane_b32 s34, v9")
    emit(sm[NSA:] + items_x(1))
    mk_tag(a)
    lbar("SM")
    emit(items_x(2) + items_w(3) + items_x(3))
    if not opt("probeB"): stamp(a, 2)
    rest = []
    for s in range(4, 10): rest += items_w(s) + items_x(s)
    PER = optv("per", 6)
    for r in range(2, 9):
        lbar(f"X{r-1}")
        n = PER if r < 8 else len(rest)
        chunk = rest[:n]; rest = rest[n:]
        for nme, _ in chunk:
            s = int(nme[1:]); prev = [p for p in range(s) if SMAP[p] == SMAP[s]]
            if prev: assert r >= (prev[-1] + 2 if prev[-1] > 0 else 1), (nme, r)
        emit(chunk)
    a.c("wave 4: one look at the K/V flags; if complete, fetch the first tiles of the image early")
    def img(r): a(f"s_mov_b32 m0, {1024*r}\ns_mov_b32 s20, {1024*r}\nbuffer_load_dwordx4 v{IMG}, s[28:31], s20 offen sc1 lds")
    a(f"""
    s_cmp_eq_u32 s6, 4
    s_cbranch_scc0 L_N4
    s_mov_b32 exec_hi, 0
    buffer_load_dwordx4 v[16:19], v13, s[28:31], s57 offen sc1
    s_waitcnt vmcnt({younger("X8") + 1})
    s_barrier
    s_waitcnt vmcnt(0)
    v_cmp_ne_u32 vcc, s34, v16
    v_cmp_ne_u32 s[58:59], s34, v17
    s_or_b64 vcc, vcc, s[58:59]
    v_cmp_ne_u32 s[58:59], s34, v18
    s_or_b64 vcc, vcc, s[58:59]
    v_cmp_ne_u32 s[58:59], s34, v19
    s_or_b64 vcc, vcc, s[58:59]
    s_mov_b32 exec_hi, -1
    s_cmp_eq_u64 vcc, 0
    s_cbranch_scc1 L_EARLY
    s_barrier
    s_mov_b32 s20, -1
    s_mov_b32 s21, 0
    """)
    if opt("probeB"): a("s_branch L_FIN2")
    stamp(a, 3)
    poll(a, "L_PKV", 13, "s57", 4, 16, mask="s[20:21]", preloaded=False)
    stamp(a, 4)
    NE = optv("ne", 6)
    for r in range(NE): img(r)
    a("s_branch L_LATE\nL_EARLY:")
    for r in range(NE): img(r)
    a("s_barrier")
    if opt("probeB"): a("s_branch L_FIN2")
    stamp(a, 3); stamp(a, 4)
    a("L_LATE:")
    NX = optv("nx", 0)
    for r in list(range(NE, NCH0)) + list(range(56, 56 + NX)): img(r)
    a(f"s_waitcnt vmcnt({NCH0 + NX - 5})\ns_branch L_ATT\nL_N4:")
    lbar("X8")
    lbar("X9")
    if opt("probeB"): a("s_branch L_FIN2")
    stamp(a, 3)

    pAK1, pAK2, pAV = AK1, AK2, AV
    AK1, AK2, AV = 3, 2, 1
    def rdK(b, off):
        return [f"ds_read_b128 {vr(KF1[b],4)}, v{AK1} offset:{off}", f"ds_read_b32 v{KF2[b]}, v{AK2} offset:{off+1024}"]
    def rdV(b, off):
        return ["s_mov_b64 exec, s[36:37]",
                f"ds_read_b128 {vr(VF[b],4)}, v{AV} offset:{off+1280}", f"ds_read_b128 {vr(VF[b]+4,4)}, v{AV} offset:{off+1920}",
                "s_mov_b64 exec, -1"]
    def qk1(u, kb): return f"v_mfma_f32_32x32x16_bf16 {vr(S[u%4],16)}, {vr(KF1[kb],4)}, {vr(Q1[u%2],4)}, 0"
    def qk2(u, kb): return f"v_mfma_f32_32x32x8_bf16 {vr(S[u%4],16)}, {vr(KF2[kb],2)}, {vr(Q2[u%2],2)}, {vr(S[u%4],16)}"
    def pv(u, vb, i): return f"v_smfmac_f32_32x32x32_bf16 {vr(O[u%2],16)}, {vr(VF[vb]+4*i,4)}, {vr(S[u%4]+8*i,8)}, v{IDX}"
    a("L_ATT:")
    a(f"""
    v_mov_b32 v{AK2}, v{pAK2}
    v_mov_b32 v{AV}, v{pAV}
    v_mov_b32 v{IDX}, 0xdddddddd
    v_mov_b32 v{Q2[0]+1}, 0
    v_mov_b32 v{Q2[1]+1}, 0
    v_lshlrev_b32 v{T2}, 2, v{T0}
    s_mov_b32 s36, 0x000fffff
    s_mov_b32 s37, 0x000fffff
    s_mov_b32 s38, 0
    s_mov_b32 s39, -1
    s_mov_b32 s42, 1
    s_mov_b32 s44, 8
    s_waitcnt lgkmcnt(0)
    s_barrier
    ds_read_b128 {vr(Q1[0],4)}, v{AQ1}
    ds_read_b32 v{Q2[0]}, v{AQ2} offset:1024
    ds_read_b128 {vr(Q1[1],4)}, v{AQ1} offset:1280
    ds_read_b32 v{Q2[1]}, v{AQ2} offset:2304
    """)
    for x in rdK(0, 0) + rdK(1, 2560) + rdV(1, 0): a(x)
    a(f"buffer_load_dword v{G}, v{T2}, s[28:31], s14 offen sc1")
    stamp(a, 5, True)
    a.c("stand-in for the row max: the max over the first 32 keys")
    a("s_waitcnt lgkmcnt(4)")
    a(f"v_mfma_f32_32x32x16_bf16 {vr(S[2],16)}, {vr(KF1[0],4)}, {vr(Q1[0],4)}, 0")
    a(f"v_mfma_f32_32x32x16_bf16 {vr(S[1],16)}, {vr(KF1[0],4)}, {vr(Q1[1],4)}, 0")
    a("s_cmp_eq_u32 s6, 4\ns_cbranch_scc0 L_BQ2\ns_waitcnt vmcnt(" + str(NX + 1) + ")\nL_BQ2:\ns_barrier\ns_nop 6")
    a(f"v_mfma_f32_32x32x8_bf16 {vr(S[0],16)}, {vr(KF2[0],2)}, {vr(Q2[0],2)}, {vr(S[2],16)}")
    a(f"v_mfma_f32_32x32x8_bf16 {vr(S[1],16)}, {vr(KF2[0],2)}, {vr(Q2[1],2)}, {vr(S[1],16)}")
    a("s_nop 10")
    for j in range(2):
        a(f"v_max3_f32 v{M[j]}, v{S[j]}, v{S[j]+1}, v{S[j]+2}\nv_max3_f32 v{T2+j}, v{S[j]+3}, v{S[j]+4}, v{S[j]+5}")
        for i in range(6, 16, 4):
            a(f"v_max3_f32 v{M[j]}, v{S[j]+i}, v{S[j]+i+1}, v{M[j]}")
            if i + 2 < 16: a(f"v_max3_f32 v{T2+j}, v{S[j]+i+2}, v{S[j]+i+3}, v{T2+j}")
        a(f"v_max_f32 v{M[j]}, v{M[j]}, v{T2+j}\nv_mov_b32 v{T2+j}, v{M[j]}")
        if j == 0: a("s_nop 1")
        else: a(f"v_mfma_f32_32x32x8_bf16 {vr(S[0],16)}, {vr(KF2[0],2)}, {vr(Q2[0],2)}, {vr(S[2],16)}\ns_nop 0")
        a(f"""
        v_permlane32_swap_b32 v{M[j]}, v{T2+j}
        s_nop 0
        v_min_f32 v{M[j]}, -v{M[j]}, -v{T2+j}
        v_lshrrev_b32 v{M[j]}, 16, v{M[j]}
        v_cndmask_b32 v{Q2[j]+1}, v{M[j]}, 0, s[38:39]
        """)
    a(f"""
    s_cmp_eq_u32 s13, 0
    s_cbranch_scc0 L_LAG0
    s_setprio 2
    s_waitcnt lgkmcnt(0)
    s_nop 2
    s_branch L_PR
    L_LAG0:
    """)
    a.c("waves 4-7: rest of the K/V image, side jobs, then S1 (waves 0-3 meet it after their first 8 tiles)")
    def rl_loads():
        a("s_bitcmp0_b32 s2, 6")
        srd_sel(a, 72, 68, 22, 640 * 1280)
        a("s_mov_b32 exec_hi, 0x3ffff")
        for e in range(8):
            a(f"buffer_load_dwordx4 {vr(RL+4*e,4)}, v{RS+e//4}, s[72:75], s32 offen offset:{(e%4)*1280}")
    def rl_stores():
        a("s_mov_b32 s56, 0x05040100\ns_mov_b32 s57, 0x07060302\ns_mov_b32 exec_hi, 0x3ffff")
        a.c("wo re-layout: 8x8 16-bit transposition in registers")
        for c in range(8):
            for r in range(4):
                a(f"v_perm_b32 v{RL+32+4*c+r}, v{RL+4*(2*r+1)+c//2}, v{RL+4*(2*r)+c//2}, {'s56' if c % 2 == 0 else 's57'}")
            a(f"buffer_store_dwordx4 {vr(RL+32+4*c,4)}, v{RA+2+c//4}, s[28:31], s35 offen offset:{(c%4)*16} sc1")
    RLE = False
    if RLE:
        a("s_cmp_eq_u32 s6, 5\ns_cbranch_scc0 L_NRL")
        rl_loads()
        a("s_mov_b32 exec_hi, -1\nL_NRL:")
    quads = [k for k in range(24, 160, 4) if not (56 <= k < 56 + NX)]
    for k in quads:
        a(f"s_add_u32 m0, s50, {1024*k}\ns_add_u32 s20, s50, {1024*k}\nbuffer_load_dwordx4 v{IMG}, s[28:31], s20 offen sc1 lds")
    a("s_cmp_eq_u32 s6, 5\ns_cbranch_scc0 L_POIS")
    if RLE:
        a(f"s_waitcnt vmcnt({len(quads)})")
        rl_stores()
    else: rl_loads()
    a("s_branch L_S1\nL_POIS:")
    a.c("waves 4,6,7: mark this workgroup's share of the O hand-off buffer as not yet written (rt16 = 8rb + i, slice 8*branch+hg); one KB column each")
    a(f"""
    s_mul_i32 s55, s4, {8*40960}
    s_lshl_b32 s56, s3, 3
    s_add_u32 s56, s56, s5
    s_mul_i32 s56, s56, 2560
    s_add_u32 s55, s55, s56
    s_add_u32 s55, s55, {WS_O}
    s_sub_u32 s56, s6, 5
    s_max_i32 s56, s56, 0
    s_lshl_b32 s56, s56, 10
    s_add_u32 s55, s55, s56
    v_mov_b32 v{PT}, -1
    v_mov_b32 v{PT+1}, -1
    v_mov_b32 v{PT+2}, -1
    v_mov_b32 v{PT+3}, -1
    s_cmp_eq_u32 s6, 7
    s_cselect_b32 exec_hi, 0, -1
    """)
    for i in range(8):
        a(f"buffer_store_dwordx4 {vr(PT,4)}, v{AK1}, s[28:31], s55 offen sc1\ns_add_u32 s55, s55, 40960")
    a("""
    L_S1:
    s_mov_b32 exec_hi, -1
    s_waitcnt vmcnt(8) lgkmcnt(0)
    s_barrier
    s_setprio 3
    L_PR:
    """)
    stamp(a, 6)
    if opt("cyc"): a("s_memtime s[80:81]")
    if opt("iters"): a("s_memtime s[94:95]\ns_waitcnt lgkmcnt(0)")
    a(".p2align 6\nL_LOOP:")
    for t in range(8):
        for j in range(2):
            u = 2 * t + j
            b = (t + j) % 2
            ex = [f"v_exp_f32 v{S[u%4]+i}, v{S[u%4]+i}" for i in range(16)]
            extra = [[], [], [], []]
            if j == 1:
                a("s_waitcnt lgkmcnt(0)")
                extra[0] = rdK(t % 2, (t + 2) * 2560)
                extra[1] = rdV(t % 2, (t + 1) * 2560)
            ms = [qk1(u + 1, b), qk2(u + 1, b), pv(u - 1, b, 0), pv(u - 1, b, 1)]
            for g in range(4):
                a(ms[g])
                for x in ex[4 * g:4 * g + 2]: a(x)
                for x in extra[g]: a(x)
                for x in ex[4 * g + 2:4 * g + 4]: a(x)
            if t == optv("nlt", 3) and j == 1 and optv("nlh", 0):
                a(f"s_cmp_eq_u32 s43, {16 + optv('nlh', 0) + 1}\ns_cbranch_scc0 L_PH\ns_setprio 1\nL_PH:")
    a(f"v_add_u32 v{AK1}, 20480, v{AK1}\nv_add_u32 v{AK2}, 20480, v{AK2}\nv_add_u32 v{AV}, 20480, v{AV}")
    a(f"""
    s_lshl_b32 s43, s13, 4
    s_add_u32 s43, s43, s44
    s_cmp_eq_u32 s43, {16 + optv("nl", 3)}
    s_cbranch_scc0 L_P1
    s_setprio 1
    L_P1:
    s_cmp_eq_u32 s42, 0
    s_cbranch_scc1 L_NEXT
    s_cmp_eq_u32 s44, 8
    s_cbranch_scc0 L_E0
    s_cmp_eq_u32 s13, 0
    s_cbranch_scc0 L_RL2
    s_barrier
    s_branch L_NEXT
    L_RL2:
    """)
    if not RLE:
        a("s_cmp_eq_u32 s6, 5\ns_cbranch_scc0 L_NEXT\ns_waitcnt vmcnt(0)")
        rl_stores()
        a("s_mov_b32 exec_hi, -1")
    a(f"""
    s_branch L_NEXT
    L_E0:
    s_cmp_eq_u32 s43, {16 + 6}
    s_cbranch_scc0 L_E1
    s_lshl_b32 s56, s2, 2
    s_add_u32 s56, s56, s6
    s_lshl_b32 s56, s56, 2
    s_add_u32 s56, s56, {FL_W - 16}
    v_mov_b32 v{T3}, 0
    s_waitcnt vmcnt(0)
    """)
    flag_store(a, "s56", T2, T3)
    a.c("flags to see: lanes 0-31 the workgroups that re-lay this tile's Wo columns, lanes 32-63 the row group")
    a(f"""
    s_branch L_NEXT
    L_E1:
    s_cmp_eq_u32 s44, 4
    s_cbranch_scc0 L_E2
    v_lshl_add_u32 v{T2}, v{T0}, 3, s5
    v_and_b32 v{T3}, 14, v0
    v_lshlrev_b32 v{T3}, 4, v{T3}
    v_and_or_b32 v{T3}, v0, 1, v{T3}
    s_and_b32 s57, s2, 0x1e
    v_or_b32 v{T3}, s57, v{T3}
    v_cndmask_b32 v{T2}, v{T2}, v{T3}, s[38:39]
    v_lshlrev_b32 v{T2}, 4, v{T2}
    s_mov_b32 s57, {FL_W}
    buffer_load_dwordx4 {vr(PT,4)}, v{T2}, s[28:31], s57 offen sc1
    s_branch L_NEXT
    L_E2:
    s_cmp_eq_u32 s44, 3
    s_cbranch_scc0 L_NEXT
    """)
    poll(a, "L_PW", T2, "s57", 4, PT, sleep=8)
    if opt("touch"):
        a.c("touch this tile's lines of the output (address translation and L2 are warm when the final stores come)")
        srd(a, 72, 66, 67, 2048 * 1280)
        a(f"""
        s_lshl_b32 s56, s4, 1
        s_add_u32 s56, s56, s3
        s_mul_i32 s56, s56, {64*1280}
        s_mul_i32 s57, s5, 160
        s_add_u32 s56, s56, s57
        s_and_b32 s57, s6, 3
        s_mul_i32 s57, s57, 52
        s_add_u32 s56, s56, s57
        v_mul_u32_u24 v{T2}, 1280, v0
        buffer_load_dword v{PT}, v{T2}, s[72:75], s56 offen
        """)
    a.c("prefetch this wave's Wo fragments: [cb=hg][ct][f32 = 5w+st]")
    a(f"""
    s_mul_i32 s56, s5, {5*40960}
    s_mul_i32 s57, s6, 5120
    s_add_u32 s56, s56, s57
    s_add_u32 s56, s56, {WS_WO}
    v_lshlrev_b32 v{T2}, 4, v0
    v_add_u32 v{T3}, 4096, v{T2}
    """)
    for ct in range(5):
        for st in range(5):
            av = T2 if st < 4 else T3
            a(f"buffer_load_dwordx4 {vr(WO+(st*5+ct)*4,4)}, v{av}, s[28:31], s56 offen offset:{(st%4)*1024} sc1")
        if ct < 4: a("s_add_u32 s56, s56, 40960")
    a("L_NEXT:")
    if opt("iters"):
        for k in range(1, 9): a(f"s_mov_b32 s{76+2*k}, s{76+2*(k+1)}")
        a("s_memtime s[94:95]\ns_waitcnt lgkmcnt(0)")
    a("s_sub_u32 s44, s44, 1\ns_cmp_lg_u32 s44, 0\ns_cbranch_scc1 L_LOOP")
    stamp(a, 7)
    if opt("cyc"): a("s_memtime s[82:83]")
    a(pv(15, 0, 0)); a(pv(15, 0, 1))
    a.c("phase E addresses: tile rows 64*(2rb+branch).., columns 80*hg.. ; wave = K eighth; row tiles in an order rotated by hg")
    a(f"""
    s_setprio 3
    s_mov_b32 s46, {f32bits(2.0**-40)}
    s_mov_b32 s47, {f32bits(2.0**40)}
    s_mov_b32 s23, -2
    s_lshl_b32 s16, s4, 1
    s_add_u32 s16, s16, s3
    s_mul_i32 s21, s16, {4*40960}
    s_mul_i32 s40, s6, 5120
    s_add_u32 s21, s21, s40
    s_add_u32 s21, s21, {WS_O}
    """)
    for i in range(4):
        a(f"s_add_u32 s22, s5, {i}\ns_and_b32 s22, s22, 3\ns_mul_i32 s22, s22, 40960\ns_add_u32 s{17+i}, s21, s22\ns_add_u32 s{8+i}, s22, s40")
    a("s_waitcnt vmcnt(0) lgkmcnt(0)")
    a.c("run-time safety check of the stand-in max: row sums must lie in [2^-40, 2^40], else redo with the true max")
    a(f"""
    v_cndmask_b32 v{M[0]}, v{O[0]+12}, v{O[0]+8}, s[38:39]
    v_cndmask_b32 v{M[1]}, v{O[1]+12}, v{O[1]+8}, s[38:39]
    v_cmp_le_f32 s[48:49], s46, v{M[0]}
    v_cmp_ge_f32 s[50:51], s47, v{M[0]}
    v_cmp_le_f32 s[52:53], s46, v{M[1]}
    v_cmp_ge_f32 s[54:55], s47, v{M[1]}
    v_rcp_f32 v{M[0]}, v{M[0]}
    v_rcp_f32 v{M[1]}, v{M[1]}
    s_and_b64 s[48:49], s[48:49], s[50:51]
    s_and_b64 s[52:53], s[52:53], s[54:55]
    s_and_b64 s[48:49], s[48:49], s[52:53]
    s_cmp_eq_u64 s[48:49], -1
    s_cbranch_scc0 L_BAD
    L_OK:
    v_mul_f32 v{M[0]}, v{M[0]}, v{G}
    v_mul_f32 v{M[1]}, v{M[1]}, v{G}
    """)
    P = S[3]
    for j in range(2):
        for i in range(12): a(f"v_mul_f32 v{O[j]+i}, v{O[j]+i}, v{M[j]}")
        for i in range(4): a(f"v_cvt_pk_bf16_f32 v{P+4*j+i}, v{O[j]+2*i}, v{O[j]+2*i+1}")
        for i in range(2): a(f"v_cvt_pk_bf16_f32 v{P+8+2*j+i}, v{O[j]+8+2*i}, v{O[j]+8+2*i+1}")
        for i in range(4): a(f"v_min_u32 v{P+4*j+i}, s23, v{P+4*j+i}")
        a(f"buffer_store_dwordx4 {vr(P+4*j,4)}, v{OA}, s[28:31], s26 offen offset:{512*j} sc1")
    for i in range(4): a(f"v_min_u32 v{P+8+i}, s23, v{P+8+i}")
    a(f"""
    s_mov_b32 exec_hi, 0
    buffer_store_dwordx4 {vr(P+8,4)}, v{OA}, s[28:31], s26 offen offset:1024 sc1
    """)
    if opt("dup"):
        a(f"buffer_store_dwordx4 {vr(P+8,4)}, v{OA}, s[28:31], s26 offen offset:1024\ns_mov_b32 exec_hi, -1")
        for j in range(2): a(f"buffer_store_dwordx4 {vr(P+4*j,4)}, v{OA}, s[28:31], s26 offen offset:{512*j}")
    a("s_mov_b32 exec_hi, -1\ns_setprio 0")
    OF = 16
    EA = [96, 116, 16, 36]
    srd(a, 72, 66, 67, 2048 * 1280)
    a.c("partial sums change lanes on their way through LDS: writer (n, rg) -> slot 4n + (rg ^ ((n>>1)&3)); reader lane = 4*row + rg")
    a.c("out address (waves 0-3): row = 64*(2rb+branch) + 16w + (l>>2) ; columns 8rg.., 32+8rg.., 64+4rg..")
    a(f"""
    v_mov_b32 v2, s34
    v_mov_b32 v3, 0
    v_lshlrev_b32 v5, 4, v0
    v_add_u32 v6, 4096, v5
    v_and_b32 v13, 15, v0
    v_lshrrev_b32 v14, 4, v0
    v_bfe_u32 v12, v0, 1, 2
    v_xor_b32 v14, v14, v12
    v_lshl_add_u32 v14, v13, 2, v14
    v_lshlrev_b32 v14, 4, v14
    v_add_u32 v8, s8, v14
    v_add_u32 v9, s9, v14
    v_add_u32 v10, s10, v14
    v_add_u32 v11, s11, v14
    v_bfe_u32 v12, v0, 3, 2
    v_xor_b32 v12, v12, v0
    s_mul_i32 s22, s6, 40960
    v_lshl_add_u32 v12, v12, 4, s22
    s_lshl_b32 s22, s16, 6
    s_lshl_b32 s21, s6, 4
    s_add_u32 s22, s22, s21
    s_mul_i32 s22, s22, 1280
    s_mul_i32 s21, s5, 160
    s_add_u32 s22, s22, s21
    v_lshrrev_b32 v13, 2, v0
    v_mul_u32_u24 v13, 1280, v13
    v_and_b32 v14, 3, v0
    v_lshl_add_u32 v7, v14, 3, v13
    v_lshl_add_u32 v13, v14, 4, v13
    s_mov_b32 s60, {SPIN}
    """)
    REQ = {"A": [int(c) for c in str(optv("reqa", 12344))], "B": [int(c) for c in str(optv("reqb", 12344))]}
    def oload(rt):
        for st in range(5):
            av = 5 if st < 4 else 6
            a(f"buffer_load_dwordx4 {vr(OF+(rt*5+st)*4,4)}, v{av}, s[28:31], s{17+rt} offen offset:{(st%4)*1024} sc1")
    def ewrites(rt):
        return [f"ds_write_b128 v{8+rt}, {vr(EA[rt]+4*ct,4)} offset:{ct*1024}" for ct in range(5)]
    tail = []
    def egemm(tag, bar=-1, wr=True):
        for rt in range(4):
            if rt == bar: a("s_barrier")
            a(f"L_CH{tag}{rt}:")
            b = OF + rt * 20
            w = ewrites(rt - 1) if rt >= 1 and wr else []
            a.c("MFMAs run ahead of the hand-off check (no word may still hold the not-yet-written mark); a failed check redoes the block")
            for st in range(5):
                if st == 0:
                    a(f"s_waitcnt vmcnt({4 + 5*(REQ[tag][rt] - rt - 1)})")
                    for r2 in range(REQ[tag][rt], REQ[tag][rt+1]): oload(r2)
                else: a(f"s_waitcnt vmcnt({4 - st + 5*(REQ[tag][rt+1] - rt - 1)})")
                f = b + 4 * st
                chk = [f"v_max3_u32 v15, v{f}, v{f+1}, v{f+2}" if st == 0 else f"v_max3_u32 v15, v{f}, v{f+1}, v15",
                       f"v_max_u32 v15, v{f+3}, v15" if st == 0 else f"v_max3_u32 v15, v{f+2}, v{f+3}, v15"]
                if st == 4: chk += ["v_cmp_eq_u32 vcc, -1, v15"]
                for ct in range(5):
                    d = vr(EA[rt] + 4 * ct, 4)
                    a(f"v_mfma_f32_16x16x32_bf16 {d}, {vr(WO+(st*5+ct)*4,4)}, {vr(f,4)}, {'0' if st == 0 else d}")
                    if ct < len(chk): a(chk[ct])
                    if w and st >= 1 and ct == 3: a(w[st - 1])
                    if w and st == 4 and ct == 4: a(w[4])
            a(f"s_cbranch_vccnz L_RE{tag}{rt}\nL_GO{tag}{rt}:")
            tail.append((tag, rt))
            if opt("probeE"): stamp(a, [1, 2, 3, 5][rt])
    def retries():
        if PROF and not opt("iters"): a(f"s_waitcnt lgkmcnt(0)\ns_sub_u32 s84, {SPIN}, s60\ns_mul_i32 s84, s84, 100\ns_add_u32 s84, s84, s76")
    a("s_cmp_eq_u32 s13, 0\ns_cbranch_scc1 L_ELEAD")
    a.c("every wave of this workgroup is past its last K/V read at this barrier: LDS can be reused")
    if not opt("asym"): a("s_barrier")
    if not opt("noack"): a("s_waitcnt vmcnt(0)")
    elif optv("dly", 0): a(f"s_sleep {optv('dly', 0)}")
    stamp(a, 8)
    for rt in range(REQ["B"][0]): oload(rt)
    if opt("asym"): a("s_barrier")
    if opt("probeE"): stamp(a, 6)
    if PROF: a("s_waitcnt lgkmcnt(0)")
    egemm("B", optv("bar", 3))
    stamp(a, 10); retries()
    a("s_waitcnt lgkmcnt(0)\ns_nop 6" if opt("probeE") else "s_waitcnt lgkmcnt(5)\ns_nop 6")
    for x in ewrites(3): a(x)
    a("s_waitcnt lgkmcnt(0)\ns_barrier\ns_branch L_FIN")
    a("L_ELEAD:")
    if not opt("asym") and not opt("leadfirst"): a("s_barrier")
    a("s_waitcnt vmcnt(0)")
    stamp(a, 8)
    for rt in range(REQ["A"][0]): oload(rt)
    if opt("probeE"): stamp(a, 6)
    if PROF: a("s_waitcnt lgkmcnt(0)")
    if opt("asym"):
        egemm("A", wr=False)
        stamp(a, 9); retries()
        a("s_barrier\ns_setprio 2\ns_waitcnt lgkmcnt(0)\ns_nop 4")
        for rt in range(4):
            for x in ewrites(rt): a(x)
            if rt == 1: a("s_waitcnt lgkmcnt(4)")
    else:
        if opt("leadfirst"): a("s_barrier")
        a(f"s_setprio {optv('ep', 0)}")
        egemm("A")
        stamp(a, 9); retries()
        a("s_waitcnt lgkmcnt(0)\ns_nop 6" if opt("probeE") else "s_waitcnt lgkmcnt(5)\ns_nop 6")
        for x in ewrites(3): a(x)
    a("s_waitcnt lgkmcnt(0)\ns_barrier")
    R = 56
    def rsum(src0, keep):
        for src in range(4):
            for c in range(5):
                a(f"ds_read_b128 {vr(R+src*20+4*c,4)}, v12 offset:{(src0+src)*5120+c*1024}")
            if src == 1: a("s_waitcnt lgkmcnt(4)")
        a("s_waitcnt lgkmcnt(10)")
        for i in range(20): a(f"v_add_f32 v{R+i}, v{R+i}, v{R+20+i}")
        if keep:
            for i in range(20): a(f"v_add_f32 v{R+i}, v{R+i}, v{16+i}")
        a("s_waitcnt lgkmcnt(0)")
        for i in range(20): a(f"v_add_f32 v{R+40+i}, v{R+40+i}, v{R+60+i}")
        for i in range(20): a(f"v_add_f32 v{16+i}, v{R+i}, v{R+40+i}")
    rsum(0, False)
    a("s_barrier")
    stamp(a, 10, True)
    rsum(4, True)
    for i in range(10): a(f"v_cvt_pk_bf16_f32 v{40+i}, v{16+2*i}, v{16+2*i+1}")
    a("""
    buffer_store_dwordx4 v[40:43], v13, s[72:75], s22 offen
    buffer_store_dwordx4 v[44:47], v13, s[72:75], s22 offen offset:64
    buffer_store_dwordx2 v[48:49], v7, s[72:75], s22 offen offset:128
    """)
    a.c("workgroup 0 advances the epoch: every workgroup has read it by now")
    a(f"""
    s_or_b32 s21, s2, s6
    s_cmp_eq_u32 s21, 0
    s_cbranch_scc0 L_FIN
    s_mov_b32 s21, {FL_EPOCH}
    s_mov_b64 exec, 1
    buffer_store_dword v2, v3, s[28:31], s21 offen sc1
    L_FIN:
    """)
    if PROF: a("s_waitcnt vmcnt(0)")
    stamp(a, 11)
    a("L_FIN2:")
    stamp_flush(a)
    a("s_endpgm")
    for tag, rt in tail:
        a(f"""
        L_RE{tag}{rt}:
        s_cmp_eq_u32 s60, 0
        s_cbranch_scc1 L_GO{tag}{rt}
        s_sub_u32 s60, s60, 1
        s_waitcnt vmcnt(0) lgkmcnt(0)
        s_sleep {optv("slp", 4)}
        """)
        for r2 in range(rt, REQ[tag][rt]): oload(r2)
        a(f"s_branch L_CH{tag}{rt}")
    a("L_BAD:")
    a.c("second (and last) pass: exact row max over all keys, then the same loop again")
    a(f"""
    s_cmp_eq_u32 s42, 0
    s_cbranch_scc1 L_OK
    s_mov_b32 s42, 0
    s_mov_b32 s40, 0xffff0000
    s_mov_b32 s43, 64
    v_subrev_u32 v{AK1}, {KV_BYTES}, v{AK1}
    v_subrev_u32 v{AK2}, {KV_BYTES}, v{AK2}
    v_subrev_u32 v{AV}, {KV_BYTES}, v{AV}
    v_mov_b32 v{T2}, v{AK1}
    v_mov_b32 v{T3}, v{AK2}
    """)
    for j in range(2):
        a(f"v_mov_b32 v{Q2[j]+1}, 0\nv_mov_b32 v{M[j]}, 0xff800000")
    for i in range(32): a(f"v_mov_b32 v{O[0]+i}, 0")
    for i in range(16): a(f"v_mov_b32 v{S[3]+i}, 0")
    a("L_MAXL:")
    a(f"ds_read_b128 {vr(KF1[0],4)}, v{T2}\nds_read_b32 v{KF2[0]}, v{T3} offset:1024")
    a(f"v_add_u32 v{T2}, 2560, v{T2}\nv_add_u32 v{T3}, 2560, v{T3}\ns_waitcnt lgkmcnt(0)")
    for j in range(2): a(qk1(j, 0)); a(qk2(j, 0))
    a("s_nop 11")
    for j in range(2):
        for i in range(8):
            a(f"v_max3_f32 v{M[j]}, v{S[j]+2*i}, v{S[j]+2*i+1}, v{M[j]}")
    a("s_sub_u32 s43, s43, 1\ns_cmp_lg_u32 s43, 0\ns_cbranch_scc1 L_MAXL")
    for x in rdK(0, 0) + rdK(1, 2560) + rdV(1, 0): a(x)
    a.c("-m split exactly into three bf16 pieces that ride in the spare k-slots")
    for j in range(2):
        a(f"""
        v_mov_b32 v{T2}, v{M[j]}
        s_nop 1
        v_permlane32_swap_b32 v{M[j]}, v{T2}
        s_nop 1
        v_min_f32 v{M[j]}, -v{M[j]}, -v{T2}
        v_and_b32 v{T2}, s40, v{M[j]}
        v_sub_f32 v{T3}, v{M[j]}, v{T2}
        v_lshrrev_b32 v{T2}, 16, v{T2}
        v_and_or_b32 v{T2}, v{T3}, s40, v{T2}
        v_and_b32 v{M[j]}, s40, v{T3}
        v_sub_f32 v{T3}, v{T3}, v{M[j]}
        v_and_b32 v{T3}, s40, v{T3}
        v_cndmask_b32 v{Q2[j]+1}, v{T2}, v{T3}, s[38:39]
        """)
    a("s_waitcnt lgkmcnt(0)\ns_nop 0")
    a(qk1(0, 0)); a(qk2(0, 0))
    a("s_mov_b32 s44, 8\ns_setprio 1\ns_nop 9\ns_branch L_LOOP")
    a("L_END:\ns_endpgm")
    return f""".p2align 6
.amdhsa_kernel {N}
  .amdhsa_next_free_vgpr 256
  .amdhsa_next_free_sgpr 102
  .amdhsa_accum_offset 256
  .amdhsa_group_segment_fixed_size 0
  .amdhsa_kernarg_size 112
  .amdhsa_user_sgpr_count 2
  .amdhsa_user_sgpr_kernarg_segment_ptr 1
  .amdhsa_system_sgpr_workgroup_id_x 1
.end_amdhsa_kernel
"""

def main():
    ref = open(f"cdna_kernels/{NAME}.s.ref").read().split("\n")
    head = [l for l in ref if l.startswith(";") and "@launch" not in l]
    a = Asm()
    kd = gen(a)
    out = "\n".join(head) + "\n"
    out += "; @launch grid=(256,1,1) block=(512,1,1) lds=163840\n"
    out += '.amdgcn_target "amdgcn-amd-amdhsa--gfx950"\n.text\n'
    t = a.text()
    if opt("outsc1"): t = "\n".join(l + " sc1" if "buffer_store" in l and "s[72:75]" in l else l for l in t.split("\n"))
    if opt("outnt"): t = "\n".join(l + " nt" if "buffer_store" in l and "s[72:75]" in l else l for l in t.split("\n"))
    if opt("plainonly"): t = "\n".join(l.replace(" sc1", "") if "buffer_store" in l and "s26" in l else l for l in t.split("\n"))
    out += t
    out += '.section .rodata,"a"\n' + kd
    path = ARGS[0] if ARGS and not ARGS[0].startswith("--") else f"cdna_kernels/{NAME}.s"
    open(path, "w").write(out)
main()
```

```python
import math, struct, sys

NAME = "gated_mix__grouped_kv_mqa__grouped_kv_mqa__prompt"
ARGS = sys.argv[1:]
def opt(n): return ("--" + n) in ARGS
def optv(n, d):
    for x in ARGS:
        if x.startswith("--" + n + "="): return int(x.split("=")[1])
    return d

KV_BYTES = 163840
WS_KV   = 0
WS_G    = 2 * KV_BYTES
WS_O    = WS_G + 16384
O_BYTES = 128 * 40 * 1024
WS_WO   = WS_O + O_BYTES
WO_BYTES = 8 * 5 * 40 * 1024
WS_FL   = WS_WO + WO_BYTES
FL_EPOCH = WS_FL
FL_KV   = WS_FL + 256
FL_W    = FL_KV + 8192
WS_END  = FL_W + 4096

def f32bits(x):
    return struct.unpack("<I", struct.pack("<f", x))[0]
QSCALE = f32bits((20 ** -0.5) * math.log2(math.e))
LOG2E = f32bits(math.log2(math.e))

class Asm:
    def __init__(self): self.l = []
    def __call__(self, s):
        for line in s.split("\n"):
            line = line.strip()
            if line: self.l.append(("" if line.endswith(":") else "  ") + line)
    def c(self, s): self.l.append("  ; " + s)
    def text(self): return "\n".join(self.l) + "\n"

def vr(b, n=1): return f"v{b}" if n == 1 else f"v[{b}:{b+n-1}]"

def srd(a, d, lo, hi, nbytes):
    a(f"s_mov_b32 s{d}, s{lo}\ns_mov_b32 s{d+1}, s{hi}\ns_mov_b32 s{d+2}, {nbytes}\ns_mov_b32 s{d+3}, 0x00020000")
def srd_sel(a, d, lo0, lo1, nbytes):
    a(f"s_cselect_b32 s{d}, s{lo0}, s{lo1}\ns_cselect_b32 s{d+1}, s{lo0+1}, s{lo1+1}\ns_mov_b32 s{d+2}, {nbytes}\ns_mov_b32 s{d+3}, 0x00020000")

PROF = opt("prof")
PROF_BASE = 16 << 20
NST = 12
def stamp(a, i, wait=False):
    if PROF and not (opt("iters") and i >= 7):
        a(f"s_memrealtime s[{76+2*i}:{77+2*i}]")
        if wait: a("s_waitcnt lgkmcnt(0)")
def stamp_flush(a):
    if not PROF: return
    a("s_waitcnt lgkmcnt(0)\ns_mov_b64 exec, 1")
    a(f"s_lshl_b32 s62, s2, 3\ns_add_u32 s62, s62, s6\ns_lshl_b32 s62, s62, 6\ns_add_u32 s62, s62, {PROF_BASE}")
    a("s_mov_b32 s30, 0x2000000\nv_mov_b32 v0, 0")
    for i in range(NST):
        a(f"v_mov_b32 v2, s{76+2*i}\nbuffer_store_dword v2, v0, s[28:31], s62 offen offset:{4*i}\ns_nop 1")

SPIN = 200000
def poll(a, lbl, addr_v, soff, width, tmp, mask=None, preloaded=True, sleep=1):
    ld = {1: "dword", 2: "dwordx2", 4: "dwordx4"}[width]
    a(f"s_mov_b32 s60, {SPIN}")
    if mask is not None: a(f"s_mov_b64 exec, {mask}")
    if preloaded: a(f"s_branch {lbl}_chk")
    a(f"{lbl}_ld:")
    a(f"buffer_load_{ld} {vr(tmp,width)}, v{addr_v}, s[28:31], {soff} offen sc1")
    a(f"{lbl}_chk:\ns_waitcnt vmcnt(0)")
    a(f"v_cmp_ne_u32 vcc, s34, v{tmp}")
    for i in range(1, width):
        a(f"v_cmp_ne_u32 s[58:59], s34, v{tmp+i}\ns_or_b64 vcc, vcc, s[58:59]")
    a(f"s_sub_u32 s60, s60, 1\ns_cbranch_scc1 {lbl}_ok")
    a(f"s_cmp_eq_u64 vcc, 0\ns_cbranch_scc1 {lbl}_ok\ns_sleep {sleep}\ns_branch {lbl}_ld\n{lbl}_ok:")
    if mask is not None: a("s_mov_b64 exec, -1")

def flag_store(a, soff, vtmp, vzero):
    a(f"v_mov_b32 v{vtmp}, s34\ns_mov_b64 exec, 1\nbuffer_store_dword v{vtmp}, v{vzero}, s[28:31], {soff} offen sc1\ns_mov_b64 exec, -1")
def mk_tag(a):
    a("s_mul_i32 s34, s34, 0x9e3779b1\ns_add_u32 s34, s34, 0x7f4a7c15")

def gen(a):
    N = NAME + "_kernel"
    STG = 26624; XB = 16384
    L_WK = 0; L_WV = 25600; L_G = 51200; RING = 57344
    L_X16 = RING + 3 * STG
    L_QX = 143360
    SLOT = {"A": RING, "B": RING + STG, "C": RING + 2 * STG, "D": RING + 3 * STG, "F": 30720}
    SMAP = ["A", "B", "C", "A", "D", "F", "B", "C", "A", "F"]
    NCH0 = 25
    Q1 = [4, 12]; Q2 = [8, 16]
    IDX, G = 10, 11
    T2, T3 = 20, 21
    M = [22, 23]
    KF1 = [24, 32]; KF2 = [28, 36]
    OA, IMG, T0, T1 = 30, 31, 38, 39
    VF = [40, 48]
    O = [56, 72]
    S = [88, 104, 120, 136]
    AK1, AK2, AV, AQ1, AQ2 = 88, 89, 90, 91, 92
    WO = 152; PT = 252

    def att_init():
        a.c("attention constants and accumulators; s12 = rt32, s13 = hp, s26 + v30 = O address")
        a(f"""
        s_and_b32 s15, s6, 3
        s_lshl_b32 s13, s4, 2
        s_add_u32 s12, s15, s13
        s_lshr_b32 s13, s6, 2
        s_mul_i32 s15, s15, 5120
        s_mul_i32 s14, s13, 2560
        s_add_u32 s15, s15, s14
        s_add_u32 s15, s15, {L_QX}
        v_and_b32 v{T0}, 31, v0
        v_lshrrev_b32 v{T1}, 5, v0
        v_lshlrev_b32 v{AK2}, 3, v{T0}
        v_lshl_add_u32 v{AK2}, v{T1}, 2, v{AK2}
        v_add_u32 v{AQ1}, s15, v3
        v_add_u32 v{AQ2}, s15, v{AK2}
        v_mul_u32_u24 v{AV}, 20, v{T1}
        v_add_lshl_u32 v{AV}, v{AV}, v{T0}, 4
        s_mul_i32 s26, s12, 81920
        s_lshl_b32 s14, s13, 1
        s_add_u32 s14, s14, s3
        s_lshl_b32 s14, s14, 3
        s_add_u32 s14, s14, s5
        s_mul_i32 s14, s14, 1280
        s_add_u32 s26, s26, s14
        s_add_u32 s26, s26, {WS_O}
        v_lshrrev_b32 v{OA}, 4, v{T0}
        v_mul_u32_u24 v{OA}, 40960, v{OA}
        v_lshl_add_u32 v{OA}, v{T1}, 8, v{OA}
        v_and_b32 v{AK1}, 15, v0
        v_lshl_add_u32 v{OA}, v{AK1}, 4, v{OA}
        s_mul_i32 s14, s3, {KV_BYTES}
        v_add_u32 v{IMG}, s14, v3
        s_lshl_b32 s14, s3, 6
        s_add_u32 s14, s14, s12
        s_lshl_b32 s14, s14, 7
        s_add_u32 s14, s14, {WS_G}
        """)
        for b in range(2):
            a(f"v_mov_b32 v{KF2[b]+1}, 0x3f803f80")
            for i in range(8): a(f"v_mov_b32 v{VF[b]+i}, 0")
        a("s_mov_b32 exec_lo, 0x01100000\ns_mov_b32 exec_hi, 0x01100000")
        for b in range(2):
            for i in range(8): a(f"v_mov_b32 v{VF[b]+i}, 0x3f803f80")
        a("s_mov_b64 exec, -1")
        for i in range(32): a(f"v_mov_b32 v{O[0]+i}, 0")
        for i in range(16): a(f"v_mov_b32 v{S[3]+i}, 0")

    a(f".globl {N}\n.p2align 8\n.type {N},@function\n{N}:")
    a("s_cmp_ge_u32 s2, 256\ns_cbranch_scc1 L_END")
    a("""
    s_load_dwordx8 s[8:15], s[0:1], 0
    s_load_dwordx8 s[16:23], s[0:1], 48
    s_load_dwordx2 s[24:25], s[0:1], 104
    s_load_dwordx4 s[64:67], s[0:1], 80
    s_load_dwordx2 s[68:69], s[0:1], 32
    """)
    if not opt("nocpf"):
        a.c("bring this kernel's own code into L2 ahead of the instruction fetch: 2 KB per workgroup, 16 workgroups of an XCD round cover it")
        a(f"""
        s_getpc_b64 s[56:57]
        L_PCREF:
        s_lshl_b32 s58, s2, 8
        s_and_b32 s58, s58, 0x7800
        v_lshl_add_u32 v94, v0, 2, s58
        v_min_u32 v94, L_END-L_PCREF, v94
        v_mov_b32 v95, s57
        v_add_co_u32 v94, vcc, s56, v94
        s_nop 1
        v_addc_co_u32 v95, vcc, 0, v95, vcc
        global_load_dword v93, v[94:95], off
        """)
    stamp(a, 0)
    a.c("s3 = branch, s4 = rb (128-row block), s5 = hg (head group), s6 = wave, s33 = rb&3")
    a("""
    v_lshrrev_b32 v1, 6, v0
    v_and_b32 v0, 63, v0
    s_and_b32 s3, s2, 1
    v_readfirstlane_b32 s6, v1
    s_lshr_b32 s4, s2, 1
    s_and_b32 s4, s4, 3
    s_lshl_b32 s4, s4, 2
    s_lshr_b32 s33, s2, 3
    s_and_b32 s33, s33, 3
    s_add_u32 s4, s4, s33
    s_lshr_b32 s5, s2, 5
    v_lshlrev_b32 v3, 4, v0
    v_lshrrev_b32 v5, 3, v0
    v_and_b32 v6, 7, v0
    v_xor_b32 v6, v6, v5
    v_lshlrev_b32 v6, 4, v6
    v_mul_u32_u24 v2, 1280, v5
    v_add_u32 v2, v2, v6
    v_mov_b32 v4, 0
    s_lshl_b32 s48, s4, 7
    s_lshl_b32 s50, s6, 10
    s_cmp_lt_u32 s6, 4
    s_cbranch_scc1 L_COMP
    """)
    a.c("Wq DMA source offsets for 3 instrs: q=64i+l, p=q/10, c=q%10, src row = swap bits 2,3 of p")
    for i in range(3):
        a(f"""
        v_add_u32 v5, {64*i}, v0
        v_mul_u32_u24 v6, 6554, v5
        v_lshrrev_b32 v6, 16, v6
        v_mul_u32_u24 v7, 10, v6
        v_sub_u32 v7, v5, v7
        v_and_b32 v5, 0x13, v6
        v_and_b32 v8, 4, v6
        v_lshl_or_b32 v5, v8, 1, v5
        v_and_b32 v8, 8, v6
        v_lshrrev_b32 v8, 1, v8
        v_or_b32 v5, v5, v8
        v_mul_u32_u24 v5, 1280, v5
        v_lshl_add_u32 v{10+i}, v7, 4, v5
        """)
    a.c("s33 = k-chunk rotation (0,3,5,8): workgroups sharing Wq columns start at different k")
    a(f"""
    s_sub_u32 s7, s6, 4
    s_lshl_b32 s49, s7, 5
    s_add_u32 s48, s48, s49
    s_mul_i32 s48, s48, 1280
    s_mul_i32 s49, s5, 160
    s_mul_i32 s54, s7, {16*1280}
    s_add_u32 s49, s49, s54
    s_lshl_b32 s54, s7, 12
    s_mul_i32 s51, s7, 2560
    s_add_u32 s51, s51, {XB}
    s_mul_i32 s33, s33, 5
    s_add_u32 s33, s33, 1
    s_lshr_b32 s33, s33, 1
    s_lshl_b32 s50, s7, 10
    s_waitcnt lgkmcnt(0)
    s_cmp_eq_u32 s3, 0
    """)
    srd_sel(a, 72, 10, 16, 640 * 1280)
    srd_sel(a, 40, 12, 18, 25600)
    srd_sel(a, 44, 14, 20, 25600)
    Q_ = []
    def kchunk(s):
        return f"s_add_u32 s55, s33, {s}\ns_cmp_ge_u32 s55, 10\ns_cselect_b32 s56, 10, 0\ns_sub_u32 s55, s55, s56\n"
    def items_x(s):
        r = []
        for i in range(4):
            t = (kchunk(s) + "s_lshl_b32 s55, s55, 7\ns_add_u32 s55, s55, s48\n") if i == 0 else ""
            t += f"s_add_u32 m0, s54, {SLOT[SMAP[s]] + 1024*i}\ns_add_u32 s56, s55, {i*8*1280}\nbuffer_load_dwordx4 v2, s[36:39], s56 offen lds"
            r.append((f"X{s}", t))
        return r
    def items_w(s):
        r = []
        for i in range(3):
            t = (kchunk(s) + f"s_mul_i32 s55, s55, {64*1280}\ns_add_u32 s55, s55, s49\n") if i == 0 else ""
            t += f"s_add_u32 m0, s51, {SLOT[SMAP[s]] + 1024*i}\n" + ("s_mov_b32 exec_hi, 0\n" if i == 2 else "s_nop 0\n")
            t += f"buffer_load_dwordx4 v{10+i}, s[72:75], s55 offen lds" + ("\ns_mov_b32 exec_hi, -1" if i == 2 else "")
            r.append((f"W{s}", t))
        return r
    def items_small():
        r = []
        for j in range(6):
            r.append(("SM", f"s_add_u32 m0, s50, {L_WK + 4096*j}\ns_add_u32 s53, s50, {4096*j}\nbuffer_load_dwordx4 v3, s[40:43], s53 offen lds"))
            r.append(("SM", f"s_add_u32 m0, s50, {L_WV + 4096*j}\ns_nop 0\nbuffer_load_dwordx4 v3, s[44:47], s53 offen lds"))
        r.append(("SM", f"s_lshl_b32 s53, s7, 8\ns_add_u32 s53, s53, {24*1024}\ns_mov_b64 exec, 0xffff\ns_add_u32 m0, s53, {L_WK}\ns_nop 0\nbuffer_load_dwordx4 v3, s[40:43], s53 offen lds"))
        r.append(("SM", f"s_add_u32 m0, s53, {L_WV}\ns_nop 0\nbuffer_load_dwordx4 v3, s[44:47], s53 offen lds\ns_mov_b64 exec, -1"))
        return r
    def emit(items):
        for n, t in items:
            a(t); Q_.append(n)
    def younger(name):
        i = max(k for k, n in enumerate(Q_) if n == name)
        return len(Q_) - 1 - i
    lb_ = [0]
    def lbar(name):
        i = lb_[0]; lb_[0] += 1
        if opt("probeB"): stamp(a, 1 + i)
        a(f"s_waitcnt vmcnt({younger(name)})\ns_barrier")
    emit(items_w(0))
    srd(a, 36, 8, 9, 2048 * 1280)
    srd(a, 28, 24, 25, WS_END)
    emit(items_w(1) + items_w(2))
    a(f"s_mov_b32 s53, {FL_EPOCH}\nbuffer_load_dword v9, v4, s[28:31], s53 offen sc1")
    a("s_branch L_LOADER2\nL_COMP:")
    a(f"""
    s_lshl_b32 s49, s5, 4
    s_add_u32 s49, s48, s49
    s_mul_i32 s49, s49, 1280
    s_lshr_b32 s51, s6, 1
    s_lshl_b32 s51, s51, 7
    s_and_b32 s52, s6, 1
    s_mul_i32 s53, s52, {8*1280}
    s_add_u32 s51, s51, s53
    s_add_u32 s51, s51, s49
    s_lshr_b32 s54, s2, 3
    s_lshl_b32 s54, s54, 10
    s_waitcnt lgkmcnt(0)
    """)
    srd(a, 36, 8, 9, 2048 * 1280)
    a.c("lines no other CU of this XCD is asking for yet: x16 pieces w+4j, one KB of wk / wv (L2 warm-up), gate")
    for j in range(5):
        a(f"s_add_u32 m0, s50, {L_X16 + 4096*j}\ns_add_u32 s53, s51, {256*j}\nbuffer_load_dwordx4 v2, s[36:39], s53 offen lds")
        if j == 0:
            srd(a, 28, 24, 25, WS_END)
            a(f"""
            s_cmp_ge_u32 s6, 2
            s_cbranch_scc1 L_LA2
            s_cmp_eq_u32 s6, 0
            s_cselect_b32 s12, s12, s14
            s_cselect_b32 s13, s13, s15
            s_cselect_b32 s18, s18, s20
            s_cselect_b32 s19, s19, s21
            s_cmp_eq_u32 s3, 0
            """)
            srd_sel(a, 40, 12, 18, 25600)
            a(f"""
            buffer_load_dwordx4 v[96:99], v3, s[40:43], s54 offen
            s_branch L_LA3
            L_LA2:
            """)
            srd(a, 40, 64, 65, 1280)
            a(f"""
            s_lshl_b32 s53, s52, 10
            s_add_u32 m0, s53, {L_G}
            s_nop 0
            buffer_load_dwordx4 v3, s[40:43], s53 offen lds
            L_LA3:
            """)
    a(f"s_mov_b32 s53, {FL_EPOCH}\nbuffer_load_dword v9, v4, s[28:31], s53 offen sc1")
    att_init()
    FR = 152; ACC = 208; KVF = 100
    KVR = [100, 112, 124, 152, 164]
    BASES = [SLOT["F"], SLOT["B"], SLOT["D"]]
    AXR = [248, 250, 252]; AWR = [254, 255, 1]
    def base_of(slot):
        o = SLOT[slot]
        i = max(k for k in range(3) if BASES[k] <= o)
        return i, o - BASES[i]
    a.c("K/V fragment addresses (wave: 0 K d0-15, 1 K and V d16-19, 2 V d0-15, 3 gate)")
    a(f"""
    v_and_b32 v5, 15, v0
    v_lshrrev_b32 v6, 4, v0
    v_and_b32 v7, 7, v0
    v_xor_b32 v7, v7, v6
    v_lshlrev_b32 v7, 4, v7
    v_lshl_add_u32 v10, v5, 7, v7
    v_add_u32 v14, {L_X16}, v10
    v_xor_b32 v15, 64, v14
    v_bfe_u32 v7, v0, 2, 2
    v_lshl_add_u32 v7, v6, 3, v7
    v_mul_u32_u24 v18, 40, v7
    s_lshl_b32 s7, s6, 12
    v_add_u32 v11, s7, v10
    v_lshrrev_b32 v7, 1, v6
    v_lshlrev_b32 v7, 4, v7
    v_and_b32 v8, 1, v6
    v_lshl_add_u32 v7, v8, 2, v7
    v_bfe_u32 v8, v0, 2, 2
    v_add_u32 v7, v7, v8
    v_mul_u32_u24 v7, 160, v7
    v_and_b32 v8, 3, v0
    v_mul_u32_u24 v8, 40, v8
    v_add_u32 v7, v7, v8
    """)
    for k in range(3):
        a(f"v_add_u32 v{AXR[k]}, {BASES[k]}, v11\nv_xor_b32 v{AXR[k]+1}, 64, v{AXR[k]}\nv_add_u32 v{AWR[k]}, {BASES[k] + XB}, v7")
    a.c("store addresses: K -> v12 + s58, V -> v13 + s59, gate -> v12 + s58")
    a(f"""
    s_lshl_b32 s58, s4, 2
    s_lshr_b32 s59, s5, 1
    s_add_u32 s58, s58, s59
    s_mul_i32 s58, s58, 2560
    s_mul_i32 s59, s3, {KV_BYTES}
    s_add_u32 s58, s58, s59
    s_and_b32 s60, s5, 1
    s_mul_i32 s59, s60, 640
    s_add_u32 s59, s59, s58
    s_add_u32 s59, s59, 1280
    v_lshrrev_b32 v7, 1, v6
    v_and_b32 v8, 1, v6
    v_mul_u32_u24 v13, 320, v7
    v_lshl_add_u32 v13, v5, 4, v13
    v_lshl_add_u32 v13, v8, 3, v13
    v_lshlrev_b32 v12, 9, v7
    v_lshl_add_u32 v12, v5, 4, v12
    v_lshl_add_u32 v12, v8, 3, v12
    v_and_b32 v7, 3, v0
    s_mov_b32 s27, {QSCALE}
    s_cmp_eq_u32 s6, 1
    s_cbranch_scc1 L_AD1
    s_cmp_eq_u32 s6, 3
    s_cbranch_scc1 L_AD3
    s_lshl_b32 s60, s60, 8
    s_add_u32 s58, s58, s60
    s_mul_i32 s60, s6, {L_WV // 2}
    v_lshl_add_u32 v18, v7, 3, v18
    v_add_u32 v18, s60, v18
    s_branch L_AD4
    L_AD1:
    s_lshl_b32 s60, s60, 7
    s_add_u32 s58, s58, s60
    s_add_u32 s58, s58, 1024
    s_add_u32 s59, s59, {12*16}
    v_lshlrev_b32 v12, 3, v5
    v_and_b32 v7, 1, v0
    v_mul_u32_u24 v7, {L_WV}, v7
    v_add3_u32 v18, v18, v7, 32
    s_branch L_AD4
    L_AD3:
    s_lshl_b32 s58, s3, 11
    s_add_u32 s58, s58, s48
    s_lshl_b32 s60, s5, 4
    s_add_u32 s58, s58, s60
    s_lshl_b32 s58, s58, 2
    s_add_u32 s58, s58, {WS_G}
    v_lshlrev_b32 v12, 2, v5
    s_lshl_b32 s27, s3, 31
    s_xor_b32 s27, s27, {LOG2E | 0x80000000}
    v_lshlrev_b32 v18, 4, v6
    v_add_u32 v18, {L_G}, v18
    L_AD4:
    """)
    def kv_loop(kind):
        per = 2 if kind == "G" else 3
        nb = 4; ring = 5
        def rd(k):
            f = KVR[k % ring]
            r = [f"ds_read_b128 {vr(f,4)}, v{14 + (k & 1)} offset:{(k >> 1) * 2048}"]
            if kind == "G": r.append(f"ds_read_b128 {vr(f+4,4)}, v18 offset:{64*k}")
            else:
                for hf in range(2):
                    r.append(f"ds_read_b64_tr_b16 {vr(f+4+2*hf,2)}, v18 offset:{(32*k + 4*hf)*40}")
            return r
        def mm(k):
            f = KVR[k % ring]; r = []
            c1 = "0" if k == 0 else "v[20:23]"; c2 = "0" if k == 0 else "v[24:27]"
            if kind in "KHG": r.append(f"v_mfma_f32_16x16x32_bf16 v[20:23], {vr(f+4,4)}, {vr(f,4)}, {c1}")
            if kind in "VH": r.append(f"v_mfma_f32_16x16x32_bf16 v[24:27], {vr(f,4)}, {vr(f+4,4)}, {c2}")
            return r
        for k in range(nb):
            for x in rd(k): a(x)
        for k in range(20):
            ahead = min(k + nb, 20) - (k + 1)
            a(f"s_waitcnt lgkmcnt({ahead * per})")
            for x in mm(k): a(x)
            if k + nb < 20:
                for x in rd(k + nb): a(x)
    def reads(s, ks):
        bi, base = base_of(SMAP[s])
        ax = AXR[bi] + ks; aw = AWR[bi]; f = FR + 28 * ks
        r = [f"ds_read_b128 {vr(f+4*rt,4)}, v{ax} offset:{base + rt*2048}" for rt in range(2)]
        for ct in range(5):
            for hf in range(2):
                r.append(f"ds_read_b64_tr_b16 {vr(f+8+4*ct+2*hf,2)}, v{aw} offset:{base + (32*ks + 8*hf)*160 + 8*ct}")
        return r
    def mf(ks, ct, first=False):
        f = FR + 28 * ks
        return [f"v_mfma_f32_16x16x32_bf16 {vr(ACC+(rt*5+ct)*4,4)}, {vr(f+8+4*ct,4)}, {vr(f+4*rt,4)}, {'0' if first else vr(ACC+(rt*5+ct)*4,4)}" for rt in range(2)]
    def stage(s):
        r0 = reads(s, 0); r1 = reads(s, 1)
        if s == 0:
            for x in r0: a(x)
        else:
            k = 0
            for ct in range(5):
                n = [4, 3, 3, 2, 0][ct]
                for x in r0[k:k+n]: a(x)
                k += n
                for x in mf(1, ct): a(x)
        issued1 = 0
        plan = [4, 4, 3, 1, 0]
        for ct in range(5):
            a(f"s_waitcnt lgkmcnt({(12 - (4 + 2*ct)) + issued1})")
            for x in mf(0, ct, s == 0): a(x)
            for x in r1[issued1:issued1 + plan[ct]]: a(x)
            issued1 += plan[ct]
        a("s_waitcnt lgkmcnt(0)")
    PUB = optv("pub", 5)
    nb_ = [0]
    def cbar():
        i = nb_[0]; nb_[0] += 1
        if i == PUB: a("s_waitcnt vmcnt(0)")
        a("s_barrier")
        if opt("probeB"):
            stamp(a, 1 + i, True)
            if i == 10: a("s_branch L_FIN2")
        if i == PUB:
            a.c("publish this workgroup's K/V slice (wave 0, one lane)")
            a(f"""
            s_cmp_eq_u32 s6, 0
            s_cbranch_scc0 L_NOPUB
            s_bfe_u32 s56, s2, 0x50001
            s_lshl_b32 s56, s56, 7
            s_lshl_b32 s57, s3, 12
            s_add_u32 s56, s56, s57
            s_lshr_b32 s57, s2, 6
            s_lshl_b32 s57, s57, 2
            s_add_u32 s56, s56, s57
            s_add_u32 s56, s56, {FL_KV}
            """)
            flag_store(a, "s56", 7, 4)
            a("L_NOPUB:")
    cbar()
    if not opt("probeB"): stamp(a, 1, True)
    stage(0)
    a("s_waitcnt vmcnt(0)")
    cbar()
    a("v_readfirstlane_b32 s34, v9")
    a("s_cmp_eq_u32 s6, 1\ns_cbranch_scc1 L_KV_H\ns_cmp_eq_u32 s6, 2\ns_cbranch_scc1 L_KV_V\ns_cmp_eq_u32 s6, 3\ns_cbranch_scc1 L_KV_G")
    kst = """
    v_mul_f32 v20, s27, v20
    v_mul_f32 v21, s27, v21
    v_mul_f32 v22, s27, v22
    v_mul_f32 v23, s27, v23
    v_cvt_pk_bf16_f32 v16, v20, v21
    v_cvt_pk_bf16_f32 v17, v22, v23
    """
    kv_loop("K")
    a.c("the softmax scale rides on K")
    a("s_nop 7" + kst + "buffer_store_dwordx2 v[16:17], v12, s[28:31], s58 offen sc1\ns_branch L_KV_E\nL_KV_H:")
    kv_loop("H")
    a("s_nop 6" + kst + """
    v_cvt_pk_bf16_f32 v18, v24, v25
    v_cvt_pk_bf16_f32 v19, v26, v27
    s_mov_b64 exec, 0xffff
    buffer_store_dwordx2 v[16:17], v12, s[28:31], s58 offen sc1
    s_mov_b32 exec_lo, 0x00f000f0
    s_mov_b32 exec_hi, 0x00f000f0
    buffer_store_dwordx2 v[18:19], v13, s[28:31], s59 offen sc1
    s_mov_b64 exec, -1
    s_branch L_KV_E
    L_KV_G:
    """)
    kv_loop("G")
    a("""
    s_nop 7
    v_mul_f32 v20, s27, v20
    v_exp_f32 v20, v20
    s_nop 0
    v_add_f32 v20, 1.0, v20
    v_rcp_f32 v20, v20
    s_mov_b64 exec, 0xffff
    buffer_store_dword v20, v12, s[28:31], s58 offen sc1
    s_mov_b64 exec, -1
    s_branch L_KV_E
    L_KV_V:
    """)
    kv_loop("V")
    a("""
    s_nop 7
    v_cvt_pk_bf16_f32 v18, v24, v25
    v_cvt_pk_bf16_f32 v19, v26, v27
    buffer_store_dwordx2 v[18:19], v13, s[28:31], s59 offen sc1
    L_KV_E:
    """)
    mk_tag(a)
    a(f"""
    s_mul_i32 s7, s6, 5120
    s_add_u32 s7, s7, {L_QX}
    v_mul_u32_u24 v12, 1280, v6
    v_add_u32 v12, s7, v12
    v_lshl_add_u32 v13, v5, 3, v12
    v_lshl_add_u32 v12, v5, 4, v12
    """)
    if not opt("probeB"): stamp(a, 2, True)
    for s in range(1, 10):
        cbar(); stage(s)
    for rt in range(2):
        for ct in range(5): a(mf(1, ct)[rt])
    stamp(a, 3)
    a.c("Q epilogue: pack, write fragments to LDS [w][head rg][1280]")
    a("s_nop 2")
    for rt in range(2):
        P = 100 + 12 * rt
        for i in range(10): a(f"v_cvt_pk_bf16_f32 v{P+i}, v{ACC+rt*20+2*i}, v{ACC+rt*20+2*i+1}")
        a(f"ds_write_b128 v12, {vr(P,4)} offset:{rt*256}")
        a(f"ds_write_b128 v12, {vr(P+4,4)} offset:{512+rt*256}")
        a(f"ds_write_b64 v13, {vr(P+8,2)} offset:{1024+rt*128}")
    a("s_branch L_ATT")

    a("L_LOADER2:")
    att_init()
    RL = 152; RA = RL + 64; RS = RA + 12
    a.c("wo re-layout job (wave 5): cb = wg&7, head pair wg>>3, piece u = l/10, octet = l%10 (50 lanes); rows (u<4) 20(u>>1)+4(u&1)+{0..3,8..11}, (u=4) 16+{0..3,20..23}")
    for i in [2, 3, 12, 13]: a(f"v_mov_b32 v{RA+i}, 0")
    a("s_cmp_eq_u32 s6, 5\ns_cbranch_scc0 L_NORL")
    t = RL + 32
    U = RA + 11
    a(f"""
    s_lshr_b32 s56, s2, 3
    s_and_b32 s35, s56, 7
    s_lshl_b32 s35, s35, 1
    s_lshr_b32 s57, s2, 7
    s_add_u32 s35, s35, s57
    s_mul_i32 s35, s35, {40*1280}
    s_mul_i32 s56, s56, 5
    s_and_b32 s57, s2, 7
    s_mul_i32 s32, s57, 160
    s_add_u32 s32, s32, s35
    v_mul_u32_u24 v{U}, 6554, v0
    v_lshrrev_b32 v{U}, 16, v{U}
    v_mul_u32_u24 v{RA}, 10, v{U}
    v_sub_u32 v{RA}, v0, v{RA}
    v_lshrrev_b32 v{t}, 1, v{U}
    v_mul_u32_u24 v{t}, 20, v{t}
    v_and_b32 v{t+1}, 1, v{U}
    v_lshl_add_u32 v{t}, v{t+1}, 2, v{t}
    v_cmp_eq_u32 vcc, 4, v{U}
    v_mov_b32 v{t+1}, 8
    s_nop 0
    v_cndmask_b32 v{t}, v{t}, 16, vcc
    v_cndmask_b32 v{t+1}, v{t+1}, 20, vcc
    v_add_u32 v{t+1}, v{t}, v{t+1}
    v_mul_u32_u24 v{t}, 1280, v{t}
    v_mul_u32_u24 v{t+1}, 1280, v{t+1}
    v_lshl_add_u32 v{RS}, v{RA}, 4, v{t}
    v_lshl_add_u32 v{RS+1}, v{RA}, 4, v{t+1}
    """)
    a.c("destination of the two 4-column chunks: octet o<8: ct = 2(o>>2)+z, rg = o&3 ; o>=8: ct = 4, rg = 2(o&1)+z")
    a(f"""
    v_cmp_lt_u32 vcc, 7, v{RA}
    v_lshrrev_b32 v{t}, 2, v{RA}
    v_mul_u32_u24 v{t}, 81920, v{t}
    v_lshl_add_u32 v{t}, v{U}, 8, v{t}
    v_and_b32 v{t+1}, 3, v{RA}
    v_lshlrev_b32 v{t+2}, 1, v{t+1}
    v_cndmask_b32 v{t+1}, v{t+1}, v{t+2}, vcc
    v_lshl_add_u32 v{RA+2}, v{t+1}, 6, v{t}
    v_mov_b32 v{t+1}, 40960
    v_cndmask_b32 v{t+1}, v{t+1}, 64, vcc
    v_add_u32 v{RA+3}, v{RA+2}, v{t+1}
    """)
    a(f"""
    s_mul_i32 s35, s57, {5*40960}
    s_lshl_b32 s56, s56, 8
    s_add_u32 s35, s35, s56
    s_add_u32 s35, s35, {WS_WO}
    L_NORL:
    v_lshlrev_b32 v13, 7, v{T0}
    s_lshl_b32 s57, s3, 12
    s_add_u32 s57, s57, {FL_KV}
    """)
    sm = items_small()
    NSA = optv("nsa", 6)
    emit(items_x(0) + sm[:NSA])
    if not opt("probeB"): stamp(a, 1)
    lbar("X0")
    a("v_readfirstlane_b32 s34, v9")
    emit(sm[NSA:] + items_x(1))
    mk_tag(a)
    lbar("SM")
    emit(items_x(2) + items_w(3) + items_x(3))
    if not opt("probeB"): stamp(a, 2)
    rest = []
    for s in range(4, 10): rest += items_w(s) + items_x(s)
    PER = optv("per", 6)
    for r in range(2, 9):
        lbar(f"X{r-1}")
        n = PER if r < 8 else len(rest)
        chunk = rest[:n]; rest = rest[n:]
        for nme, _ in chunk:
            s = int(nme[1:]); prev = [p for p in range(s) if SMAP[p] == SMAP[s]]
            if prev: assert r >= (prev[-1] + 2 if prev[-1] > 0 else 1), (nme, r)
        emit(chunk)
    a.c("wave 4: one look at the K/V flags; if complete, fetch the first tiles of the image early")
    def img(r): a(f"s_mov_b32 m0, {1024*r}\ns_mov_b32 s20, {1024*r}\nbuffer_load_dwordx4 v{IMG}, s[28:31], s20 offen sc1 lds")
    a(f"""
    s_cmp_eq_u32 s6, 4
    s_cbranch_scc0 L_N4
    s_mov_b32 exec_hi, 0
    buffer_load_dwordx4 v[16:19], v13, s[28:31], s57 offen sc1
    s_waitcnt vmcnt({younger("X8") + 1})
    s_barrier
    s_waitcnt vmcnt(0)
    v_cmp_ne_u32 vcc, s34, v16
    v_cmp_ne_u32 s[58:59], s34, v17
    s_or_b64 vcc, vcc, s[58:59]
    v_cmp_ne_u32 s[58:59], s34, v18
    s_or_b64 vcc, vcc, s[58:59]
    v_cmp_ne_u32 s[58:59], s34, v19
    s_or_b64 vcc, vcc, s[58:59]
    s_mov_b32 exec_hi, -1
    s_cmp_eq_u64 vcc, 0
    s_cbranch_scc1 L_EARLY
    s_barrier
    s_mov_b32 s20, -1
    s_mov_b32 s21, 0
    """)
    if opt("probeB"): a("s_branch L_FIN2")
    stamp(a, 3)
    poll(a, "L_PKV", 13, "s57", 4, 16, mask="s[20:21]", preloaded=False)
    stamp(a, 4)
    NE = optv("ne", 6)
    for r in range(NE): img(r)
    a("s_branch L_LATE\nL_EARLY:")
    for r in range(NE): img(r)
    a("s_barrier")
    if opt("probeB"): a("s_branch L_FIN2")
    stamp(a, 3); stamp(a, 4)
    a("L_LATE:")
    NX = optv("nx", 0)
    for r in list(range(NE, NCH0)) + list(range(56, 56 + NX)): img(r)
    a(f"s_waitcnt vmcnt({NCH0 + NX - 5})\ns_branch L_ATT\nL_N4:")
    lbar("X8")
    lbar("X9")
    if opt("probeB"): a("s_branch L_FIN2")
    stamp(a, 3)

    pAK1, pAK2, pAV = AK1, AK2, AV
    AK1, AK2, AV = 3, 2, 1
    def rdK(b, off):
        return [f"ds_read_b128 {vr(KF1[b],4)}, v{AK1} offset:{off}", f"ds_read_b32 v{KF2[b]}, v{AK2} offset:{off+1024}"]
    def rdV(b, off):
        return ["s_mov_b64 exec, s[36:37]",
                f"ds_read_b128 {vr(VF[b],4)}, v{AV} offset:{off+1280}", f"ds_read_b128 {vr(VF[b]+4,4)}, v{AV} offset:{off+1920}",
                "s_mov_b64 exec, -1"]
    def qk1(u, kb): return f"v_mfma_f32_32x32x16_bf16 {vr(S[u%4],16)}, {vr(KF1[kb],4)}, {vr(Q1[u%2],4)}, 0"
    def qk2(u, kb): return f"v_mfma_f32_32x32x8_bf16 {vr(S[u%4],16)}, {vr(KF2[kb],2)}, {vr(Q2[u%2],2)}, {vr(S[u%4],16)}"
    def pv(u, vb, i): return f"v_smfmac_f32_32x32x32_bf16 {vr(O[u%2],16)}, {vr(VF[vb]+4*i,4)}, {vr(S[u%4]+8*i,8)}, v{IDX}"
    a("L_ATT:")
    a(f"""
    v_mov_b32 v{AK2}, v{pAK2}
    v_mov_b32 v{AV}, v{pAV}
    v_mov_b32 v{IDX}, 0xdddddddd
    v_mov_b32 v{Q2[0]+1}, 0
    v_mov_b32 v{Q2[1]+1}, 0
    v_lshlrev_b32 v{T2}, 2, v{T0}
    s_mov_b32 s36, 0x000fffff
    s_mov_b32 s37, 0x000fffff
    s_mov_b32 s38, 0
    s_mov_b32 s39, -1
    s_mov_b32 s42, 1
    s_mov_b32 s44, 8
    s_waitcnt lgkmcnt(0)
    s_barrier
    ds_read_b128 {vr(Q1[0],4)}, v{AQ1}
    ds_read_b32 v{Q2[0]}, v{AQ2} offset:1024
    ds_read_b128 {vr(Q1[1],4)}, v{AQ1} offset:1280
    ds_read_b32 v{Q2[1]}, v{AQ2} offset:2304
    """)
    for x in rdK(0, 0) + rdK(1, 2560) + rdV(1, 0): a(x)
    a(f"buffer_load_dword v{G}, v{T2}, s[28:31], s14 offen sc1")
    stamp(a, 5, True)
    a.c("stand-in for the row max: the max over the first 32 keys")
    a("s_waitcnt lgkmcnt(4)")
    a(f"v_mfma_f32_32x32x16_bf16 {vr(S[2],16)}, {vr(KF1[0],4)}, {vr(Q1[0],4)}, 0")
    a(f"v_mfma_f32_32x32x16_bf16 {vr(S[1],16)}, {vr(KF1[0],4)}, {vr(Q1[1],4)}, 0")
    a("s_cmp_eq_u32 s6, 4\ns_cbranch_scc0 L_BQ2\ns_waitcnt vmcnt(" + str(NX + 1) + ")\nL_BQ2:\ns_barrier\ns_nop 6")
    a(f"v_mfma_f32_32x32x8_bf16 {vr(S[0],16)}, {vr(KF2[0],2)}, {vr(Q2[0],2)}, {vr(S[2],16)}")
    a(f"v_mfma_f32_32x32x8_bf16 {vr(S[1],16)}, {vr(KF2[0],2)}, {vr(Q2[1],2)}, {vr(S[1],16)}")
    a("s_nop 10")
    for j in range(2):
        a(f"v_max3_f32 v{M[j]}, v{S[j]}, v{S[j]+1}, v{S[j]+2}\nv_max3_f32 v{T2+j}, v{S[j]+3}, v{S[j]+4}, v{S[j]+5}")
        for i in range(6, 16, 4):
            a(f"v_max3_f32 v{M[j]}, v{S[j]+i}, v{S[j]+i+1}, v{M[j]}")
            if i + 2 < 16: a(f"v_max3_f32 v{T2+j}, v{S[j]+i+2}, v{S[j]+i+3}, v{T2+j}")
        a(f"v_max_f32 v{M[j]}, v{M[j]}, v{T2+j}\nv_mov_b32 v{T2+j}, v{M[j]}")
        if j == 0: a("s_nop 1")
        else: a(f"v_mfma_f32_32x32x8_bf16 {vr(S[0],16)}, {vr(KF2[0],2)}, {vr(Q2[0],2)}, {vr(S[2],16)}\ns_nop 0")
        a(f"""
        v_permlane32_swap_b32 v{M[j]}, v{T2+j}
        s_nop 0
        v_min_f32 v{M[j]}, -v{M[j]}, -v{T2+j}
        v_lshrrev_b32 v{M[j]}, 16, v{M[j]}
        v_cndmask_b32 v{Q2[j]+1}, v{M[j]}, 0, s[38:39]
        """)
    a(f"""
    s_cmp_eq_u32 s13, 0
    s_cbranch_scc0 L_LAG0
    s_setprio 2
    s_waitcnt lgkmcnt(0)
    s_nop 2
    s_branch L_PR
    L_LAG0:
    """)
    a.c("waves 4-7: rest of the K/V image, side jobs, then S1 (waves 0-3 meet it after their first 8 tiles)")
    def rl_loads():
        a("s_bitcmp0_b32 s2, 6")
        srd_sel(a, 72, 68, 22, 640 * 1280)
        a("s_mov_b32 exec_hi, 0x3ffff")
        for e in range(8):
            a(f"buffer_load_dwordx4 {vr(RL+4*e,4)}, v{RS+e//4}, s[72:75], s32 offen offset:{(e%4)*1280}")
    def rl_stores():
        a("s_mov_b32 s56, 0x05040100\ns_mov_b32 s57, 0x07060302\ns_mov_b32 exec_hi, 0x3ffff")
        a.c("wo re-layout: 8x8 16-bit transposition in registers")
        for c in range(8):
            for r in range(4):
                a(f"v_perm_b32 v{RL+32+4*c+r}, v{RL+4*(2*r+1)+c//2}, v{RL+4*(2*r)+c//2}, {'s56' if c % 2 == 0 else 's57'}")
            a(f"buffer_store_dwordx4 {vr(RL+32+4*c,4)}, v{RA+2+c//4}, s[28:31], s35 offen offset:{(c%4)*16} sc1")
    RLE = False
    if RLE:
        a("s_cmp_eq_u32 s6, 5\ns_cbranch_scc0 L_NRL")
        rl_loads()
        a("s_mov_b32 exec_hi, -1\nL_NRL:")
    quads = [k for k in range(24, 160, 4) if not (56 <= k < 56 + NX)]
    for k in quads:
        a(f"s_add_u32 m0, s50, {1024*k}\ns_add_u32 s20, s50, {1024*k}\nbuffer_load_dwordx4 v{IMG}, s[28:31], s20 offen sc1 lds")
    a("s_cmp_eq_u32 s6, 5\ns_cbranch_scc0 L_POIS")
    if RLE:
        a(f"s_waitcnt vmcnt({len(quads)})")
        rl_stores()
    else: rl_loads()
    a("s_branch L_S1\nL_POIS:")
    a.c("waves 4,6,7: mark this workgroup's share of the O hand-off buffer as not yet written (rt16 = 8rb + i, slice 8*branch+hg); one KB column each")
    a(f"""
    s_mul_i32 s55, s4, {8*40960}
    s_lshl_b32 s56, s3, 3
    s_add_u32 s56, s56, s5
    s_mul_i32 s56, s56, 2560
    s_add_u32 s55, s55, s56
    s_add_u32 s55, s55, {WS_O}
    s_sub_u32 s56, s6, 5
    s_max_i32 s56, s56, 0
    s_lshl_b32 s56, s56, 10
    s_add_u32 s55, s55, s56
    v_mov_b32 v{PT}, -1
    v_mov_b32 v{PT+1}, -1
    v_mov_b32 v{PT+2}, -1
    v_mov_b32 v{PT+3}, -1
    s_cmp_eq_u32 s6, 7
    s_cselect_b32 exec_hi, 0, -1
    """)
    for i in range(8):
        a(f"buffer_store_dwordx4 {vr(PT,4)}, v{AK1}, s[28:31], s55 offen sc1\ns_add_u32 s55, s55, 40960")
    a("""
    L_S1:
    s_mov_b32 exec_hi, -1
    s_waitcnt vmcnt(8) lgkmcnt(0)
    s_barrier
    s_setprio 3
    L_PR:
    """)
    stamp(a, 6)
    if opt("cyc"): a("s_memtime s[80:81]")
    if opt("iters"): a("s_memtime s[94:95]\ns_waitcnt lgkmcnt(0)")
    a(".p2align 6\nL_LOOP:")
    for t in range(8):
        for j in range(2):
            u = 2 * t + j
            b = (t + j) % 2
            ex = [f"v_exp_f32 v{S[u%4]+i}, v{S[u%4]+i}" for i in range(16)]
            extra = [[], [], [], []]
            if j == 1:
                a("s_waitcnt lgkmcnt(0)")
                extra[0] = rdK(t % 2, (t + 2) * 2560)
                extra[1] = rdV(t % 2, (t + 1) * 2560)
            ms = [qk1(u + 1, b), qk2(u + 1, b), pv(u - 1, b, 0), pv(u - 1, b, 1)]
            for g in range(4):
                a(ms[g])
                for x in ex[4 * g:4 * g + 2]: a(x)
                for x in extra[g]: a(x)
                for x in ex[4 * g + 2:4 * g + 4]: a(x)
            if t == optv("nlt", 0) and j == 1 and optv("nlh", 3):
                a(f"s_cmp_eq_u32 s43, {16 + optv('nlh', 3) + 1}\ns_cbranch_scc0 L_PH\ns_setprio 1\nL_PH:")
    a(f"v_add_u32 v{AK1}, 20480, v{AK1}\nv_add_u32 v{AK2}, 20480, v{AK2}\nv_add_u32 v{AV}, 20480, v{AV}")
    a(f"""
    s_lshl_b32 s43, s13, 4
    s_add_u32 s43, s43, s44
    s_cmp_eq_u32 s43, {16 + optv("nl", 9)}
    s_cbranch_scc0 L_P1
    s_setprio 1
    L_P1:
    s_cmp_eq_u32 s42, 0
    s_cbranch_scc1 L_NEXT
    {"s_cmp_lg_u32 s43, 8" if opt("noside") else ""}
    {"s_cbranch_scc1 L_NEXT" if opt("noside") else ""}
    s_cmp_eq_u32 s44, 8
    s_cbranch_scc0 L_E0
    s_cmp_eq_u32 s13, 0
    s_cbranch_scc0 L_RL2
    s_barrier
    s_branch L_NEXT
    L_RL2:
    """)
    if not RLE:
        a("s_cmp_eq_u32 s6, 5\ns_cbranch_scc0 L_NEXT\ns_waitcnt vmcnt(0)")
        rl_stores()
        a("s_mov_b32 exec_hi, -1")
    a(f"""
    s_branch L_NEXT
    L_E0:
    s_cmp_eq_u32 s43, {16 + 6}
    s_cbranch_scc0 L_E1
    s_lshl_b32 s56, s2, 2
    s_add_u32 s56, s56, s6
    s_lshl_b32 s56, s56, 2
    s_add_u32 s56, s56, {FL_W - 16}
    v_mov_b32 v{T3}, 0
    s_waitcnt vmcnt(0)
    """)
    flag_store(a, "s56", T2, T3)
    a.c("flags to see: lanes 0-31 the workgroups that re-lay this tile's Wo columns, lanes 32-63 the row group")
    a(f"""
    s_branch L_NEXT
    L_E1:
    s_cmp_eq_u32 s44, 4
    s_cbranch_scc0 L_E2
    v_lshl_add_u32 v{T2}, v{T0}, 3, s5
    v_and_b32 v{T3}, 14, v0
    v_lshlrev_b32 v{T3}, 4, v{T3}
    v_and_or_b32 v{T3}, v0, 1, v{T3}
    s_and_b32 s57, s2, 0x1e
    v_or_b32 v{T3}, s57, v{T3}
    v_cndmask_b32 v{T2}, v{T2}, v{T3}, s[38:39]
    v_lshlrev_b32 v{T2}, 4, v{T2}
    s_mov_b32 s57, {FL_W}
    buffer_load_dwordx4 {vr(PT,4)}, v{T2}, s[28:31], s57 offen sc1
    s_branch L_NEXT
    L_E2:
    s_cmp_eq_u32 s44, 3
    s_cbranch_scc0 L_NEXT
    """)
    poll(a, "L_PW", T2, "s57", 4, PT, sleep=8)
    if opt("touch"):
        a.c("touch this tile's lines of the output (address translation and L2 are warm when the final stores come)")
        srd(a, 72, 66, 67, 2048 * 1280)
        a(f"""
        s_lshl_b32 s56, s4, 1
        s_add_u32 s56, s56, s3
        s_mul_i32 s56, s56, {64*1280}
        s_mul_i32 s57, s5, 160
        s_add_u32 s56, s56, s57
        s_and_b32 s57, s6, 3
        s_mul_i32 s57, s57, 52
        s_add_u32 s56, s56, s57
        v_mul_u32_u24 v{T2}, 1280, v0
        buffer_load_dword v{PT}, v{T2}, s[72:75], s56 offen
        """)
    a.c("prefetch this wave's Wo fragments: [cb=hg][ct][f32 = 5w+st]")
    a(f"""
    s_mul_i32 s56, s5, {5*40960}
    s_mul_i32 s57, s6, 5120
    s_add_u32 s56, s56, s57
    s_add_u32 s56, s56, {WS_WO}
    v_lshlrev_b32 v{T2}, 4, v0
    v_add_u32 v{T3}, 4096, v{T2}
    """)
    for ct in range(5):
        for st in range(5):
            av = T2 if st < 4 else T3
            if not opt("nowo"): a(f"buffer_load_dwordx4 {vr(WO+(st*5+ct)*4,4)}, v{av}, s[28:31], s56 offen offset:{(st%4)*1024} sc1")
        if ct < 4: a("s_add_u32 s56, s56, 40960")
    a("L_NEXT:")
    if opt("iters"):
        for k in range(1, 9): a(f"s_mov_b32 s{76+2*k}, s{76+2*(k+1)}")
        a("s_memtime s[94:95]\ns_waitcnt lgkmcnt(0)")
    a("s_sub_u32 s44, s44, 1\ns_cmp_lg_u32 s44, 0\ns_cbranch_scc1 L_LOOP")
    stamp(a, 7)
    if opt("cyc"): a("s_memtime s[82:83]")
    a(pv(15, 0, 0)); a(pv(15, 0, 1))
    a.c("phase E addresses: tile rows 64*(2rb+branch).., columns 80*hg.. ; wave = K eighth; row tiles in an order rotated by hg")
    a(f"""
    s_setprio 3
    s_mov_b32 s46, {f32bits(2.0**-40)}
    s_mov_b32 s47, {f32bits(2.0**40)}
    s_mov_b32 s23, -2
    s_lshl_b32 s16, s4, 1
    s_add_u32 s16, s16, s3
    s_mul_i32 s21, s16, {4*40960}
    s_mul_i32 s40, s6, 5120
    s_add_u32 s21, s21, s40
    s_add_u32 s21, s21, {WS_O}
    """)
    for i in range(4):
        a(f"s_add_u32 s22, s5, {i}\ns_and_b32 s22, s22, 3\ns_mul_i32 s22, s22, 40960\ns_add_u32 s{17+i}, s21, s22\ns_add_u32 s{8+i}, s22, s40")
    a("s_waitcnt vmcnt(0) lgkmcnt(0)")
    a.c("run-time safety check of the stand-in max: row sums must lie in [2^-40, 2^40], else redo with the true max")
    a(f"""
    v_cndmask_b32 v{M[0]}, v{O[0]+12}, v{O[0]+8}, s[38:39]
    v_cndmask_b32 v{M[1]}, v{O[1]+12}, v{O[1]+8}, s[38:39]
    v_cmp_le_f32 s[48:49], s46, v{M[0]}
    v_cmp_ge_f32 s[50:51], s47, v{M[0]}
    v_cmp_le_f32 s[52:53], s46, v{M[1]}
    v_cmp_ge_f32 s[54:55], s47, v{M[1]}
    v_rcp_f32 v{M[0]}, v{M[0]}
    v_rcp_f32 v{M[1]}, v{M[1]}
    s_and_b64 s[48:49], s[48:49], s[50:51]
    s_and_b64 s[52:53], s[52:53], s[54:55]
    s_and_b64 s[48:49], s[48:49], s[52:53]
    s_cmp_eq_u64 s[48:49], -1
    s_cbranch_scc0 L_BAD
    L_OK:
    v_mul_f32 v{M[0]}, v{M[0]}, v{G}
    v_mul_f32 v{M[1]}, v{M[1]}, v{G}
    """)
    P = S[3]
    for j in range(2):
        for i in range(12): a(f"v_mul_f32 v{O[j]+i}, v{O[j]+i}, v{M[j]}")
        for i in range(4): a(f"v_cvt_pk_bf16_f32 v{P+4*j+i}, v{O[j]+2*i}, v{O[j]+2*i+1}")
        for i in range(2): a(f"v_cvt_pk_bf16_f32 v{P+8+2*j+i}, v{O[j]+8+2*i}, v{O[j]+8+2*i+1}")
        for i in range(4): a(f"v_min_u32 v{P+4*j+i}, s23, v{P+4*j+i}")
        a(f"buffer_store_dwordx4 {vr(P+4*j,4)}, v{OA}, s[28:31], s26 offen offset:{512*j} sc1")
    for i in range(4): a(f"v_min_u32 v{P+8+i}, s23, v{P+8+i}")
    a(f"""
    s_mov_b32 exec_hi, 0
    buffer_store_dwordx4 {vr(P+8,4)}, v{OA}, s[28:31], s26 offen offset:1024 sc1
    """)
    if opt("dup"):
        a(f"buffer_store_dwordx4 {vr(P+8,4)}, v{OA}, s[28:31], s26 offen offset:1024\ns_mov_b32 exec_hi, -1")
        for j in range(2): a(f"buffer_store_dwordx4 {vr(P+4*j,4)}, v{OA}, s[28:31], s26 offen offset:{512*j}")
    a("s_mov_b32 exec_hi, -1\ns_setprio 0")
    EB = not opt("lateb")
    if EB:
        a.c("every wave of this workgroup is past its last K/V read at this barrier: LDS can be reused")
        a("s_cmp_eq_u32 s13, 0\ns_cbranch_scc1 L_NB\ns_barrier\nL_NB:")
    OF = 16
    EA = [96, 116, 16, 36]
    srd(a, 72, 66, 67, 2048 * 1280)
    a.c("partial sums change lanes on their way through LDS: writer (n, rg) -> slot 4n + (rg ^ ((n>>1)&3)); reader lane = 4*row + rg")
    a.c("out address (waves 0-3): row = 64*(2rb+branch) + 16w + (l>>2) ; columns 8rg.., 32+8rg.., 64+4rg..")
    a(f"""
    v_mov_b32 v2, s34
    v_mov_b32 v3, 0
    v_lshlrev_b32 v5, 4, v0
    v_add_u32 v6, 4096, v5
    v_and_b32 v13, 15, v0
    v_lshrrev_b32 v14, 4, v0
    v_bfe_u32 v12, v0, 1, 2
    v_xor_b32 v14, v14, v12
    v_lshl_add_u32 v14, v13, 2, v14
    v_lshlrev_b32 v14, 4, v14
    v_add_u32 v8, s8, v14
    v_add_u32 v9, s9, v14
    v_add_u32 v10, s10, v14
    v_add_u32 v11, s11, v14
    v_bfe_u32 v12, v0, 3, 2
    v_xor_b32 v12, v12, v0
    s_mul_i32 s22, s6, 40960
    v_lshl_add_u32 v12, v12, 4, s22
    s_lshl_b32 s22, s16, 6
    s_lshl_b32 s21, s6, 4
    s_add_u32 s22, s22, s21
    s_mul_i32 s22, s22, 1280
    s_mul_i32 s21, s5, 160
    s_add_u32 s22, s22, s21
    v_lshrrev_b32 v13, 2, v0
    v_mul_u32_u24 v13, 1280, v13
    v_and_b32 v14, 3, v0
    v_lshl_add_u32 v7, v14, 3, v13
    v_lshl_add_u32 v13, v14, 4, v13
    s_mov_b32 s60, {SPIN}
    """)
    REQ = {"A": [int(c) for c in str(optv("reqa", 44444))], "B": [int(c) for c in str(optv("reqb", 12344))]}
    def oload(rt):
        for st in range(5):
            av = 5 if st < 4 else 6
            a(f"buffer_load_dwordx4 {vr(OF+(rt*5+st)*4,4)}, v{av}, s[28:31], s{17+rt} offen offset:{(st%4)*1024} sc1")
    def ewrites(rt):
        return [f"ds_write_b128 v{8+rt}, {vr(EA[rt]+4*ct,4)} offset:{ct*1024}" for ct in range(5)]
    tail = []
    def egemm(tag, bar=-1, wr=True):
        for rt in range(4):
            if rt == bar: a("s_barrier")
            a(f"L_CH{tag}{rt}:")
            b = OF + rt * 20
            w = ewrites(rt - 1) if rt >= 1 and wr else []
            a.c("MFMAs run ahead of the hand-off check (no word may still hold the not-yet-written mark); a failed check redoes the block")
            for st in range(5):
                if st == 0:
                    a(f"s_waitcnt vmcnt({4 + 5*(REQ[tag][rt] - rt - 1)})")
                    for r2 in range(REQ[tag][rt], REQ[tag][rt+1]): oload(r2)
                else: a(f"s_waitcnt vmcnt({4 - st + 5*(REQ[tag][rt+1] - rt - 1)})")
                f = b + 4 * st
                chk = [f"v_max3_u32 v15, v{f}, v{f+1}, v{f+2}" if st == 0 else f"v_max3_u32 v15, v{f}, v{f+1}, v15",
                       f"v_max_u32 v15, v{f+3}, v15" if st == 0 else f"v_max3_u32 v15, v{f+2}, v{f+3}, v15"]
                if st == 4: chk += ["v_cmp_eq_u32 vcc, -1, v15"]
                for ct in range(5):
                    d = vr(EA[rt] + 4 * ct, 4)
                    a(f"v_mfma_f32_16x16x32_bf16 {d}, {vr(WO+(st*5+ct)*4,4)}, {vr(f,4)}, {'0' if st == 0 else d}")
                    if ct < len(chk): a(chk[ct])
                    if w and st >= 1 and ct == 3: a(w[st - 1])
                    if w and st == 4 and ct == 4: a(w[4])
            a(f"s_cbranch_vccnz L_RE{tag}{rt}\nL_GO{tag}{rt}:")
            tail.append((tag, rt))
            if opt("probeE"): stamp(a, [1, 2, 3, 5][rt])
    def retries():
        if PROF and not opt("iters"): a(f"s_waitcnt lgkmcnt(0)\ns_sub_u32 s84, {SPIN}, s60\ns_mul_i32 s84, s84, 100\ns_add_u32 s84, s84, s76")
    a("s_cmp_eq_u32 s13, 0\ns_cbranch_scc1 L_ELEAD")
    a.c("every wave of this workgroup is past its last K/V read at this barrier: LDS can be reused")
    if not opt("asym") and not EB: a("s_barrier")
    if not opt("noack"): a("s_waitcnt vmcnt(0)")
    elif optv("dly", 0): a(f"s_sleep {optv('dly', 0)}")
    stamp(a, 8)
    for rt in range(REQ["B"][0]): oload(rt)
    if opt("asym"): a("s_barrier")
    if opt("probeE"): stamp(a, 6)
    if PROF: a("s_waitcnt lgkmcnt(0)")
    egemm("B", optv("bar", 2))
    stamp(a, 10); retries()
    a("s_waitcnt lgkmcnt(0)\ns_nop 6" if opt("probeE") else "s_waitcnt lgkmcnt(5)\ns_nop 6")
    for x in ewrites(3): a(x)
    a("s_waitcnt lgkmcnt(0)\ns_barrier\ns_branch L_FIN")
    a("L_ELEAD:")
    if not opt("asym") and not (not opt("leadlast")): a("s_barrier")
    a("s_waitcnt vmcnt(0)")
    stamp(a, 8)
    for rt in range(REQ["A"][0]): oload(rt)
    if opt("probeE"): stamp(a, 6)
    if PROF: a("s_waitcnt lgkmcnt(0)")
    if opt("asym"):
        egemm("A", wr=False)
        stamp(a, 9); retries()
        a("s_barrier\ns_setprio 2\ns_waitcnt lgkmcnt(0)\ns_nop 4")
        for rt in range(4):
            for x in ewrites(rt): a(x)
            if rt == 1: a("s_waitcnt lgkmcnt(4)")
    else:
        if (not opt("leadlast")): a("s_barrier")
        a(f"s_setprio {optv('ep', 0)}")
        egemm("A")
        stamp(a, 9); retries()
        a("s_waitcnt lgkmcnt(0)\ns_nop 6" if opt("probeE") else "s_waitcnt lgkmcnt(5)\ns_nop 6")
        for x in ewrites(3): a(x)
    a("s_waitcnt lgkmcnt(0)\ns_barrier")
    R = 56
    def rsum(src0, keep):
        for src in range(4):
            for c in range(5):
                a(f"ds_read_b128 {vr(R+src*20+4*c,4)}, v12 offset:{(src0+src)*5120+c*1024}")
            if src == 1: a("s_waitcnt lgkmcnt(4)")
        a("s_waitcnt lgkmcnt(10)")
        for i in range(20): a(f"v_add_f32 v{R+i}, v{R+i}, v{R+20+i}")
        if keep:
            for i in range(20): a(f"v_add_f32 v{R+i}, v{R+i}, v{16+i}")
        a("s_waitcnt lgkmcnt(0)")
        for i in range(20): a(f"v_add_f32 v{R+40+i}, v{R+40+i}, v{R+60+i}")
        for i in range(20): a(f"v_add_f32 v{16+i}, v{R+i}, v{R+40+i}")
    rsum(0, False)
    a("s_barrier")
    stamp(a, 10, True)
    rsum(4, True)
    for i in range(10): a(f"v_cvt_pk_bf16_f32 v{40+i}, v{16+2*i}, v{16+2*i+1}")
    a("""
    buffer_store_dwordx4 v[40:43], v13, s[72:75], s22 offen
    buffer_store_dwordx4 v[44:47], v13, s[72:75], s22 offen offset:64
    buffer_store_dwordx2 v[48:49], v7, s[72:75], s22 offen offset:128
    """)
    a.c("workgroup 0 advances the epoch: every workgroup has read it by now")
    a(f"""
    s_or_b32 s21, s2, s6
    s_cmp_eq_u32 s21, 0
    s_cbranch_scc0 L_FIN
    s_mov_b32 s21, {FL_EPOCH}
    s_mov_b64 exec, 1
    buffer_store_dword v2, v3, s[28:31], s21 offen sc1
    L_FIN:
    """)
    if PROF: a("s_waitcnt vmcnt(0)")
    stamp(a, 11)
    a("L_FIN2:")
    stamp_flush(a)
    a("s_endpgm")
    for tag, rt in tail:
        a(f"""
        L_RE{tag}{rt}:
        s_cmp_eq_u32 s60, 0
        s_cbranch_scc1 L_GO{tag}{rt}
        s_sub_u32 s60, s60, 1
        s_waitcnt vmcnt(0) lgkmcnt(0)
        s_sleep {optv("slp", 4)}
        """)
        for r2 in range(rt, REQ[tag][rt]): oload(r2)
        a(f"s_branch L_CH{tag}{rt}")
    a("L_BAD:")
    a.c("second (and last) pass: exact row max over all keys, then the same loop again")
    a(f"""
    s_cmp_eq_u32 s42, 0
    s_cbranch_scc1 L_OK
    s_mov_b32 s42, 0
    s_mov_b32 s40, 0xffff0000
    s_mov_b32 s43, 64
    v_subrev_u32 v{AK1}, {KV_BYTES}, v{AK1}
    v_subrev_u32 v{AK2}, {KV_BYTES}, v{AK2}
    v_subrev_u32 v{AV}, {KV_BYTES}, v{AV}
    v_mov_b32 v{T2}, v{AK1}
    v_mov_b32 v{T3}, v{AK2}
    """)
    for j in range(2):
        a(f"v_mov_b32 v{Q2[j]+1}, 0\nv_mov_b32 v{M[j]}, 0xff800000")
    for i in range(32): a(f"v_mov_b32 v{O[0]+i}, 0")
    for i in range(16): a(f"v_mov_b32 v{S[3]+i}, 0")
    a("L_MAXL:")
    a(f"ds_read_b128 {vr(KF1[0],4)}, v{T2}\nds_read_b32 v{KF2[0]}, v{T3} offset:1024")
    a(f"v_add_u32 v{T2}, 2560, v{T2}\nv_add_u32 v{T3}, 2560, v{T3}\ns_waitcnt lgkmcnt(0)")
    for j in range(2): a(qk1(j, 0)); a(qk2(j, 0))
    a("s_nop 11")
    for j in range(2):
        for i in range(8):
            a(f"v_max3_f32 v{M[j]}, v{S[j]+2*i}, v{S[j]+2*i+1}, v{M[j]}")
    a("s_sub_u32 s43, s43, 1\ns_cmp_lg_u32 s43, 0\ns_cbranch_scc1 L_MAXL")
    for x in rdK(0, 0) + rdK(1, 2560) + rdV(1, 0): a(x)
    a.c("-m split exactly into three bf16 pieces that ride in the spare k-slots")
    for j in range(2):
        a(f"""
        v_mov_b32 v{T2}, v{M[j]}
        s_nop 1
        v_permlane32_swap_b32 v{M[j]}, v{T2}
        s_nop 1
        v_min_f32 v{M[j]}, -v{M[j]}, -v{T2}
        v_and_b32 v{T2}, s40, v{M[j]}
        v_sub_f32 v{T3}, v{M[j]}, v{T2}
        v_lshrrev_b32 v{T2}, 16, v{T2}
        v_and_or_b32 v{T2}, v{T3}, s40, v{T2}
        v_and_b32 v{M[j]}, s40, v{T3}
        v_sub_f32 v{T3}, v{T3}, v{M[j]}
        v_and_b32 v{T3}, s40, v{T3}
        v_cndmask_b32 v{Q2[j]+1}, v{T2}, v{T3}, s[38:39]
        """)
    a("s_waitcnt lgkmcnt(0)\ns_nop 0")
    a(qk1(0, 0)); a(qk2(0, 0))
    a("s_mov_b32 s44, 8\ns_setprio 1\ns_nop 9\ns_branch L_LOOP")
    a("L_END:\ns_endpgm")
    return f""".p2align 6
.amdhsa_kernel {N}
  .amdhsa_next_free_vgpr 256
  .amdhsa_next_free_sgpr 102
  .amdhsa_accum_offset 256
  .amdhsa_group_segment_fixed_size 0
  .amdhsa_kernarg_size 112
  .amdhsa_user_sgpr_count 2
  .amdhsa_user_sgpr_kernarg_segment_ptr 1
  .amdhsa_system_sgpr_workgroup_id_x 1
.end_amdhsa_kernel
"""

def main():
    ref = open(f"cdna_kernels/{NAME}.s.ref").read().split("\n")
    head = [l for l in ref if l.startswith(";") and "@launch" not in l]
    a = Asm()
    kd = gen(a)
    out = "\n".join(head) + "\n"
    out += "; @launch grid=(256,1,1) block=(512,1,1) lds=163840\n"
    out += '.amdgcn_target "amdgcn-amd-amdhsa--gfx950"\n.text\n'
    t = a.text()
    if opt("outsc1"): t = "\n".join(l + " sc1" if "buffer_store" in l and "s[72:75]" in l else l for l in t.split("\n"))
    if opt("outnt"): t = "\n".join(l + " nt" if "buffer_store" in l and "s[72:75]" in l else l for l in t.split("\n"))
    if opt("plainonly"): t = "\n".join(l.replace(" sc1", "") if "buffer_store" in l and "s26" in l else l for l in t.split("\n"))
    out += t
    out += '.section .rodata,"a"\n' + kd
    path = ARGS[0] if ARGS and not ARGS[0].startswith("--") else f"cdna_kernels/{NAME}.s"
    open(path, "w").write(out)
main()
```

```python
import math, struct, sys

NAME = "gated_mix__grouped_kv_mqa__grouped_kv_mqa__prompt"
ARGS = sys.argv[1:]
def opt(n): return ("--" + n) in ARGS
def optv(n, d):
    for x in ARGS:
        if x.startswith("--" + n + "="): return int(x.split("=")[1])
    return d

KV_BYTES = 163840
WS_KV   = 0
WS_G    = 2 * KV_BYTES
WS_O    = WS_G + 16384
O_BYTES = 128 * 40 * 1024
WS_WO   = WS_O + O_BYTES
WO_BYTES = 8 * 5 * 40 * 1024
WS_FL   = WS_WO + WO_BYTES
FL_EPOCH = WS_FL
FL_KV   = WS_FL + 256
FL_W    = FL_KV + 8192
WS_END  = FL_W + 4096

def f32bits(x):
    return struct.unpack("<I", struct.pack("<f", x))[0]
QSCALE = f32bits((20 ** -0.5) * math.log2(math.e))
LOG2E = f32bits(math.log2(math.e))

class Asm:
    def __init__(self): self.l = []
    def __call__(self, s):
        for line in s.split("\n"):
            line = line.strip()
            if line: self.l.append(("" if line.endswith(":") else "  ") + line)
    def c(self, s): self.l.append("  ; " + s)
    def text(self): return "\n".join(self.l) + "\n"

def vr(b, n=1): return f"v{b}" if n == 1 else f"v[{b}:{b+n-1}]"

def srd(a, d, lo, hi, nbytes):
    a(f"s_mov_b32 s{d}, s{lo}\ns_mov_b32 s{d+1}, s{hi}\ns_mov_b32 s{d+2}, {nbytes}\ns_mov_b32 s{d+3}, 0x00020000")
def srd_sel(a, d, lo0, lo1, nbytes):
    a(f"s_cselect_b32 s{d}, s{lo0}, s{lo1}\ns_cselect_b32 s{d+1}, s{lo0+1}, s{lo1+1}\ns_mov_b32 s{d+2}, {nbytes}\ns_mov_b32 s{d+3}, 0x00020000")

PROF = opt("prof")
PROF_BASE = 16 << 20
NST = 12
def stamp(a, i, wait=False):
    if PROF and not (opt("iters") and i >= 7):
        a(f"s_memrealtime s[{76+2*i}:{77+2*i}]")
        if wait: a("s_waitcnt lgkmcnt(0)")
def stamp_flush(a):
    if not PROF: return
    a("s_waitcnt lgkmcnt(0)\ns_mov_b64 exec, 1")
    a(f"s_lshl_b32 s62, s2, 3\ns_add_u32 s62, s62, s6\ns_lshl_b32 s62, s62, 6\ns_add_u32 s62, s62, {PROF_BASE}")
    a("s_mov_b32 s30, 0x2000000\nv_mov_b32 v0, 0")
    for i in range(NST):
        a(f"v_mov_b32 v2, s{76+2*i}\nbuffer_store_dword v2, v0, s[28:31], s62 offen offset:{4*i}\ns_nop 1")

SPIN = 200000
def poll(a, lbl, addr_v, soff, width, tmp, mask=None, preloaded=True, sleep=1):
    ld = {1: "dword", 2: "dwordx2", 4: "dwordx4"}[width]
    a(f"s_mov_b32 s60, {SPIN}")
    if mask is not None: a(f"s_mov_b64 exec, {mask}")
    if preloaded: a(f"s_branch {lbl}_chk")
    a(f"{lbl}_ld:")
    a(f"buffer_load_{ld} {vr(tmp,width)}, v{addr_v}, s[28:31], {soff} offen sc1")
    a(f"{lbl}_chk:\ns_waitcnt vmcnt(0)")
    a(f"v_cmp_ne_u32 vcc, s34, v{tmp}")
    for i in range(1, width):
        a(f"v_cmp_ne_u32 s[58:59], s34, v{tmp+i}\ns_or_b64 vcc, vcc, s[58:59]")
    a(f"s_sub_u32 s60, s60, 1\ns_cbranch_scc1 {lbl}_ok")
    a(f"s_cmp_eq_u64 vcc, 0\ns_cbranch_scc1 {lbl}_ok\ns_sleep {sleep}\ns_branch {lbl}_ld\n{lbl}_ok:")
    if mask is not None: a("s_mov_b64 exec, -1")

def flag_store(a, soff, vtmp, vzero):
    a(f"v_mov_b32 v{vtmp}, s34\ns_mov_b64 exec, 1\nbuffer_store_dword v{vtmp}, v{vzero}, s[28:31], {soff} offen sc1\ns_mov_b64 exec, -1")
def mk_tag(a):
    a("s_mul_i32 s34, s34, 0x9e3779b1\ns_add_u32 s34, s34, 0x7f4a7c15")

def gen(a):
    N = NAME + "_kernel"
    STG = 26624; XB = 16384
    L_WK = 0; L_WV = 25600; L_G = 51200; RING = 57344
    L_X16 = RING + 3 * STG
    L_QX = 143360
    SLOT = {"A": RING, "B": RING + STG, "C": RING + 2 * STG, "D": RING + 3 * STG, "F": 30720}
    SMAP = ["A", "B", "C", "D", "F", "A", "B", "C", "F", "A"]
    NCH0 = 25
    Q1 = [4, 12]; Q2 = [8, 16]
    IDX, G = 10, 11
    T2, T3 = 20, 21
    M = [22, 23]
    KF1 = [24, 32]; KF2 = [28, 36]
    OA, IMG, T0, T1 = 30, 31, 38, 39
    VF = [40, 48]
    O = [56, 72]
    S = [88, 104, 120, 136]
    AK1, AK2, AV, AQ1, AQ2 = 88, 89, 90, 91, 92
    WO = 152; PT = 252

    def att_init():
        a.c("attention constants and accumulators; s12 = rt32, s13 = hp, s26 + v30 = O address")
        a(f"""
        s_and_b32 s15, s6, 3
        s_lshl_b32 s13, s4, 2
        s_add_u32 s12, s15, s13
        s_lshr_b32 s13, s6, 2
        s_mul_i32 s15, s15, 5120
        s_mul_i32 s14, s13, 2560
        s_add_u32 s15, s15, s14
        s_add_u32 s15, s15, {L_QX}
        v_and_b32 v{T0}, 31, v0
        v_lshrrev_b32 v{T1}, 5, v0
        v_lshlrev_b32 v{AK2}, 3, v{T0}
        v_lshl_add_u32 v{AK2}, v{T1}, 2, v{AK2}
        v_add_u32 v{AQ1}, s15, v3
        v_add_u32 v{AQ2}, s15, v{AK2}
        v_mul_u32_u24 v{AV}, 20, v{T1}
        v_add_lshl_u32 v{AV}, v{AV}, v{T0}, 4
        s_mul_i32 s26, s12, 81920
        s_lshl_b32 s14, s13, 1
        s_add_u32 s14, s14, s3
        s_lshl_b32 s14, s14, 3
        s_add_u32 s14, s14, s5
        s_mul_i32 s14, s14, 1280
        s_add_u32 s26, s26, s14
        s_add_u32 s26, s26, {WS_O}
        v_lshrrev_b32 v{OA}, 4, v{T0}
        v_mul_u32_u24 v{OA}, 40960, v{OA}
        v_lshl_add_u32 v{OA}, v{T1}, 8, v{OA}
        v_and_b32 v{AK1}, 15, v0
        v_lshl_add_u32 v{OA}, v{AK1}, 4, v{OA}
        s_mul_i32 s14, s3, {KV_BYTES}
        v_add_u32 v{IMG}, s14, v3
        s_lshl_b32 s14, s3, 6
        s_add_u32 s14, s14, s12
        s_lshl_b32 s14, s14, 7
        s_add_u32 s14, s14, {WS_G}
        """)
        for b in range(2):
            a(f"v_mov_b32 v{KF2[b]+1}, 0x3f803f80")
            for i in range(8): a(f"v_mov_b32 v{VF[b]+i}, 0")
        a("s_mov_b32 exec_lo, 0x01100000\ns_mov_b32 exec_hi, 0x01100000")
        for b in range(2):
            for i in range(8): a(f"v_mov_b32 v{VF[b]+i}, 0x3f803f80")
        a("s_mov_b64 exec, -1")
        for i in range(32): a(f"v_mov_b32 v{O[0]+i}, 0")
        for i in range(16): a(f"v_mov_b32 v{S[3]+i}, 0")

    a(f".globl {N}\n.p2align 8\n.type {N},@function\n{N}:")
    a("s_cmp_ge_u32 s2, 256\ns_cbranch_scc1 L_END")
    a("""
    s_load_dwordx8 s[8:15], s[0:1], 0
    s_load_dwordx8 s[16:23], s[0:1], 48
    s_load_dwordx2 s[24:25], s[0:1], 104
    s_load_dwordx4 s[64:67], s[0:1], 80
    s_load_dwordx2 s[68:69], s[0:1], 32
    """)
    if not opt("nocpf"):
        a.c("bring this kernel's own code into L2 ahead of the instruction fetch: 2 KB per workgroup, 16 workgroups of an XCD round cover it")
        a(f"""
        s_getpc_b64 s[56:57]
        L_PCREF:
        s_lshl_b32 s58, s2, 8
        s_and_b32 s58, s58, 0x7800
        v_lshl_add_u32 v94, v0, 2, s58
        v_min_u32 v94, L_END-L_PCREF, v94
        v_mov_b32 v95, s57
        v_add_co_u32 v94, vcc, s56, v94
        s_nop 1
        v_addc_co_u32 v95, vcc, 0, v95, vcc
        global_load_dword v93, v[94:95], off
        """)
    stamp(a, 0)
    a.c("s3 = branch, s4 = rb (128-row block), s5 = hg (head group), s6 = wave, s33 = rb&3")
    a("""
    v_lshrrev_b32 v1, 6, v0
    v_and_b32 v0, 63, v0
    s_and_b32 s3, s2, 1
    v_readfirstlane_b32 s6, v1
    s_lshr_b32 s4, s2, 1
    s_and_b32 s4, s4, 3
    s_lshl_b32 s4, s4, 2
    s_lshr_b32 s33, s2, 3
    s_and_b32 s33, s33, 3
    s_add_u32 s4, s4, s33
    s_lshr_b32 s5, s2, 5
    v_lshlrev_b32 v3, 4, v0
    v_lshrrev_b32 v5, 3, v0
    v_and_b32 v6, 7, v0
    v_xor_b32 v6, v6, v5
    v_lshlrev_b32 v6, 4, v6
    v_mul_u32_u24 v2, 1280, v5
    v_add_u32 v2, v2, v6
    v_mov_b32 v4, 0
    s_lshl_b32 s48, s4, 7
    s_lshl_b32 s50, s6, 10
    s_cmp_ge_u32 s6, 4
    s_cbranch_scc1 L_LOADER
    """)
    a(f"""
    s_lshl_b32 s49, s5, 4
    s_add_u32 s49, s48, s49
    s_mul_i32 s49, s49, 1280
    s_lshr_b32 s51, s6, 1
    s_lshl_b32 s51, s51, 7
    s_and_b32 s52, s6, 1
    s_mul_i32 s53, s52, {8*1280}
    s_add_u32 s51, s51, s53
    s_add_u32 s51, s51, s49
    s_lshr_b32 s54, s2, 3
    s_lshl_b32 s54, s54, 10
    s_waitcnt lgkmcnt(0)
    """)
    srd(a, 36, 8, 9, 2048 * 1280)
    a.c("lines no other CU of this XCD is asking for yet: x16 pieces w+4j, one KB of wk / wv (L2 warm-up), gate")
    for j in range(5):
        a(f"s_add_u32 m0, s50, {L_X16 + 4096*j}\ns_add_u32 s53, s51, {256*j}\nbuffer_load_dwordx4 v2, s[36:39], s53 offen lds")
        if j == 0:
            srd(a, 28, 24, 25, WS_END)
            a("s_cmp_eq_u32 s3, 0")
            srd_sel(a, 40, 12, 18, 25600)
            srd_sel(a, 44, 14, 20, 25600)
            srd(a, 72, 64, 65, 1280)
            a(f"""
            s_cmp_eq_u32 s6, 0
            s_cbranch_scc0 L_LA1
            buffer_load_dwordx4 v[96:99], v3, s[40:43], s54 offen
            s_branch L_LA3
            L_LA1:
            s_cmp_eq_u32 s6, 1
            s_cbranch_scc0 L_LA2
            buffer_load_dwordx4 v[96:99], v3, s[44:47], s54 offen
            s_branch L_LA3
            L_LA2:
            s_lshl_b32 s53, s52, 10
            s_add_u32 m0, s53, {L_G}
            s_nop 0
            buffer_load_dwordx4 v3, s[72:75], s53 offen lds
            L_LA3:
            """)
    a(f"s_mov_b32 s53, {FL_EPOCH}\nbuffer_load_dword v9, v4, s[28:31], s53 offen sc1")
    def small_loads():
        a.c("wk / wv: KB w+4j, then 256 B each of the last KB")
        for j in range(6):
            a(f"s_add_u32 m0, s50, {L_WK + 4096*j}\ns_add_u32 s53, s50, {4096*j}\nbuffer_load_dwordx4 v3, s[40:43], s53 offen lds")
            a(f"s_add_u32 m0, s50, {L_WV + 4096*j}\ns_nop 0\nbuffer_load_dwordx4 v3, s[44:47], s53 offen lds")
        a(f"s_lshl_b32 s53, s6, 8\ns_add_u32 s53, s53, {24*1024}\ns_mov_b64 exec, 0xffff\ns_add_u32 m0, s53, {L_WK}\ns_nop 0\nbuffer_load_dwordx4 v3, s[40:43], s53 offen lds")
        a(f"s_add_u32 m0, s53, {L_WV}\ns_nop 0\nbuffer_load_dwordx4 v3, s[44:47], s53 offen lds\ns_mov_b64 exec, -1")
    small_loads()
    att_init()
    FS = [152, 180, 100]; ACC = 208
    KVR = [152, 160, 168, 176, 184, 192]
    BASES = [SLOT["F"], SLOT["B"], SLOT["D"]]
    AXR = [248, 250, 252]; AWR = [254, 255, 1]
    def base_of(slot):
        o = SLOT[slot]
        i = max(k for k in range(3) if BASES[k] <= o)
        return i, o - BASES[i]
    a.c("K/V fragment addresses (wave: 0 K d0-15, 1 K and V d16-19, 2 V d0-15, 3 gate)")
    a(f"""
    v_and_b32 v5, 15, v0
    v_lshrrev_b32 v6, 4, v0
    v_and_b32 v7, 7, v0
    v_xor_b32 v7, v7, v6
    v_lshlrev_b32 v7, 4, v7
    v_lshl_add_u32 v10, v5, 7, v7
    v_add_u32 v14, {L_X16}, v10
    v_xor_b32 v15, 64, v14
    v_bfe_u32 v7, v0, 2, 2
    v_lshl_add_u32 v7, v6, 3, v7
    v_mul_u32_u24 v18, 40, v7
    s_lshl_b32 s7, s6, 12
    v_add_u32 v11, s7, v10
    v_lshrrev_b32 v7, 1, v6
    v_lshlrev_b32 v7, 4, v7
    v_and_b32 v8, 1, v6
    v_lshl_add_u32 v7, v8, 2, v7
    v_bfe_u32 v8, v0, 2, 2
    v_add_u32 v7, v7, v8
    v_mul_u32_u24 v7, 160, v7
    v_and_b32 v8, 3, v0
    v_mul_u32_u24 v8, 40, v8
    v_add_u32 v7, v7, v8
    """)
    for k in range(3):
        a(f"v_add_u32 v{AXR[k]}, {BASES[k]}, v11\nv_xor_b32 v{AXR[k]+1}, 64, v{AXR[k]}\nv_add_u32 v{AWR[k]}, {BASES[k] + XB}, v7")
    a.c("store addresses: K -> v12 + s58, V -> v13 + s59, gate -> v12 + s58")
    a(f"""
    s_lshl_b32 s58, s4, 2
    s_lshr_b32 s59, s5, 1
    s_add_u32 s58, s58, s59
    s_mul_i32 s58, s58, 2560
    s_mul_i32 s59, s3, {KV_BYTES}
    s_add_u32 s58, s58, s59
    s_and_b32 s60, s5, 1
    s_mul_i32 s59, s60, 640
    s_add_u32 s59, s59, s58
    s_add_u32 s59, s59, 1280
    v_lshrrev_b32 v7, 1, v6
    v_and_b32 v8, 1, v6
    v_mul_u32_u24 v13, 320, v7
    v_lshl_add_u32 v13, v5, 4, v13
    v_lshl_add_u32 v13, v8, 3, v13
    v_lshlrev_b32 v12, 9, v7
    v_lshl_add_u32 v12, v5, 4, v12
    v_lshl_add_u32 v12, v8, 3, v12
    v_and_b32 v7, 3, v0
    s_mov_b32 s27, {QSCALE}
    s_cmp_eq_u32 s6, 1
    s_cbranch_scc1 L_AD1
    s_cmp_eq_u32 s6, 3
    s_cbranch_scc1 L_AD3
    s_lshl_b32 s60, s60, 8
    s_add_u32 s58, s58, s60
    s_mul_i32 s60, s6, {L_WV // 2}
    v_lshl_add_u32 v18, v7, 3, v18
    v_add_u32 v18, s60, v18
    s_branch L_AD4
    L_AD1:
    s_lshl_b32 s60, s60, 7
    s_add_u32 s58, s58, s60
    s_add_u32 s58, s58, 1024
    s_add_u32 s59, s59, {12*16}
    v_lshlrev_b32 v12, 3, v5
    v_and_b32 v7, 1, v0
    v_mul_u32_u24 v7, {L_WV}, v7
    v_add3_u32 v18, v18, v7, 32
    s_branch L_AD4
    L_AD3:
    s_lshl_b32 s58, s3, 11
    s_add_u32 s58, s58, s48
    s_lshl_b32 s60, s5, 4
    s_add_u32 s58, s58, s60
    s_lshl_b32 s58, s58, 2
    s_add_u32 s58, s58, {WS_G}
    v_lshlrev_b32 v12, 2, v5
    s_lshl_b32 s27, s3, 31
    s_xor_b32 s27, s27, {LOG2E | 0x80000000}
    v_lshlrev_b32 v18, 4, v6
    v_add_u32 v18, {L_G}, v18
    L_AD4:
    """)
    def kv_loop(kind):
        per = 2 if kind == "G" else 3
        nb = 5; ring = 6
        def rd(k):
            f = KVR[k % ring]
            r = [f"ds_read_b128 {vr(f,4)}, v{14 + (k & 1)} offset:{(k >> 1) * 2048}"]
            if kind == "G": r.append(f"ds_read_b128 {vr(f+4,4)}, v18 offset:{64*k}")
            else:
                for hf in range(2):
                    r.append(f"ds_read_b64_tr_b16 {vr(f+4+2*hf,2)}, v18 offset:{(32*k + 4*hf)*40}")
            return r
        def mm(k):
            f = KVR[k % ring]; r = []
            c1 = "0" if k == 0 else "v[20:23]"; c2 = "0" if k == 0 else "v[24:27]"
            if kind in "KHG": r.append(f"v_mfma_f32_16x16x32_bf16 v[20:23], {vr(f+4,4)}, {vr(f,4)}, {c1}")
            if kind in "VH": r.append(f"v_mfma_f32_16x16x32_bf16 v[24:27], {vr(f,4)}, {vr(f+4,4)}, {c2}")
            return r
        for k in range(nb):
            for x in rd(k): a(x)
        for k in range(20):
            ahead = min(k + nb, 20) - (k + 1)
            a(f"s_waitcnt lgkmcnt({ahead * per})")
            for x in mm(k): a(x)
            if k + nb < 20:
                for x in rd(k + nb): a(x)
    def reads(i):
        s, ks = i // 2, i % 2
        bi, base = base_of(SMAP[s])
        ax = AXR[bi] + ks; aw = AWR[bi]; f = FS[i % 3]
        r = [f"ds_read_b128 {vr(f+4*rt,4)}, v{ax} offset:{base + rt*2048}" for rt in range(2)]
        for ct in range(5):
            for hf in range(2):
                r.append(f"ds_read_b64_tr_b16 {vr(f+8+4*ct+2*hf,2)}, v{aw} offset:{base + (32*ks + 8*hf)*160 + 8*ct}")
        return r
    def mf(i, ct):
        f = FS[i % 3]
        return [f"v_mfma_f32_16x16x32_bf16 {vr(ACC+(rt*5+ct)*4,4)}, {vr(f+8+4*ct,4)}, {vr(f+4*rt,4)}, {'0' if i == 0 else vr(ACC+(rt*5+ct)*4,4)}" for rt in range(2)]
    def stage(s):
        for ks in range(2):
            r = reads(2 * s + ks)
            if ks == 1: a("s_waitcnt lgkmcnt(3)")
            if s < 1:
                for x in r: a(x)
                continue
            m = [x for ct in range(5) for x in mf(2 * s - 2 + ks, ct)]
            for k in range(10):
                a(m[k])
                if k < 6: a(r[2*k]); a(r[2*k+1])
        a("s_waitcnt lgkmcnt(0)")
    PUB = optv("pub", 3)
    nb_ = [0]
    def cbar():
        i = nb_[0]; nb_[0] += 1
        if i == PUB: a("s_waitcnt vmcnt(0)")
        a("s_barrier")
        if opt("probeB"):
            stamp(a, 1 + i, True)
            if i == 10: a("s_branch L_FIN2")
        if i == PUB:
            a.c("publish this workgroup's K/V slice (wave 0, one lane)")
            a(f"""
            s_cmp_eq_u32 s6, 0
            s_cbranch_scc0 L_NOPUB
            s_bfe_u32 s56, s2, 0x50001
            s_lshl_b32 s56, s56, 7
            s_lshl_b32 s57, s3, 12
            s_add_u32 s56, s56, s57
            s_lshr_b32 s57, s2, 6
            s_lshl_b32 s57, s57, 2
            s_add_u32 s56, s56, s57
            s_add_u32 s56, s56, {FL_KV}
            """)
            flag_store(a, "s56", 7, 4)
            a("L_NOPUB:")
    a("s_waitcnt vmcnt(0)")
    cbar()
    if not opt("probeB"): stamp(a, 1, True)
    a("v_readfirstlane_b32 s34, v9")
    a("s_cmp_eq_u32 s6, 1\ns_cbranch_scc1 L_KV_H\ns_cmp_eq_u32 s6, 2\ns_cbranch_scc1 L_KV_V\ns_cmp_eq_u32 s6, 3\ns_cbranch_scc1 L_KV_G")
    kst = """
    v_mul_f32 v20, s27, v20
    v_mul_f32 v21, s27, v21
    v_mul_f32 v22, s27, v22
    v_mul_f32 v23, s27, v23
    v_cvt_pk_bf16_f32 v16, v20, v21
    v_cvt_pk_bf16_f32 v17, v22, v23
    """
    kv_loop("K")
    a.c("the softmax scale rides on K")
    a("s_nop 7" + kst + "buffer_store_dwordx2 v[16:17], v12, s[28:31], s58 offen sc1\ns_branch L_KV_E\nL_KV_H:")
    kv_loop("H")
    a("s_nop 6" + kst + """
    v_cvt_pk_bf16_f32 v18, v24, v25
    v_cvt_pk_bf16_f32 v19, v26, v27
    s_mov_b64 exec, 0xffff
    buffer_store_dwordx2 v[16:17], v12, s[28:31], s58 offen sc1
    s_mov_b32 exec_lo, 0x00f000f0
    s_mov_b32 exec_hi, 0x00f000f0
    buffer_store_dwordx2 v[18:19], v13, s[28:31], s59 offen sc1
    s_mov_b64 exec, -1
    s_branch L_KV_E
    L_KV_G:
    """)
    kv_loop("G")
    a("""
    s_nop 7
    v_mul_f32 v20, s27, v20
    v_exp_f32 v20, v20
    s_nop 0
    v_add_f32 v20, 1.0, v20
    v_rcp_f32 v20, v20
    s_mov_b64 exec, 0xffff
    buffer_store_dword v20, v12, s[28:31], s58 offen sc1
    s_mov_b64 exec, -1
    s_branch L_KV_E
    L_KV_V:
    """)
    kv_loop("V")
    a("""
    s_nop 7
    v_cvt_pk_bf16_f32 v18, v24, v25
    v_cvt_pk_bf16_f32 v19, v26, v27
    buffer_store_dwordx2 v[18:19], v13, s[28:31], s59 offen sc1
    L_KV_E:
    """)
    mk_tag(a)
    a(f"""
    s_mul_i32 s7, s6, 5120
    s_add_u32 s7, s7, {L_QX}
    v_mul_u32_u24 v12, 1280, v6
    v_add_u32 v12, s7, v12
    v_lshl_add_u32 v13, v5, 3, v12
    v_lshl_add_u32 v12, v5, 4, v12
    """)
    if not opt("probeB"): stamp(a, 2, True)
    for s in range(10):
        cbar(); stage(s)
    for rt in range(2):
        for i in (18, 19):
            for ct in range(5): a(mf(i, ct)[rt])
        if rt == 1: stamp(a, 3)
    a.c("Q epilogue: pack, write fragments to LDS [w][head rg][1280]")
    for rt in range(2):
        P = 100 + 12 * rt
        for i in range(10): a(f"v_cvt_pk_bf16_f32 v{P+i}, v{ACC+rt*20+2*i}, v{ACC+rt*20+2*i+1}")
        a(f"ds_write_b128 v12, {vr(P,4)} offset:{rt*256}")
        a(f"ds_write_b128 v12, {vr(P+4,4)} offset:{512+rt*256}")
        a(f"ds_write_b64 v13, {vr(P+8,2)} offset:{1024+rt*128}")
    a("s_branch L_ATT")

    a("L_LOADER:")
    a.c("Wq DMA source offsets for 3 instrs: q=64i+l, p=q/10, c=q%10, src row = swap bits 2,3 of p")
    for i in range(3):
        a(f"""
        v_add_u32 v5, {64*i}, v0
        v_mul_u32_u24 v6, 6554, v5
        v_lshrrev_b32 v6, 16, v6
        v_mul_u32_u24 v7, 10, v6
        v_sub_u32 v7, v5, v7
        v_and_b32 v5, 0x13, v6
        v_and_b32 v8, 4, v6
        v_lshl_or_b32 v5, v8, 1, v5
        v_and_b32 v8, 8, v6
        v_lshrrev_b32 v8, 1, v8
        v_or_b32 v5, v5, v8
        v_mul_u32_u24 v5, 1280, v5
        v_lshl_add_u32 v{10+i}, v7, 4, v5
        """)
    a.c("s33 = k-chunk rotation (0,3,5,8): workgroups sharing Wq columns start at different k")
    a(f"""
    s_sub_u32 s7, s6, 4
    s_lshl_b32 s49, s7, 5
    s_add_u32 s48, s48, s49
    s_mul_i32 s48, s48, 1280
    s_mul_i32 s49, s5, 160
    s_mul_i32 s54, s7, {16*1280}
    s_add_u32 s49, s49, s54
    s_lshl_b32 s54, s7, 12
    s_mul_i32 s51, s7, 2560
    s_add_u32 s51, s51, {XB}
    s_mul_i32 s33, s33, 5
    s_add_u32 s33, s33, 1
    s_lshr_b32 s33, s33, 1
    s_lshl_b32 s50, s7, 10
    s_waitcnt lgkmcnt(0)
    s_cmp_eq_u32 s3, 0
    """)
    srd_sel(a, 72, 10, 16, 640 * 1280)
    Q_ = []
    def kchunk(s):
        return f"s_add_u32 s55, s33, {s}\ns_cmp_ge_u32 s55, 10\ns_cselect_b32 s56, 10, 0\ns_sub_u32 s55, s55, s56\n"
    def items_x(s):
        r = []
        for i in range(4):
            t = (kchunk(s) + "s_lshl_b32 s55, s55, 7\ns_add_u32 s55, s55, s48\n") if i == 0 else ""
            t += f"s_add_u32 m0, s54, {SLOT[SMAP[s]] + 1024*i}\ns_add_u32 s56, s55, {i*8*1280}\nbuffer_load_dwordx4 v2, s[36:39], s56 offen lds"
            r.append((f"X{s}", t))
        return r
    def items_w(s):
        r = []
        for i in range(3):
            t = (kchunk(s) + f"s_mul_i32 s55, s55, {64*1280}\ns_add_u32 s55, s55, s49\n") if i == 0 else ""
            t += f"s_add_u32 m0, s51, {SLOT[SMAP[s]] + 1024*i}\n" + ("s_mov_b32 exec_hi, 0\n" if i == 2 else "s_nop 0\n")
            t += f"buffer_load_dwordx4 v{10+i}, s[72:75], s55 offen lds" + ("\ns_mov_b32 exec_hi, -1" if i == 2 else "")
            r.append((f"W{s}", t))
        return r
    def emit(items):
        for n, t in items:
            a(t); Q_.append(n)
    def younger(name):
        i = max(k for k, n in enumerate(Q_) if n == name)
        return len(Q_) - 1 - i
    lb_ = [0]
    def lbar(name):
        i = lb_[0]; lb_[0] += 1
        if opt("probeB"): stamp(a, 1 + i)
        a(f"s_waitcnt vmcnt({younger(name)})\ns_barrier")
    srd(a, 36, 8, 9, 2048 * 1280)
    srd(a, 28, 24, 25, WS_END)
    NW0 = optv("nw0", 0)
    w012 = items_w(0) + items_w(1) + items_w(2)
    emit(w012[:NW0])
    att_init()
    RL = 152; RA = RL + 64; RS = RA + 12
    a.c("wo re-layout job (wave 5): cb = wg&7, head pair wg>>3, piece u = l/10, octet = l%10 (50 lanes); rows (u<4) 20(u>>1)+4(u&1)+{0..3,8..11}, (u=4) 16+{0..3,20..23}")
    for i in [2, 3, 12, 13]: a(f"v_mov_b32 v{RA+i}, 0")
    a("s_cmp_eq_u32 s6, 5\ns_cbranch_scc0 L_NORL")
    t = RL + 32
    U = RA + 11
    a(f"""
    s_lshr_b32 s56, s2, 3
    s_and_b32 s35, s56, 7
    s_lshl_b32 s35, s35, 1
    s_lshr_b32 s57, s2, 7
    s_add_u32 s35, s35, s57
    s_mul_i32 s35, s35, {40*1280}
    s_mul_i32 s56, s56, 5
    s_and_b32 s57, s2, 7
    s_mul_i32 s32, s57, 160
    s_add_u32 s32, s32, s35
    v_mul_u32_u24 v{U}, 6554, v0
    v_lshrrev_b32 v{U}, 16, v{U}
    v_mul_u32_u24 v{RA}, 10, v{U}
    v_sub_u32 v{RA}, v0, v{RA}
    v_lshrrev_b32 v{t}, 1, v{U}
    v_mul_u32_u24 v{t}, 20, v{t}
    v_and_b32 v{t+1}, 1, v{U}
    v_lshl_add_u32 v{t}, v{t+1}, 2, v{t}
    v_cmp_eq_u32 vcc, 4, v{U}
    v_mov_b32 v{t+1}, 8
    s_nop 0
    v_cndmask_b32 v{t}, v{t}, 16, vcc
    v_cndmask_b32 v{t+1}, v{t+1}, 20, vcc
    v_add_u32 v{t+1}, v{t}, v{t+1}
    v_mul_u32_u24 v{t}, 1280, v{t}
    v_mul_u32_u24 v{t+1}, 1280, v{t+1}
    v_lshl_add_u32 v{RS}, v{RA}, 4, v{t}
    v_lshl_add_u32 v{RS+1}, v{RA}, 4, v{t+1}
    """)
    a.c("destination of the two 4-column chunks: octet o<8: ct = 2(o>>2)+z, rg = o&3 ; o>=8: ct = 4, rg = 2(o&1)+z")
    a(f"""
    v_cmp_lt_u32 vcc, 7, v{RA}
    v_lshrrev_b32 v{t}, 2, v{RA}
    v_mul_u32_u24 v{t}, 81920, v{t}
    v_lshl_add_u32 v{t}, v{U}, 8, v{t}
    v_and_b32 v{t+1}, 3, v{RA}
    v_lshlrev_b32 v{t+2}, 1, v{t+1}
    v_cndmask_b32 v{t+1}, v{t+1}, v{t+2}, vcc
    v_lshl_add_u32 v{RA+2}, v{t+1}, 6, v{t}
    v_mov_b32 v{t+1}, 40960
    v_cndmask_b32 v{t+1}, v{t+1}, 64, vcc
    v_add_u32 v{RA+3}, v{RA+2}, v{t+1}
    """)
    a(f"""
    s_mul_i32 s35, s57, {5*40960}
    s_lshl_b32 s56, s56, 8
    s_add_u32 s35, s35, s56
    s_add_u32 s35, s35, {WS_WO}
    L_NORL:
    v_lshlrev_b32 v13, 7, v{T0}
    s_lshl_b32 s57, s3, 12
    s_add_u32 s57, s57, {FL_KV}
    """)
    NWB = optv("nwb", 6)
    emit(w012[NW0:NWB])
    a(f"s_mov_b32 s53, {FL_EPOCH}\nbuffer_load_dword v9, v4, s[28:31], s53 offen sc1")
    stamp(a, 1)
    lb_[0] += 1
    a("s_barrier")
    emit(w012[NWB:] + items_x(0) + items_x(1) + items_x(2))
    rest = []
    for s in range(3, 10): rest += items_w(s) + items_x(s)
    PER = [int(c) for c in str(optv("per", 76666666))]
    for r in range(8):
        lbar(f"X{r}")
        if r == 0:
            a("v_readfirstlane_b32 s34, v9")
            if not opt("probeB"): stamp(a, 2)
        if r == 1: mk_tag(a)
        chunk = rest[:PER[r]]; rest = rest[PER[r]:]
        for nme, _ in chunk:
            s = int(nme[1:]); prev = [p for p in range(s) if SMAP[p] == SMAP[s]]
            if prev: assert r >= prev[-1] + 1, (nme, r)
            assert r < s
        emit(chunk)
        if r == optv("pr", 5):
            emit([("PL", "s_cmp_eq_u32 s6, 4\ns_cselect_b32 exec_lo, -1, 1\ns_mov_b32 exec_hi, 0\nbuffer_load_dwordx4 v[16:19], v13, s[28:31], s57 offen sc1\ns_mov_b64 exec, -1")])
    assert not rest
    a.c("wave 4: one look at the K/V flags; if complete, fetch the first tiles of the image early")
    def img(r): a(f"s_mov_b32 m0, {1024*r}\ns_mov_b32 s20, {1024*r}\nbuffer_load_dwordx4 v{IMG}, s[28:31], s20 offen sc1 lds")
    NE = optv("ne", 6)
    a(f"""
    s_cmp_eq_u32 s6, 4
    s_cbranch_scc0 L_N4
    s_mov_b32 exec_hi, 0
    s_waitcnt vmcnt({younger("PL")})
    v_cmp_ne_u32 vcc, s34, v16
    v_cmp_ne_u32 s[58:59], s34, v17
    s_or_b64 vcc, vcc, s[58:59]
    v_cmp_ne_u32 s[58:59], s34, v18
    s_or_b64 vcc, vcc, s[58:59]
    v_cmp_ne_u32 s[58:59], s34, v19
    s_or_b64 vcc, vcc, s[58:59]
    s_mov_b32 exec_hi, -1
    s_cmp_eq_u64 vcc, 0
    s_cbranch_scc1 L_EARLY
    s_waitcnt vmcnt({younger("X8")})
    s_barrier
    s_waitcnt vmcnt(0)
    s_barrier
    s_mov_b32 s20, -1
    s_mov_b32 s21, 0
    """)
    if opt("probeB"): a("s_branch L_FIN2")
    stamp(a, 3)
    poll(a, "L_PKV", 13, "s57", 4, 16, mask="s[20:21]", preloaded=False)
    stamp(a, 4)
    for r in range(NE): img(r)
    a("s_branch L_LATE\nL_EARLY:")
    a(f"s_waitcnt vmcnt({younger('X8')})\ns_barrier")
    for r in range(NE): img(r)
    a(f"s_waitcnt vmcnt({NE})\ns_barrier")
    if opt("probeB"): a("s_branch L_FIN2")
    stamp(a, 3); stamp(a, 4)
    a("L_LATE:")
    NX = 0
    for r in range(NE, NCH0): img(r)
    a(f"s_waitcnt vmcnt({NCH0 - 5})\ns_branch L_ATT\nL_N4:")
    lbar("X8")
    lbar("X9")
    if opt("probeB"): a("s_branch L_FIN2")
    stamp(a, 3)

    pAK1, pAK2, pAV = AK1, AK2, AV
    AK1, AK2, AV = 3, 2, 1
    def rdK(b, off):
        return [f"ds_read_b128 {vr(KF1[b],4)}, v{AK1} offset:{off}", f"ds_read_b32 v{KF2[b]}, v{AK2} offset:{off+1024}"]
    def rdV(b, off):
        return ["s_mov_b64 exec, s[36:37]",
                f"ds_read_b128 {vr(VF[b],4)}, v{AV} offset:{off+1280}", f"ds_read_b128 {vr(VF[b]+4,4)}, v{AV} offset:{off+1920}",
                "s_mov_b64 exec, -1"]
    def qk1(u, kb): return f"v_mfma_f32_32x32x16_bf16 {vr(S[u%4],16)}, {vr(KF1[kb],4)}, {vr(Q1[u%2],4)}, 0"
    def qk2(u, kb): return f"v_mfma_f32_32x32x8_bf16 {vr(S[u%4],16)}, {vr(KF2[kb],2)}, {vr(Q2[u%2],2)}, {vr(S[u%4],16)}"
    def pv(u, vb, i): return f"v_smfmac_f32_32x32x32_bf16 {vr(O[u%2],16)}, {vr(VF[vb]+4*i,4)}, {vr(S[u%4]+8*i,8)}, v{IDX}"
    a("L_ATT:")
    a(f"""
    v_mov_b32 v{AK2}, v{pAK2}
    v_mov_b32 v{AV}, v{pAV}
    v_mov_b32 v{IDX}, 0xdddddddd
    v_mov_b32 v{Q2[0]+1}, 0
    v_mov_b32 v{Q2[1]+1}, 0
    v_lshlrev_b32 v{T2}, 2, v{T0}
    s_mov_b32 s36, 0x000fffff
    s_mov_b32 s37, 0x000fffff
    s_mov_b32 s38, 0
    s_mov_b32 s39, -1
    s_mov_b32 s42, 1
    s_mov_b32 s44, 8
    s_waitcnt lgkmcnt(0)
    s_barrier
    ds_read_b128 {vr(Q1[0],4)}, v{AQ1}
    ds_read_b32 v{Q2[0]}, v{AQ2} offset:1024
    ds_read_b128 {vr(Q1[1],4)}, v{AQ1} offset:1280
    ds_read_b32 v{Q2[1]}, v{AQ2} offset:2304
    """)
    for x in rdK(0, 0) + rdK(1, 2560) + rdV(1, 0): a(x)
    a(f"buffer_load_dword v{G}, v{T2}, s[28:31], s14 offen sc1")
    stamp(a, 5, True)
    a.c("stand-in for the row max: the max over the first 32 keys")
    a("s_waitcnt lgkmcnt(4)")
    a(f"v_mfma_f32_32x32x16_bf16 {vr(S[2],16)}, {vr(KF1[0],4)}, {vr(Q1[0],4)}, 0")
    a(f"v_mfma_f32_32x32x16_bf16 {vr(S[1],16)}, {vr(KF1[0],4)}, {vr(Q1[1],4)}, 0")
    a("s_cmp_eq_u32 s6, 4\ns_cbranch_scc0 L_BQ2\ns_waitcnt vmcnt(" + str(NX + 1) + ")\nL_BQ2:\ns_barrier\ns_nop 6")
    a(f"v_mfma_f32_32x32x8_bf16 {vr(S[0],16)}, {vr(KF2[0],2)}, {vr(Q2[0],2)}, {vr(S[2],16)}")
    a(f"v_mfma_f32_32x32x8_bf16 {vr(S[1],16)}, {vr(KF2[0],2)}, {vr(Q2[1],2)}, {vr(S[1],16)}")
    a("s_nop 10")
    for j in range(2):
        a(f"v_max3_f32 v{M[j]}, v{S[j]}, v{S[j]+1}, v{S[j]+2}\nv_max3_f32 v{T2+j}, v{S[j]+3}, v{S[j]+4}, v{S[j]+5}")
        for i in range(6, 16, 4):
            a(f"v_max3_f32 v{M[j]}, v{S[j]+i}, v{S[j]+i+1}, v{M[j]}")
            if i + 2 < 16: a(f"v_max3_f32 v{T2+j}, v{S[j]+i+2}, v{S[j]+i+3}, v{T2+j}")
        a(f"v_max_f32 v{M[j]}, v{M[j]}, v{T2+j}\nv_mov_b32 v{T2+j}, v{M[j]}")
        if j == 0: a("s_nop 1")
        else: a(f"v_mfma_f32_32x32x8_bf16 {vr(S[0],16)}, {vr(KF2[0],2)}, {vr(Q2[0],2)}, {vr(S[2],16)}\ns_nop 0")
        a(f"""
        v_permlane32_swap_b32 v{M[j]}, v{T2+j}
        s_nop 0
        v_min_f32 v{M[j]}, -v{M[j]}, -v{T2+j}
        v_lshrrev_b32 v{M[j]}, 16, v{M[j]}
        v_cndmask_b32 v{Q2[j]+1}, v{M[j]}, 0, s[38:39]
        """)
    a(f"""
    s_cmp_eq_u32 s13, 0
    s_cbranch_scc0 L_LAG0
    s_setprio 2
    s_waitcnt lgkmcnt(0)
    s_nop 2
    s_branch L_PR
    L_LAG0:
    """)
    a.c("waves 4-7: rest of the K/V image, side jobs, then S1 (waves 0-3 meet it after their first 8 tiles)")
    def rl_loads():
        a("s_bitcmp0_b32 s2, 6")
        srd_sel(a, 72, 68, 22, 640 * 1280)
        a("s_mov_b32 exec_hi, 0x3ffff")
        for e in range(8):
            a(f"buffer_load_dwordx4 {vr(RL+4*e,4)}, v{RS+e//4}, s[72:75], s32 offen offset:{(e%4)*1280}")
    def rl_stores():
        a("s_mov_b32 s56, 0x05040100\ns_mov_b32 s57, 0x07060302\ns_mov_b32 exec_hi, 0x3ffff")
        a.c("wo re-layout: 8x8 16-bit transposition in registers")
        for c in range(8):
            for r in range(4):
                a(f"v_perm_b32 v{RL+32+4*c+r}, v{RL+4*(2*r+1)+c//2}, v{RL+4*(2*r)+c//2}, {'s56' if c % 2 == 0 else 's57'}")
            a(f"buffer_store_dwordx4 {vr(RL+32+4*c,4)}, v{RA+2+c//4}, s[28:31], s35 offen offset:{(c%4)*16} sc1")
    RLE = False
    if RLE:
        a("s_cmp_eq_u32 s6, 5\ns_cbranch_scc0 L_NRL")
        rl_loads()
        a("s_mov_b32 exec_hi, -1\nL_NRL:")
    quads = [k for k in range(24, 160, 4) if not (56 <= k < 56 + NX)]
    for k in quads:
        a(f"s_add_u32 m0, s50, {1024*k}\ns_add_u32 s20, s50, {1024*k}\nbuffer_load_dwordx4 v{IMG}, s[28:31], s20 offen sc1 lds")
    a("s_cmp_eq_u32 s6, 5\ns_cbranch_scc0 L_POIS")
    if RLE:
        a(f"s_waitcnt vmcnt({len(quads)})")
        rl_stores()
    else: rl_loads()
    a("s_branch L_S1\nL_POIS:")
    a.c("waves 4,6,7: mark this workgroup's share of the O hand-off buffer as not yet written (rt16 = 8rb + i, slice 8*branch+hg); one KB column each")
    a(f"""
    s_mul_i32 s55, s4, {8*40960}
    s_lshl_b32 s56, s3, 3
    s_add_u32 s56, s56, s5
    s_mul_i32 s56, s56, 2560
    s_add_u32 s55, s55, s56
    s_add_u32 s55, s55, {WS_O}
    s_sub_u32 s56, s6, 5
    s_max_i32 s56, s56, 0
    s_lshl_b32 s56, s56, 10
    s_add_u32 s55, s55, s56
    v_mov_b32 v{PT}, -1
    v_mov_b32 v{PT+1}, -1
    v_mov_b32 v{PT+2}, -1
    v_mov_b32 v{PT+3}, -1
    s_cmp_eq_u32 s6, 7
    s_cselect_b32 exec_hi, 0, -1
    """)
    for i in range(8):
        a(f"buffer_store_dwordx4 {vr(PT,4)}, v{AK1}, s[28:31], s55 offen sc1\ns_add_u32 s55, s55, 40960")
    a("""
    L_S1:
    s_mov_b32 exec_hi, -1
    s_waitcnt vmcnt(8) lgkmcnt(0)
    s_barrier
    s_setprio 3
    L_PR:
    """)
    stamp(a, 6)
    if opt("cyc"): a("s_memtime s[80:81]")
    if opt("iters"): a("s_memtime s[94:95]\ns_waitcnt lgkmcnt(0)")
    a(".p2align 6\nL_LOOP:")
    for t in range(8):
        for j in range(2):
            u = 2 * t + j
            b = (t + j) % 2
            ex = [f"v_exp_f32 v{S[u%4]+i}, v{S[u%4]+i}" for i in range(16)]
            extra = [[], [], [], []]
            if j == 1:
                a("s_waitcnt lgkmcnt(0)")
                extra[0] = rdK(t % 2, (t + 2) * 2560)
                extra[1] = rdV(t % 2, (t + 1) * 2560)
            ms = [qk1(u + 1, b), qk2(u + 1, b), pv(u - 1, b, 0), pv(u - 1, b, 1)]
            for g in range(4):
                a(ms[g])
                for x in ex[4 * g:4 * g + 2]: a(x)
                for x in extra[g]: a(x)
                for x in ex[4 * g + 2:4 * g + 4]: a(x)
            if t == optv("nlt", 0) and j == 1 and optv("nlh", 3):
                a(f"s_cmp_eq_u32 s43, {16 + optv('nlh', 3) + 1}\ns_cbranch_scc0 L_PH\ns_setprio 1\nL_PH:")
    a(f"v_add_u32 v{AK1}, 20480, v{AK1}\nv_add_u32 v{AK2}, 20480, v{AK2}\nv_add_u32 v{AV}, 20480, v{AV}")
    a(f"""
    s_lshl_b32 s43, s13, 4
    s_add_u32 s43, s43, s44
    s_cmp_eq_u32 s43, {16 + optv("nl", 9)}
    s_cbranch_scc0 L_P1
    s_setprio 1
    L_P1:
    s_cmp_eq_u32 s42, 0
    s_cbranch_scc1 L_NEXT
    {"s_cmp_lg_u32 s43, 8" if opt("noside") else ""}
    {"s_cbranch_scc1 L_NEXT" if opt("noside") else ""}
    s_cmp_eq_u32 s44, 8
    s_cbranch_scc0 L_E0
    s_cmp_eq_u32 s13, 0
    s_cbranch_scc0 L_RL2
    s_barrier
    s_branch L_NEXT
    L_RL2:
    """)
    if not RLE:
        a("s_cmp_eq_u32 s6, 5\ns_cbranch_scc0 L_NEXT\ns_waitcnt vmcnt(0)")
        rl_stores()
        a("s_mov_b32 exec_hi, -1")
    a(f"""
    s_branch L_NEXT
    L_E0:
    s_cmp_eq_u32 s43, {16 + 6}
    s_cbranch_scc0 L_E1
    s_lshl_b32 s56, s2, 2
    s_add_u32 s56, s56, s6
    s_lshl_b32 s56, s56, 2
    s_add_u32 s56, s56, {FL_W - 16}
    v_mov_b32 v{T3}, 0
    s_waitcnt vmcnt(0)
    """)
    flag_store(a, "s56", T2, T3)
    a.c("flags to see: lanes 0-31 the workgroups that re-lay this tile's Wo columns, lanes 32-63 the row group")
    a(f"""
    s_branch L_NEXT
    L_E1:
    s_cmp_eq_u32 s44, 4
    s_cbranch_scc0 L_E2
    v_lshl_add_u32 v{T2}, v{T0}, 3, s5
    v_and_b32 v{T3}, 14, v0
    v_lshlrev_b32 v{T3}, 4, v{T3}
    v_and_or_b32 v{T3}, v0, 1, v{T3}
    s_and_b32 s57, s2, 0x1e
    v_or_b32 v{T3}, s57, v{T3}
    v_cndmask_b32 v{T2}, v{T2}, v{T3}, s[38:39]
    v_lshlrev_b32 v{T2}, 4, v{T2}
    s_mov_b32 s57, {FL_W}
    buffer_load_dwordx4 {vr(PT,4)}, v{T2}, s[28:31], s57 offen sc1
    s_branch L_NEXT
    L_E2:
    s_cmp_eq_u32 s44, 3
    s_cbranch_scc0 L_NEXT
    """)
    poll(a, "L_PW", T2, "s57", 4, PT, sleep=8)
    if opt("touch"):
        a.c("touch this tile's lines of the output (address translation and L2 are warm when the final stores come)")
        srd(a, 72, 66, 67, 2048 * 1280)
        a(f"""
        s_lshl_b32 s56, s4, 1
        s_add_u32 s56, s56, s3
        s_mul_i32 s56, s56, {64*1280}
        s_mul_i32 s57, s5, 160
        s_add_u32 s56, s56, s57
        s_and_b32 s57, s6, 3
        s_mul_i32 s57, s57, 52
        s_add_u32 s56, s56, s57
        v_mul_u32_u24 v{T2}, 1280, v0
        buffer_load_dword v{PT}, v{T2}, s[72:75], s56 offen
        """)
    a.c("prefetch this wave's Wo fragments: [cb=hg][ct][f32 = 5w+st]")
    a(f"""
    s_mul_i32 s56, s5, {5*40960}
    s_mul_i32 s57, s6, 5120
    s_add_u32 s56, s56, s57
    s_add_u32 s56, s56, {WS_WO}
    v_lshlrev_b32 v{T2}, 4, v0
    v_add_u32 v{T3}, 4096, v{T2}
    """)
    for ct in range(5):
        for st in range(5):
            av = T2 if st < 4 else T3
            if not opt("nowo"): a(f"buffer_load_dwordx4 {vr(WO+(st*5+ct)*4,4)}, v{av}, s[28:31], s56 offen offset:{(st%4)*1024} sc1")
        if ct < 4: a("s_add_u32 s56, s56, 40960")
    a("L_NEXT:")
    if opt("iters"):
        for k in range(1, 9): a(f"s_mov_b32 s{76+2*k}, s{76+2*(k+1)}")
        a("s_memtime s[94:95]\ns_waitcnt lgkmcnt(0)")
    a("s_sub_u32 s44, s44, 1\ns_cmp_lg_u32 s44, 0\ns_cbranch_scc1 L_LOOP")
    stamp(a, 7)
    if opt("cyc"): a("s_memtime s[82:83]")
    a(pv(15, 0, 0)); a(pv(15, 0, 1))
    a.c("phase E addresses: tile rows 64*(2rb+branch).., columns 80*hg.. ; wave = K eighth; row tiles in an order rotated by hg")
    a(f"""
    s_setprio 3
    s_mov_b32 s46, {f32bits(2.0**-40)}
    s_mov_b32 s47, {f32bits(2.0**40)}
    s_mov_b32 s23, -2
    s_lshl_b32 s16, s4, 1
    s_add_u32 s16, s16, s3
    s_mul_i32 s21, s16, {4*40960}
    s_mul_i32 s40, s6, 5120
    s_add_u32 s21, s21, s40
    s_add_u32 s21, s21, {WS_O}
    """)
    for i in range(4):
        a(f"s_add_u32 s22, s5, {i}\ns_and_b32 s22, s22, 3\ns_mul_i32 s22, s22, 40960\ns_add_u32 s{17+i}, s21, s22\ns_add_u32 s{8+i}, s22, s40")
    a("s_waitcnt vmcnt(0) lgkmcnt(0)")
    a.c("run-time safety check of the stand-in max: row sums must lie in [2^-40, 2^40], else redo with the true max")
    a(f"""
    v_cndmask_b32 v{M[0]}, v{O[0]+12}, v{O[0]+8}, s[38:39]
    v_cndmask_b32 v{M[1]}, v{O[1]+12}, v{O[1]+8}, s[38:39]
    v_cmp_le_f32 s[48:49], s46, v{M[0]}
    v_cmp_ge_f32 s[50:51], s47, v{M[0]}
    v_cmp_le_f32 s[52:53], s46, v{M[1]}
    v_cmp_ge_f32 s[54:55], s47, v{M[1]}
    v_rcp_f32 v{M[0]}, v{M[0]}
    v_rcp_f32 v{M[1]}, v{M[1]}
    s_and_b64 s[48:49], s[48:49], s[50:51]
    s_and_b64 s[52:53], s[52:53], s[54:55]
    s_and_b64 s[48:49], s[48:49], s[52:53]
    s_cmp_eq_u64 s[48:49], -1
    s_cbranch_scc0 L_BAD
    L_OK:
    v_mul_f32 v{M[0]}, v{M[0]}, v{G}
    v_mul_f32 v{M[1]}, v{M[1]}, v{G}
    """)
    P = S[3]
    for j in range(2):
        for i in range(12): a(f"v_mul_f32 v{O[j]+i}, v{O[j]+i}, v{M[j]}")
        for i in range(4): a(f"v_cvt_pk_bf16_f32 v{P+4*j+i}, v{O[j]+2*i}, v{O[j]+2*i+1}")
        for i in range(2): a(f"v_cvt_pk_bf16_f32 v{P+8+2*j+i}, v{O[j]+8+2*i}, v{O[j]+8+2*i+1}")
        for i in range(4): a(f"v_min_u32 v{P+4*j+i}, s23, v{P+4*j+i}")
        a(f"buffer_store_dwordx4 {vr(P+4*j,4)}, v{OA}, s[28:31], s26 offen offset:{512*j} sc1")
    for i in range(4): a(f"v_min_u32 v{P+8+i}, s23, v{P+8+i}")
    a(f"""
    s_mov_b32 exec_hi, 0
    buffer_store_dwordx4 {vr(P+8,4)}, v{OA}, s[28:31], s26 offen offset:1024 sc1
    """)
    if opt("dup"):
        a(f"buffer_store_dwordx4 {vr(P+8,4)}, v{OA}, s[28:31], s26 offen offset:1024\ns_mov_b32 exec_hi, -1")
        for j in range(2): a(f"buffer_store_dwordx4 {vr(P+4*j,4)}, v{OA}, s[28:31], s26 offen offset:{512*j}")
    a("s_mov_b32 exec_hi, -1\ns_setprio 0")
    EB = not opt("lateb")
    if EB:
        a.c("every wave of this workgroup is past its last K/V read at this barrier: LDS can be reused")
        a("s_cmp_eq_u32 s13, 0\ns_cbranch_scc1 L_NB\ns_barrier\nL_NB:")
    OF = 16
    EA = [96, 116, 16, 36]
    srd(a, 72, 66, 67, 2048 * 1280)
    a.c("partial sums change lanes on their way through LDS: writer (n, rg) -> slot 4n + (rg ^ ((n>>1)&3)); reader lane = 4*row + rg")
    a.c("out address (waves 0-3): row = 64*(2rb+branch) + 16w + (l>>2) ; columns 8rg.., 32+8rg.., 64+4rg..")
    a(f"""
    v_mov_b32 v2, s34
    v_mov_b32 v3, 0
    v_lshlrev_b32 v5, 4, v0
    v_add_u32 v6, 4096, v5
    v_and_b32 v13, 15, v0
    v_lshrrev_b32 v14, 4, v0
    v_bfe_u32 v12, v0, 1, 2
    v_xor_b32 v14, v14, v12
    v_lshl_add_u32 v14, v13, 2, v14
    v_lshlrev_b32 v14, 4, v14
    v_add_u32 v8, s8, v14
    v_add_u32 v9, s9, v14
    v_add_u32 v10, s10, v14
    v_add_u32 v11, s11, v14
    v_bfe_u32 v12, v0, 3, 2
    v_xor_b32 v12, v12, v0
    s_mul_i32 s22, s6, 40960
    v_lshl_add_u32 v12, v12, 4, s22
    s_lshl_b32 s22, s16, 6
    s_lshl_b32 s21, s6, 4
    s_add_u32 s22, s22, s21
    s_mul_i32 s22, s22, 1280
    s_mul_i32 s21, s5, 160
    s_add_u32 s22, s22, s21
    v_lshrrev_b32 v13, 2, v0
    v_mul_u32_u24 v13, 1280, v13
    v_and_b32 v14, 3, v0
    v_lshl_add_u32 v7, v14, 3, v13
    v_lshl_add_u32 v13, v14, 4, v13
    s_mov_b32 s60, {SPIN}
    """)
    REQ = {"A": [int(c) for c in str(optv("reqa", 44444))], "B": [int(c) for c in str(optv("reqb", 12344))]}
    def oload(rt):
        for st in range(5):
            av = 5 if st < 4 else 6
            a(f"buffer_load_dwordx4 {vr(OF+(rt*5+st)*4,4)}, v{av}, s[28:31], s{17+rt} offen offset:{(st%4)*1024} sc1")
    def ewrites(rt):
        return [f"ds_write_b128 v{8+rt}, {vr(EA[rt]+4*ct,4)} offset:{ct*1024}" for ct in range(5)]
    tail = []
    def egemm(tag, bar=-1, wr=True):
        for rt in range(4):
            if rt == bar: a("s_barrier")
            a(f"L_CH{tag}{rt}:")
            b = OF + rt * 20
            w = ewrites(rt - 1) if rt >= 1 and wr else []
            a.c("MFMAs run ahead of the hand-off check (no word may still hold the not-yet-written mark); a failed check redoes the block")
            for st in range(5):
                if st == 0:
                    a(f"s_waitcnt vmcnt({4 + 5*(REQ[tag][rt] - rt - 1)})")
                    for r2 in range(REQ[tag][rt], REQ[tag][rt+1]): oload(r2)
                else: a(f"s_waitcnt vmcnt({4 - st + 5*(REQ[tag][rt+1] - rt - 1)})")
                f = b + 4 * st
                chk = [f"v_max3_u32 v15, v{f}, v{f+1}, v{f+2}" if st == 0 else f"v_max3_u32 v15, v{f}, v{f+1}, v15",
                       f"v_max_u32 v15, v{f+3}, v15" if st == 0 else f"v_max3_u32 v15, v{f+2}, v{f+3}, v15"]
                if st == 4: chk += ["v_cmp_eq_u32 vcc, -1, v15"]
                for ct in range(5):
                    d = vr(EA[rt] + 4 * ct, 4)
                    a(f"v_mfma_f32_16x16x32_bf16 {d}, {vr(WO+(st*5+ct)*4,4)}, {vr(f,4)}, {'0' if st == 0 else d}")
                    if ct < len(chk): a(chk[ct])
                    if w and st >= 1 and ct == 3: a(w[st - 1])
                    if w and st == 4 and ct == 4: a(w[4])
            a(f"s_cbranch_vccnz L_RE{tag}{rt}\nL_GO{tag}{rt}:")
            tail.append((tag, rt))
            if opt("probeE"): stamp(a, [1, 2, 3, 5][rt])
    def retries():
        if PROF and not opt("iters") and not opt("keep4"): a(f"s_waitcnt lgkmcnt(0)\ns_sub_u32 s84, {SPIN}, s60\ns_mul_i32 s84, s84, 100\ns_add_u32 s84, s84, s76")
    a("s_cmp_eq_u32 s13, 0\ns_cbranch_scc1 L_ELEAD")
    a.c("every wave of this workgroup is past its last K/V read at this barrier: LDS can be reused")
    if not opt("asym") and not EB: a("s_barrier")
    if not opt("noack"): a("s_waitcnt vmcnt(0)")
    elif optv("dly", 0): a(f"s_sleep {optv('dly', 0)}")
    stamp(a, 8)
    for rt in range(REQ["B"][0]): oload(rt)
    if opt("asym"): a("s_barrier")
    if opt("probeE"): stamp(a, 6)
    if PROF: a("s_waitcnt lgkmcnt(0)")
    egemm("B", optv("bar", 2))
    stamp(a, 10); retries()
    a("s_waitcnt lgkmcnt(0)\ns_nop 6" if opt("probeE") else "s_waitcnt lgkmcnt(5)\ns_nop 6")
    for x in ewrites(3): a(x)
    a("s_waitcnt lgkmcnt(0)\ns_barrier\ns_branch L_FIN")
    a("L_ELEAD:")
    if not opt("asym") and not (not opt("leadlast")): a("s_barrier")
    a("s_waitcnt vmcnt(0)")
    stamp(a, 8)
    for rt in range(REQ["A"][0]): oload(rt)
    if opt("probeE"): stamp(a, 6)
    if PROF: a("s_waitcnt lgkmcnt(0)")
    if opt("asym"):
        egemm("A", wr=False)
        stamp(a, 9); retries()
        a("s_barrier\ns_setprio 2\ns_waitcnt lgkmcnt(0)\ns_nop 4")
        for rt in range(4):
            for x in ewrites(rt): a(x)
            if rt == 1: a("s_waitcnt lgkmcnt(4)")
    else:
        if (not opt("leadlast")): a("s_barrier")
        a(f"s_setprio {optv('ep', 0)}")
        egemm("A")
        stamp(a, 9); retries()
        a("s_waitcnt lgkmcnt(0)\ns_nop 6" if opt("probeE") else "s_waitcnt lgkmcnt(5)\ns_nop 6")
        for x in ewrites(3): a(x)
    a("s_waitcnt lgkmcnt(0)\ns_barrier")
    R = 56
    def rsum(src0, keep):
        for src in range(4):
            for c in range(5):
                a(f"ds_read_b128 {vr(R+src*20+4*c,4)}, v12 offset:{(src0+src)*5120+c*1024}")
            if src == 1: a("s_waitcnt lgkmcnt(4)")
        a("s_waitcnt lgkmcnt(10)")
        for i in range(20): a(f"v_add_f32 v{R+i}, v{R+i}, v{R+20+i}")
        if keep:
            for i in range(20): a(f"v_add_f32 v{R+i}, v{R+i}, v{16+i}")
        a("s_waitcnt lgkmcnt(0)")
        for i in range(20): a(f"v_add_f32 v{R+40+i}, v{R+40+i}, v{R+60+i}")
        for i in range(20): a(f"v_add_f32 v{16+i}, v{R+i}, v{R+40+i}")
    rsum(0, False)
    a("s_barrier")
    stamp(a, 10, True)
    rsum(4, True)
    for i in range(10): a(f"v_cvt_pk_bf16_f32 v{40+i}, v{16+2*i}, v{16+2*i+1}")
    a("""
    buffer_store_dwordx4 v[40:43], v13, s[72:75], s22 offen
    buffer_store_dwordx4 v[44:47], v13, s[72:75], s22 offen offset:64
    buffer_store_dwordx2 v[48:49], v7, s[72:75], s22 offen offset:128
    """)
    a.c("workgroup 0 advances the epoch: every workgroup has read it by now")
    a(f"""
    s_or_b32 s21, s2, s6
    s_cmp_eq_u32 s21, 0
    s_cbranch_scc0 L_FIN
    s_mov_b32 s21, {FL_EPOCH}
    s_mov_b64 exec, 1
    buffer_store_dword v2, v3, s[28:31], s21 offen sc1
    L_FIN:
    """)
    if PROF: a("s_waitcnt vmcnt(0)")
    stamp(a, 11)
    a("L_FIN2:")
    stamp_flush(a)
    a("s_endpgm")
    for tag, rt in tail:
        a(f"""
        L_RE{tag}{rt}:
        s_cmp_eq_u32 s60, 0
        s_cbranch_scc1 L_GO{tag}{rt}
        s_sub_u32 s60, s60, 1
        s_waitcnt vmcnt(0) lgkmcnt(0)
        s_sleep {optv("slp", 4)}
        """)
        for r2 in range(rt, REQ[tag][rt]): oload(r2)
        a(f"s_branch L_CH{tag}{rt}")
    a("L_BAD:")
    a.c("second (and last) pass: exact row max over all keys, then the same loop again")
    a(f"""
    s_cmp_eq_u32 s42, 0
    s_cbranch_scc1 L_OK
    s_mov_b32 s42, 0
    s_mov_b32 s40, 0xffff0000
    s_mov_b32 s43, 64
    v_subrev_u32 v{AK1}, {KV_BYTES}, v{AK1}
    v_subrev_u32 v{AK2}, {KV_BYTES}, v{AK2}
    v_subrev_u32 v{AV}, {KV_BYTES}, v{AV}
    v_mov_b32 v{T2}, v{AK1}
    v_mov_b32 v{T3}, v{AK2}
    """)
    for j in range(2):
        a(f"v_mov_b32 v{Q2[j]+1}, 0\nv_mov_b32 v{M[j]}, 0xff800000")
    for i in range(32): a(f"v_mov_b32 v{O[0]+i}, 0")
    for i in range(16): a(f"v_mov_b32 v{S[3]+i}, 0")
    a("L_MAXL:")
    a(f"ds_read_b128 {vr(KF1[0],4)}, v{T2}\nds_read_b32 v{KF2[0]}, v{T3} offset:1024")
    a(f"v_add_u32 v{T2}, 2560, v{T2}\nv_add_u32 v{T3}, 2560, v{T3}\ns_waitcnt lgkmcnt(0)")
    for j in range(2): a(qk1(j, 0)); a(qk2(j, 0))
    a("s_nop 11")
    for j in range(2):
        for i in range(8):
            a(f"v_max3_f32 v{M[j]}, v{S[j]+2*i}, v{S[j]+2*i+1}, v{M[j]}")
    a("s_sub_u32 s43, s43, 1\ns_cmp_lg_u32 s43, 0\ns_cbranch_scc1 L_MAXL")
    for x in rdK(0, 0) + rdK(1, 2560) + rdV(1, 0): a(x)
    a.c("-m split exactly into three bf16 pieces that ride in the spare k-slots")
    for j in range(2):
        a(f"""
        v_mov_b32 v{T2}, v{M[j]}
        s_nop 1
        v_permlane32_swap_b32 v{M[j]}, v{T2}
        s_nop 1
        v_min_f32 v{M[j]}, -v{M[j]}, -v{T2}
        v_and_b32 v{T2}, s40, v{M[j]}
        v_sub_f32 v{T3}, v{M[j]}, v{T2}
        v_lshrrev_b32 v{T2}, 16, v{T2}
        v_and_or_b32 v{T2}, v{T3}, s40, v{T2}
        v_and_b32 v{M[j]}, s40, v{T3}
        v_sub_f32 v{T3}, v{T3}, v{M[j]}
        v_and_b32 v{T3}, s40, v{T3}
        v_cndmask_b32 v{Q2[j]+1}, v{T2}, v{T3}, s[38:39]
        """)
    a("s_waitcnt lgkmcnt(0)\ns_nop 0")
    a(qk1(0, 0)); a(qk2(0, 0))
    a("s_mov_b32 s44, 8\ns_setprio 1\ns_nop 9\ns_branch L_LOOP")
    a("L_END:\ns_endpgm")
    return f""".p2align 6
.amdhsa_kernel {N}
  .amdhsa_next_free_vgpr 256
  .amdhsa_next_free_sgpr 102
  .amdhsa_accum_offset 256
  .amdhsa_group_segment_fixed_size 0
  .amdhsa_kernarg_size 112
  .amdhsa_user_sgpr_count 2
  .amdhsa_user_sgpr_kernarg_segment_ptr 1
  .amdhsa_system_sgpr_workgroup_id_x 1
.end_amdhsa_kernel
"""

def main():
    ref = open(f"cdna_kernels/{NAME}.s.ref").read().split("\n")
    head = [l for l in ref if l.startswith(";") and "@launch" not in l]
    a = Asm()
    kd = gen(a)
    out = "\n".join(head) + "\n"
    out += "; @launch grid=(256,1,1) block=(512,1,1) lds=163840\n"
    out += '.amdgcn_target "amdgcn-amd-amdhsa--gfx950"\n.text\n'
    t = a.text()
    if opt("outsc1"): t = "\n".join(l + " sc1" if "buffer_store" in l and "s[72:75]" in l else l for l in t.split("\n"))
    if opt("outnt"): t = "\n".join(l + " nt" if "buffer_store" in l and "s[72:75]" in l else l for l in t.split("\n"))
    if opt("plainonly"): t = "\n".join(l.replace(" sc1", "") if "buffer_store" in l and "s26" in l else l for l in t.split("\n"))
    out += t
    out += '.section .rodata,"a"\n' + kd
    path = ARGS[0] if ARGS and not ARGS[0].startswith("--") else f"cdna_kernels/{NAME}.s"
    open(path, "w").write(out)
main()
```

```python
import math, struct, sys

NAME = "gated_mix__grouped_kv_mqa__grouped_kv_mqa__prompt"
ARGS = sys.argv[1:]
def opt(n): return ("--" + n) in ARGS
def optv(n, d):
    for x in ARGS:
        if x.startswith("--" + n + "="): return int(x.split("=")[1])
    return d

KV_BYTES = 163840
WS_KV   = 0
WS_G    = 2 * KV_BYTES
WS_O    = WS_G + 16384
O_BYTES = 128 * 40 * 1024
WS_WO   = WS_O + O_BYTES
WO_BYTES = 8 * 5 * 40 * 1024
WS_FL   = WS_WO + WO_BYTES
FL_EPOCH = WS_FL
FL_KV   = WS_FL + 256
FL_W    = FL_KV + 8192
WS_END  = FL_W + 4096

def f32bits(x):
    return struct.unpack("<I", struct.pack("<f", x))[0]
QSCALE = f32bits((20 ** -0.5) * math.log2(math.e))
LOG2E = f32bits(math.log2(math.e))

class Asm:
    def __init__(self): self.l = []
    def __call__(self, s):
        for line in s.split("\n"):
            line = line.strip()
            if line: self.l.append(("" if line.endswith(":") else "  ") + line)
    def c(self, s): self.l.append("  ; " + s)
    def text(self): return "\n".join(self.l) + "\n"

def vr(b, n=1): return f"v{b}" if n == 1 else f"v[{b}:{b+n-1}]"

def srd(a, d, lo, hi, nbytes):
    a(f"s_mov_b32 s{d}, s{lo}\ns_mov_b32 s{d+1}, s{hi}\ns_mov_b32 s{d+2}, {nbytes}\ns_mov_b32 s{d+3}, 0x00020000")
def srd_sel(a, d, lo0, lo1, nbytes):
    a(f"s_cselect_b32 s{d}, s{lo0}, s{lo1}\ns_cselect_b32 s{d+1}, s{lo0+1}, s{lo1+1}\ns_mov_b32 s{d+2}, {nbytes}\ns_mov_b32 s{d+3}, 0x00020000")

PROF = opt("prof")
PROF_BASE = 16 << 20
NST = 12
def stamp(a, i, wait=False):
    if PROF and not (opt("iters") and i >= 7):
        a(f"s_memrealtime s[{76+2*i}:{77+2*i}]")
        if wait: a("s_waitcnt lgkmcnt(0)")
def stamp_flush(a):
    if not PROF: return
    a("s_waitcnt lgkmcnt(0)\ns_mov_b64 exec, 1")
    a(f"s_lshl_b32 s62, s2, 3\ns_add_u32 s62, s62, s6\ns_lshl_b32 s62, s62, 6\ns_add_u32 s62, s62, {PROF_BASE}")
    a("s_mov_b32 s30, 0x2000000\nv_mov_b32 v0, 0")
    for i in range(NST):
        a(f"v_mov_b32 v2, s{76+2*i}\nbuffer_store_dword v2, v0, s[28:31], s62 offen offset:{4*i}\ns_nop 1")

SPIN = 200000
def poll(a, lbl, addr_v, soff, width, tmp, mask=None, preloaded=True, sleep=1):
    ld = {1: "dword", 2: "dwordx2", 4: "dwordx4"}[width]
    a(f"s_mov_b32 s60, {SPIN}")
    if mask is not None: a(f"s_mov_b64 exec, {mask}")
    if preloaded: a(f"s_branch {lbl}_chk")
    a(f"{lbl}_ld:")
    a(f"buffer_load_{ld} {vr(tmp,width)}, v{addr_v}, s[28:31], {soff} offen sc1")
    a(f"{lbl}_chk:\ns_waitcnt vmcnt(0)")
    a(f"v_cmp_ne_u32 vcc, s34, v{tmp}")
    for i in range(1, width):
        a(f"v_cmp_ne_u32 s[58:59], s34, v{tmp+i}\ns_or_b64 vcc, vcc, s[58:59]")
    a(f"s_sub_u32 s60, s60, 1\ns_cbranch_scc1 {lbl}_ok")
    a(f"s_cmp_eq_u64 vcc, 0\ns_cbranch_scc1 {lbl}_ok\ns_sleep {sleep}\ns_branch {lbl}_ld\n{lbl}_ok:")
    if mask is not None: a("s_mov_b64 exec, -1")

def flag_store(a, soff, vtmp, vzero):
    a(f"v_mov_b32 v{vtmp}, s34\ns_mov_b64 exec, 1\nbuffer_store_dword v{vtmp}, v{vzero}, s[28:31], {soff} offen sc1\ns_mov_b64 exec, -1")
def mk_tag(a):
    a("s_mul_i32 s34, s34, 0x9e3779b1\ns_add_u32 s34, s34, 0x7f4a7c15")

def gen(a):
    N = NAME + "_kernel"
    STG = 22528; XB = 12288
    L_M = 0; L_G = 25600; RING = 27648
    L_X32 = RING + 4 * STG
    SLOT = {"A": RING, "B": RING + STG, "C": RING + 2 * STG, "D": RING + 3 * STG}
    SMAP = ["A", "B", "C", "D", "A", "B", "C", "D", "A", "B"]
    L_QX = SLOT["D"]
    NCH0 = 25
    Q1 = [4, 12]; Q2 = [8, 16]
    IDX, G = 10, 11
    T2, T3 = 20, 21
    M = [22, 23]
    KF1 = [24, 32]; KF2 = [28, 36]
    OA, IMG, T0, T1 = 30, 31, 38, 39
    VF = [40, 48]
    O = [56, 72]
    S = [88, 104, 120, 136]
    AK1, AK2, AV, AQ1, AQ2 = 88, 89, 90, 91, 92
    WO = 152; PT = 252

    def att_init():
        a.c("attention constants and accumulators; s12 = rt32, s13 = hp, s26 + v30 = O address")
        a(f"""
        s_and_b32 s15, s6, 3
        s_lshl_b32 s13, s4, 2
        s_add_u32 s12, s15, s13
        s_lshr_b32 s13, s6, 2
        s_mul_i32 s15, s15, 5120
        s_mul_i32 s14, s13, 2560
        s_add_u32 s15, s15, s14
        s_add_u32 s15, s15, {L_QX}
        v_and_b32 v{T0}, 31, v0
        v_lshrrev_b32 v{T1}, 5, v0
        v_lshlrev_b32 v{AK2}, 3, v{T0}
        v_lshl_add_u32 v{AK2}, v{T1}, 2, v{AK2}
        v_add_u32 v{AQ1}, s15, v3
        v_add_u32 v{AQ2}, s15, v{AK2}
        v_mul_u32_u24 v{AV}, 20, v{T1}
        v_add_lshl_u32 v{AV}, v{AV}, v{T0}, 4
        s_mul_i32 s26, s12, 81920
        s_lshl_b32 s14, s13, 1
        s_add_u32 s14, s14, s3
        s_lshl_b32 s14, s14, 3
        s_add_u32 s14, s14, s5
        s_mul_i32 s14, s14, 1280
        s_add_u32 s26, s26, s14
        s_add_u32 s26, s26, {WS_O}
        v_lshrrev_b32 v{OA}, 4, v{T0}
        v_mul_u32_u24 v{OA}, 40960, v{OA}
        v_lshl_add_u32 v{OA}, v{T1}, 8, v{OA}
        v_and_b32 v{AK1}, 15, v0
        v_lshl_add_u32 v{OA}, v{AK1}, 4, v{OA}
        s_mul_i32 s14, s3, {KV_BYTES}
        v_add_u32 v{IMG}, s14, v3
        s_lshl_b32 s14, s3, 6
        s_add_u32 s14, s14, s12
        s_lshl_b32 s14, s14, 7
        s_add_u32 s14, s14, {WS_G}
        """)
        for b in range(2):
            a(f"v_mov_b32 v{KF2[b]+1}, 0x3f803f80")
            for i in range(8): a(f"v_mov_b32 v{VF[b]+i}, 0")
        a("s_mov_b32 exec_lo, 0x01100000\ns_mov_b32 exec_hi, 0x01100000")
        for b in range(2):
            for i in range(8): a(f"v_mov_b32 v{VF[b]+i}, 0x3f803f80")
        a("s_mov_b64 exec, -1")
        for i in range(32): a(f"v_mov_b32 v{O[0]+i}, 0")
        for i in range(16): a(f"v_mov_b32 v{S[3]+i}, 0")

    a(f".globl {N}\n.p2align 8\n.type {N},@function\n{N}:")
    a("s_cmp_ge_u32 s2, 256\ns_cbranch_scc1 L_END")
    a("""
    s_load_dwordx8 s[8:15], s[0:1], 0
    s_load_dwordx8 s[16:23], s[0:1], 48
    s_load_dwordx2 s[24:25], s[0:1], 104
    s_load_dwordx4 s[64:67], s[0:1], 80
    s_load_dwordx2 s[68:69], s[0:1], 32
    """)
    if not opt("nocpf"):
        a.c("bring this kernel's own code into L2 ahead of the instruction fetch: 2 KB per workgroup, 16 workgroups of an XCD round cover it")
        a(f"""
        s_getpc_b64 s[56:57]
        L_PCREF:
        s_lshl_b32 s58, s2, 8
        s_and_b32 s58, s58, 0x7800
        v_lshl_add_u32 v94, v0, 2, s58
        v_min_u32 v94, L_END-L_PCREF, v94
        v_mov_b32 v95, s57
        v_add_co_u32 v94, vcc, s56, v94
        s_nop 1
        v_addc_co_u32 v95, vcc, 0, v95, vcc
        global_load_dword v93, v[94:95], off
        """)
    stamp(a, 0)
    a.c("s3 = branch, s4 = rb (128-row block), s5 = hg (head group), s6 = wave, s33 = k-chunk rotation (0,3,5,8), s70 = 32-row tile of the K/V job, s71 = 0: K and gate, 1: V")
    a("""
    v_lshrrev_b32 v1, 6, v0
    v_and_b32 v0, 63, v0
    s_and_b32 s3, s2, 1
    v_readfirstlane_b32 s6, v1
    s_lshr_b32 s4, s2, 1
    s_and_b32 s4, s4, 3
    s_lshl_b32 s4, s4, 2
    s_lshr_b32 s33, s2, 3
    s_and_b32 s33, s33, 3
    s_add_u32 s4, s4, s33
    s_lshr_b32 s5, s2, 5
    v_lshlrev_b32 v3, 4, v0
    v_lshrrev_b32 v5, 3, v0
    v_and_b32 v6, 7, v0
    v_xor_b32 v6, v6, v5
    v_lshlrev_b32 v6, 4, v6
    v_mul_u32_u24 v2, 1280, v5
    v_add_u32 v2, v2, v6
    v_mov_b32 v4, 0
    s_lshl_b32 s48, s4, 7
    s_lshl_b32 s50, s6, 10
    s_lshr_b32 s70, s5, 1
    s_and_b32 s71, s5, 1
    s_lshl_b32 s54, s70, 2
    s_add_u32 s54, s54, s33
    s_mul_i32 s33, s33, 5
    s_add_u32 s33, s33, 1
    s_lshr_b32 s33, s33, 1
    s_cmp_ge_u32 s6, 4
    s_cbranch_scc1 L_LOADER
    """)
    a(f"""
    s_lshl_b32 s49, s70, 2
    s_add_u32 s49, s49, s6
    s_lshl_b32 s49, s49, 3
    s_add_u32 s49, s48, s49
    s_mul_i32 s49, s49, 1280
    s_mul_i32 s53, s71, 640
    s_add_u32 s51, s49, s53
    s_sub_u32 s49, s49, s53
    s_mul_i32 s53, s71, 20480
    s_add_u32 s55, s50, s53
    s_sub_u32 s56, s50, s53
    s_and_b32 s52, s6, 1
    s_lshl_b32 s54, s54, 1
    s_add_u32 s54, s54, s52
    s_lshl_b32 s54, s54, 10
    s_waitcnt lgkmcnt(0)
    """)
    srd(a, 36, 8, 9, 2048 * 1280)
    a.c("the K/V job's 32 rows of x, all of k (they also serve the Q projection); 2 KB of wk / wv as L2 warm-up; gate")
    for j in range(10):
        sl, ss = ("s55", "s51") if j < 5 else ("s56", "s49")
        a(f"s_add_u32 m0, {sl}, {L_X32 + 4096*j}\ns_add_u32 s53, {ss}, {128*j}\nbuffer_load_dwordx4 v2, s[36:39], s53 offen lds")
        if j == 0:
            srd(a, 28, 24, 25, WS_END)
            a("""
            s_cmp_eq_u32 s71, 0
            s_cselect_b32 s12, s12, s14
            s_cselect_b32 s13, s13, s15
            s_cselect_b32 s18, s18, s20
            s_cselect_b32 s19, s19, s21
            s_cmp_eq_u32 s3, 0
            """)
            srd_sel(a, 40, 12, 18, 25600)
            srd(a, 72, 64, 65, 1280)
            a(f"""
            s_cmp_lt_u32 s6, 2
            s_cbranch_scc0 L_LA2
            buffer_load_dwordx4 v[96:99], v3, s[40:43], s54 offen
            s_branch L_LA3
            L_LA2:
            s_lshl_b32 s53, s52, 10
            s_add_u32 m0, s53, {L_G}
            s_nop 0
            buffer_load_dwordx4 v3, s[72:75], s53 offen lds
            L_LA3:
            """)
    a(f"s_mov_b32 s53, {FL_EPOCH}\nbuffer_load_dword v9, v4, s[28:31], s53 offen sc1")
    a.c("wk or wv: KB w+4j, then 256 B each of the last KB")
    for j in range(6):
        a(f"s_add_u32 m0, s50, {L_M + 4096*j}\ns_add_u32 s53, s50, {4096*j}\nbuffer_load_dwordx4 v3, s[40:43], s53 offen lds")
    a(f"s_lshl_b32 s53, s6, 8\ns_add_u32 s53, s53, {24*1024}\ns_mov_b64 exec, 0xffff\ns_add_u32 m0, s53, {L_M}\ns_nop 0\nbuffer_load_dwordx4 v3, s[40:43], s53 offen lds\ns_mov_b64 exec, -1")
    att_init()
    FS = [152, 180, 100]; ACC = 208
    KVR = [152, 164, 176, 188, 200, 212]
    AX = 248; AWR = [250, 251]
    a.c("K/V job: wave = (16-row tile w&1, columns 0-15 / 16-19 by w>>1)")
    a(f"""
    v_and_b32 v5, 15, v0
    v_lshrrev_b32 v6, 4, v0
    v_and_b32 v7, 7, v0
    v_xor_b32 v7, v7, v6
    v_lshlrev_b32 v7, 4, v7
    v_lshl_add_u32 v10, v5, 7, v7
    s_lshl_b32 s53, s52, 11
    s_add_u32 s53, s53, {L_X32}
    v_add_u32 v14, s53, v10
    v_xor_b32 v15, 64, v14
    v_bfe_u32 v7, v0, 2, 2
    v_lshl_add_u32 v7, v6, 3, v7
    v_mul_u32_u24 v18, 40, v7
    v_and_b32 v8, 3, v0
    v_lshlrev_b32 v8, 3, v8
    s_cmp_lt_u32 s6, 2
    s_cselect_b32 s56, -1, 0
    s_cselect_b32 s57, 0, 32
    v_and_b32 v8, s56, v8
    v_add3_u32 v18, v18, v8, s57
    v_lshlrev_b32 v19, 4, v6
    v_add_u32 v19, {L_G}, v19
    v_lshrrev_b32 v7, 1, v6
    v_lshlrev_b32 v7, 4, v7
    v_and_b32 v8, 1, v6
    v_lshl_add_u32 v7, v8, 2, v7
    v_bfe_u32 v8, v0, 2, 2
    v_add_u32 v7, v7, v8
    v_mul_u32_u24 v7, 160, v7
    v_and_b32 v8, 3, v0
    v_mul_u32_u24 v8, 40, v8
    v_add_u32 v7, v7, v8
    v_add_u32 v{AWR[0]}, {SLOT["A"] + XB}, v7
    v_add_u32 v{AWR[1]}, {SLOT["C"] + XB}, v7
    s_cmp_gt_u32 s6, s70
    s_cselect_b32 s62, 1, 0
    s_sub_u32 s62, s6, s62
    s_lshl_b32 s62, s62, 12
    """)
    a.c("store address v12 + s58, lanes s[60:61], scale s27; gate -> v13 + s59, s63 = -+log2e")
    a(f"""
    s_lshl_b32 s58, s4, 2
    s_add_u32 s58, s58, s70
    s_lshl_b32 s59, s58, 1
    s_mul_i32 s58, s58, 2560
    s_mul_i32 s60, s3, {KV_BYTES}
    s_add_u32 s58, s58, s60
    s_add_u32 s59, s59, s52
    s_lshl_b32 s60, s3, 7
    s_add_u32 s59, s59, s60
    s_lshl_b32 s59, s59, 6
    s_add_u32 s59, s59, {WS_G}
    v_lshlrev_b32 v13, 2, v5
    s_lshl_b32 s63, s3, 31
    s_xor_b32 s63, s63, {LOG2E | 0x80000000}
    v_lshrrev_b32 v7, 1, v6
    v_and_b32 v8, 1, v6
    s_mov_b32 s27, {QSCALE}
    s_mov_b64 s[60:61], -1
    s_cmp_eq_u32 s71, 0
    s_cbranch_scc0 L_AD2
    s_cmp_lt_u32 s6, 2
    s_cbranch_scc0 L_AD1
    s_lshl_b32 s53, s52, 8
    s_add_u32 s58, s58, s53
    v_lshlrev_b32 v12, 9, v7
    v_lshl_add_u32 v12, v5, 4, v12
    v_lshl_add_u32 v12, v8, 3, v12
    s_branch L_AD4
    L_AD1:
    s_lshl_b32 s53, s52, 7
    s_add_u32 s58, s58, s53
    s_add_u32 s58, s58, 1024
    v_lshlrev_b32 v12, 3, v5
    s_mov_b64 s[60:61], 0xffff
    s_branch L_AD4
    L_AD2:
    s_mul_i32 s53, s52, 640
    s_add_u32 s58, s58, s53
    s_add_u32 s58, s58, 1280
    v_mul_u32_u24 v12, 320, v7
    v_lshl_add_u32 v12, v5, 4, v12
    v_lshl_add_u32 v12, v8, 3, v12
    s_mov_b32 s27, 1.0
    s_cmp_lt_u32 s6, 2
    s_cbranch_scc1 L_AD4
    s_add_u32 s58, s58, 256
    s_mov_b32 s60, 0x000f000f
    s_mov_b32 s61, 0x000f000f
    L_AD4:
    """)
    def kv_loop(kind):
        per = 4 if kind == "G" else 3
        nb = 3 if kind == "G" else 5
        ring = nb + 1
        def rd(k):
            f = KVR[k % ring]
            r = [f"ds_read_b128 {vr(f,4)}, v{14 + (k & 1)} offset:{(k >> 1) * 4096}"]
            for hf in range(2):
                r.append(f"ds_read_b64_tr_b16 {vr(f+4+2*hf,2)}, v18 offset:{(32*k + 4*hf)*40}")
            if kind == "G": r.append(f"ds_read_b128 {vr(f+8,4)}, v19 offset:{64*k}")
            return r
        def mm(k):
            f = KVR[k % ring]
            c1 = "0" if k == 0 else "v[20:23]"; c2 = "0" if k == 0 else "v[24:27]"
            if kind == "V": r = [f"v_mfma_f32_16x16x32_bf16 v[20:23], {vr(f,4)}, {vr(f+4,4)}, {c1}"]
            else: r = [f"v_mfma_f32_16x16x32_bf16 v[20:23], {vr(f+4,4)}, {vr(f,4)}, {c1}"]
            if kind == "G": r.append(f"v_mfma_f32_16x16x32_bf16 v[24:27], {vr(f+8,4)}, {vr(f,4)}, {c2}")
            return r
        for k in range(nb):
            for x in rd(k): a(x)
        for k in range(20):
            ahead = min(k + nb, 20) - (k + 1)
            a(f"s_waitcnt lgkmcnt({ahead * per})")
            for x in mm(k): a(x)
            if k + nb < 20:
                for x in rd(k + nb): a(x)
    def xaddr(s):
        return [f"s_add_u32 s55, s33, {s}", "s_cmp_ge_u32 s55, 10", "s_cselect_b32 s56, 10, 0", "s_sub_u32 s55, s55, s56",
                "s_lshl_b32 s55, s55, 12", f"s_add_u32 s55, s55, {L_X32}", f"s_add_u32 s56, s62, {SLOT[SMAP[s]]}",
                "s_cmp_eq_u32 s6, s70", "s_cselect_b32 s55, s55, s56", f"v_add_u32 v{AX}, s55, v10", f"v_xor_b32 v{AX+1}, 64, v{AX}"]
    def reads(i):
        s, ks = i // 2, i % 2
        hi = SMAP[s] in "CD"; base = STG if SMAP[s] in "BD" else 0
        f = FS[i % 3]
        r = [f"ds_read_b128 {vr(f+4*rt,4)}, v{AX+ks} offset:{rt*2048}" for rt in range(2)]
        for ct in range(5):
            for hf in range(2):
                r.append(f"ds_read_b64_tr_b16 {vr(f+8+4*ct+2*hf,2)}, v{AWR[hi]} offset:{base + (32*ks + 8*hf)*160 + 8*ct}")
        return r
    def mf(i, ct):
        f = FS[i % 3]
        return [f"v_mfma_f32_16x16x32_bf16 {vr(ACC+(rt*5+ct)*4,4)}, {vr(f+8+4*ct,4)}, {vr(f+4*rt,4)}, {'0' if i == 0 else vr(ACC+(rt*5+ct)*4,4)}" for rt in range(2)]
    def stage(s):
        for ks in range(2):
            r = reads(2 * s + ks)
            if ks == 1: a("s_waitcnt lgkmcnt(3)")
            if s < 1:
                for x in r: a(x)
                continue
            m = [x for ct in range(5) for x in mf(2 * s - 2 + ks, ct)]
            for k in range(10):
                a(m[k])
                if k < 6: a(r[2*k]); a(r[2*k+1])
                elif ks == 1 and s < 9:
                    for x in xaddr(s + 1)[3*(k-6):3*(k-5)]: a(x)
        if s == 0:
            for x in xaddr(1): a(x)
        a("s_waitcnt lgkmcnt(0)")
    PUB = optv("pub", 2)
    nb_ = [0]
    def cbar():
        i = nb_[0]; nb_[0] += 1
        if i == PUB: a("s_waitcnt vmcnt(0)")
        a("s_barrier")
        if opt("probeB"):
            stamp(a, 1 + i, True)
            if i == 10: a("s_branch L_FIN2")
        if i == PUB:
            a.c("publish this workgroup's K/V slice (wave 0, one lane)")
            a(f"""
            s_cmp_eq_u32 s6, 0
            s_cbranch_scc0 L_NOPUB
            s_bfe_u32 s56, s2, 0x50001
            s_lshl_b32 s56, s56, 7
            s_lshl_b32 s57, s3, 12
            s_add_u32 s56, s56, s57
            s_lshr_b32 s57, s2, 6
            s_lshl_b32 s57, s57, 2
            s_add_u32 s56, s56, s57
            s_add_u32 s56, s56, {FL_KV}
            """)
            flag_store(a, "s56", 7, 4)
            a("L_NOPUB:")
    a("s_waitcnt vmcnt(0)")
    cbar()
    if not opt("probeB"): stamp(a, 1, True)
    a("v_readfirstlane_b32 s34, v9")
    a("s_cmp_eq_u32 s71, 1\ns_cbranch_scc1 L_KV_V\ns_cmp_ge_u32 s6, 2\ns_cbranch_scc1 L_KV_G")
    kv_loop("K")
    a("s_branch L_KV_E\nL_KV_G:")
    kv_loop("G")
    a("""
    s_nop 7
    v_mul_f32 v24, s63, v24
    v_exp_f32 v24, v24
    s_nop 0
    v_add_f32 v24, 1.0, v24
    v_rcp_f32 v24, v24
    s_mov_b64 exec, 0xffff
    buffer_store_dword v24, v13, s[28:31], s59 offen sc1
    s_mov_b64 exec, -1
    s_branch L_KV_E
    L_KV_V:
    """)
    kv_loop("V")
    a("L_KV_E:")
    for x in xaddr(0): a(x)
    a.c("the softmax scale rides on K")
    a("""
    v_mul_f32 v20, s27, v20
    v_mul_f32 v21, s27, v21
    v_mul_f32 v22, s27, v22
    v_mul_f32 v23, s27, v23
    v_cvt_pk_bf16_f32 v16, v20, v21
    v_cvt_pk_bf16_f32 v17, v22, v23
    s_mov_b64 exec, s[60:61]
    buffer_store_dwordx2 v[16:17], v12, s[28:31], s58 offen sc1
    s_mov_b64 exec, -1
    """)
    mk_tag(a)
    a(f"""
    s_mul_i32 s7, s6, 5120
    s_add_u32 s7, s7, {L_QX}
    v_mul_u32_u24 v12, 1280, v6
    v_add_u32 v12, s7, v12
    v_lshl_add_u32 v13, v5, 3, v12
    v_lshl_add_u32 v12, v5, 4, v12
    """)
    if not opt("probeB"): stamp(a, 2, True)
    for s in range(10):
        cbar(); stage(s)
    for rt in range(2):
        for i in (18, 19):
            for ct in range(5): a(mf(i, ct)[rt])
        if rt == 1: stamp(a, 3)
    a.c("Q epilogue: pack, write fragments to LDS [w][head rg][1280]")
    for rt in range(2):
        P = 100 + 12 * rt
        for i in range(10): a(f"v_cvt_pk_bf16_f32 v{P+i}, v{ACC+rt*20+2*i}, v{ACC+rt*20+2*i+1}")
        a(f"ds_write_b128 v12, {vr(P,4)} offset:{rt*256}")
        a(f"ds_write_b128 v12, {vr(P+4,4)} offset:{512+rt*256}")
        a(f"ds_write_b64 v13, {vr(P+8,2)} offset:{1024+rt*128}")
    a("s_branch L_ATT")

    a("L_LOADER:")
    a.c("Wq DMA source offsets for 3 instrs: q=64i+l, p=q/10, c=q%10, src row = swap bits 2,3 of p")
    for i in range(3):
        a(f"""
        v_add_u32 v5, {64*i}, v0
        v_mul_u32_u24 v6, 6554, v5
        v_lshrrev_b32 v6, 16, v6
        v_mul_u32_u24 v7, 10, v6
        v_sub_u32 v7, v5, v7
        v_and_b32 v5, 0x13, v6
        v_and_b32 v8, 4, v6
        v_lshl_or_b32 v5, v8, 1, v5
        v_and_b32 v8, 8, v6
        v_lshrrev_b32 v8, 1, v8
        v_or_b32 v5, v5, v8
        v_mul_u32_u24 v5, 1280, v5
        v_lshl_add_u32 v{10+i}, v7, 4, v5
        """)
    a.c("x row groups 3lw+i of the 12 that are not resident -> s40..s42")
    a(f"""
    s_sub_u32 s7, s6, 4
    s_mul_i32 s49, s5, 160
    s_mul_i32 s54, s7, {16*1280}
    s_add_u32 s49, s49, s54
    s_mul_i32 s54, s7, 3072
    s_mul_i32 s51, s7, 2560
    s_add_u32 s51, s51, {XB}
    s_lshl_b32 s50, s7, 10
    s_lshl_b32 s53, s70, 2
    """)
    for i in range(3):
        a(f"""
        s_mul_i32 s55, s7, 3
        s_add_u32 s55, s55, {i}
        s_cmp_ge_u32 s55, s53
        s_cselect_b32 s56, 4, 0
        s_add_u32 s55, s55, s56
        s_lshl_b32 s55, s55, 3
        s_add_u32 s55, s55, s48
        s_mul_i32 s{40+i}, s55, 1280
        """)
    a("s_waitcnt lgkmcnt(0)\ns_cmp_eq_u32 s3, 0")
    srd_sel(a, 72, 10, 16, 640 * 1280)
    Q_ = []
    def kchunk(s):
        return f"s_add_u32 s55, s33, {s}\ns_cmp_ge_u32 s55, 10\ns_cselect_b32 s56, 10, 0\ns_sub_u32 s55, s55, s56\n"
    def items_x(s):
        r = []
        for i in range(3):
            t = (kchunk(s) + "s_lshl_b32 s55, s55, 7\n") if i == 0 else ""
            t += f"s_add_u32 m0, s54, {SLOT[SMAP[s]] + 1024*i}\ns_add_u32 s56, s55, s{40+i}\nbuffer_load_dwordx4 v2, s[36:39], s56 offen lds"
            r.append((f"X{s}", t))
        return r
    def items_w(s):
        r = []
        for i in range(3):
            t = (kchunk(s) + f"s_mul_i32 s55, s55, {64*1280}\ns_add_u32 s55, s55, s49\n") if i == 0 else ""
            t += f"s_add_u32 m0, s51, {SLOT[SMAP[s]] + 1024*i}\n" + ("s_mov_b32 exec_hi, 0\n" if i == 2 else "s_nop 0\n")
            t += f"buffer_load_dwordx4 v{10+i}, s[72:75], s55 offen lds" + ("\ns_mov_b32 exec_hi, -1" if i == 2 else "")
            r.append((f"W{s}", t))
        return r
    def emit(items):
        for n, t in items:
            a(t); Q_.append(n)
    def younger(name):
        i = max(k for k, n in enumerate(Q_) if n == name)
        return len(Q_) - 1 - i
    lb_ = [0]
    def lbar(name):
        i = lb_[0]; lb_[0] += 1
        if opt("probeB"): stamp(a, 1 + i)
        a(f"s_waitcnt vmcnt({younger(name)})\ns_barrier")
    srd(a, 36, 8, 9, 2048 * 1280)
    srd(a, 28, 24, 25, WS_END)
    NW0 = optv("nw0", 0)
    w012 = items_w(0) + items_w(1) + items_w(2)
    emit(w012[:NW0])
    att_init()
    RL = 152; RA = RL + 64; RS = RA + 12
    a.c("wo re-layout job (wave 5): cb = wg&7, head pair wg>>3, piece u = l/10, octet = l%10 (50 lanes); rows (u<4) 20(u>>1)+4(u&1)+{0..3,8..11}, (u=4) 16+{0..3,20..23}")
    for i in [2, 3, 12, 13]: a(f"v_mov_b32 v{RA+i}, 0")
    a("s_cmp_eq_u32 s6, 5\ns_cbranch_scc0 L_NORL")
    t = RL + 32
    U = RA + 11
    a(f"""
    s_lshr_b32 s56, s2, 3
    s_and_b32 s35, s56, 7
    s_lshl_b32 s35, s35, 1
    s_lshr_b32 s57, s2, 7
    s_add_u32 s35, s35, s57
    s_mul_i32 s35, s35, {40*1280}
    s_mul_i32 s56, s56, 5
    s_and_b32 s57, s2, 7
    s_mul_i32 s32, s57, 160
    s_add_u32 s32, s32, s35
    v_mul_u32_u24 v{U}, 6554, v0
    v_lshrrev_b32 v{U}, 16, v{U}
    v_mul_u32_u24 v{RA}, 10, v{U}
    v_sub_u32 v{RA}, v0, v{RA}
    v_lshrrev_b32 v{t}, 1, v{U}
    v_mul_u32_u24 v{t}, 20, v{t}
    v_and_b32 v{t+1}, 1, v{U}
    v_lshl_add_u32 v{t}, v{t+1}, 2, v{t}
    v_cmp_eq_u32 vcc, 4, v{U}
    v_mov_b32 v{t+1}, 8
    s_nop 0
    v_cndmask_b32 v{t}, v{t}, 16, vcc
    v_cndmask_b32 v{t+1}, v{t+1}, 20, vcc
    v_add_u32 v{t+1}, v{t}, v{t+1}
    v_mul_u32_u24 v{t}, 1280, v{t}
    v_mul_u32_u24 v{t+1}, 1280, v{t+1}
    v_lshl_add_u32 v{RS}, v{RA}, 4, v{t}
    v_lshl_add_u32 v{RS+1}, v{RA}, 4, v{t+1}
    """)
    a.c("destination of the two 4-column chunks: octet o<8: ct = 2(o>>2)+z, rg = o&3 ; o>=8: ct = 4, rg = 2(o&1)+z")
    a(f"""
    v_cmp_lt_u32 vcc, 7, v{RA}
    v_lshrrev_b32 v{t}, 2, v{RA}
    v_mul_u32_u24 v{t}, 81920, v{t}
    v_lshl_add_u32 v{t}, v{U}, 8, v{t}
    v_and_b32 v{t+1}, 3, v{RA}
    v_lshlrev_b32 v{t+2}, 1, v{t+1}
    v_cndmask_b32 v{t+1}, v{t+1}, v{t+2}, vcc
    v_lshl_add_u32 v{RA+2}, v{t+1}, 6, v{t}
    v_mov_b32 v{t+1}, 40960
    v_cndmask_b32 v{t+1}, v{t+1}, 64, vcc
    v_add_u32 v{RA+3}, v{RA+2}, v{t+1}
    """)
    a(f"""
    s_mul_i32 s35, s57, {5*40960}
    s_lshl_b32 s56, s56, 8
    s_add_u32 s35, s35, s56
    s_add_u32 s35, s35, {WS_WO}
    L_NORL:
    v_lshlrev_b32 v13, 7, v{T0}
    s_lshl_b32 s57, s3, 12
    s_add_u32 s57, s57, {FL_KV}
    """)
    NWB = optv("nwb", 6)
    emit(w012[NW0:NWB])
    a(f"s_mov_b32 s53, {FL_EPOCH}\nbuffer_load_dword v9, v4, s[28:31], s53 offen sc1")
    stamp(a, 1)
    lb_[0] += 1
    a("s_barrier")
    emit(w012[NWB:] + items_x(0) + items_x(1) + items_x(2))
    rest = []
    for s in range(3, 10): rest += items_w(s) + items_x(s)
    PER = [int(c) for c in str(optv("per", 66666660))]
    for r in range(8):
        lbar(f"X{r}")
        if r == 0:
            a("v_readfirstlane_b32 s34, v9")
            if not opt("probeB"): stamp(a, 2)
        if r == 1: mk_tag(a)
        chunk = rest[:PER[r]]; rest = rest[PER[r]:]
        for nme, _ in chunk:
            s = int(nme[1:]); prev = [p for p in range(s) if SMAP[p] == SMAP[s]]
            if prev: assert r >= prev[-1] + 1, (nme, r)
            assert r < s
        emit(chunk)
        if r == optv("pr", 4):
            emit([("PL", "s_cmp_eq_u32 s6, 4\ns_cselect_b32 exec_lo, -1, 1\ns_mov_b32 exec_hi, 0\nbuffer_load_dwordx4 v[16:19], v13, s[28:31], s57 offen sc1\ns_mov_b64 exec, -1")])
    assert not rest
    a.c("wave 4: one look at the K/V flags; if complete, fetch the first tiles of the image early")
    def img(r): a(f"s_mov_b32 m0, {1024*r}\ns_mov_b32 s20, {1024*r}\nbuffer_load_dwordx4 v{IMG}, s[28:31], s20 offen sc1 lds")
    NE = optv("ne", 6)
    a(f"""
    s_cmp_eq_u32 s6, 4
    s_cbranch_scc0 L_N4
    s_mov_b32 exec_hi, 0
    s_waitcnt vmcnt({younger("PL")})
    v_cmp_ne_u32 vcc, s34, v16
    v_cmp_ne_u32 s[58:59], s34, v17
    s_or_b64 vcc, vcc, s[58:59]
    v_cmp_ne_u32 s[58:59], s34, v18
    s_or_b64 vcc, vcc, s[58:59]
    v_cmp_ne_u32 s[58:59], s34, v19
    s_or_b64 vcc, vcc, s[58:59]
    s_mov_b32 exec_hi, -1
    s_cmp_eq_u64 vcc, 0
    s_cbranch_scc1 L_EARLY
    s_waitcnt vmcnt({younger("X8")})
    s_barrier
    s_waitcnt vmcnt(0)
    s_barrier
    s_mov_b32 s20, -1
    s_mov_b32 s21, 0
    """)
    if opt("probeB"): a("s_branch L_FIN2")
    stamp(a, 3)
    poll(a, "L_PKV", 13, "s57", 4, 16, mask="s[20:21]", preloaded=False)
    stamp(a, 4)
    for r in range(NE): img(r)
    a("s_branch L_LATE\nL_EARLY:")
    a(f"s_waitcnt vmcnt({younger('X8')})\ns_barrier")
    for r in range(NE): img(r)
    a(f"s_waitcnt vmcnt({NE})\ns_barrier")
    if opt("probeB"): a("s_branch L_FIN2")
    stamp(a, 3); stamp(a, 4)
    a("L_LATE:")
    NX = 0
    for r in range(NE, NCH0): img(r)
    a(f"s_waitcnt vmcnt({NCH0 - 5})\ns_branch L_ATT\nL_N4:")
    lbar("X8")
    lbar("X9")
    if opt("probeB"): a("s_branch L_FIN2")
    stamp(a, 3)

    pAK1, pAK2, pAV = AK1, AK2, AV
    AK1, AK2, AV = 3, 2, 1
    def rdK(b, off):
        return [f"ds_read_b128 {vr(KF1[b],4)}, v{AK1} offset:{off}", f"ds_read_b32 v{KF2[b]}, v{AK2} offset:{off+1024}"]
    def rdV(b, off):
        return ["s_mov_b64 exec, s[36:37]",
                f"ds_read_b128 {vr(VF[b],4)}, v{AV} offset:{off+1280}", f"ds_read_b128 {vr(VF[b]+4,4)}, v{AV} offset:{off+1920}",
                "s_mov_b64 exec, -1"]
    def qk1(u, kb): return f"v_mfma_f32_32x32x16_bf16 {vr(S[u%4],16)}, {vr(KF1[kb],4)}, {vr(Q1[u%2],4)}, 0"
    def qk2(u, kb): return f"v_mfma_f32_32x32x8_bf16 {vr(S[u%4],16)}, {vr(KF2[kb],2)}, {vr(Q2[u%2],2)}, {vr(S[u%4],16)}"
    def pv(u, vb, i): return f"v_smfmac_f32_32x32x32_bf16 {vr(O[u%2],16)}, {vr(VF[vb]+4*i,4)}, {vr(S[u%4]+8*i,8)}, v{IDX}"
    a("L_ATT:")
    a(f"""
    v_mov_b32 v{AK2}, v{pAK2}
    v_mov_b32 v{AV}, v{pAV}
    v_mov_b32 v{IDX}, 0xdddddddd
    v_mov_b32 v{Q2[0]+1}, 0
    v_mov_b32 v{Q2[1]+1}, 0
    v_lshlrev_b32 v{T2}, 2, v{T0}
    s_mov_b32 s36, 0x000fffff
    s_mov_b32 s37, 0x000fffff
    s_mov_b32 s38, 0
    s_mov_b32 s39, -1
    s_mov_b32 s42, 1
    s_mov_b32 s43, 0
    s_mov_b32 s44, 8
    s_waitcnt lgkmcnt(0)
    s_barrier
    ds_read_b128 {vr(Q1[0],4)}, v{AQ1}
    ds_read_b32 v{Q2[0]}, v{AQ2} offset:1024
    ds_read_b128 {vr(Q1[1],4)}, v{AQ1} offset:1280
    ds_read_b32 v{Q2[1]}, v{AQ2} offset:2304
    """)
    for x in rdK(0, 0) + rdK(1, 2560) + rdV(1, 0): a(x)
    a(f"buffer_load_dword v{G}, v{T2}, s[28:31], s14 offen sc1")
    stamp(a, 5, True)
    a.c("stand-in for the row max: the max over the first 32 keys")
    a("s_waitcnt lgkmcnt(4)")
    a(f"v_mfma_f32_32x32x16_bf16 {vr(S[2],16)}, {vr(KF1[0],4)}, {vr(Q1[0],4)}, 0")
    a(f"v_mfma_f32_32x32x16_bf16 {vr(S[1],16)}, {vr(KF1[0],4)}, {vr(Q1[1],4)}, 0")
    a("s_cmp_eq_u32 s6, 4\ns_cbranch_scc0 L_BQ2\ns_waitcnt vmcnt(" + str(NX + 1) + ")\nL_BQ2:\ns_barrier\ns_nop 6")
    a(f"v_mfma_f32_32x32x8_bf16 {vr(S[0],16)}, {vr(KF2[0],2)}, {vr(Q2[0],2)}, {vr(S[2],16)}")
    a(f"v_mfma_f32_32x32x8_bf16 {vr(S[1],16)}, {vr(KF2[0],2)}, {vr(Q2[1],2)}, {vr(S[1],16)}")
    a("s_nop 10")
    for j in range(2):
        a(f"v_max3_f32 v{M[j]}, v{S[j]}, v{S[j]+1}, v{S[j]+2}\nv_max3_f32 v{T2+j}, v{S[j]+3}, v{S[j]+4}, v{S[j]+5}")
        for i in range(6, 16, 4):
            a(f"v_max3_f32 v{M[j]}, v{S[j]+i}, v{S[j]+i+1}, v{M[j]}")
            if i + 2 < 16: a(f"v_max3_f32 v{T2+j}, v{S[j]+i+2}, v{S[j]+i+3}, v{T2+j}")
        a(f"v_max_f32 v{M[j]}, v{M[j]}, v{T2+j}\nv_mov_b32 v{T2+j}, v{M[j]}")
        if j == 0: a("s_nop 1")
        else: a(f"v_mfma_f32_32x32x8_bf16 {vr(S[0],16)}, {vr(KF2[0],2)}, {vr(Q2[0],2)}, {vr(S[2],16)}\ns_nop 0")
        a(f"""
        v_permlane32_swap_b32 v{M[j]}, v{T2+j}
        s_nop 0
        v_min_f32 v{M[j]}, -v{M[j]}, -v{T2+j}
        v_lshrrev_b32 v{M[j]}, 16, v{M[j]}
        v_cndmask_b32 v{Q2[j]+1}, v{M[j]}, 0, s[38:39]
        """)
    a(f"""
    s_cmp_eq_u32 s13, 0
    s_cbranch_scc0 L_LAG0
    s_setprio 2
    s_waitcnt lgkmcnt(0)
    s_nop 2
    s_branch L_PR
    L_LAG0:
    """)
    a.c("waves 4-7: rest of the K/V image, side jobs, then S1 (waves 0-3 meet it after their first 8 tiles)")
    def rl_loads():
        a("s_bitcmp0_b32 s2, 6")
        srd_sel(a, 72, 68, 22, 640 * 1280)
        a("s_mov_b32 exec_hi, 0x3ffff")
        for e in range(8):
            a(f"buffer_load_dwordx4 {vr(RL+4*e,4)}, v{RS+e//4}, s[72:75], s32 offen offset:{(e%4)*1280}")
    def rl_stores():
        a("s_mov_b32 s56, 0x05040100\ns_mov_b32 s57, 0x07060302\ns_mov_b32 exec_hi, 0x3ffff")
        a.c("wo re-layout: 8x8 16-bit transposition in registers")
        for c in range(8):
            for r in range(4):
                a(f"v_perm_b32 v{RL+32+4*c+r}, v{RL+4*(2*r+1)+c//2}, v{RL+4*(2*r)+c//2}, {'s56' if c % 2 == 0 else 's57'}")
            a(f"buffer_store_dwordx4 {vr(RL+32+4*c,4)}, v{RA+2+c//4}, s[28:31], s35 offen offset:{(c%4)*16} sc1")
    RLE = False
    if RLE:
        a("s_cmp_eq_u32 s6, 5\ns_cbranch_scc0 L_NRL")
        rl_loads()
        a("s_mov_b32 exec_hi, -1\nL_NRL:")
    quads = [k for k in range(24, 160, 4) if not (56 <= k < 56 + NX)]
    for k in quads:
        a(f"s_add_u32 m0, s50, {1024*k}\ns_add_u32 s20, s50, {1024*k}\nbuffer_load_dwordx4 v{IMG}, s[28:31], s20 offen sc1 lds")
    a("s_cmp_eq_u32 s6, 5\ns_cbranch_scc0 L_POIS")
    if RLE:
        a(f"s_waitcnt vmcnt({len(quads)})")
        rl_stores()
    else: rl_loads()
    a("s_branch L_S1\nL_POIS:")
    a.c("waves 4,6,7: mark this workgroup's share of the O hand-off buffer as not yet written (rt16 = 8rb + i, slice 8*branch+hg); one KB column each")
    a(f"""
    s_mul_i32 s55, s4, {8*40960}
    s_lshl_b32 s56, s3, 3
    s_add_u32 s56, s56, s5
    s_mul_i32 s56, s56, 2560
    s_add_u32 s55, s55, s56
    s_add_u32 s55, s55, {WS_O}
    s_sub_u32 s56, s6, 5
    s_max_i32 s56, s56, 0
    s_lshl_b32 s56, s56, 10
    s_add_u32 s55, s55, s56
    v_mov_b32 v{PT}, -1
    v_mov_b32 v{PT+1}, -1
    v_mov_b32 v{PT+2}, -1
    v_mov_b32 v{PT+3}, -1
    s_cmp_eq_u32 s6, 7
    s_cselect_b32 exec_hi, 0, -1
    """)
    for i in range(8):
        a(f"buffer_store_dwordx4 {vr(PT,4)}, v{AK1}, s[28:31], s55 offen sc1\ns_add_u32 s55, s55, 40960")
    a("""
    L_S1:
    s_mov_b32 exec_hi, -1
    s_waitcnt vmcnt(8) lgkmcnt(0)
    s_barrier
    s_setprio 3
    L_PR:
    """)
    stamp(a, 6)
    if opt("cyc"): a("s_memtime s[80:81]")
    if opt("iters"): a("s_memtime s[94:95]\ns_waitcnt lgkmcnt(0)")
    a(".p2align 6\nL_LOOP:")
    for t in range(8):
        for j in range(2):
            u = 2 * t + j
            b = (t + j) % 2
            ex = [f"v_exp_f32 v{S[u%4]+i}, v{S[u%4]+i}" for i in range(16)]
            extra = [[], [], [], []]
            if j == 1:
                a("s_waitcnt lgkmcnt(0)")
                extra[0] = rdK(t % 2, (t + 2) * 2560)
                extra[1] = rdV(t % 2, (t + 1) * 2560)
            ms = [qk1(u + 1, b), qk2(u + 1, b), pv(u - 1, b, 0), pv(u - 1, b, 1)]
            for g in range(4):
                a(ms[g])
                for x in ex[4 * g:4 * g + 2]: a(x)
                for x in extra[g]: a(x)
                for x in ex[4 * g + 2:4 * g + 4]: a(x)
            if t == optv("nlt", 0) and j == 1 and optv("nlh", 3):
                a(f"s_cmp_eq_u32 s43, {16 + optv('nlh', 3) + 1}\ns_cbranch_scc0 L_PH\ns_setprio 1\nL_PH:")
    a(f"v_add_u32 v{AK1}, 20480, v{AK1}\nv_add_u32 v{AK2}, 20480, v{AK2}\nv_add_u32 v{AV}, 20480, v{AV}")
    a(f"""
    s_lshl_b32 s43, s13, 4
    s_add_u32 s43, s43, s44
    s_cmp_eq_u32 s43, {16 + optv("nl", 9)}
    s_cbranch_scc0 L_P1
    s_setprio 1
    L_P1:
    s_cmp_eq_u32 s42, 0
    s_cbranch_scc1 L_NEXT
    {"s_cmp_lg_u32 s43, 8" if opt("noside") else ""}
    {"s_cbranch_scc1 L_NEXT" if opt("noside") else ""}
    s_cmp_eq_u32 s44, 8
    s_cbranch_scc0 L_E0
    s_cmp_eq_u32 s13, 0
    s_cbranch_scc0 L_RL2
    s_barrier
    s_branch L_NEXT
    L_RL2:
    """)
    if not RLE:
        a("s_cmp_eq_u32 s6, 5\ns_cbranch_scc0 L_NEXT\ns_waitcnt vmcnt(0)")
        rl_stores()
        a("s_mov_b32 exec_hi, -1")
    a(f"""
    s_branch L_NEXT
    L_E0:
    s_cmp_eq_u32 s43, {16 + 6}
    s_cbranch_scc0 L_E1
    s_lshl_b32 s56, s2, 2
    s_add_u32 s56, s56, s6
    s_lshl_b32 s56, s56, 2
    s_add_u32 s56, s56, {FL_W - 16}
    v_mov_b32 v{T3}, 0
    s_waitcnt vmcnt(0)
    """)
    flag_store(a, "s56", T2, T3)
    a.c("flags to see: lanes 0-31 the workgroups that re-lay this tile's Wo columns, lanes 32-63 the row group")
    a(f"""
    s_branch L_NEXT
    L_E1:
    s_cmp_eq_u32 s44, 4
    s_cbranch_scc0 L_E2
    v_lshl_add_u32 v{T2}, v{T0}, 3, s5
    v_and_b32 v{T3}, 14, v0
    v_lshlrev_b32 v{T3}, 4, v{T3}
    v_and_or_b32 v{T3}, v0, 1, v{T3}
    s_and_b32 s57, s2, 0x1e
    v_or_b32 v{T3}, s57, v{T3}
    v_cndmask_b32 v{T2}, v{T2}, v{T3}, s[38:39]
    v_lshlrev_b32 v{T2}, 4, v{T2}
    s_mov_b32 s57, {FL_W}
    buffer_load_dwordx4 {vr(PT,4)}, v{T2}, s[28:31], s57 offen sc1
    s_branch L_NEXT
    L_E2:
    s_cmp_eq_u32 s44, 3
    s_cbranch_scc0 L_NEXT
    """)
    poll(a, "L_PW", T2, "s57", 4, PT, sleep=8)
    if opt("touch"):
        a.c("touch this tile's lines of the output (address translation and L2 are warm when the final stores come)")
        srd(a, 72, 66, 67, 2048 * 1280)
        a(f"""
        s_lshl_b32 s56, s4, 1
        s_add_u32 s56, s56, s3
        s_mul_i32 s56, s56, {64*1280}
        s_mul_i32 s57, s5, 160
        s_add_u32 s56, s56, s57
        s_and_b32 s57, s6, 3
        s_mul_i32 s57, s57, 52
        s_add_u32 s56, s56, s57
        v_mul_u32_u24 v{T2}, 1280, v0
        buffer_load_dword v{PT}, v{T2}, s[72:75], s56 offen
        """)
    a.c("prefetch this wave's Wo fragments: [cb=hg][ct][f32 = 5w+st]")
    a(f"""
    s_mul_i32 s56, s5, {5*40960}
    s_mul_i32 s57, s6, 5120
    s_add_u32 s56, s56, s57
    s_add_u32 s56, s56, {WS_WO}
    v_lshlrev_b32 v{T2}, 4, v0
    v_add_u32 v{T3}, 4096, v{T2}
    """)
    for ct in range(5):
        for st in range(5):
            av = T2 if st < 4 else T3
            if not opt("nowo"): a(f"buffer_load_dwordx4 {vr(WO+(st*5+ct)*4,4)}, v{av}, s[28:31], s56 offen offset:{(st%4)*1024} sc1")
        if ct < 4: a("s_add_u32 s56, s56, 40960")
    a("L_NEXT:")
    if opt("iters"):
        for k in range(1, 9): a(f"s_mov_b32 s{76+2*k}, s{76+2*(k+1)}")
        a("s_memtime s[94:95]\ns_waitcnt lgkmcnt(0)")
    a("s_sub_u32 s44, s44, 1\ns_cmp_lg_u32 s44, 0\ns_cbranch_scc1 L_LOOP")
    stamp(a, 7)
    if opt("cyc"): a("s_memtime s[82:83]")
    a(pv(15, 0, 0)); a(pv(15, 0, 1))
    a.c("phase E addresses: tile rows 64*(2rb+branch).., columns 80*hg.. ; wave = K eighth; row tiles in an order rotated by hg")
    a(f"""
    s_setprio 3
    s_mov_b32 s46, {f32bits(2.0**-40)}
    s_mov_b32 s47, {f32bits(2.0**40)}
    s_mov_b32 s23, -2
    s_lshl_b32 s16, s4, 1
    s_add_u32 s16, s16, s3
    s_mul_i32 s21, s16, {4*40960}
    s_mul_i32 s40, s6, 5120
    s_add_u32 s21, s21, s40
    s_add_u32 s21, s21, {WS_O}
    """)
    for i in range(4):
        a(f"s_add_u32 s22, s5, {i}\ns_and_b32 s22, s22, 3\ns_mul_i32 s22, s22, 40960\ns_add_u32 s{17+i}, s21, s22\ns_add_u32 s{8+i}, s22, s40")
    a("s_waitcnt vmcnt(0) lgkmcnt(0)")
    a.c("run-time safety check of the stand-in max: row sums must lie in [2^-40, 2^40], else redo with the true max")
    a(f"""
    v_cndmask_b32 v{M[0]}, v{O[0]+12}, v{O[0]+8}, s[38:39]
    v_cndmask_b32 v{M[1]}, v{O[1]+12}, v{O[1]+8}, s[38:39]
    v_cmp_le_f32 s[48:49], s46, v{M[0]}
    v_cmp_ge_f32 s[50:51], s47, v{M[0]}
    v_cmp_le_f32 s[52:53], s46, v{M[1]}
    v_cmp_ge_f32 s[54:55], s47, v{M[1]}
    v_rcp_f32 v{M[0]}, v{M[0]}
    v_rcp_f32 v{M[1]}, v{M[1]}
    s_and_b64 s[48:49], s[48:49], s[50:51]
    s_and_b64 s[52:53], s[52:53], s[54:55]
    s_and_b64 s[48:49], s[48:49], s[52:53]
    s_cmp_eq_u64 s[48:49], -1
    s_cbranch_scc0 L_BAD
    L_OK:
    v_mul_f32 v{M[0]}, v{M[0]}, v{G}
    v_mul_f32 v{M[1]}, v{M[1]}, v{G}
    """)
    P = S[3]
    for j in range(2):
        for i in range(12): a(f"v_mul_f32 v{O[j]+i}, v{O[j]+i}, v{M[j]}")
        for i in range(4): a(f"v_cvt_pk_bf16_f32 v{P+4*j+i}, v{O[j]+2*i}, v{O[j]+2*i+1}")
        for i in range(2): a(f"v_cvt_pk_bf16_f32 v{P+8+2*j+i}, v{O[j]+8+2*i}, v{O[j]+8+2*i+1}")
        for i in range(4): a(f"v_min_u32 v{P+4*j+i}, s23, v{P+4*j+i}")
        a(f"buffer_store_dwordx4 {vr(P+4*j,4)}, v{OA}, s[28:31], s26 offen offset:{512*j} sc1")
    for i in range(4): a(f"v_min_u32 v{P+8+i}, s23, v{P+8+i}")
    a(f"""
    s_mov_b32 exec_hi, 0
    buffer_store_dwordx4 {vr(P+8,4)}, v{OA}, s[28:31], s26 offen offset:1024 sc1
    """)
    if opt("dup"):
        a(f"buffer_store_dwordx4 {vr(P+8,4)}, v{OA}, s[28:31], s26 offen offset:1024\ns_mov_b32 exec_hi, -1")
        for j in range(2): a(f"buffer_store_dwordx4 {vr(P+4*j,4)}, v{OA}, s[28:31], s26 offen offset:{512*j}")
    a("s_mov_b32 exec_hi, -1\ns_setprio 0")
    EB = not opt("lateb")
    if EB:
        a.c("every wave of this workgroup is past its last K/V read at this barrier: LDS can be reused")
        a("s_cmp_eq_u32 s13, 0\ns_cbranch_scc1 L_NB\ns_barrier\nL_NB:")
    OF = 16
    EA = [96, 116, 16, 36]
    srd(a, 72, 66, 67, 2048 * 1280)
    a.c("partial sums change lanes on their way through LDS: writer (n, rg) -> slot 4n + (rg ^ ((n>>1)&3)); reader lane = 4*row + rg")
    a.c("out address (waves 0-3): row = 64*(2rb+branch) + 16w + (l>>2) ; columns 8rg.., 32+8rg.., 64+4rg..")
    a(f"""
    v_mov_b32 v2, s34
    v_mov_b32 v3, 0
    v_lshlrev_b32 v5, 4, v0
    v_add_u32 v6, 4096, v5
    v_and_b32 v13, 15, v0
    v_lshrrev_b32 v14, 4, v0
    v_bfe_u32 v12, v0, 1, 2
    v_xor_b32 v14, v14, v12
    v_lshl_add_u32 v14, v13, 2, v14
    v_lshlrev_b32 v14, 4, v14
    v_add_u32 v8, s8, v14
    v_add_u32 v9, s9, v14
    v_add_u32 v10, s10, v14
    v_add_u32 v11, s11, v14
    v_bfe_u32 v12, v0, 3, 2
    v_xor_b32 v12, v12, v0
    s_mul_i32 s22, s6, 40960
    v_lshl_add_u32 v12, v12, 4, s22
    s_lshl_b32 s22, s16, 6
    s_lshl_b32 s21, s6, 4
    s_add_u32 s22, s22, s21
    s_mul_i32 s22, s22, 1280
    s_mul_i32 s21, s5, 160
    s_add_u32 s22, s22, s21
    v_lshrrev_b32 v13, 2, v0
    v_mul_u32_u24 v13, 1280, v13
    v_and_b32 v14, 3, v0
    v_lshl_add_u32 v7, v14, 3, v13
    v_lshl_add_u32 v13, v14, 4, v13
    s_mov_b32 s60, {SPIN}
    """)
    REQ = {"A": [int(c) for c in str(optv("reqa", 44444))], "B": [int(c) for c in str(optv("reqb", 12344))]}
    def oload(rt):
        for st in range(5):
            av = 5 if st < 4 else 6
            a(f"buffer_load_dwordx4 {vr(OF+(rt*5+st)*4,4)}, v{av}, s[28:31], s{17+rt} offen offset:{(st%4)*1024} sc1")
    def ewrites(rt):
        return [f"ds_write_b128 v{8+rt}, {vr(EA[rt]+4*ct,4)} offset:{ct*1024}" for ct in range(5)]
    tail = []
    def egemm(tag, bar=-1, wr=True):
        for rt in range(4):
            if rt == bar: a("s_barrier")
            a(f"L_CH{tag}{rt}:")
            b = OF + rt * 20
            w = ewrites(rt - 1) if rt >= 1 and wr else []
            a.c("MFMAs run ahead of the hand-off check (no word may still hold the not-yet-written mark); a failed check redoes the block")
            for st in range(5):
                if st == 0:
                    a(f"s_waitcnt vmcnt({4 + 5*(REQ[tag][rt] - rt - 1)})")
                    for r2 in range(REQ[tag][rt], REQ[tag][rt+1]): oload(r2)
                else: a(f"s_waitcnt vmcnt({4 - st + 5*(REQ[tag][rt+1] - rt - 1)})")
                f = b + 4 * st
                chk = [f"v_max3_u32 v15, v{f}, v{f+1}, v{f+2}" if st == 0 else f"v_max3_u32 v15, v{f}, v{f+1}, v15",
                       f"v_max_u32 v15, v{f+3}, v15" if st == 0 else f"v_max3_u32 v15, v{f+2}, v{f+3}, v15"]
                if st == 4: chk += ["v_cmp_eq_u32 vcc, -1, v15"]
                for ct in range(5):
                    d = vr(EA[rt] + 4 * ct, 4)
                    a(f"v_mfma_f32_16x16x32_bf16 {d}, {vr(WO+(st*5+ct)*4,4)}, {vr(f,4)}, {'0' if st == 0 else d}")
                    if ct < len(chk): a(chk[ct])
                    if w and st >= 1 and ct == 3: a(w[st - 1])
                    if w and st == 4 and ct == 4: a(w[4])
            a(f"s_cbranch_vccnz L_RE{tag}{rt}\nL_GO{tag}{rt}:")
            tail.append((tag, rt))
            if opt("probeE"): stamp(a, [1, 2, 3, 5][rt])
    def retries():
        if PROF and not opt("iters") and not opt("keep4"): a(f"s_waitcnt lgkmcnt(0)\ns_sub_u32 s84, {SPIN}, s60\ns_mul_i32 s84, s84, 100\ns_add_u32 s84, s84, s76")
    a("s_cmp_eq_u32 s13, 0\ns_cbranch_scc1 L_ELEAD")
    a.c("every wave of this workgroup is past its last K/V read at this barrier: LDS can be reused")
    if not opt("asym") and not EB: a("s_barrier")
    if not opt("noack"): a("s_waitcnt vmcnt(0)")
    elif optv("dly", 0): a(f"s_sleep {optv('dly', 0)}")
    stamp(a, 8)
    for rt in range(REQ["B"][0]): oload(rt)
    if opt("asym"): a("s_barrier")
    if opt("probeE"): stamp(a, 6)
    if PROF: a("s_waitcnt lgkmcnt(0)")
    egemm("B", optv("bar", 2))
    stamp(a, 10); retries()
    a("s_waitcnt lgkmcnt(0)\ns_nop 6" if opt("probeE") else "s_waitcnt lgkmcnt(5)\ns_nop 6")
    for x in ewrites(3): a(x)
    a("s_waitcnt lgkmcnt(0)\ns_barrier\ns_branch L_FIN")
    a("L_ELEAD:")
    if not opt("asym") and not (not opt("leadlast")): a("s_barrier")
    a("s_waitcnt vmcnt(0)")
    stamp(a, 8)
    for rt in range(REQ["A"][0]): oload(rt)
    if opt("probeE"): stamp(a, 6)
    if PROF: a("s_waitcnt lgkmcnt(0)")
    if opt("asym"):
        egemm("A", wr=False)
        stamp(a, 9); retries()
        a("s_barrier\ns_setprio 2\ns_waitcnt lgkmcnt(0)\ns_nop 4")
        for rt in range(4):
            for x in ewrites(rt): a(x)
            if rt == 1: a("s_waitcnt lgkmcnt(4)")
    else:
        if (not opt("leadlast")): a("s_barrier")
        a(f"s_setprio {optv('ep', 0)}")
        egemm("A")
        stamp(a, 9); retries()
        a("s_waitcnt lgkmcnt(0)\ns_nop 6" if opt("probeE") else "s_waitcnt lgkmcnt(5)\ns_nop 6")
        for x in ewrites(3): a(x)
    a("s_waitcnt lgkmcnt(0)\ns_barrier")
    R = 56
    def rsum(src0, keep):
        for src in range(4):
            for c in range(5):
                a(f"ds_read_b128 {vr(R+src*20+4*c,4)}, v12 offset:{(src0+src)*5120+c*1024}")
            if src == 1: a("s_waitcnt lgkmcnt(4)")
        a("s_waitcnt lgkmcnt(10)")
        for i in range(20): a(f"v_add_f32 v{R+i}, v{R+i}, v{R+20+i}")
        if keep:
            for i in range(20): a(f"v_add_f32 v{R+i}, v{R+i}, v{16+i}")
        a("s_waitcnt lgkmcnt(0)")
        for i in range(20): a(f"v_add_f32 v{R+40+i}, v{R+40+i}, v{R+60+i}")
        for i in range(20): a(f"v_add_f32 v{16+i}, v{R+i}, v{R+40+i}")
    rsum(0, False)
    a("s_barrier")
    stamp(a, 10, True)
    rsum(4, True)
    for i in range(10): a(f"v_cvt_pk_bf16_f32 v{40+i}, v{16+2*i}, v{16+2*i+1}")
    a("""
    buffer_store_dwordx4 v[40:43], v13, s[72:75], s22 offen
    buffer_store_dwordx4 v[44:47], v13, s[72:75], s22 offen offset:64
    buffer_store_dwordx2 v[48:49], v7, s[72:75], s22 offen offset:128
    """)
    a.c("workgroup 0 advances the epoch: every workgroup has read it by now")
    a(f"""
    s_or_b32 s21, s2, s6
    s_cmp_eq_u32 s21, 0
    s_cbranch_scc0 L_FIN
    s_mov_b32 s21, {FL_EPOCH}
    s_mov_b64 exec, 1
    buffer_store_dword v2, v3, s[28:31], s21 offen sc1
    L_FIN:
    """)
    if PROF: a("s_waitcnt vmcnt(0)")
    stamp(a, 11)
    a("L_FIN2:")
    stamp_flush(a)
    a("s_endpgm")
    for tag, rt in tail:
        a(f"""
        L_RE{tag}{rt}:
        s_cmp_eq_u32 s60, 0
        s_cbranch_scc1 L_GO{tag}{rt}
        s_sub_u32 s60, s60, 1
        s_waitcnt vmcnt(0) lgkmcnt(0)
        s_sleep {optv("slp", 4)}
        """)
        for r2 in range(rt, REQ[tag][rt]): oload(r2)
        a(f"s_branch L_CH{tag}{rt}")
    a("L_BAD:")
    a.c("second (and last) pass: exact row max over all keys, then the same loop again")
    a(f"""
    s_cmp_eq_u32 s42, 0
    s_cbranch_scc1 L_OK
    s_mov_b32 s42, 0
    s_mov_b32 s40, 0xffff0000
    s_mov_b32 s43, 64
    v_subrev_u32 v{AK1}, {KV_BYTES}, v{AK1}
    v_subrev_u32 v{AK2}, {KV_BYTES}, v{AK2}
    v_subrev_u32 v{AV}, {KV_BYTES}, v{AV}
    v_mov_b32 v{T2}, v{AK1}
    v_mov_b32 v{T3}, v{AK2}
    """)
    for j in range(2):
        a(f"v_mov_b32 v{Q2[j]+1}, 0\nv_mov_b32 v{M[j]}, 0xff800000")
    for i in range(32): a(f"v_mov_b32 v{O[0]+i}, 0")
    for i in range(16): a(f"v_mov_b32 v{S[3]+i}, 0")
    a("L_MAXL:")
    a(f"ds_read_b128 {vr(KF1[0],4)}, v{T2}\nds_read_b32 v{KF2[0]}, v{T3} offset:1024")
    a(f"v_add_u32 v{T2}, 2560, v{T2}\nv_add_u32 v{T3}, 2560, v{T3}\ns_waitcnt lgkmcnt(0)")
    for j in range(2): a(qk1(j, 0)); a(qk2(j, 0))
    a("s_nop 11")
    for j in range(2):
        for i in range(8):
            a(f"v_max3_f32 v{M[j]}, v{S[j]+2*i}, v{S[j]+2*i+1}, v{M[j]}")
    a("s_sub_u32 s43, s43, 1\ns_cmp_lg_u32 s43, 0\ns_cbranch_scc1 L_MAXL")
    for x in rdK(0, 0) + rdK(1, 2560) + rdV(1, 0): a(x)
    a.c("-m split exactly into three bf16 pieces that ride in the spare k-slots")
    for j in range(2):
        a(f"""
        v_mov_b32 v{T2}, v{M[j]}
        s_nop 1
        v_permlane32_swap_b32 v{M[j]}, v{T2}
        s_nop 1
        v_min_f32 v{M[j]}, -v{M[j]}, -v{T2}
        v_and_b32 v{T2}, s40, v{M[j]}
        v_sub_f32 v{T3}, v{M[j]}, v{T2}
        v_lshrrev_b32 v{T2}, 16, v{T2}
        v_and_or_b32 v{T2}, v{T3}, s40, v{T2}
        v_and_b32 v{M[j]}, s40, v{T3}
        v_sub_f32 v{T3}, v{T3}, v{M[j]}
        v_and_b32 v{T3}, s40, v{T3}
        v_cndmask_b32 v{Q2[j]+1}, v{T2}, v{T3}, s[38:39]
        """)
    a("s_waitcnt lgkmcnt(0)\ns_nop 0")
    a(qk1(0, 0)); a(qk2(0, 0))
    a("s_mov_b32 s44, 8\ns_setprio 1\ns_nop 9\ns_branch L_LOOP")
    a("L_END:\ns_endpgm")
    return f""".p2align 6
.amdhsa_kernel {N}
  .amdhsa_next_free_vgpr 256
  .amdhsa_next_free_sgpr 102
  .amdhsa_accum_offset 256
  .amdhsa_group_segment_fixed_size 0
  .amdhsa_kernarg_size 112
  .amdhsa_user_sgpr_count 2
  .amdhsa_user_sgpr_kernarg_segment_ptr 1
  .amdhsa_system_sgpr_workgroup_id_x 1
.end_amdhsa_kernel
"""

def main():
    ref = open(f"cdna_kernels/{NAME}.s.ref").read().split("\n")
    head = [l for l in ref if l.startswith(";") and "@launch" not in l]
    a = Asm()
    kd = gen(a)
    out = "\n".join(head) + "\n"
    out += "; @launch grid=(256,1,1) block=(512,1,1) lds=163840\n"
    out += '.amdgcn_target "amdgcn-amd-amdhsa--gfx950"\n.text\n'
    t = a.text()
    if opt("outsc1"): t = "\n".join(l + " sc1" if "buffer_store" in l and "s[72:75]" in l else l for l in t.split("\n"))
    if opt("outnt"): t = "\n".join(l + " nt" if "buffer_store" in l and "s[72:75]" in l else l for l in t.split("\n"))
    if opt("plainonly"): t = "\n".join(l.replace(" sc1", "") if "buffer_store" in l and "s26" in l else l for l in t.split("\n"))
    out += t
    out += '.section .rodata,"a"\n' + kd
    path = ARGS[0] if ARGS and not ARGS[0].startswith("--") else f"cdna_kernels/{NAME}.s"
    open(path, "w").write(out)
main()
```

```python
import math, struct, sys

NAME = "gated_mix__grouped_kv_mqa__grouped_kv_mqa__prompt"
ARGS = sys.argv[1:]
def opt(n): return ("--" + n) in ARGS
def optv(n, d):
    for x in ARGS:
        if x.startswith("--" + n + "="): return int(x.split("=")[1])
    return d

KV_BYTES = 163840
WS_KV   = 0
WS_G    = 2 * KV_BYTES
WS_O    = WS_G + 16384
O_BYTES = 128 * 40 * 1024
WS_WO   = WS_O + O_BYTES
WO_BYTES = 8 * 5 * 40 * 1024
WS_FL   = WS_WO + WO_BYTES
FL_EPOCH = WS_FL
FL_KV   = WS_FL + 256
FL_W    = FL_KV + 8192
WS_END  = FL_W + 4096

def f32bits(x):
    return struct.unpack("<I", struct.pack("<f", x))[0]
QSCALE = f32bits((20 ** -0.5) * math.log2(math.e))
LOG2E = f32bits(math.log2(math.e))

class Asm:
    def __init__(self): self.l = []
    def __call__(self, s):
        for line in s.split("\n"):
            line = line.strip()
            if line: self.l.append(("" if line.endswith(":") else "  ") + line)
    def c(self, s): self.l.append("  ; " + s)
    def text(self): return "\n".join(self.l) + "\n"

def vr(b, n=1): return f"v{b}" if n == 1 else f"v[{b}:{b+n-1}]"

def srd(a, d, lo, hi, nbytes):
    a(f"s_mov_b32 s{d}, s{lo}\ns_mov_b32 s{d+1}, s{hi}\ns_mov_b32 s{d+2}, {nbytes}\ns_mov_b32 s{d+3}, 0x00020000")
def srd_sel(a, d, lo0, lo1, nbytes):
    a(f"s_cselect_b32 s{d}, s{lo0}, s{lo1}\ns_cselect_b32 s{d+1}, s{lo0+1}, s{lo1+1}\ns_mov_b32 s{d+2}, {nbytes}\ns_mov_b32 s{d+3}, 0x00020000")

PROF = opt("prof")
PROF_BASE = 16 << 20
NST = 12
def stamp(a, i, wait=False):
    if PROF and not (opt("iters") and i >= 7) and not (opt("clk") and i >= 8):
        a(f"s_memrealtime s[{76+2*i}:{77+2*i}]")
        if opt("clk") and i < 4: a(f"s_memtime s[{92+2*i}:{93+2*i}]")
        if wait: a("s_waitcnt lgkmcnt(0)")
def stamp_flush(a):
    if not PROF: return
    a("s_waitcnt lgkmcnt(0)\ns_mov_b64 exec, 1")
    a(f"s_lshl_b32 s62, s2, 3\ns_add_u32 s62, s62, s6\ns_lshl_b32 s62, s62, 6\ns_add_u32 s62, s62, {PROF_BASE}")
    a("s_mov_b32 s30, 0x2000000\nv_mov_b32 v0, 0")
    for i in range(NST):
        a(f"v_mov_b32 v2, s{76+2*i}\nbuffer_store_dword v2, v0, s[28:31], s62 offen offset:{4*i}\ns_nop 1")

SPIN = 200000
def poll(a, lbl, addr_v, soff, width, tmp, mask=None, preloaded=True, sleep=1):
    ld = {1: "dword", 2: "dwordx2", 4: "dwordx4"}[width]
    a(f"s_mov_b32 s60, {SPIN}")
    if mask is not None: a(f"s_mov_b64 exec, {mask}")
    if preloaded: a(f"s_branch {lbl}_chk")
    a(f"{lbl}_ld:")
    a(f"buffer_load_{ld} {vr(tmp,width)}, v{addr_v}, s[28:31], {soff} offen sc1")
    a(f"{lbl}_chk:\ns_waitcnt vmcnt(0)")
    a(f"v_cmp_ne_u32 vcc, s34, v{tmp}")
    for i in range(1, width):
        a(f"v_cmp_ne_u32 s[58:59], s34, v{tmp+i}\ns_or_b64 vcc, vcc, s[58:59]")
    a(f"s_sub_u32 s60, s60, 1\ns_cbranch_scc1 {lbl}_ok")
    a(f"s_cmp_eq_u64 vcc, 0\ns_cbranch_scc1 {lbl}_ok\ns_sleep {sleep}\ns_branch {lbl}_ld\n{lbl}_ok:")
    if mask is not None: a("s_mov_b64 exec, -1")

def flag_store(a, soff, vtmp, vzero):
    a(f"v_mov_b32 v{vtmp}, s34\ns_mov_b64 exec, 1\nbuffer_store_dword v{vtmp}, v{vzero}, s[28:31], {soff} offen sc1\ns_mov_b64 exec, -1")
def mk_tag(a):
    a("s_mul_i32 s34, s34, 0x9e3779b1\ns_add_u32 s34, s34, 0x7f4a7c15")

def gen(a):
    N = NAME + "_kernel"
    STG = 22528; XB = 12288
    L_M = 0; L_G = 25600; RING = 27648
    L_X32 = RING + 4 * STG
    SLOT = {"A": RING, "B": RING + STG, "C": RING + 2 * STG, "D": RING + 3 * STG}
    SMAP = ["A", "B", "C", "D", "A", "B", "C", "D", "A", "B"]
    L_QX = SLOT["D"]
    NCH0 = 25
    Q1 = [4, 12]; Q2 = [8, 16]
    IDX, G = 10, 11
    T2, T3 = 20, 21
    M = [22, 23]
    KF1 = [24, 32]; KF2 = [28, 36]
    OA, IMG, T0, T1 = 30, 31, 38, 39
    VF = [40, 48]
    O = [56, 72]
    S = [88, 104, 120, 136]
    AK1, AK2, AV, AQ1, AQ2 = 88, 89, 90, 91, 92
    WO = 152; PT = 252

    def att_init():
        a.c("attention constants and accumulators; s12 = rt32, s13 = hp, s26 + v30 = O address")
        a(f"""
        s_and_b32 s15, s6, 3
        s_lshl_b32 s13, s4, 2
        s_add_u32 s12, s15, s13
        s_lshr_b32 s13, s6, 2
        s_mul_i32 s15, s15, 5120
        s_mul_i32 s14, s13, 2560
        s_add_u32 s15, s15, s14
        s_add_u32 s15, s15, {L_QX}
        v_and_b32 v{T0}, 31, v0
        v_lshrrev_b32 v{T1}, 5, v0
        v_lshlrev_b32 v{AK2}, 3, v{T0}
        v_lshl_add_u32 v{AK2}, v{T1}, 2, v{AK2}
        v_add_u32 v{AQ1}, s15, v3
        v_add_u32 v{AQ2}, s15, v{AK2}
        v_mul_u32_u24 v{AV}, 20, v{T1}
        v_add_lshl_u32 v{AV}, v{AV}, v{T0}, 4
        s_mul_i32 s26, s12, 81920
        s_lshl_b32 s14, s13, 1
        s_add_u32 s14, s14, s3
        s_lshl_b32 s14, s14, 3
        s_add_u32 s14, s14, s5
        s_mul_i32 s14, s14, 1280
        s_add_u32 s26, s26, s14
        s_add_u32 s26, s26, {WS_O}
        v_lshrrev_b32 v{OA}, 4, v{T0}
        v_mul_u32_u24 v{OA}, 40960, v{OA}
        v_lshl_add_u32 v{OA}, v{T1}, 8, v{OA}
        v_and_b32 v{AK1}, 15, v0
        v_lshl_add_u32 v{OA}, v{AK1}, 4, v{OA}
        s_mul_i32 s14, s3, {KV_BYTES}
        v_add_u32 v{IMG}, s14, v3
        s_lshl_b32 s14, s3, 6
        s_add_u32 s14, s14, s12
        s_lshl_b32 s14, s14, 7
        s_add_u32 s14, s14, {WS_G}
        """)
        for b in range(2):
            a(f"v_mov_b32 v{KF2[b]+1}, 0x3f803f80")
            for i in range(8): a(f"v_mov_b32 v{VF[b]+i}, 0")
        a("s_mov_b32 exec_lo, 0x01100000\ns_mov_b32 exec_hi, 0x01100000")
        for b in range(2):
            for i in range(8): a(f"v_mov_b32 v{VF[b]+i}, 0x3f803f80")
        a("s_mov_b64 exec, -1")
        for i in range(32): a(f"v_mov_b32 v{O[0]+i}, 0")
        for i in range(16): a(f"v_mov_b32 v{S[3]+i}, 0")

    a(f".globl {N}\n.p2align 8\n.type {N},@function\n{N}:")
    a("s_cmp_ge_u32 s2, 256\ns_cbranch_scc1 L_END")
    a("""
    s_load_dwordx8 s[8:15], s[0:1], 0
    s_load_dwordx8 s[16:23], s[0:1], 48
    s_load_dwordx2 s[24:25], s[0:1], 104
    s_load_dwordx4 s[64:67], s[0:1], 80
    s_load_dwordx2 s[68:69], s[0:1], 32
    """)
    if not opt("nocpf"):
        a.c("bring this kernel's own code into L2 ahead of the instruction fetch: 2 KB per workgroup, 16 workgroups of an XCD round cover it")
        a(f"""
        s_getpc_b64 s[56:57]
        L_PCREF:
        s_lshl_b32 s58, s2, 8
        s_and_b32 s58, s58, 0x7800
        v_lshl_add_u32 v94, v0, 2, s58
        v_min_u32 v94, L_END-L_PCREF, v94
        v_mov_b32 v95, s57
        v_add_co_u32 v94, vcc, s56, v94
        s_nop 1
        v_addc_co_u32 v95, vcc, 0, v95, vcc
        global_load_dword v93, v[94:95], off
        """)
    stamp(a, 0)
    a.c("s3 = branch, s4 = rb (128-row block), s5 = hg (head group), s6 = wave, s33 = k-chunk rotation (0,3,5,8), s70 = 32-row tile of the K/V job, s71 = 0: K and gate, 1: V")
    a("""
    v_lshrrev_b32 v1, 6, v0
    v_and_b32 v0, 63, v0
    s_and_b32 s3, s2, 1
    v_readfirstlane_b32 s6, v1
    s_lshr_b32 s4, s2, 1
    s_and_b32 s4, s4, 3
    s_lshl_b32 s4, s4, 2
    s_lshr_b32 s33, s2, 3
    s_and_b32 s33, s33, 3
    s_add_u32 s4, s4, s33
    s_lshr_b32 s5, s2, 5
    v_lshlrev_b32 v3, 4, v0
    v_lshrrev_b32 v5, 3, v0
    v_and_b32 v6, 7, v0
    v_xor_b32 v6, v6, v5
    v_lshlrev_b32 v6, 4, v6
    v_mul_u32_u24 v2, 1280, v5
    v_add_u32 v2, v2, v6
    v_mov_b32 v4, 0
    s_lshl_b32 s48, s4, 7
    s_lshl_b32 s50, s6, 10
    s_lshr_b32 s70, s5, 1
    s_and_b32 s71, s5, 1
    s_lshl_b32 s54, s70, 2
    s_add_u32 s54, s54, s33
    s_mul_i32 s33, s33, 5
    s_add_u32 s33, s33, 1
    s_lshr_b32 s33, s33, 1
    s_cmp_ge_u32 s6, 4
    s_cbranch_scc1 L_LOADER
    """)
    a(f"""
    s_lshl_b32 s49, s70, 2
    s_add_u32 s49, s49, s6
    s_lshl_b32 s49, s49, 3
    s_add_u32 s49, s48, s49
    s_mul_i32 s49, s49, 1280
    s_mul_i32 s53, s71, 640
    s_add_u32 s51, s49, s53
    s_sub_u32 s49, s49, s53
    s_mul_i32 s53, s71, 20480
    s_add_u32 s55, s50, s53
    s_sub_u32 s56, s50, s53
    s_and_b32 s52, s6, 1
    s_lshl_b32 s54, s54, 1
    s_add_u32 s54, s54, s52
    s_lshl_b32 s54, s54, 10
    s_waitcnt lgkmcnt(0)
    """)
    srd(a, 36, 8, 9, 2048 * 1280)
    a.c("the K/V job's 32 rows of x, all of k (they also serve the Q projection); 2 KB of wk / wv as L2 warm-up; gate")
    for j in range(10):
        sl, ss = ("s55", "s51") if j < 5 else ("s56", "s49")
        a(f"s_add_u32 m0, {sl}, {L_X32 + 4096*j}\ns_add_u32 s53, {ss}, {128*j}\nbuffer_load_dwordx4 v2, s[36:39], s53 offen lds")
        if j == 0:
            srd(a, 28, 24, 25, WS_END)
            a("""
            s_cmp_eq_u32 s71, 0
            s_cselect_b32 s12, s12, s14
            s_cselect_b32 s13, s13, s15
            s_cselect_b32 s18, s18, s20
            s_cselect_b32 s19, s19, s21
            s_cmp_eq_u32 s3, 0
            """)
            srd_sel(a, 40, 12, 18, 25600)
            srd(a, 72, 64, 65, 1280)
            a(f"""
            s_cmp_lt_u32 s6, 2
            s_cbranch_scc0 L_LA2
            buffer_load_dwordx4 v[96:99], v3, s[40:43], s54 offen
            s_branch L_LA3
            L_LA2:
            s_lshl_b32 s53, s52, 10
            s_add_u32 m0, s53, {L_G}
            s_nop 0
            buffer_load_dwordx4 v3, s[72:75], s53 offen lds
            L_LA3:
            """)
    a(f"s_mov_b32 s53, {FL_EPOCH}\nbuffer_load_dword v9, v4, s[28:31], s53 offen sc1")
    a.c("wk or wv: KB w+4j, then 256 B each of the last KB")
    for j in range(6):
        a(f"s_add_u32 m0, s50, {L_M + 4096*j}\ns_add_u32 s53, s50, {4096*j}\nbuffer_load_dwordx4 v3, s[40:43], s53 offen lds")
    a(f"s_lshl_b32 s53, s6, 8\ns_add_u32 s53, s53, {24*1024}\ns_mov_b64 exec, 0xffff\ns_add_u32 m0, s53, {L_M}\ns_nop 0\nbuffer_load_dwordx4 v3, s[40:43], s53 offen lds\ns_mov_b64 exec, -1")
    att_init()
    FS = [152, 180, 100]; ACC = 208
    KVR = [152, 164, 176, 188, 200, 212]
    AX = 248; AWR = [250, 251]
    a.c("K/V job: wave = (16-row tile w&1, columns 0-15 / 16-19 by w>>1)")
    a(f"""
    v_and_b32 v5, 15, v0
    v_lshrrev_b32 v6, 4, v0
    v_and_b32 v7, 7, v0
    v_xor_b32 v7, v7, v6
    v_lshlrev_b32 v7, 4, v7
    v_lshl_add_u32 v10, v5, 7, v7
    s_lshl_b32 s53, s52, 11
    s_add_u32 s53, s53, {L_X32}
    v_add_u32 v14, s53, v10
    v_xor_b32 v15, 64, v14
    v_bfe_u32 v7, v0, 2, 2
    v_lshl_add_u32 v7, v6, 3, v7
    v_mul_u32_u24 v18, 40, v7
    v_and_b32 v8, 3, v0
    v_lshlrev_b32 v8, 3, v8
    s_cmp_lt_u32 s6, 2
    s_cselect_b32 s56, -1, 0
    s_cselect_b32 s57, 0, 32
    v_and_b32 v8, s56, v8
    v_add3_u32 v18, v18, v8, s57
    v_lshlrev_b32 v19, 4, v6
    v_add_u32 v19, {L_G}, v19
    v_lshrrev_b32 v7, 1, v6
    v_lshlrev_b32 v7, 4, v7
    v_and_b32 v8, 1, v6
    v_lshl_add_u32 v7, v8, 2, v7
    v_bfe_u32 v8, v0, 2, 2
    v_add_u32 v7, v7, v8
    v_mul_u32_u24 v7, 160, v7
    v_and_b32 v8, 3, v0
    v_mul_u32_u24 v8, 40, v8
    v_add_u32 v7, v7, v8
    v_add_u32 v{AWR[0]}, {SLOT["A"] + XB}, v7
    v_add_u32 v{AWR[1]}, {SLOT["C"] + XB}, v7
    s_cmp_gt_u32 s6, s70
    s_cselect_b32 s62, 1, 0
    s_sub_u32 s62, s6, s62
    s_lshl_b32 s62, s62, 12
    """)
    a.c("store address v12 + s58, lanes s[60:61], scale s27; gate -> v13 + s59, s63 = -+log2e")
    a(f"""
    s_lshl_b32 s58, s4, 2
    s_add_u32 s58, s58, s70
    s_lshl_b32 s59, s58, 1
    s_mul_i32 s58, s58, 2560
    s_mul_i32 s60, s3, {KV_BYTES}
    s_add_u32 s58, s58, s60
    s_add_u32 s59, s59, s52
    s_lshl_b32 s60, s3, 7
    s_add_u32 s59, s59, s60
    s_lshl_b32 s59, s59, 6
    s_add_u32 s59, s59, {WS_G}
    v_lshlrev_b32 v13, 2, v5
    s_lshl_b32 s63, s3, 31
    s_xor_b32 s63, s63, {LOG2E | 0x80000000}
    v_lshrrev_b32 v7, 1, v6
    v_and_b32 v8, 1, v6
    s_mov_b32 s27, {QSCALE}
    s_mov_b64 s[60:61], -1
    s_cmp_eq_u32 s71, 0
    s_cbranch_scc0 L_AD2
    s_cmp_lt_u32 s6, 2
    s_cbranch_scc0 L_AD1
    s_lshl_b32 s53, s52, 8
    s_add_u32 s58, s58, s53
    v_lshlrev_b32 v12, 9, v7
    v_lshl_add_u32 v12, v5, 4, v12
    v_lshl_add_u32 v12, v8, 3, v12
    s_branch L_AD4
    L_AD1:
    s_lshl_b32 s53, s52, 7
    s_add_u32 s58, s58, s53
    s_add_u32 s58, s58, 1024
    v_lshlrev_b32 v12, 3, v5
    s_mov_b64 s[60:61], 0xffff
    s_branch L_AD4
    L_AD2:
    s_mul_i32 s53, s52, 640
    s_add_u32 s58, s58, s53
    s_add_u32 s58, s58, 1280
    v_mul_u32_u24 v12, 320, v7
    v_lshl_add_u32 v12, v5, 4, v12
    v_lshl_add_u32 v12, v8, 3, v12
    s_mov_b32 s27, 1.0
    s_cmp_lt_u32 s6, 2
    s_cbranch_scc1 L_AD4
    s_add_u32 s58, s58, 256
    s_mov_b32 s60, 0x000f000f
    s_mov_b32 s61, 0x000f000f
    L_AD4:
    """)
    def kv_loop(kind):
        per = 4 if kind == "G" else 3
        nb = 3 if kind == "G" else 5
        ring = nb + 1
        def rd(k):
            f = KVR[k % ring]
            r = [f"ds_read_b128 {vr(f,4)}, v{14 + (k & 1)} offset:{(k >> 1) * 4096}"]
            for hf in range(2):
                r.append(f"ds_read_b64_tr_b16 {vr(f+4+2*hf,2)}, v18 offset:{(32*k + 4*hf)*40}")
            if kind == "G": r.append(f"ds_read_b128 {vr(f+8,4)}, v19 offset:{64*k}")
            return r
        def mm(k):
            f = KVR[k % ring]
            c1 = "0" if k == 0 else "v[20:23]"; c2 = "0" if k == 0 else "v[24:27]"
            if kind == "V": r = [f"v_mfma_f32_16x16x32_bf16 v[20:23], {vr(f,4)}, {vr(f+4,4)}, {c1}"]
            else: r = [f"v_mfma_f32_16x16x32_bf16 v[20:23], {vr(f+4,4)}, {vr(f,4)}, {c1}"]
            if kind == "G": r.append(f"v_mfma_f32_16x16x32_bf16 v[24:27], {vr(f+8,4)}, {vr(f,4)}, {c2}")
            return r
        for k in range(nb):
            for x in rd(k): a(x)
        for k in range(20):
            ahead = min(k + nb, 20) - (k + 1)
            a(f"s_waitcnt lgkmcnt({ahead * per})")
            for x in mm(k): a(x)
            if k + nb < 20:
                for x in rd(k + nb): a(x)
    def xaddr(s):
        return [f"s_add_u32 s55, s33, {s}", "s_cmp_ge_u32 s55, 10", "s_cselect_b32 s56, 10, 0", "s_sub_u32 s55, s55, s56",
                "s_lshl_b32 s55, s55, 12", f"s_add_u32 s55, s55, {L_X32}", f"s_add_u32 s56, s62, {SLOT[SMAP[s]]}",
                "s_cmp_eq_u32 s6, s70", "s_cselect_b32 s55, s55, s56", f"v_add_u32 v{AX}, s55, v10", f"v_xor_b32 v{AX+1}, 64, v{AX}"]
    def reads(i):
        s, ks = i // 2, i % 2
        hi = SMAP[s] in "CD"; base = STG if SMAP[s] in "BD" else 0
        f = FS[i % 3]
        r = [f"ds_read_b128 {vr(f+4*rt,4)}, v{AX+ks} offset:{rt*2048}" for rt in range(2)]
        for ct in range(5):
            for hf in range(2):
                r.append(f"ds_read_b64_tr_b16 {vr(f+8+4*ct+2*hf,2)}, v{AWR[hi]} offset:{base + (32*ks + 8*hf)*160 + 8*ct}")
        return r
    def mf(i, ct):
        f = FS[i % 3]
        return [f"v_mfma_f32_16x16x32_bf16 {vr(ACC+(rt*5+ct)*4,4)}, {vr(f+8+4*ct,4)}, {vr(f+4*rt,4)}, {'0' if i == 0 else vr(ACC+(rt*5+ct)*4,4)}" for rt in range(2)]
    def stage(s):
        for ks in range(2):
            r = reads(2 * s + ks)
            if ks == 1: a("s_waitcnt lgkmcnt(3)")
            if s < 1:
                for x in r: a(x)
                continue
            m = [x for ct in range(5) for x in mf(2 * s - 2 + ks, ct)]
            for k in range(10):
                if not opt("nomfmaB"): a(m[k])
                if k < 6: a(r[2*k]); a(r[2*k+1])
                elif ks == 1 and s < 9:
                    for x in xaddr(s + 1)[3*(k-6):3*(k-5)]: a(x)
        if s == 0:
            for x in xaddr(1): a(x)
        a("s_waitcnt lgkmcnt(12)" if s == 9 else "s_waitcnt lgkmcnt(0)")
    PUB = optv("pub", 2)
    nb_ = [0]
    def cbar():
        i = nb_[0]; nb_[0] += 1
        if i == PUB: a("s_waitcnt vmcnt(0)")
        if not (opt("freerun") and 2 <= i <= 7): a("s_barrier")
        if opt("probeB"):
            stamp(a, 1 + i, True)
            if i == 10: a("s_branch L_FIN2")
        if i == PUB:
            a.c("publish this workgroup's K/V slice (wave 0, one lane)")
            a(f"""
            s_cmp_eq_u32 s6, 0
            s_cbranch_scc0 L_NOPUB
            s_bfe_u32 s56, s2, 0x50001
            s_lshl_b32 s56, s56, 7
            s_lshl_b32 s57, s3, 12
            s_add_u32 s56, s56, s57
            s_lshr_b32 s57, s2, 6
            s_lshl_b32 s57, s57, 2
            s_add_u32 s56, s56, s57
            s_add_u32 s56, s56, {FL_KV}
            """)
            flag_store(a, "s56", 7, 4)
            a("L_NOPUB:")
    a("s_waitcnt vmcnt(0)")
    cbar()
    if not opt("probeB"): stamp(a, 1, True)
    a("v_readfirstlane_b32 s34, v9")
    a("s_cmp_eq_u32 s71, 1\ns_cbranch_scc1 L_KV_V\ns_cmp_ge_u32 s6, 2\ns_cbranch_scc1 L_KV_G")
    kv_loop("K")
    a("s_branch L_KV_E\nL_KV_G:")
    kv_loop("G")
    a("""
    s_nop 7
    v_mul_f32 v24, s63, v24
    v_exp_f32 v24, v24
    s_nop 0
    v_add_f32 v24, 1.0, v24
    v_rcp_f32 v24, v24
    s_mov_b64 exec, 0xffff
    buffer_store_dword v24, v13, s[28:31], s59 offen sc1
    s_mov_b64 exec, -1
    s_branch L_KV_E
    L_KV_V:
    """)
    kv_loop("V")
    a("L_KV_E:")
    for x in xaddr(0): a(x)
    a.c("the softmax scale rides on K")
    a("""
    v_mul_f32 v20, s27, v20
    v_mul_f32 v21, s27, v21
    v_mul_f32 v22, s27, v22
    v_mul_f32 v23, s27, v23
    v_cvt_pk_bf16_f32 v16, v20, v21
    v_cvt_pk_bf16_f32 v17, v22, v23
    s_mov_b64 exec, s[60:61]
    buffer_store_dwordx2 v[16:17], v12, s[28:31], s58 offen sc1
    s_mov_b64 exec, -1
    """)
    mk_tag(a)
    a(f"""
    s_mul_i32 s7, s6, 5120
    s_add_u32 s7, s7, {L_QX}
    v_mul_u32_u24 v12, 1280, v6
    v_add_u32 v12, s7, v12
    v_lshl_add_u32 v13, v5, 3, v12
    v_lshl_add_u32 v12, v5, 4, v12
    """)
    if not opt("probeB"): stamp(a, 2, True)
    for s in range(10):
        cbar(); stage(s)
    for rt in range(2):
        for ct in range(5): a(mf(18, ct)[rt])
    a("s_waitcnt lgkmcnt(0)")
    a.c("last k-step; finished tiles are packed and written to LDS [w][head rg][1280] behind it")
    def pack(k):
        rt, ct = k // 5, k % 5; P = 100 + 12 * rt
        r = [f"v_cvt_pk_bf16_f32 v{P+2*ct+i}, v{ACC+4*k+2*i}, v{ACC+4*k+2*i+1}" for i in range(2)]
        if ct == 1: r.append(f"ds_write_b128 v12, {vr(P,4)} offset:{rt*256}")
        if ct == 3: r.append(f"ds_write_b128 v12, {vr(P+4,4)} offset:{512+rt*256}")
        if ct == 4: r.append(f"ds_write_b64 v13, {vr(P+8,2)} offset:{1024+rt*128}")
        return r
    for k in range(10):
        a(mf(19, k % 5)[k // 5])
        if k == 5: a("s_nop 2")
        if k >= 5:
            for x in pack(k - 5): a(x)
    stamp(a, 3)
    for k in range(5, 10):
        for x in pack(k): a(x)
    a("s_branch L_ATT")

    a("L_LOADER:")
    a.c("Wq DMA source offsets for 3 instrs: q=64i+l, p=q/10, c=q%10, src row = swap bits 2,3 of p")
    for i in range(3):
        a(f"""
        v_add_u32 v5, {64*i}, v0
        v_mul_u32_u24 v6, 6554, v5
        v_lshrrev_b32 v6, 16, v6
        v_mul_u32_u24 v7, 10, v6
        v_sub_u32 v7, v5, v7
        v_and_b32 v5, 0x13, v6
        v_and_b32 v8, 4, v6
        v_lshl_or_b32 v5, v8, 1, v5
        v_and_b32 v8, 8, v6
        v_lshrrev_b32 v8, 1, v8
        v_or_b32 v5, v5, v8
        v_mul_u32_u24 v5, 1280, v5
        v_lshl_add_u32 v{10+i}, v7, 4, v5
        """)
    a.c("x row groups 3lw+i of the 12 that are not resident -> s40..s42")
    a(f"""
    s_sub_u32 s7, s6, 4
    s_mul_i32 s49, s5, 160
    s_mul_i32 s54, s7, {16*1280}
    s_add_u32 s49, s49, s54
    s_mul_i32 s54, s7, 3072
    s_mul_i32 s51, s7, 2560
    s_add_u32 s51, s51, {XB}
    s_lshl_b32 s50, s7, 10
    s_lshl_b32 s53, s70, 2
    """)
    for i in range(3):
        a(f"""
        s_mul_i32 s55, s7, 3
        s_add_u32 s55, s55, {i}
        s_cmp_ge_u32 s55, s53
        s_cselect_b32 s56, 4, 0
        s_add_u32 s55, s55, s56
        s_lshl_b32 s55, s55, 3
        s_add_u32 s55, s55, s48
        s_mul_i32 s{40+i}, s55, 1280
        """)
    a("s_waitcnt lgkmcnt(0)\ns_cmp_eq_u32 s3, 0")
    srd_sel(a, 72, 10, 16, 640 * 1280)
    Q_ = []
    def kchunk(s):
        return f"s_add_u32 s55, s33, {s}\ns_cmp_ge_u32 s55, 10\ns_cselect_b32 s56, 10, 0\ns_sub_u32 s55, s55, s56\n"
    def items_x(s):
        r = []
        for i in range(3):
            t = (kchunk(s) + "s_lshl_b32 s55, s55, 7\n") if i == 0 else ""
            t += f"s_add_u32 m0, s54, {SLOT[SMAP[s]] + 1024*i}\ns_add_u32 s56, s55, s{40+i}\nbuffer_load_dwordx4 v2, s[36:39], s56 offen lds"
            r.append((f"X{s}", t))
        return r
    def items_w(s):
        r = []
        for i in range(3):
            t = (kchunk(s) + f"s_mul_i32 s55, s55, {64*1280}\ns_add_u32 s55, s55, s49\n") if i == 0 else ""
            t += f"s_add_u32 m0, s51, {SLOT[SMAP[s]] + 1024*i}\n" + ("s_mov_b32 exec_hi, 0\n" if i == 2 else "s_nop 0\n")
            t += f"buffer_load_dwordx4 v{10+i}, s[72:75], s55 offen lds" + ("\ns_mov_b32 exec_hi, -1" if i == 2 else "")
            r.append((f"W{s}", t))
        return r
    def emit(items):
        for n, t in items:
            a(t); Q_.append(n)
    def younger(name):
        i = max(k for k, n in enumerate(Q_) if n == name)
        return len(Q_) - 1 - i
    lb_ = [0]
    def lbar(name):
        i = lb_[0]; lb_[0] += 1
        if opt("probeB"): stamp(a, 1 + i)
        if opt("freerun") and 2 <= i <= 7: return
        a(f"s_waitcnt vmcnt({younger(name)})\ns_barrier")
    srd(a, 36, 8, 9, 2048 * 1280)
    srd(a, 28, 24, 25, WS_END)
    NW0 = optv("nw0", 0)
    w012 = items_w(0) + items_w(1) + items_w(2)
    emit(w012[:NW0])
    att_init()
    RL = 152; RA = RL + 64; RS = RA + 12
    a.c("wo re-layout job (wave 5): cb = wg&7, head pair wg>>3, piece u = l/10, octet = l%10 (50 lanes); rows (u<4) 20(u>>1)+4(u&1)+{0..3,8..11}, (u=4) 16+{0..3,20..23}")
    for i in [2, 3, 12, 13]: a(f"v_mov_b32 v{RA+i}, 0")
    a("s_cmp_eq_u32 s6, 5\ns_cbranch_scc0 L_NORL")
    t = RL + 32
    U = RA + 11
    a(f"""
    s_lshr_b32 s56, s2, 3
    s_and_b32 s35, s56, 7
    s_lshl_b32 s35, s35, 1
    s_lshr_b32 s57, s2, 7
    s_add_u32 s35, s35, s57
    s_mul_i32 s35, s35, {40*1280}
    s_mul_i32 s56, s56, 5
    s_and_b32 s57, s2, 7
    s_mul_i32 s32, s57, 160
    s_add_u32 s32, s32, s35
    v_mul_u32_u24 v{U}, 6554, v0
    v_lshrrev_b32 v{U}, 16, v{U}
    v_mul_u32_u24 v{RA}, 10, v{U}
    v_sub_u32 v{RA}, v0, v{RA}
    v_lshrrev_b32 v{t}, 1, v{U}
    v_mul_u32_u24 v{t}, 20, v{t}
    v_and_b32 v{t+1}, 1, v{U}
    v_lshl_add_u32 v{t}, v{t+1}, 2, v{t}
    v_cmp_eq_u32 vcc, 4, v{U}
    v_mov_b32 v{t+1}, 8
    s_nop 0
    v_cndmask_b32 v{t}, v{t}, 16, vcc
    v_cndmask_b32 v{t+1}, v{t+1}, 20, vcc
    v_add_u32 v{t+1}, v{t}, v{t+1}
    v_mul_u32_u24 v{t}, 1280, v{t}
    v_mul_u32_u24 v{t+1}, 1280, v{t+1}
    v_lshl_add_u32 v{RS}, v{RA}, 4, v{t}
    v_lshl_add_u32 v{RS+1}, v{RA}, 4, v{t+1}
    """)
    a.c("destination of the two 4-column chunks: octet o<8: ct = 2(o>>2)+z, rg = o&3 ; o>=8: ct = 4, rg = 2(o&1)+z")
    a(f"""
    v_cmp_lt_u32 vcc, 7, v{RA}
    v_lshrrev_b32 v{t}, 2, v{RA}
    v_mul_u32_u24 v{t}, 81920, v{t}
    v_lshl_add_u32 v{t}, v{U}, 8, v{t}
    v_and_b32 v{t+1}, 3, v{RA}
    v_lshlrev_b32 v{t+2}, 1, v{t+1}
    v_cndmask_b32 v{t+1}, v{t+1}, v{t+2}, vcc
    v_lshl_add_u32 v{RA+2}, v{t+1}, 6, v{t}
    v_mov_b32 v{t+1}, 40960
    v_cndmask_b32 v{t+1}, v{t+1}, 64, vcc
    v_add_u32 v{RA+3}, v{RA+2}, v{t+1}
    """)
    a(f"""
    s_mul_i32 s35, s57, {5*40960}
    s_lshl_b32 s56, s56, 8
    s_add_u32 s35, s35, s56
    s_add_u32 s35, s35, {WS_WO}
    L_NORL:
    v_lshlrev_b32 v13, 7, v{T0}
    s_lshl_b32 s57, s3, 12
    s_add_u32 s57, s57, {FL_KV}
    """)
    NWB = optv("nwb", 6)
    emit(w012[NW0:NWB])
    a(f"s_mov_b32 s53, {FL_EPOCH}\nbuffer_load_dword v9, v4, s[28:31], s53 offen sc1")
    stamp(a, 1)
    lb_[0] += 1
    a("s_barrier")
    rest = []
    for s in range(3, 10): rest += items_w(s) + items_x(s)
    PRE = optv("pre", 0)
    emit(w012[NWB:] + items_x(0) + items_x(1) + items_x(2) + rest[:PRE]); rest = rest[PRE:]
    PER = [int(c) for c in str(optv("per", 166666660))[1:]]
    for r in range(8):
        lbar(f"X{r}")
        if r == 0:
            a("v_readfirstlane_b32 s34, v9")
            if not opt("probeB"): stamp(a, 2)
        if r == 1: mk_tag(a)
        chunk = rest[:PER[r]]; rest = rest[PER[r]:]
        for nme, _ in chunk:
            s = int(nme[1:]); prev = [p for p in range(s) if SMAP[p] == SMAP[s]]
            if prev: assert r >= prev[-1] + 1, (nme, r)
            assert r < s
        emit(chunk)
        if r == optv("pr", 4):
            emit([("PL", "s_cmp_eq_u32 s6, 4\ns_cselect_b32 exec_lo, -1, 1\ns_mov_b32 exec_hi, 0\nbuffer_load_dwordx4 v[16:19], v13, s[28:31], s57 offen sc1\ns_mov_b64 exec, -1")])
    assert not rest
    a.c("wave 4: one look at the K/V flags; if complete, fetch the first tiles of the image early")
    def img(r): a(f"s_mov_b32 m0, {1024*r}\ns_mov_b32 s20, {1024*r}\nbuffer_load_dwordx4 v{IMG}, s[28:31], s20 offen sc1 lds")
    NE = optv("ne", 25)
    a(f"""
    s_cmp_eq_u32 s6, 4
    s_cbranch_scc0 L_N4
    s_mov_b32 exec_hi, 0
    s_waitcnt vmcnt({younger("PL")})
    v_cmp_ne_u32 vcc, s34, v16
    v_cmp_ne_u32 s[58:59], s34, v17
    s_or_b64 vcc, vcc, s[58:59]
    v_cmp_ne_u32 s[58:59], s34, v18
    s_or_b64 vcc, vcc, s[58:59]
    v_cmp_ne_u32 s[58:59], s34, v19
    s_or_b64 vcc, vcc, s[58:59]
    s_mov_b32 exec_hi, -1
    s_cmp_eq_u64 vcc, 0
    s_cbranch_scc1 L_EARLY
    s_waitcnt vmcnt({younger("X8")})
    s_barrier
    s_waitcnt vmcnt(0)
    s_barrier
    s_mov_b32 s20, -1
    s_mov_b32 s21, 0
    """)
    if opt("probeB"): a("s_branch L_FIN2")
    stamp(a, 3)
    poll(a, "L_PKV", 13, "s57", 4, 16, mask="s[20:21]", preloaded=False)
    stamp(a, 4)
    for r in range(NE): img(r)
    a("s_branch L_LATE\nL_EARLY:")
    NE0 = optv("ne0", 10)
    for r in range(NE0): img(r)
    a(f"s_waitcnt vmcnt({younger('X8') + NE0})\ns_barrier")
    for r in range(NE0, NE): img(r)
    a(f"s_waitcnt vmcnt({NE})\ns_barrier")
    if opt("probeB"): a("s_branch L_FIN2")
    stamp(a, 3); stamp(a, 4)
    a("L_LATE:")
    NX = 0
    for r in range(NE, NCH0): img(r)
    a(f"s_waitcnt vmcnt({NCH0 - 5})\ns_branch L_ATT\nL_N4:")
    lbar("X8")
    lbar("X9")
    if opt("probeB"): a("s_branch L_FIN2")
    stamp(a, 3)

    pAK1, pAK2, pAV = AK1, AK2, AV
    AK1, AK2, AV = 3, 2, 1
    def rdK(b, off):
        return [f"ds_read_b128 {vr(KF1[b],4)}, v{AK1} offset:{off}", f"ds_read_b32 v{KF2[b]}, v{AK2} offset:{off+1024}"]
    def rdV(b, off):
        return ["s_mov_b64 exec, s[36:37]",
                f"ds_read_b128 {vr(VF[b],4)}, v{AV} offset:{off+1280}", f"ds_read_b128 {vr(VF[b]+4,4)}, v{AV} offset:{off+1920}",
                "s_mov_b64 exec, -1"]
    def qk1(u, kb): return f"v_mfma_f32_32x32x16_bf16 {vr(S[u%4],16)}, {vr(KF1[kb],4)}, {vr(Q1[u%2],4)}, 0"
    def qk2(u, kb): return f"v_mfma_f32_32x32x8_bf16 {vr(S[u%4],16)}, {vr(KF2[kb],2)}, {vr(Q2[u%2],2)}, {vr(S[u%4],16)}"
    def pv(u, vb, i): return f"v_smfmac_f32_32x32x32_bf16 {vr(O[u%2],16)}, {vr(VF[vb]+4*i,4)}, {vr(S[u%4]+8*i,8)}, v{IDX}"
    a("L_ATT:")
    a(f"""
    v_mov_b32 v{AK2}, v{pAK2}
    v_mov_b32 v{AV}, v{pAV}
    v_mov_b32 v{IDX}, 0xdddddddd
    v_mov_b32 v{Q2[0]+1}, 0
    v_mov_b32 v{Q2[1]+1}, 0
    v_lshlrev_b32 v{T2}, 2, v{T0}
    s_mov_b32 s36, 0x000fffff
    s_mov_b32 s37, 0x000fffff
    s_mov_b32 s38, 0
    s_mov_b32 s39, -1
    s_mov_b32 s42, 1
    s_mov_b32 s43, 0
    s_mov_b32 s44, 8
    s_waitcnt lgkmcnt(0)
    s_barrier
    ds_read_b128 {vr(Q1[0],4)}, v{AQ1}
    ds_read_b32 v{Q2[0]}, v{AQ2} offset:1024
    ds_read_b128 {vr(Q1[1],4)}, v{AQ1} offset:1280
    ds_read_b32 v{Q2[1]}, v{AQ2} offset:2304
    """)
    for x in rdK(0, 0) + rdK(1, 2560) + rdV(1, 0): a(x)
    a(f"buffer_load_dword v{G}, v{T2}, s[28:31], s14 offen sc1")
    stamp(a, 5, True)
    a.c("stand-in for the row max: the max over the first 32 keys")
    a("s_waitcnt lgkmcnt(4)\ns_cmp_eq_u32 s13, 0\ns_cbranch_scc1 L_BQ2\ns_waitcnt vmcnt(1)\ns_barrier\nL_BQ2:")
    a(f"v_mfma_f32_32x32x16_bf16 {vr(S[2],16)}, {vr(KF1[0],4)}, {vr(Q1[0],4)}, 0")
    a(f"v_mfma_f32_32x32x8_bf16 {vr(S[0],16)}, {vr(KF2[0],2)}, {vr(Q2[0],2)}, {vr(S[2],16)}")
    a(f"v_mfma_f32_32x32x16_bf16 {vr(S[1],16)}, {vr(KF1[0],4)}, {vr(Q1[1],4)}, 0")
    a(f"v_mfma_f32_32x32x8_bf16 {vr(S[1],16)}, {vr(KF2[0],2)}, {vr(Q2[1],2)}, {vr(S[1],16)}")
    a("s_cbranch_scc0 L_BQ3\ns_setprio 2\ns_barrier\nL_BQ3:\ns_nop 8")
    for j in range(2):
        a(f"v_max3_f32 v{M[j]}, v{S[j]}, v{S[j]+1}, v{S[j]+2}\nv_max3_f32 v{T2+j}, v{S[j]+3}, v{S[j]+4}, v{S[j]+5}")
        if j == 1: a(f"v_mfma_f32_32x32x8_bf16 {vr(S[0],16)}, {vr(KF2[0],2)}, {vr(Q2[0],2)}, {vr(S[2],16)}")
        for i in range(6, 16, 4):
            a(f"v_max3_f32 v{M[j]}, v{S[j]+i}, v{S[j]+i+1}, v{M[j]}")
            if i + 2 < 16: a(f"v_max3_f32 v{T2+j}, v{S[j]+i+2}, v{S[j]+i+3}, v{T2+j}")
        a(f"""
        v_max_f32 v{M[j]}, v{M[j]}, v{T2+j}
        v_mov_b32 v{T2+j}, v{M[j]}
        s_nop 1
        v_permlane32_swap_b32 v{M[j]}, v{T2+j}
        s_nop 0
        v_min_f32 v{M[j]}, -v{M[j]}, -v{T2+j}
        v_lshrrev_b32 v{M[j]}, 16, v{M[j]}
        v_cndmask_b32 v{Q2[j]+1}, v{M[j]}, 0, s[38:39]
        """)
    a(f"""
    s_cmp_eq_u32 s13, 0
    s_cbranch_scc0 L_LAG0
    s_setprio 2
    s_waitcnt lgkmcnt(0)
    s_branch L_PR
    L_LAG0:
    """)
    a.c("waves 4-7: rest of the K/V image, side jobs, then S1 (waves 0-3 meet it after their first 8 tiles)")
    def rl_loads():
        a("s_bitcmp0_b32 s2, 6")
        srd_sel(a, 72, 68, 22, 640 * 1280)
        a("s_mov_b32 exec_hi, 0x3ffff")
        for e in range(8):
            a(f"buffer_load_dwordx4 {vr(RL+4*e,4)}, v{RS+e//4}, s[72:75], s32 offen offset:{(e%4)*1280}")
    def rl_stores():
        a("s_mov_b32 s56, 0x05040100\ns_mov_b32 s57, 0x07060302\ns_mov_b32 exec_hi, 0x3ffff")
        a.c("wo re-layout: 8x8 16-bit transposition in registers")
        for c in range(8):
            for r in range(4):
                a(f"v_perm_b32 v{RL+32+4*c+r}, v{RL+4*(2*r+1)+c//2}, v{RL+4*(2*r)+c//2}, {'s56' if c % 2 == 0 else 's57'}")
            a(f"buffer_store_dwordx4 {vr(RL+32+4*c,4)}, v{RA+2+c//4}, s[28:31], s35 offen offset:{(c%4)*16} sc1")
    RLE = False
    if RLE:
        a("s_cmp_eq_u32 s6, 5\ns_cbranch_scc0 L_NRL")
        rl_loads()
        a("s_mov_b32 exec_hi, -1\nL_NRL:")
    quads = [k for k in range(24, 160, 4) if not (56 <= k < 56 + NX)]
    for k in quads:
        a(f"s_add_u32 m0, s50, {1024*k}\ns_add_u32 s20, s50, {1024*k}\nbuffer_load_dwordx4 v{IMG}, s[28:31], s20 offen sc1 lds")
    a("s_cmp_eq_u32 s6, 5\ns_cbranch_scc0 L_POIS")
    if RLE:
        a(f"s_waitcnt vmcnt({len(quads)})")
        rl_stores()
    else: rl_loads()
    a("s_branch L_S1\nL_POIS:")
    a.c("waves 4,6,7: mark this workgroup's share of the O hand-off buffer as not yet written (rt16 = 8rb + i, slice 8*branch+hg); one KB column each")
    a(f"""
    s_mul_i32 s55, s4, {8*40960}
    s_lshl_b32 s56, s3, 3
    s_add_u32 s56, s56, s5
    s_mul_i32 s56, s56, 2560
    s_add_u32 s55, s55, s56
    s_add_u32 s55, s55, {WS_O}
    s_sub_u32 s56, s6, 5
    s_max_i32 s56, s56, 0
    s_lshl_b32 s56, s56, 10
    s_add_u32 s55, s55, s56
    v_mov_b32 v{PT}, -1
    v_mov_b32 v{PT+1}, -1
    v_mov_b32 v{PT+2}, -1
    v_mov_b32 v{PT+3}, -1
    s_cmp_eq_u32 s6, 7
    s_cselect_b32 exec_hi, 0, -1
    """)
    for i in range(8):
        if opt("nopois"): a("s_mov_b64 exec, 1")
        a(f"buffer_store_dwordx4 {vr(PT,4)}, v{AK1}, s[28:31], s55 offen sc1\ns_add_u32 s55, s55, 40960")
    a("""
    L_S1:
    s_mov_b64 exec, -1
    s_waitcnt vmcnt(8) lgkmcnt(0)
    s_barrier
    s_setprio 3
    L_PR:
    """)
    stamp(a, 6)
    if opt("cyc"): a("s_memtime s[80:81]")
    if opt("iters"): a("s_memtime s[94:95]\ns_waitcnt lgkmcnt(0)")
    a(".p2align 6\nL_LOOP:")
    for t in range(8):
        for j in range(2):
            u = 2 * t + j
            b = (t + j) % 2
            ex = [f"v_exp_f32 v{S[u%4]+i}, v{S[u%4]+i}" for i in range(16)]
            extra = [[], [], [], []]
            if j == 1:
                a("s_waitcnt lgkmcnt(0)")
                extra[0] = rdK(t % 2, (t + 2) * 2560)
                extra[1] = rdV(t % 2, (t + 1) * 2560)
            ms = [qk1(u + 1, b), qk2(u + 1, b), pv(u - 1, b, 0), pv(u - 1, b, 1)]
            for g in range(4):
                a(ms[g])
                for x in ex[4 * g:4 * g + 2]: a(x)
                for x in extra[g]: a(x)
                for x in ex[4 * g + 2:4 * g + 4]: a(x)
            if t == optv("nlt", 0) and j == 1 and optv("nlh", 3):
                a(f"s_cmp_eq_u32 s43, {16 + optv('nlh', 3) + 1}\ns_cbranch_scc0 L_PH\ns_setprio 1\nL_PH:")
    a(f"v_add_u32 v{AK1}, 20480, v{AK1}\nv_add_u32 v{AK2}, 20480, v{AK2}\nv_add_u32 v{AV}, 20480, v{AV}")
    a(f"""
    s_lshl_b32 s43, s13, 4
    s_add_u32 s43, s43, s44
    s_cmp_eq_u32 s43, {16 + optv("nl", 9)}
    s_cbranch_scc0 L_P1
    s_setprio 1
    L_P1:
    s_cmp_eq_u32 s42, 0
    s_cbranch_scc1 L_NEXT
    {"s_cmp_lg_u32 s43, 8" if opt("noside") else ""}
    {"s_cbranch_scc1 L_NEXT" if opt("noside") else ""}
    s_cmp_eq_u32 s44, 8
    s_cbranch_scc0 L_E0
    s_cmp_eq_u32 s13, 0
    s_cbranch_scc0 L_RL2
    s_barrier
    s_branch L_NEXT
    L_RL2:
    """)
    if not RLE:
        a(f"s_cmp_eq_u32 s6, {15 if opt('norl') else 5}\ns_cbranch_scc0 L_NEXT\ns_waitcnt vmcnt(0)")
        rl_stores()
        a("s_mov_b32 exec_hi, -1")
    a(f"""
    s_branch L_NEXT
    L_E0:
    s_cmp_eq_u32 s43, {16 + (7 if opt("spread") else 6)}
    s_cbranch_scc0 L_E1
    s_lshl_b32 s56, s2, 2
    s_add_u32 s56, s56, s6
    s_lshl_b32 s56, s56, 2
    s_add_u32 s56, s56, {FL_W - 16}
    v_mov_b32 v{T3}, 0
    s_waitcnt vmcnt(0)
    """)
    flag_store(a, "s56", T2, T3)
    a.c("flags to see: lanes 0-31 the workgroups that re-lay this tile's Wo columns, lanes 32-63 the row group")
    a(f"""
    s_branch L_NEXT
    L_E1:
    s_cmp_eq_u32 s44, {6 if opt("spread") else 4}
    s_cbranch_scc0 L_E2
    v_lshl_add_u32 v{T2}, v{T0}, 3, s5
    v_and_b32 v{T3}, 14, v0
    v_lshlrev_b32 v{T3}, 4, v{T3}
    v_and_or_b32 v{T3}, v0, 1, v{T3}
    s_and_b32 s57, s2, 0x1e
    v_or_b32 v{T3}, s57, v{T3}
    v_cndmask_b32 v{T2}, v{T2}, v{T3}, s[38:39]
    v_lshlrev_b32 v{T2}, 4, v{T2}
    s_mov_b32 s57, {FL_W}
    buffer_load_dwordx4 {vr(PT,4)}, v{T2}, s[28:31], s57 offen sc1
    s_branch L_NEXT
    L_E2:
    s_cmp_eq_u32 s44, {5 if opt("spread") else 3}
    s_cbranch_scc0 {"L_W1" if opt("spread") else "L_NEXT"}
    """)
    poll(a, "L_PW", T2, "s57", 4, PT, sleep=8)
    if opt("touch"):
        a.c("touch this tile's lines of the output (address translation and L2 are warm when the final stores come)")
        srd(a, 72, 66, 67, 2048 * 1280)
        a(f"""
        s_lshl_b32 s56, s4, 1
        s_add_u32 s56, s56, s3
        s_mul_i32 s56, s56, {64*1280}
        s_mul_i32 s57, s5, 160
        s_add_u32 s56, s56, s57
        s_and_b32 s57, s6, 3
        s_mul_i32 s57, s57, 52
        s_add_u32 s56, s56, s57
        v_mul_u32_u24 v{T2}, 1280, v0
        buffer_load_dword v{PT}, v{T2}, s[72:75], s56 offen
        """)
    a.c("prefetch this wave's Wo fragments: [cb=hg][ct][f32 = 5w+st]")
    a(f"""
    s_mul_i32 s56, s5, {5*40960}
    s_mul_i32 s57, s6, 5120
    s_add_u32 s56, s56, s57
    s_add_u32 s56, s56, {WS_WO}
    v_lshlrev_b32 v{T2}, 4, v0
    v_add_u32 v{T3}, 4096, v{T2}
    """)
    for ct in range(5):
        for st in range(5):
            av = T2 if st < 4 else T3
            if not opt("nowo"): a(f"buffer_load_dwordx4 {vr(WO+(st*5+ct)*4,4)}, v{av}, s[28:31], s56 offen offset:{(st%4)*1024} sc1")
        if ct < 4: a("s_add_u32 s56, s56, 40960")
        if opt("spread") and ct < 4:
            SP = [5, 4, 3, 2, 2]
            if SP[ct + 1] != SP[ct]:
                a(f"s_branch L_NEXT\nL_W{ct+1}:\ns_cmp_eq_u32 s44, {SP[ct+1]}\ns_cbranch_scc0 {'L_W%d' % (ct+2) if ct < 2 else 'L_NEXT'}")
    a("L_NEXT:")
    if opt("iters"):
        for k in range(1, 9): a(f"s_mov_b32 s{76+2*k}, s{76+2*(k+1)}")
        a("s_memtime s[94:95]\ns_waitcnt lgkmcnt(0)")
    a("s_sub_u32 s44, s44, 1\ns_cmp_lg_u32 s44, 0\ns_cbranch_scc1 L_LOOP")
    stamp(a, 7)
    if opt("cyc"): a("s_memtime s[82:83]")
    a(pv(15, 0, 0)); a(pv(15, 0, 1))
    a.c("phase E addresses: tile rows 64*(2rb+branch).., columns 80*hg.. ; wave = K eighth; row tiles in an order rotated by hg")
    a(f"""
    s_setprio 3
    s_mov_b32 s46, {f32bits(2.0**-40)}
    s_mov_b32 s47, {f32bits(2.0**40)}
    s_mov_b32 s23, -2
    s_lshl_b32 s16, s4, 1
    s_add_u32 s16, s16, s3
    s_mul_i32 s21, s16, {4*40960}
    s_mul_i32 s40, s6, 5120
    s_add_u32 s21, s21, s40
    s_add_u32 s21, s21, {WS_O}
    """)
    for i in range(4):
        a(f"s_add_u32 s22, s5, {i}\ns_and_b32 s22, s22, 3\ns_mul_i32 s22, s22, 40960\ns_add_u32 s{17+i}, s21, s22\ns_add_u32 s{8+i}, s22, s40")
    a("s_waitcnt vmcnt(0) lgkmcnt(0)")
    a.c("run-time safety check of the stand-in max: row sums must lie in [2^-40, 2^40], else redo with the true max")
    a(f"""
    v_cndmask_b32 v{M[0]}, v{O[0]+12}, v{O[0]+8}, s[38:39]
    v_cndmask_b32 v{M[1]}, v{O[1]+12}, v{O[1]+8}, s[38:39]
    v_cmp_le_f32 s[48:49], s46, v{M[0]}
    v_cmp_ge_f32 s[50:51], s47, v{M[0]}
    v_cmp_le_f32 s[52:53], s46, v{M[1]}
    v_cmp_ge_f32 s[54:55], s47, v{M[1]}
    v_rcp_f32 v{M[0]}, v{M[0]}
    v_rcp_f32 v{M[1]}, v{M[1]}
    s_and_b64 s[48:49], s[48:49], s[50:51]
    s_and_b64 s[52:53], s[52:53], s[54:55]
    s_and_b64 s[48:49], s[48:49], s[52:53]
    s_cmp_eq_u64 s[48:49], -1
    s_cbranch_scc0 L_BAD
    L_OK:
    v_mul_f32 v{M[0]}, v{M[0]}, v{G}
    v_mul_f32 v{M[1]}, v{M[1]}, v{G}
    """)
    P = S[3]
    for j in range(2):
        for i in range(12): a(f"v_mul_f32 v{O[j]+i}, v{O[j]+i}, v{M[j]}")
        for i in range(4): a(f"v_cvt_pk_bf16_f32 v{P+4*j+i}, v{O[j]+2*i}, v{O[j]+2*i+1}")
        for i in range(2): a(f"v_cvt_pk_bf16_f32 v{P+8+2*j+i}, v{O[j]+8+2*i}, v{O[j]+8+2*i+1}")
        for i in range(4): a(f"v_min_u32 v{P+4*j+i}, s23, v{P+4*j+i}")
        a(f"buffer_store_dwordx4 {vr(P+4*j,4)}, v{OA}, s[28:31], s26 offen offset:{512*j} sc1")
    for i in range(4): a(f"v_min_u32 v{P+8+i}, s23, v{P+8+i}")
    a(f"""
    s_mov_b32 exec_hi, 0
    buffer_store_dwordx4 {vr(P+8,4)}, v{OA}, s[28:31], s26 offen offset:1024 sc1
    """)
    if opt("dup"):
        a(f"buffer_store_dwordx4 {vr(P+8,4)}, v{OA}, s[28:31], s26 offen offset:1024\ns_mov_b32 exec_hi, -1")
        for j in range(2): a(f"buffer_store_dwordx4 {vr(P+4*j,4)}, v{OA}, s[28:31], s26 offen offset:{512*j}")
    a("s_mov_b32 exec_hi, -1\ns_setprio 0")
    EB = not opt("lateb")
    if EB:
        a.c("every wave of this workgroup is past its last K/V read at this barrier: LDS can be reused")
        a("s_cmp_eq_u32 s13, 0\ns_cbranch_scc1 L_NB\ns_barrier\nL_NB:")
    OF = 16
    EA = [96, 116, 16, 36]
    srd(a, 72, 66, 67, 2048 * 1280)
    a.c("partial sums change lanes on their way through LDS: writer (n, rg) -> slot 4n + (rg ^ ((n>>1)&3)); reader lane = 4*row + rg")
    a.c("out address (waves 0-3): row = 64*(2rb+branch) + 16w + (l>>2) ; columns 8rg.., 32+8rg.., 64+4rg..")
    a(f"""
    v_mov_b32 v2, s34
    v_mov_b32 v3, 0
    v_lshlrev_b32 v5, 4, v0
    v_add_u32 v6, 4096, v5
    v_and_b32 v13, 15, v0
    v_lshrrev_b32 v14, 4, v0
    v_bfe_u32 v12, v0, 1, 2
    v_xor_b32 v14, v14, v12
    v_lshl_add_u32 v14, v13, 2, v14
    v_lshlrev_b32 v14, 4, v14
    v_add_u32 v8, s8, v14
    v_add_u32 v9, s9, v14
    v_add_u32 v10, s10, v14
    v_add_u32 v11, s11, v14
    v_bfe_u32 v12, v0, 3, 2
    v_xor_b32 v12, v12, v0
    s_mul_i32 s22, s6, 40960
    v_lshl_add_u32 v12, v12, 4, s22
    s_lshl_b32 s22, s16, 6
    s_lshl_b32 s21, s6, 4
    s_add_u32 s22, s22, s21
    s_mul_i32 s22, s22, 1280
    s_mul_i32 s21, s5, 160
    s_add_u32 s22, s22, s21
    v_lshrrev_b32 v13, 2, v0
    v_mul_u32_u24 v13, 1280, v13
    v_and_b32 v14, 3, v0
    v_lshl_add_u32 v7, v14, 3, v13
    v_lshl_add_u32 v13, v14, 4, v13
    s_mov_b32 s60, {SPIN}
    """)
    REQ = {"A": [int(c) for c in str(optv("reqa", 44444))], "B": [int(c) for c in str(optv("reqb", 12344))]}
    def oload(rt):
        for st in range(5):
            av = 5 if st < 4 else 6
            a(f"buffer_load_dwordx4 {vr(OF+(rt*5+st)*4,4)}, v{av}, s[28:31], s{17+rt} offen offset:{(st%4)*1024} sc1")
    def ewrites(rt):
        return [f"ds_write_b128 v{8+rt}, {vr(EA[rt]+4*ct,4)} offset:{ct*1024}" for ct in range(5)]
    tail = []
    def egemm(tag, bar=-1, wr=True):
        for rt in range(4):
            if rt == bar: a("s_barrier")
            a(f"L_CH{tag}{rt}:")
            b = OF + rt * 20
            w = ewrites(rt - 1) if rt >= 1 and wr else []
            a.c("MFMAs run ahead of the hand-off check (no word may still hold the not-yet-written mark); a failed check redoes the block")
            for st in range(5):
                if st == 0:
                    a(f"s_waitcnt vmcnt({4 + 5*(REQ[tag][rt] - rt - 1)})")
                    for r2 in range(REQ[tag][rt], REQ[tag][rt+1]): oload(r2)
                else: a(f"s_waitcnt vmcnt({4 - st + 5*(REQ[tag][rt+1] - rt - 1)})")
                f = b + 4 * st
                chk = [f"v_max3_u32 v15, v{f}, v{f+1}, v{f+2}" if st == 0 else f"v_max3_u32 v15, v{f}, v{f+1}, v15",
                       f"v_max_u32 v15, v{f+3}, v15" if st == 0 else f"v_max3_u32 v15, v{f+2}, v{f+3}, v15"]
                if st == 4: chk += ["v_cmp_eq_u32 vcc, -1, v15"]
                for ct in range(5):
                    d = vr(EA[rt] + 4 * ct, 4)
                    a(f"v_mfma_f32_16x16x32_bf16 {d}, {vr(WO+(st*5+ct)*4,4)}, {vr(f,4)}, {'0' if st == 0 else d}")
                    if ct < len(chk): a(chk[ct])
                    if w and st >= 1 and ct == 3: a(w[st - 1])
                    if w and st == 4 and ct == 4: a(w[4])
            a(f"s_cbranch_vccnz L_RE{tag}{rt}\nL_GO{tag}{rt}:")
            tail.append((tag, rt))
            if opt("probeE"): stamp(a, [1, 2, 3, 5][rt])
    def retries():
        if PROF and not opt("iters") and not opt("keep4"): a(f"s_waitcnt lgkmcnt(0)\ns_sub_u32 s84, {SPIN}, s60\ns_mul_i32 s84, s84, 100\ns_add_u32 s84, s84, s76")
    a("s_cmp_eq_u32 s13, 0\ns_cbranch_scc1 L_ELEAD")
    a.c("every wave of this workgroup is past its last K/V read at this barrier: LDS can be reused")
    if not opt("asym") and not EB: a("s_barrier")
    if not opt("noack"): a("s_waitcnt vmcnt(0)")
    elif optv("dly", 0): a(f"s_sleep {optv('dly', 0)}")
    stamp(a, 8)
    for rt in range(REQ["B"][0]): oload(rt)
    if opt("asym"): a("s_barrier")
    if opt("probeE"): stamp(a, 6)
    if PROF: a("s_waitcnt lgkmcnt(0)")
    if optv("bp", 0): a(f"s_setprio {optv('bp', 0)}")
    egemm("B", optv("bar", 2))
    stamp(a, 10); retries()
    a("s_waitcnt lgkmcnt(0)\ns_nop 6" if opt("probeE") else "s_waitcnt lgkmcnt(5)\ns_nop 6")
    for x in ewrites(3): a(x)
    a("s_waitcnt lgkmcnt(0)\ns_barrier\ns_branch L_FIN")
    a("L_ELEAD:")
    if not opt("asym") and not (not opt("leadlast")): a("s_barrier")
    a("s_waitcnt vmcnt(0)")
    stamp(a, 8)
    for rt in range(REQ["A"][0]): oload(rt)
    if opt("probeE"): stamp(a, 6)
    if PROF: a("s_waitcnt lgkmcnt(0)")
    if opt("asym"):
        egemm("A", wr=False)
        stamp(a, 9); retries()
        a("s_barrier\ns_setprio 2\ns_waitcnt lgkmcnt(0)\ns_nop 4")
        for rt in range(4):
            for x in ewrites(rt): a(x)
            if rt == 1: a("s_waitcnt lgkmcnt(4)")
    else:
        egemm("A", optv("bara", 1))
        stamp(a, 9); retries()
        a("s_waitcnt lgkmcnt(0)\ns_nop 6" if opt("probeE") else "s_waitcnt lgkmcnt(5)\ns_nop 6")
        for x in ewrites(3): a(x)
    a("s_waitcnt lgkmcnt(0)\ns_barrier")
    R = 56
    def rsum(src0, keep):
        for src in range(4):
            for c in range(5):
                a(f"ds_read_b128 {vr(R+src*20+4*c,4)}, v12 offset:{(src0+src)*5120+c*1024}")
            if src == 1: a("s_waitcnt lgkmcnt(4)")
        a("s_waitcnt lgkmcnt(10)")
        for i in range(20): a(f"v_add_f32 v{R+i}, v{R+i}, v{R+20+i}")
        if keep:
            for i in range(20): a(f"v_add_f32 v{R+i}, v{R+i}, v{16+i}")
        a("s_waitcnt lgkmcnt(0)")
        for i in range(20): a(f"v_add_f32 v{R+40+i}, v{R+40+i}, v{R+60+i}")
        for i in range(20): a(f"v_add_f32 v{16+i}, v{R+i}, v{R+40+i}")
    rsum(0, False)
    a("s_barrier")
    stamp(a, 10, True)
    rsum(4, True)
    for i in range(10): a(f"v_cvt_pk_bf16_f32 v{40+i}, v{16+2*i}, v{16+2*i+1}")
    a("""
    buffer_store_dwordx4 v[40:43], v13, s[72:75], s22 offen
    buffer_store_dwordx4 v[44:47], v13, s[72:75], s22 offen offset:64
    buffer_store_dwordx2 v[48:49], v7, s[72:75], s22 offen offset:128
    """)
    a.c("workgroup 0 advances the epoch: every workgroup has read it by now")
    a(f"""
    s_or_b32 s21, s2, s6
    s_cmp_eq_u32 s21, 0
    s_cbranch_scc0 L_FIN
    s_mov_b32 s21, {FL_EPOCH}
    s_mov_b64 exec, 1
    buffer_store_dword v2, v3, s[28:31], s21 offen sc1
    L_FIN:
    """)
    if PROF: a("s_waitcnt vmcnt(0)")
    stamp(a, 11)
    a("L_FIN2:")
    stamp_flush(a)
    a("s_endpgm")
    for tag, rt in tail:
        a(f"""
        L_RE{tag}{rt}:
        s_cmp_eq_u32 s60, 0
        s_cbranch_scc1 L_GO{tag}{rt}
        s_sub_u32 s60, s60, 1
        s_waitcnt vmcnt(0) lgkmcnt(0)
        s_sleep {optv("slp", 4)}
        """)
        for r2 in range(rt, REQ[tag][rt]): oload(r2)
        a(f"s_branch L_CH{tag}{rt}")
    a("L_BAD:")
    a.c("second (and last) pass: exact row max over all keys, then the same loop again")
    a(f"""
    s_cmp_eq_u32 s42, 0
    s_cbranch_scc1 L_OK
    s_mov_b32 s42, 0
    s_mov_b32 s40, 0xffff0000
    s_mov_b32 s43, 64
    v_subrev_u32 v{AK1}, {KV_BYTES}, v{AK1}
    v_subrev_u32 v{AK2}, {KV_BYTES}, v{AK2}
    v_subrev_u32 v{AV}, {KV_BYTES}, v{AV}
    v_mov_b32 v{T2}, v{AK1}
    v_mov_b32 v{T3}, v{AK2}
    """)
    for j in range(2):
        a(f"v_mov_b32 v{Q2[j]+1}, 0\nv_mov_b32 v{M[j]}, 0xff800000")
    for i in range(32): a(f"v_mov_b32 v{O[0]+i}, 0")
    for i in range(16): a(f"v_mov_b32 v{S[3]+i}, 0")
    a("L_MAXL:")
    a(f"ds_read_b128 {vr(KF1[0],4)}, v{T2}\nds_read_b32 v{KF2[0]}, v{T3} offset:1024")
    a(f"v_add_u32 v{T2}, 2560, v{T2}\nv_add_u32 v{T3}, 2560, v{T3}\ns_waitcnt lgkmcnt(0)")
    for j in range(2): a(qk1(j, 0)); a(qk2(j, 0))
    a("s_nop 11")
    for j in range(2):
        for i in range(8):
            a(f"v_max3_f32 v{M[j]}, v{S[j]+2*i}, v{S[j]+2*i+1}, v{M[j]}")
    a("s_sub_u32 s43, s43, 1\ns_cmp_lg_u32 s43, 0\ns_cbranch_scc1 L_MAXL")
    for x in rdK(0, 0) + rdK(1, 2560) + rdV(1, 0): a(x)
    a.c("-m split exactly into three bf16 pieces that ride in the spare k-slots")
    for j in range(2):
        a(f"""
        v_mov_b32 v{T2}, v{M[j]}
        s_nop 1
        v_permlane32_swap_b32 v{M[j]}, v{T2}
        s_nop 1
        v_min_f32 v{M[j]}, -v{M[j]}, -v{T2}
        v_and_b32 v{T2}, s40, v{M[j]}
        v_sub_f32 v{T3}, v{M[j]}, v{T2}
        v_lshrrev_b32 v{T2}, 16, v{T2}
        v_and_or_b32 v{T2}, v{T3}, s40, v{T2}
        v_and_b32 v{M[j]}, s40, v{T3}
        v_sub_f32 v{T3}, v{T3}, v{M[j]}
        v_and_b32 v{T3}, s40, v{T3}
        v_cndmask_b32 v{Q2[j]+1}, v{T2}, v{T3}, s[38:39]
        """)
    a("s_waitcnt lgkmcnt(0)\ns_nop 0")
    a(qk1(0, 0)); a(qk2(0, 0))
    a("s_mov_b32 s44, 8\ns_setprio 1\ns_nop 9\ns_branch L_LOOP")
    a("L_END:\ns_endpgm")
    return f""".p2align 6
.amdhsa_kernel {N}
  .amdhsa_next_free_vgpr 256
  .amdhsa_next_free_sgpr 102
  .amdhsa_accum_offset 256
  .amdhsa_group_segment_fixed_size 0
  .amdhsa_kernarg_size 112
  .amdhsa_user_sgpr_count 2
  .amdhsa_user_sgpr_kernarg_segment_ptr 1
  .amdhsa_system_sgpr_workgroup_id_x 1
.end_amdhsa_kernel
"""

def main():
    ref = open(f"cdna_kernels/{NAME}.s.ref").read().split("\n")
    head = [l for l in ref if l.startswith(";") and "@launch" not in l]
    a = Asm()
    kd = gen(a)
    out = "\n".join(head) + "\n"
    out += "; @launch grid=(256,1,1) block=(512,1,1) lds=163840\n"
    out += """;
;  E  gate * O / l goes through d_ws (slots pre-marked as unwritten, every word verified on arrival),
"""
    out += '.amdgcn_target "amdgcn-amd-amdhsa--gfx950"\n.text\n'
    t = a.text()
    if opt("outsc1"): t = "\n".join(l + " sc1" if "buffer_store" in l and "s[72:75]" in l else l for l in t.split("\n"))
    if opt("outnt"): t = "\n".join(l + " nt" if "buffer_store" in l and "s[72:75]" in l else l for l in t.split("\n"))
    if opt("plainonly"): t = "\n".join(l.replace(" sc1", "") if "buffer_store" in l and "s26" in l else l for l in t.split("\n"))
    out += t
    out += '.section .rodata,"a"\n' + kd
    path = ARGS[0] if ARGS and not ARGS[0].startswith("--") else f"cdna_kernels/{NAME}.s"
    open(path, "w").write(out)
main()
```

```python
import math, struct, sys

NAME = "gated_mix__grouped_kv_mqa__grouped_kv_mqa__prompt"
ARGS = sys.argv[1:]
def opt(n): return ("--" + n) in ARGS
def optv(n, d):
    for x in ARGS:
        if x.startswith("--" + n + "="): return int(x.split("=")[1])
    return d

KV_BYTES = 163840
WS_KV   = 0
WS_G    = 2 * KV_BYTES
WS_O    = WS_G + 16384
O_BYTES = 128 * 40 * 1024
WS_WO   = WS_O + O_BYTES
WO_BYTES = 8 * 5 * 40 * 1024
WS_FL   = WS_WO + WO_BYTES
FL_EPOCH = WS_FL
FL_KV   = WS_FL + 256
FL_W    = FL_KV + 8192
WS_END  = FL_W + 4096

def f32bits(x):
    return struct.unpack("<I", struct.pack("<f", x))[0]
QSCALE = f32bits((20 ** -0.5) * math.log2(math.e))
LOG2E = f32bits(math.log2(math.e))

class Asm:
    def __init__(self): self.l = []
    def __call__(self, s):
        for line in s.split("\n"):
            line = line.strip()
            if line: self.l.append(("" if line.endswith(":") else "  ") + line)
    def c(self, s): self.l.append("  ; " + s)
    def text(self): return "\n".join(self.l) + "\n"

def vr(b, n=1): return f"v{b}" if n == 1 else f"v[{b}:{b+n-1}]"

def srd(a, d, lo, hi, nbytes):
    a(f"s_mov_b32 s{d}, s{lo}\ns_mov_b32 s{d+1}, s{hi}\ns_mov_b32 s{d+2}, {nbytes}\ns_mov_b32 s{d+3}, 0x00020000")
def srd_sel(a, d, lo0, lo1, nbytes):
    a(f"s_cselect_b32 s{d}, s{lo0}, s{lo1}\ns_cselect_b32 s{d+1}, s{lo0+1}, s{lo1+1}\ns_mov_b32 s{d+2}, {nbytes}\ns_mov_b32 s{d+3}, 0x00020000")

PROF = opt("prof")
PROF_BASE = 16 << 20
NST = 12
def stamp(a, i, wait=False):
    if PROF and not (opt("iters") and i >= 7) and not (opt("clk") and i >= 8):
        a(f"s_memrealtime s[{76+2*i}:{77+2*i}]")
        if opt("clk") and i < 4: a(f"s_memtime s[{92+2*i}:{93+2*i}]")
        if wait: a("s_waitcnt lgkmcnt(0)")
def stamp_flush(a):
    if not PROF: return
    a("s_waitcnt lgkmcnt(0)\ns_mov_b64 exec, 1")
    a(f"s_lshl_b32 s62, s2, 3\ns_add_u32 s62, s62, s6\ns_lshl_b32 s62, s62, 6\ns_add_u32 s62, s62, {PROF_BASE}")
    a("s_mov_b32 s30, 0x2000000\nv_mov_b32 v0, 0")
    for i in range(NST):
        a(f"v_mov_b32 v2, s{76+2*i}\nbuffer_store_dword v2, v0, s[28:31], s62 offen offset:{4*i}\ns_nop 1")

SPIN = 200000
def poll(a, lbl, addr_v, soff, width, tmp, mask=None, preloaded=True, sleep=1):
    ld = {1: "dword", 2: "dwordx2", 4: "dwordx4"}[width]
    a(f"s_mov_b32 s60, {SPIN}")
    if mask is not None: a(f"s_mov_b64 exec, {mask}")
    if preloaded: a(f"s_branch {lbl}_chk")
    a(f"{lbl}_ld:")
    a(f"buffer_load_{ld} {vr(tmp,width)}, v{addr_v}, s[28:31], {soff} offen sc1")
    a(f"{lbl}_chk:\ns_waitcnt vmcnt(0)")
    a(f"v_cmp_ne_u32 vcc, s34, v{tmp}")
    for i in range(1, width):
        a(f"v_cmp_ne_u32 s[58:59], s34, v{tmp+i}\ns_or_b64 vcc, vcc, s[58:59]")
    a(f"s_sub_u32 s60, s60, 1\ns_cbranch_scc1 {lbl}_ok")
    a(f"s_cmp_eq_u64 vcc, 0\ns_cbranch_scc1 {lbl}_ok\ns_sleep {sleep}\ns_branch {lbl}_ld\n{lbl}_ok:")
    if mask is not None: a("s_mov_b64 exec, -1")

def flag_store(a, soff, vtmp, vzero):
    a(f"v_mov_b32 v{vtmp}, s34\ns_mov_b64 exec, 1\nbuffer_store_dword v{vtmp}, v{vzero}, s[28:31], {soff} offen sc1\ns_mov_b64 exec, -1")
def mk_tag(a):
    a("s_mul_i32 s34, s34, 0x9e3779b1\ns_add_u32 s34, s34, 0x7f4a7c15")

def gen(a):
    N = NAME + "_kernel"
    STG = 22528; XB = 12288
    L_M = 0; L_G = 25600; RING = 27648
    L_X32 = RING + 4 * STG
    SLOT = {"A": RING, "B": RING + STG, "C": RING + 2 * STG, "D": RING + 3 * STG}
    SMAP = ["A", "B", "C", "D", "A", "B", "C", "D", "A", "B"]
    L_QX = SLOT["D"]
    NCH0 = 25
    Q1 = [4, 12]; Q2 = [8, 16]
    IDX, G = 10, 11
    T2, T3 = 20, 21
    M = [22, 23]
    KF1 = [24, 32]; KF2 = [28, 36]
    OA, IMG, T0, T1 = 30, 31, 38, 39
    VF = [40, 48]
    O = [56, 72]
    S = [88, 104, 120, 136]
    AK1, AK2, AV, AQ1, AQ2 = 88, 89, 90, 91, 92
    WO = 152; PT = 252

    def att_init():
        a.c("attention constants and accumulators; s12 = rt32, s13 = hp, s26 + v30 = O address")
        a(f"""
        s_and_b32 s15, s6, 3
        s_lshl_b32 s13, s4, 2
        s_add_u32 s12, s15, s13
        s_lshr_b32 s13, s6, 2
        s_mul_i32 s15, s15, 5120
        s_mul_i32 s14, s13, 2560
        s_add_u32 s15, s15, s14
        s_add_u32 s15, s15, {L_QX}
        v_and_b32 v{T0}, 31, v0
        v_lshrrev_b32 v{T1}, 5, v0
        v_lshlrev_b32 v{AK2}, 3, v{T0}
        v_lshl_add_u32 v{AK2}, v{T1}, 2, v{AK2}
        v_add_u32 v{AQ1}, s15, v3
        v_add_u32 v{AQ2}, s15, v{AK2}
        v_mul_u32_u24 v{AV}, 20, v{T1}
        v_add_lshl_u32 v{AV}, v{AV}, v{T0}, 4
        s_mul_i32 s26, s12, 81920
        s_lshl_b32 s14, s13, 1
        s_add_u32 s14, s14, s3
        s_lshl_b32 s14, s14, 3
        s_add_u32 s14, s14, s5
        s_mul_i32 s14, s14, 1280
        s_add_u32 s26, s26, s14
        s_add_u32 s26, s26, {WS_O}
        v_lshrrev_b32 v{OA}, 4, v{T0}
        v_mul_u32_u24 v{OA}, 40960, v{OA}
        v_lshl_add_u32 v{OA}, v{T1}, 8, v{OA}
        v_and_b32 v{AK1}, 15, v0
        v_lshl_add_u32 v{OA}, v{AK1}, 4, v{OA}
        s_mul_i32 s14, s3, {KV_BYTES}
        v_add_u32 v{IMG}, s14, v3
        s_lshl_b32 s14, s3, 6
        s_add_u32 s14, s14, s12
        s_lshl_b32 s14, s14, 7
        s_add_u32 s14, s14, {WS_G}
        """)
        for b in range(2):
            a(f"v_mov_b32 v{KF2[b]+1}, 0x3f803f80")
            for i in range(8): a(f"v_mov_b32 v{VF[b]+i}, 0")
        a("s_mov_b32 exec_lo, 0x01100000\ns_mov_b32 exec_hi, 0x01100000")
        for b in range(2):
            for i in range(8): a(f"v_mov_b32 v{VF[b]+i}, 0x3f803f80")
        a("s_mov_b64 exec, -1")
        for i in range(32): a(f"v_mov_b32 v{O[0]+i}, 0")
        for i in range(16): a(f"v_mov_b32 v{S[3]+i}, 0")

    a(f".globl {N}\n.p2align 8\n.type {N},@function\n{N}:")
    a("s_cmp_ge_u32 s2, 256\ns_cbranch_scc1 L_END")
    a("""
    s_load_dwordx8 s[8:15], s[0:1], 0
    s_load_dwordx8 s[16:23], s[0:1], 48
    s_load_dwordx2 s[24:25], s[0:1], 104
    s_load_dwordx4 s[64:67], s[0:1], 80
    s_load_dwordx2 s[68:69], s[0:1], 32
    """)
    if not opt("nocpf"):
        a.c("bring this kernel's own code into L2 ahead of the instruction fetch: 2 KB per workgroup, 16 workgroups of an XCD round cover it")
        a(f"""
        s_getpc_b64 s[56:57]
        L_PCREF:
        s_lshl_b32 s58, s2, 8
        s_and_b32 s58, s58, 0x7800
        v_lshl_add_u32 v94, v0, 2, s58
        v_min_u32 v94, L_END-L_PCREF, v94
        v_mov_b32 v95, s57
        v_add_co_u32 v94, vcc, s56, v94
        s_nop 1
        v_addc_co_u32 v95, vcc, 0, v95, vcc
        global_load_dword v93, v[94:95], off
        """)
    stamp(a, 0)
    a.c("s3 = branch, s4 = rb (128-row block), s5 = hg (head group), s6 = wave, s33 = k-chunk rotation (0,3,5,8), s70 = 32-row tile of the K/V job, s71 = 0: K and gate, 1: V")
    a("""
    v_lshrrev_b32 v1, 6, v0
    v_and_b32 v0, 63, v0
    s_and_b32 s3, s2, 1
    v_readfirstlane_b32 s6, v1
    s_lshr_b32 s4, s2, 1
    s_and_b32 s4, s4, 3
    s_lshl_b32 s4, s4, 2
    s_lshr_b32 s33, s2, 3
    s_and_b32 s33, s33, 3
    s_add_u32 s4, s4, s33
    s_lshr_b32 s5, s2, 5
    v_lshlrev_b32 v3, 4, v0
    v_lshrrev_b32 v5, 3, v0
    v_and_b32 v6, 7, v0
    v_xor_b32 v6, v6, v5
    v_lshlrev_b32 v6, 4, v6
    v_mul_u32_u24 v2, 1280, v5
    v_add_u32 v2, v2, v6
    v_mov_b32 v4, 0
    s_lshl_b32 s48, s4, 7
    s_lshl_b32 s50, s6, 10
    s_lshr_b32 s70, s5, 1
    s_and_b32 s71, s5, 1
    s_lshl_b32 s54, s70, 2
    s_add_u32 s54, s54, s33
    s_mul_i32 s33, s33, 5
    s_add_u32 s33, s33, 1
    s_lshr_b32 s33, s33, 1
    s_cmp_ge_u32 s6, 4
    s_cbranch_scc1 L_LOADER
    """)
    a(f"""
    s_lshl_b32 s49, s70, 2
    s_add_u32 s49, s49, s6
    s_lshl_b32 s49, s49, 3
    s_add_u32 s49, s48, s49
    s_mul_i32 s49, s49, 1280
    s_mul_i32 s53, s71, 640
    s_add_u32 s51, s49, s53
    s_sub_u32 s49, s49, s53
    s_mul_i32 s53, s71, 20480
    s_add_u32 s55, s50, s53
    s_sub_u32 s56, s50, s53
    s_and_b32 s52, s6, 1
    s_lshl_b32 s54, s54, 1
    s_add_u32 s54, s54, s52
    s_lshl_b32 s54, s54, 10
    s_waitcnt lgkmcnt(0)
    """)
    srd(a, 36, 8, 9, 2048 * 1280)
    a.c("the K/V job's 32 rows of x, all of k (they also serve the Q projection); 2 KB of wk / wv as L2 warm-up; gate")
    for j in range(10):
        sl, ss = ("s55", "s51") if j < 5 else ("s56", "s49")
        a(f"s_add_u32 m0, {sl}, {L_X32 + 4096*j}\ns_add_u32 s53, {ss}, {128*j}\nbuffer_load_dwordx4 v2, s[36:39], s53 offen lds")
        if j == 0:
            srd(a, 28, 24, 25, WS_END)
            a("""
            s_cmp_eq_u32 s71, 0
            s_cselect_b32 s12, s12, s14
            s_cselect_b32 s13, s13, s15
            s_cselect_b32 s18, s18, s20
            s_cselect_b32 s19, s19, s21
            s_cmp_eq_u32 s3, 0
            """)
            srd_sel(a, 40, 12, 18, 25600)
            srd(a, 72, 64, 65, 1280)
            a(f"""
            s_cmp_lt_u32 s6, 2
            s_cbranch_scc0 L_LA2
            buffer_load_dwordx4 v[96:99], v3, s[40:43], s54 offen
            s_branch L_LA3
            L_LA2:
            s_lshl_b32 s53, s52, 10
            s_add_u32 m0, s53, {L_G}
            s_nop 0
            buffer_load_dwordx4 v3, s[72:75], s53 offen lds
            L_LA3:
            """)
    a(f"s_mov_b32 s53, {FL_EPOCH}\nbuffer_load_dword v9, v4, s[28:31], s53 offen sc1")
    a.c("wk or wv: KB w+4j, then 256 B each of the last KB")
    for j in range(6):
        a(f"s_add_u32 m0, s50, {L_M + 4096*j}\ns_add_u32 s53, s50, {4096*j}\nbuffer_load_dwordx4 v3, s[40:43], s53 offen lds")
    a(f"s_lshl_b32 s53, s6, 8\ns_add_u32 s53, s53, {24*1024}\ns_mov_b64 exec, 0xffff\ns_add_u32 m0, s53, {L_M}\ns_nop 0\nbuffer_load_dwordx4 v3, s[40:43], s53 offen lds\ns_mov_b64 exec, -1")
    att_init()
    FS = [152, 180, 100]; ACC = 208
    KVR = [152, 164, 176, 188, 200, 212]
    AX = 248; AWR = [250, 251]
    a.c("K/V job: wave = (16-row tile w&1, columns 0-15 / 16-19 by w>>1)")
    a(f"""
    v_and_b32 v5, 15, v0
    v_lshrrev_b32 v6, 4, v0
    v_and_b32 v7, 7, v0
    v_xor_b32 v7, v7, v6
    v_lshlrev_b32 v7, 4, v7
    v_lshl_add_u32 v10, v5, 7, v7
    s_lshl_b32 s53, s52, 11
    s_add_u32 s53, s53, {L_X32}
    v_add_u32 v14, s53, v10
    v_xor_b32 v15, 64, v14
    v_bfe_u32 v7, v0, 2, 2
    v_lshl_add_u32 v7, v6, 3, v7
    v_mul_u32_u24 v18, 40, v7
    v_and_b32 v8, 3, v0
    v_lshlrev_b32 v8, 3, v8
    s_cmp_lt_u32 s6, 2
    s_cselect_b32 s56, -1, 0
    s_cselect_b32 s57, 0, 32
    v_and_b32 v8, s56, v8
    v_add3_u32 v18, v18, v8, s57
    v_lshlrev_b32 v19, 4, v6
    v_add_u32 v19, {L_G}, v19
    v_lshrrev_b32 v7, 1, v6
    v_lshlrev_b32 v7, 4, v7
    v_and_b32 v8, 1, v6
    v_lshl_add_u32 v7, v8, 2, v7
    v_bfe_u32 v8, v0, 2, 2
    v_add_u32 v7, v7, v8
    v_mul_u32_u24 v7, 160, v7
    v_and_b32 v8, 3, v0
    v_mul_u32_u24 v8, 40, v8
    v_add_u32 v7, v7, v8
    v_add_u32 v{AWR[0]}, {SLOT["A"] + XB}, v7
    v_add_u32 v{AWR[1]}, {SLOT["C"] + XB}, v7
    s_cmp_gt_u32 s6, s70
    s_cselect_b32 s62, 1, 0
    s_sub_u32 s62, s6, s62
    s_lshl_b32 s62, s62, 12
    """)
    a.c("store address v12 + s58, lanes s[60:61], scale s27; gate -> v13 + s59, s63 = -+log2e")
    a(f"""
    s_lshl_b32 s58, s4, 2
    s_add_u32 s58, s58, s70
    s_lshl_b32 s59, s58, 1
    s_mul_i32 s58, s58, 2560
    s_mul_i32 s60, s3, {KV_BYTES}
    s_add_u32 s58, s58, s60
    s_add_u32 s59, s59, s52
    s_lshl_b32 s60, s3, 7
    s_add_u32 s59, s59, s60
    s_lshl_b32 s59, s59, 6
    s_add_u32 s59, s59, {WS_G}
    v_lshlrev_b32 v13, 2, v5
    s_lshl_b32 s63, s3, 31
    s_xor_b32 s63, s63, {LOG2E | 0x80000000}
    v_lshrrev_b32 v7, 1, v6
    v_and_b32 v8, 1, v6
    s_mov_b32 s27, {QSCALE}
    s_mov_b64 s[60:61], -1
    s_cmp_eq_u32 s71, 0
    s_cbranch_scc0 L_AD2
    s_cmp_lt_u32 s6, 2
    s_cbranch_scc0 L_AD1
    s_lshl_b32 s53, s52, 8
    s_add_u32 s58, s58, s53
    v_lshlrev_b32 v12, 9, v7
    v_lshl_add_u32 v12, v5, 4, v12
    v_lshl_add_u32 v12, v8, 3, v12
    s_branch L_AD4
    L_AD1:
    s_lshl_b32 s53, s52, 7
    s_add_u32 s58, s58, s53
    s_add_u32 s58, s58, 1024
    v_lshlrev_b32 v12, 3, v5
    s_mov_b64 s[60:61], 0xffff
    s_branch L_AD4
    L_AD2:
    s_mul_i32 s53, s52, 640
    s_add_u32 s58, s58, s53
    s_add_u32 s58, s58, 1280
    v_mul_u32_u24 v12, 320, v7
    v_lshl_add_u32 v12, v5, 4, v12
    v_lshl_add_u32 v12, v8, 3, v12
    s_mov_b32 s27, 1.0
    s_cmp_lt_u32 s6, 2
    s_cbranch_scc1 L_AD4
    s_add_u32 s58, s58, 256
    s_mov_b32 s60, 0x000f000f
    s_mov_b32 s61, 0x000f000f
    L_AD4:
    """)
    def kv_loop(kind):
        per = 4 if kind == "G" else 3
        nb = 3 if kind == "G" else 5
        ring = nb + 1
        def rd(k):
            f = KVR[k % ring]
            r = [f"ds_read_b128 {vr(f,4)}, v{14 + (k & 1)} offset:{(k >> 1) * 4096}"]
            for hf in range(2):
                r.append(f"ds_read_b64_tr_b16 {vr(f+4+2*hf,2)}, v18 offset:{(32*k + 4*hf)*40}")
            if kind == "G": r.append(f"ds_read_b128 {vr(f+8,4)}, v19 offset:{64*k}")
            return r
        def mm(k):
            f = KVR[k % ring]
            c1 = "0" if k == 0 else "v[20:23]"; c2 = "0" if k == 0 else "v[24:27]"
            if kind == "V": r = [f"v_mfma_f32_16x16x32_bf16 v[20:23], {vr(f,4)}, {vr(f+4,4)}, {c1}"]
            else: r = [f"v_mfma_f32_16x16x32_bf16 v[20:23], {vr(f+4,4)}, {vr(f,4)}, {c1}"]
            if kind == "G": r.append(f"v_mfma_f32_16x16x32_bf16 v[24:27], {vr(f+8,4)}, {vr(f,4)}, {c2}")
            return r
        for k in range(nb):
            for x in rd(k): a(x)
        for k in range(20):
            ahead = min(k + nb, 20) - (k + 1)
            a(f"s_waitcnt lgkmcnt({ahead * per})")
            for x in mm(k): a(x)
            if k + nb < 20:
                for x in rd(k + nb): a(x)
    def xaddr(s):
        return [f"s_add_u32 s55, s33, {s}", "s_cmp_ge_u32 s55, 10", "s_cselect_b32 s56, 10, 0", "s_sub_u32 s55, s55, s56",
                "s_lshl_b32 s55, s55, 12", f"s_add_u32 s55, s55, {L_X32}", f"s_add_u32 s56, s62, {SLOT[SMAP[s]]}",
                "s_cmp_eq_u32 s6, s70", "s_cselect_b32 s55, s55, s56", f"v_add_u32 v{AX}, s55, v10", f"v_xor_b32 v{AX+1}, 64, v{AX}"]
    def reads(i):
        s, ks = i // 2, i % 2
        hi = SMAP[s] in "CD"; base = STG if SMAP[s] in "BD" else 0
        f = FS[i % 3]
        r = [f"ds_read_b128 {vr(f+4*rt,4)}, v{AX+ks} offset:{rt*2048}" for rt in range(2)]
        for ct in range(5):
            for hf in range(2):
                r.append(f"ds_read_b64_tr_b16 {vr(f+8+4*ct+2*hf,2)}, v{AWR[hi]} offset:{base + (32*ks + 8*hf)*160 + 8*ct}")
        return r
    def mf(i, ct):
        f = FS[i % 3]
        return [f"v_mfma_f32_16x16x32_bf16 {vr(ACC+(rt*5+ct)*4,4)}, {vr(f+8+4*ct,4)}, {vr(f+4*rt,4)}, {'0' if i == 0 else vr(ACC+(rt*5+ct)*4,4)}" for rt in range(2)]
    def stage(s):
        for ks in range(2):
            r = reads(2 * s + ks)
            if ks == 1: a("s_waitcnt lgkmcnt(3)")
            if s < 1:
                for x in r: a(x)
                continue
            m = [x for ct in range(5) for x in mf(2 * s - 2 + ks, ct)]
            for k in range(10):
                if not opt("nomfmaB"): a(m[k])
                if k < 6: a(r[2*k]); a(r[2*k+1])
                elif ks == 1 and s < 9:
                    for x in xaddr(s + 1)[3*(k-6):3*(k-5)]: a(x)
        if s == 0:
            for x in xaddr(1): a(x)
        a("s_waitcnt lgkmcnt(12)" if s == 9 else "s_waitcnt lgkmcnt(0)")
    PUB = optv("pub", 2)
    nb_ = [0]
    def cbar():
        i = nb_[0]; nb_[0] += 1
        if i == PUB: a("s_waitcnt vmcnt(0)")
        if not (opt("freerun") and 2 <= i <= 7): a("s_barrier")
        if opt("probeB"):
            stamp(a, 1 + i, True)
            if i == 10: a("s_branch L_FIN2")
        if i == PUB:
            a.c("publish this workgroup's K/V slice (wave 0, one lane)")
            a(f"""
            s_cmp_eq_u32 s6, 0
            s_cbranch_scc0 L_NOPUB
            s_bfe_u32 s56, s2, 0x50001
            s_lshl_b32 s56, s56, 7
            s_lshl_b32 s57, s3, 12
            s_add_u32 s56, s56, s57
            s_lshr_b32 s57, s2, 6
            s_lshl_b32 s57, s57, 2
            s_add_u32 s56, s56, s57
            s_add_u32 s56, s56, {FL_KV}
            """)
            flag_store(a, "s56", 7, 4)
            a("L_NOPUB:")
    a("s_waitcnt vmcnt(0)")
    cbar()
    if not opt("probeB"): stamp(a, 1, True)
    a("v_readfirstlane_b32 s34, v9")
    a("s_cmp_eq_u32 s71, 1\ns_cbranch_scc1 L_KV_V\ns_cmp_ge_u32 s6, 2\ns_cbranch_scc1 L_KV_G")
    kv_loop("K")
    a("s_branch L_KV_E\nL_KV_G:")
    kv_loop("G")
    a("""
    s_nop 7
    v_mul_f32 v24, s63, v24
    v_exp_f32 v24, v24
    s_nop 0
    v_add_f32 v24, 1.0, v24
    v_rcp_f32 v24, v24
    s_mov_b64 exec, 0xffff
    buffer_store_dword v24, v13, s[28:31], s59 offen sc1
    s_mov_b64 exec, -1
    s_branch L_KV_E
    L_KV_V:
    """)
    kv_loop("V")
    a("L_KV_E:")
    for x in xaddr(0): a(x)
    a.c("the softmax scale rides on K")
    a("""
    v_mul_f32 v20, s27, v20
    v_mul_f32 v21, s27, v21
    v_mul_f32 v22, s27, v22
    v_mul_f32 v23, s27, v23
    v_cvt_pk_bf16_f32 v16, v20, v21
    v_cvt_pk_bf16_f32 v17, v22, v23
    s_mov_b64 exec, s[60:61]
    buffer_store_dwordx2 v[16:17], v12, s[28:31], s58 offen sc1
    s_mov_b64 exec, -1
    """)
    mk_tag(a)
    a(f"""
    s_mul_i32 s7, s6, 5120
    s_add_u32 s7, s7, {L_QX}
    v_mul_u32_u24 v12, 1280, v6
    v_add_u32 v12, s7, v12
    v_lshl_add_u32 v13, v5, 3, v12
    v_lshl_add_u32 v12, v5, 4, v12
    """)
    if not opt("probeB"): stamp(a, 2, True)
    for s in range(10):
        cbar(); stage(s)
    for rt in range(2):
        for ct in range(5): a(mf(18, ct)[rt])
    a("s_waitcnt lgkmcnt(0)")
    a.c("last k-step; finished tiles are packed and written to LDS [w][head rg][1280] behind it")
    def pack(k):
        rt, ct = k // 5, k % 5; P = 100 + 12 * rt
        r = [f"v_cvt_pk_bf16_f32 v{P+2*ct+i}, v{ACC+4*k+2*i}, v{ACC+4*k+2*i+1}" for i in range(2)]
        if ct == 1: r.append(f"ds_write_b128 v12, {vr(P,4)} offset:{rt*256}")
        if ct == 3: r.append(f"ds_write_b128 v12, {vr(P+4,4)} offset:{512+rt*256}")
        if ct == 4: r.append(f"ds_write_b64 v13, {vr(P+8,2)} offset:{1024+rt*128}")
        return r
    for k in range(10):
        a(mf(19, k % 5)[k // 5])
        if k == 5: a("s_nop 2")
        if k >= 5:
            for x in pack(k - 5): a(x)
    stamp(a, 3)
    for k in range(5, 10):
        for x in pack(k): a(x)
    a("s_branch L_ATT")

    a("L_LOADER:")
    a.c("Wq DMA source offsets for 3 instrs: q=64i+l, p=q/10, c=q%10, src row = swap bits 2,3 of p")
    for i in range(3):
        a(f"""
        v_add_u32 v5, {64*i}, v0
        v_mul_u32_u24 v6, 6554, v5
        v_lshrrev_b32 v6, 16, v6
        v_mul_u32_u24 v7, 10, v6
        v_sub_u32 v7, v5, v7
        v_and_b32 v5, 0x13, v6
        v_and_b32 v8, 4, v6
        v_lshl_or_b32 v5, v8, 1, v5
        v_and_b32 v8, 8, v6
        v_lshrrev_b32 v8, 1, v8
        v_or_b32 v5, v5, v8
        v_mul_u32_u24 v5, 1280, v5
        v_lshl_add_u32 v{10+i}, v7, 4, v5
        """)
    a.c("x row groups 3lw+i of the 12 that are not resident -> s40..s42")
    a(f"""
    s_sub_u32 s7, s6, 4
    s_mul_i32 s49, s5, 160
    s_mul_i32 s54, s7, {16*1280}
    s_add_u32 s49, s49, s54
    s_mul_i32 s54, s7, 3072
    s_mul_i32 s51, s7, 2560
    s_add_u32 s51, s51, {XB}
    s_lshl_b32 s50, s7, 10
    s_lshl_b32 s53, s70, 2
    """)
    for i in range(3):
        a(f"""
        s_mul_i32 s55, s7, 3
        s_add_u32 s55, s55, {i}
        s_cmp_ge_u32 s55, s53
        s_cselect_b32 s56, 4, 0
        s_add_u32 s55, s55, s56
        s_lshl_b32 s55, s55, 3
        s_add_u32 s55, s55, s48
        s_mul_i32 s{40+i}, s55, 1280
        """)
    a("s_waitcnt lgkmcnt(0)\ns_cmp_eq_u32 s3, 0")
    srd_sel(a, 72, 10, 16, 640 * 1280)
    Q_ = []
    def kchunk(s):
        return f"s_add_u32 s55, s33, {s}\ns_cmp_ge_u32 s55, 10\ns_cselect_b32 s56, 10, 0\ns_sub_u32 s55, s55, s56\n"
    def items_x(s):
        r = []
        for i in range(3):
            t = (kchunk(s) + "s_lshl_b32 s55, s55, 7\n") if i == 0 else ""
            t += f"s_add_u32 m0, s54, {SLOT[SMAP[s]] + 1024*i}\ns_add_u32 s56, s55, s{40+i}\nbuffer_load_dwordx4 v2, s[36:39], s56 offen lds"
            r.append((f"X{s}", t))
        return r
    def items_w(s):
        r = []
        for i in range(3):
            t = (kchunk(s) + f"s_mul_i32 s55, s55, {64*1280}\ns_add_u32 s55, s55, s49\n") if i == 0 else ""
            t += f"s_add_u32 m0, s51, {SLOT[SMAP[s]] + 1024*i}\n" + ("s_mov_b32 exec_hi, 0\n" if i == 2 else "s_nop 0\n")
            t += f"buffer_load_dwordx4 v{10+i}, s[72:75], s55 offen lds" + ("\ns_mov_b32 exec_hi, -1" if i == 2 else "")
            r.append((f"W{s}", t))
        return r
    def emit(items):
        for n, t in items:
            a(t); Q_.append(n)
    def younger(name):
        i = max(k for k, n in enumerate(Q_) if n == name)
        return len(Q_) - 1 - i
    lb_ = [0]
    def lbar(name):
        i = lb_[0]; lb_[0] += 1
        if opt("probeB"): stamp(a, 1 + i)
        if opt("freerun") and 2 <= i <= 7: return
        a(f"s_waitcnt vmcnt({younger(name)})\ns_barrier")
    srd(a, 36, 8, 9, 2048 * 1280)
    srd(a, 28, 24, 25, WS_END)
    NW0 = optv("nw0", 0)
    w012 = items_w(0) + items_w(1) + items_w(2)
    emit(w012[:NW0])
    att_init()
    RL = 152; RA = RL + 64; RS = RA + 12
    a.c("wo re-layout job (wave 5): cb = wg&7, head pair wg>>3, piece u = l/10, octet = l%10 (50 lanes); rows (u<4) 20(u>>1)+4(u&1)+{0..3,8..11}, (u=4) 16+{0..3,20..23}")
    for i in [2, 3, 12, 13]: a(f"v_mov_b32 v{RA+i}, 0")
    a("s_cmp_eq_u32 s6, 5\ns_cbranch_scc0 L_NORL")
    t = RL + 32
    U = RA + 11
    a(f"""
    s_lshr_b32 s56, s2, 3
    s_and_b32 s35, s56, 7
    s_lshl_b32 s35, s35, 1
    s_lshr_b32 s57, s2, 7
    s_add_u32 s35, s35, s57
    s_mul_i32 s35, s35, {40*1280}
    s_mul_i32 s56, s56, 5
    s_and_b32 s57, s2, 7
    s_mul_i32 s32, s57, 160
    s_add_u32 s32, s32, s35
    v_mul_u32_u24 v{U}, 6554, v0
    v_lshrrev_b32 v{U}, 16, v{U}
    v_mul_u32_u24 v{RA}, 10, v{U}
    v_sub_u32 v{RA}, v0, v{RA}
    v_lshrrev_b32 v{t}, 1, v{U}
    v_mul_u32_u24 v{t}, 20, v{t}
    v_and_b32 v{t+1}, 1, v{U}
    v_lshl_add_u32 v{t}, v{t+1}, 2, v{t}
    v_cmp_eq_u32 vcc, 4, v{U}
    v_mov_b32 v{t+1}, 8
    s_nop 0
    v_cndmask_b32 v{t}, v{t}, 16, vcc
    v_cndmask_b32 v{t+1}, v{t+1}, 20, vcc
    v_add_u32 v{t+1}, v{t}, v{t+1}
    v_mul_u32_u24 v{t}, 1280, v{t}
    v_mul_u32_u24 v{t+1}, 1280, v{t+1}
    v_lshl_add_u32 v{RS}, v{RA}, 4, v{t}
    v_lshl_add_u32 v{RS+1}, v{RA}, 4, v{t+1}
    """)
    a.c("destination of the two 4-column chunks: octet o<8: ct = 2(o>>2)+z, rg = o&3 ; o>=8: ct = 4, rg = 2(o&1)+z")
    a(f"""
    v_cmp_lt_u32 vcc, 7, v{RA}
    v_lshrrev_b32 v{t}, 2, v{RA}
    v_mul_u32_u24 v{t}, 81920, v{t}
    v_lshl_add_u32 v{t}, v{U}, 8, v{t}
    v_and_b32 v{t+1}, 3, v{RA}
    v_lshlrev_b32 v{t+2}, 1, v{t+1}
    v_cndmask_b32 v{t+1}, v{t+1}, v{t+2}, vcc
    v_lshl_add_u32 v{RA+2}, v{t+1}, 6, v{t}
    v_mov_b32 v{t+1}, 40960
    v_cndmask_b32 v{t+1}, v{t+1}, 64, vcc
    v_add_u32 v{RA+3}, v{RA+2}, v{t+1}
    """)
    a(f"""
    s_mul_i32 s35, s57, {5*40960}
    s_lshl_b32 s56, s56, 8
    s_add_u32 s35, s35, s56
    s_add_u32 s35, s35, {WS_WO}
    L_NORL:
    v_lshlrev_b32 v13, 7, v{T0}
    s_lshl_b32 s57, s3, 12
    s_add_u32 s57, s57, {FL_KV}
    """)
    NWB = optv("nwb", 6)
    emit(w012[NW0:NWB])
    a(f"s_mov_b32 s53, {FL_EPOCH}\nbuffer_load_dword v9, v4, s[28:31], s53 offen sc1")
    stamp(a, 1)
    lb_[0] += 1
    a("s_barrier")
    rest = []
    for s in range(3, 10): rest += items_w(s) + items_x(s)
    PRE = optv("pre", 0)
    emit(w012[NWB:] + items_x(0) + items_x(1) + items_x(2) + rest[:PRE]); rest = rest[PRE:]
    PER = [int(c) for c in str(optv("per", 166666660))[1:]]
    for r in range(8):
        lbar(f"X{r}")
        if r == 0:
            a("v_readfirstlane_b32 s34, v9")
            if not opt("probeB"): stamp(a, 2)
        if r == 1: mk_tag(a)
        chunk = rest[:PER[r]]; rest = rest[PER[r]:]
        for nme, _ in chunk:
            s = int(nme[1:]); prev = [p for p in range(s) if SMAP[p] == SMAP[s]]
            if prev: assert r >= prev[-1] + 1, (nme, r)
            assert r < s
        emit(chunk)
        if r == optv("pr", 4):
            emit([("PL", "s_cmp_eq_u32 s6, 4\ns_cselect_b32 exec_lo, -1, 1\ns_mov_b32 exec_hi, 0\nbuffer_load_dwordx4 v[16:19], v13, s[28:31], s57 offen sc1\ns_mov_b64 exec, -1")])
    assert not rest
    a.c("wave 4: one look at the K/V flags; if complete, fetch the first tiles of the image early")
    def img(r): a(f"s_mov_b32 m0, {1024*r}\ns_mov_b32 s20, {1024*r}\nbuffer_load_dwordx4 v{IMG}, s[28:31], s20 offen sc1 lds")
    NE = optv("ne", 25)
    a(f"""
    s_cmp_eq_u32 s6, 4
    s_cbranch_scc0 L_N4
    s_mov_b32 exec_hi, 0
    s_waitcnt vmcnt({younger("PL")})
    v_cmp_ne_u32 vcc, s34, v16
    v_cmp_ne_u32 s[58:59], s34, v17
    s_or_b64 vcc, vcc, s[58:59]
    v_cmp_ne_u32 s[58:59], s34, v18
    s_or_b64 vcc, vcc, s[58:59]
    v_cmp_ne_u32 s[58:59], s34, v19
    s_or_b64 vcc, vcc, s[58:59]
    s_mov_b32 exec_hi, -1
    s_cmp_eq_u64 vcc, 0
    s_cbranch_scc1 L_EARLY
    s_waitcnt vmcnt({younger("X8")})
    s_barrier
    s_waitcnt vmcnt(0)
    s_barrier
    s_mov_b32 s20, -1
    s_mov_b32 s21, 0
    """)
    if opt("probeB"): a("s_branch L_FIN2")
    stamp(a, 3)
    poll(a, "L_PKV", 13, "s57", 4, 16, mask="s[20:21]", preloaded=False)
    stamp(a, 4)
    for r in range(NE): img(r)
    a("s_branch L_LATE\nL_EARLY:")
    NE0 = optv("ne0", 10)
    for r in range(NE0): img(r)
    a(f"s_waitcnt vmcnt({younger('X8') + NE0})\ns_barrier")
    for r in range(NE0, NE): img(r)
    a(f"s_waitcnt vmcnt({NE})\ns_barrier")
    if opt("probeB"): a("s_branch L_FIN2")
    stamp(a, 3); stamp(a, 4)
    a("L_LATE:")
    NX = 0
    for r in range(NE, NCH0): img(r)
    a(f"s_waitcnt vmcnt({NCH0 - 5})\ns_branch L_ATT\nL_N4:")
    lbar("X8")
    lbar("X9")
    if opt("probeB"): a("s_branch L_FIN2")
    stamp(a, 3)

    pAK1, pAK2, pAV = AK1, AK2, AV
    AK1, AK2, AV = 3, 2, 1
    def rdK(b, off):
        return [f"ds_read_b128 {vr(KF1[b],4)}, v{AK1} offset:{off}", f"ds_read_b32 v{KF2[b]}, v{AK2} offset:{off+1024}"]
    def rdV(b, off):
        return ["s_mov_b64 exec, s[36:37]",
                f"ds_read_b128 {vr(VF[b],4)}, v{AV} offset:{off+1280}", f"ds_read_b128 {vr(VF[b]+4,4)}, v{AV} offset:{off+1920}",
                "s_mov_b64 exec, -1"]
    def qk1(u, kb): return f"v_mfma_f32_32x32x16_bf16 {vr(S[u%4],16)}, {vr(KF1[kb],4)}, {vr(Q1[u%2],4)}, 0"
    def qk2(u, kb): return f"v_mfma_f32_32x32x8_bf16 {vr(S[u%4],16)}, {vr(KF2[kb],2)}, {vr(Q2[u%2],2)}, {vr(S[u%4],16)}"
    def pv(u, vb, i): return f"v_smfmac_f32_32x32x32_bf16 {vr(O[u%2],16)}, {vr(VF[vb]+4*i,4)}, {vr(S[u%4]+8*i,8)}, v{IDX}"
    a("L_ATT:")
    a(f"""
    v_mov_b32 v{AK2}, v{pAK2}
    v_mov_b32 v{AV}, v{pAV}
    v_mov_b32 v{IDX}, 0xdddddddd
    v_mov_b32 v{Q2[0]+1}, 0
    v_mov_b32 v{Q2[1]+1}, 0
    v_lshlrev_b32 v{T2}, 2, v{T0}
    s_mov_b32 s36, 0x000fffff
    s_mov_b32 s37, 0x000fffff
    s_mov_b32 s38, 0
    s_mov_b32 s39, -1
    s_mov_b32 s42, 1
    s_mov_b32 s43, 0
    s_mov_b32 s44, 8
    s_waitcnt lgkmcnt(0)
    s_barrier
    ds_read_b128 {vr(Q1[0],4)}, v{AQ1}
    ds_read_b32 v{Q2[0]}, v{AQ2} offset:1024
    ds_read_b128 {vr(Q1[1],4)}, v{AQ1} offset:1280
    ds_read_b32 v{Q2[1]}, v{AQ2} offset:2304
    """)
    for x in rdK(0, 0) + rdK(1, 2560) + rdV(1, 0): a(x)
    a(f"buffer_load_dword v{G}, v{T2}, s[28:31], s14 offen sc1")
    stamp(a, 5, True)
    a.c("stand-in for the row max: the max over the first 32 keys")
    a("s_waitcnt lgkmcnt(4)\ns_cmp_eq_u32 s13, 0\ns_cbranch_scc1 L_BQ2\ns_waitcnt vmcnt(1)\ns_barrier\nL_BQ2:")
    a(f"v_mfma_f32_32x32x16_bf16 {vr(S[2],16)}, {vr(KF1[0],4)}, {vr(Q1[0],4)}, 0")
    a(f"v_mfma_f32_32x32x8_bf16 {vr(S[0],16)}, {vr(KF2[0],2)}, {vr(Q2[0],2)}, {vr(S[2],16)}")
    a(f"v_mfma_f32_32x32x16_bf16 {vr(S[1],16)}, {vr(KF1[0],4)}, {vr(Q1[1],4)}, 0")
    a(f"v_mfma_f32_32x32x8_bf16 {vr(S[1],16)}, {vr(KF2[0],2)}, {vr(Q2[1],2)}, {vr(S[1],16)}")
    a("s_cbranch_scc0 L_BQ3\ns_setprio 2\ns_barrier\nL_BQ3:\ns_nop 8")
    for j in range(2):
        a(f"v_max3_f32 v{M[j]}, v{S[j]}, v{S[j]+1}, v{S[j]+2}\nv_max3_f32 v{T2+j}, v{S[j]+3}, v{S[j]+4}, v{S[j]+5}")
        if j == 1: a(f"v_mfma_f32_32x32x8_bf16 {vr(S[0],16)}, {vr(KF2[0],2)}, {vr(Q2[0],2)}, {vr(S[2],16)}")
        for i in range(6, 16, 4):
            a(f"v_max3_f32 v{M[j]}, v{S[j]+i}, v{S[j]+i+1}, v{M[j]}")
            if i + 2 < 16: a(f"v_max3_f32 v{T2+j}, v{S[j]+i+2}, v{S[j]+i+3}, v{T2+j}")
        a(f"""
        v_max_f32 v{M[j]}, v{M[j]}, v{T2+j}
        v_mov_b32 v{T2+j}, v{M[j]}
        s_nop 1
        v_permlane32_swap_b32 v{M[j]}, v{T2+j}
        s_nop 0
        v_min_f32 v{M[j]}, -v{M[j]}, -v{T2+j}
        v_lshrrev_b32 v{M[j]}, 16, v{M[j]}
        v_cndmask_b32 v{Q2[j]+1}, v{M[j]}, 0, s[38:39]
        """)
    a(f"""
    s_cmp_eq_u32 s13, 0
    s_cbranch_scc0 L_LAG0
    s_setprio 2
    s_waitcnt lgkmcnt(0)
    s_branch L_PR
    L_LAG0:
    """)
    a.c("waves 4-7: rest of the K/V image, side jobs, then S1 (waves 0-3 meet it after their first 8 tiles)")
    def rl_loads():
        a("s_bitcmp0_b32 s2, 6")
        srd_sel(a, 72, 68, 22, 640 * 1280)
        a("s_mov_b32 exec_hi, 0x3ffff")
        for e in range(8):
            a(f"buffer_load_dwordx4 {vr(RL+4*e,4)}, v{RS+e//4}, s[72:75], s32 offen offset:{(e%4)*1280}")
    def rl_stores():
        a("s_mov_b32 s56, 0x05040100\ns_mov_b32 s57, 0x07060302\ns_mov_b32 exec_hi, 0x3ffff")
        a.c("wo re-layout: 8x8 16-bit transposition in registers")
        for c in range(8):
            for r in range(4):
                a(f"v_perm_b32 v{RL+32+4*c+r}, v{RL+4*(2*r+1)+c//2}, v{RL+4*(2*r)+c//2}, {'s56' if c % 2 == 0 else 's57'}")
            a(f"buffer_store_dwordx4 {vr(RL+32+4*c,4)}, v{RA+2+c//4}, s[28:31], s35 offen offset:{(c%4)*16} sc1")
    RLE = False
    if RLE:
        a("s_cmp_eq_u32 s6, 5\ns_cbranch_scc0 L_NRL")
        rl_loads()
        a("s_mov_b32 exec_hi, -1\nL_NRL:")
    quads = [k for k in range(24, 160, 4) if not (56 <= k < 56 + NX)]
    for k in quads:
        a(f"s_add_u32 m0, s50, {1024*k}\ns_add_u32 s20, s50, {1024*k}\nbuffer_load_dwordx4 v{IMG}, s[28:31], s20 offen sc1 lds")
    a("s_cmp_eq_u32 s6, 5\ns_cbranch_scc0 L_POIS")
    if RLE:
        a(f"s_waitcnt vmcnt({len(quads)})")
        rl_stores()
    else: rl_loads()
    a("s_branch L_S1\nL_POIS:")
    a.c("waves 4,6,7: mark this workgroup's share of the O hand-off buffer as not yet written (rt16 = 8rb + i, slice 8*branch+hg); one KB column each")
    a(f"""
    s_mul_i32 s55, s4, {8*40960}
    s_lshl_b32 s56, s3, 3
    s_add_u32 s56, s56, s5
    s_mul_i32 s56, s56, 2560
    s_add_u32 s55, s55, s56
    s_add_u32 s55, s55, {WS_O}
    s_sub_u32 s56, s6, 5
    s_max_i32 s56, s56, 0
    s_lshl_b32 s56, s56, 10
    s_add_u32 s55, s55, s56
    v_mov_b32 v{PT}, -1
    v_mov_b32 v{PT+1}, -1
    v_mov_b32 v{PT+2}, -1
    v_mov_b32 v{PT+3}, -1
    s_cmp_eq_u32 s6, 7
    s_cselect_b32 exec_hi, 0, -1
    """)
    for i in range(8):
        if opt("nopois"): a("s_mov_b64 exec, 1")
        a(f"buffer_store_dwordx4 {vr(PT,4)}, v{AK1}, s[28:31], s55 offen sc1\ns_add_u32 s55, s55, 40960")
    a("""
    L_S1:
    s_mov_b64 exec, -1
    s_waitcnt vmcnt(8) lgkmcnt(0)
    s_barrier
    s_setprio 3
    L_PR:
    """)
    stamp(a, 6)
    if opt("cyc"): a("s_memtime s[80:81]")
    if opt("iters"): a("s_memtime s[94:95]\ns_waitcnt lgkmcnt(0)")
    a(".p2align 6\nL_LOOP:")
    for t in range(8):
        for j in range(2):
            u = 2 * t + j
            b = (t + j) % 2
            ex = [f"v_exp_f32 v{S[u%4]+i}, v{S[u%4]+i}" for i in range(16)]
            extra = [[], [], [], []]
            if j == 1:
                a("s_waitcnt lgkmcnt(0)")
                extra[0] = rdK(t % 2, (t + 2) * 2560)
                extra[1] = rdV(t % 2, (t + 1) * 2560)
            ms = [qk1(u + 1, b), qk2(u + 1, b), pv(u - 1, b, 0), pv(u - 1, b, 1)]
            for g in range(4):
                a(ms[g])
                for x in ex[4 * g:4 * g + 2]: a(x)
                for x in extra[g]: a(x)
                for x in ex[4 * g + 2:4 * g + 4]: a(x)
            if t == optv("nlt", 0) and j == 1 and optv("nlh", 3):
                a(f"s_cmp_eq_u32 s43, {16 + optv('nlh', 3) + 1}\ns_cbranch_scc0 L_PH\ns_setprio 1\nL_PH:")
    a(f"v_add_u32 v{AK1}, 20480, v{AK1}\nv_add_u32 v{AK2}, 20480, v{AK2}\nv_add_u32 v{AV}, 20480, v{AV}")
    a(f"""
    s_lshl_b32 s43, s13, 4
    s_add_u32 s43, s43, s44
    s_cmp_eq_u32 s43, {16 + optv("nl", 9)}
    s_cbranch_scc0 L_P1
    s_setprio 1
    L_P1:
    s_cmp_eq_u32 s42, 0
    s_cbranch_scc1 L_NEXT
    {"s_cmp_lg_u32 s43, 8" if opt("noside") else ""}
    {"s_cbranch_scc1 L_NEXT" if opt("noside") else ""}
    s_cmp_eq_u32 s44, 8
    s_cbranch_scc0 L_E0
    s_cmp_eq_u32 s13, 0
    s_cbranch_scc0 L_RL2
    s_barrier
    s_branch L_NEXT
    L_RL2:
    """)
    if not RLE:
        a(f"s_cmp_eq_u32 s6, {15 if opt('norl') else 5}\ns_cbranch_scc0 L_NEXT\ns_waitcnt vmcnt(0)")
        rl_stores()
        a("s_mov_b32 exec_hi, -1")
    a(f"""
    s_branch L_NEXT
    L_E0:
    s_cmp_eq_u32 s43, {16 + (7 if opt("spread") else 6)}
    s_cbranch_scc0 L_E1
    s_lshl_b32 s56, s2, 2
    s_add_u32 s56, s56, s6
    s_lshl_b32 s56, s56, 2
    s_add_u32 s56, s56, {FL_W - 16}
    v_mov_b32 v{T3}, 0
    s_waitcnt vmcnt(0)
    """)
    flag_store(a, "s56", T2, T3)
    a.c("flags to see: lanes 0-31 the workgroups that re-lay this tile's Wo columns, lanes 32-63 the row group")
    a(f"""
    s_branch L_NEXT
    L_E1:
    s_cmp_eq_u32 s44, {6 if opt("spread") else 4}
    s_cbranch_scc0 L_E2
    v_lshl_add_u32 v{T2}, v{T0}, 3, s5
    v_and_b32 v{T3}, 14, v0
    v_lshlrev_b32 v{T3}, 4, v{T3}
    v_and_or_b32 v{T3}, v0, 1, v{T3}
    s_and_b32 s57, s2, 0x1e
    v_or_b32 v{T3}, s57, v{T3}
    v_cndmask_b32 v{T2}, v{T2}, v{T3}, s[38:39]
    v_lshlrev_b32 v{T2}, 4, v{T2}
    s_mov_b32 s57, {FL_W}
    buffer_load_dwordx4 {vr(PT,4)}, v{T2}, s[28:31], s57 offen sc1
    s_branch L_NEXT
    L_E2:
    s_cmp_eq_u32 s44, {5 if opt("spread") else 3}
    s_cbranch_scc0 {"L_W1" if opt("spread") else "L_NEXT"}
    """)
    poll(a, "L_PW", T2, "s57", 4, PT, sleep=8)
    if opt("touch"):
        a.c("touch this tile's lines of the output (address translation and L2 are warm when the final stores come)")
        srd(a, 72, 66, 67, 2048 * 1280)
        a(f"""
        s_lshl_b32 s56, s4, 1
        s_add_u32 s56, s56, s3
        s_mul_i32 s56, s56, {64*1280}
        s_mul_i32 s57, s5, 160
        s_add_u32 s56, s56, s57
        s_and_b32 s57, s6, 3
        s_mul_i32 s57, s57, 52
        s_add_u32 s56, s56, s57
        v_mul_u32_u24 v{T2}, 1280, v0
        buffer_load_dword v{PT}, v{T2}, s[72:75], s56 offen
        """)
    a.c("prefetch this wave's Wo fragments: [cb=hg][ct][f32 = 5w+st]")
    a(f"""
    s_mul_i32 s56, s5, {5*40960}
    s_mul_i32 s57, s6, 5120
    s_add_u32 s56, s56, s57
    s_add_u32 s56, s56, {WS_WO}
    v_lshlrev_b32 v{T2}, 4, v0
    v_add_u32 v{T3}, 4096, v{T2}
    """)
    for ct in range(5):
        for st in range(5):
            av = T2 if st < 4 else T3
            if not opt("nowo"): a(f"buffer_load_dwordx4 {vr(WO+(st*5+ct)*4,4)}, v{av}, s[28:31], s56 offen offset:{(st%4)*1024} sc1")
        if ct < 4: a("s_add_u32 s56, s56, 40960")
        if opt("spread") and ct < 4:
            SP = [5, 4, 3, 2, 2]
            if SP[ct + 1] != SP[ct]:
                a(f"s_branch L_NEXT\nL_W{ct+1}:\ns_cmp_eq_u32 s44, {SP[ct+1]}\ns_cbranch_scc0 {'L_W%d' % (ct+2) if ct < 2 else 'L_NEXT'}")
    a("L_NEXT:")
    if opt("iters"):
        for k in range(1, 9): a(f"s_mov_b32 s{76+2*k}, s{76+2*(k+1)}")
        a("s_memtime s[94:95]\ns_waitcnt lgkmcnt(0)")
    a("s_sub_u32 s44, s44, 1\ns_cmp_lg_u32 s44, 0\ns_cbranch_scc1 L_LOOP")
    stamp(a, 7)
    if opt("cyc"): a("s_memtime s[82:83]")
    a(pv(15, 0, 0)); a(pv(15, 0, 1))
    a.c("phase E addresses: tile rows 64*(2rb+branch).., columns 80*hg.. ; wave = K eighth; row tiles in an order rotated by hg")
    a(f"""
    s_setprio 3
    s_mov_b32 s46, {f32bits(2.0**-40)}
    s_mov_b32 s47, {f32bits(2.0**40)}
    s_mov_b32 s23, -2
    s_lshl_b32 s16, s4, 1
    s_add_u32 s16, s16, s3
    s_mul_i32 s21, s16, {4*40960}
    s_mul_i32 s40, s6, 5120
    s_add_u32 s21, s21, s40
    s_add_u32 s21, s21, {WS_O}
    """)
    for i in range(4):
        a(f"s_add_u32 s22, s5, {i}\ns_and_b32 s22, s22, 3\ns_mul_i32 s22, s22, 40960\ns_add_u32 s{17+i}, s21, s22\ns_add_u32 s{8+i}, s22, s40")
    a("s_waitcnt vmcnt(0) lgkmcnt(0)")
    a.c("run-time safety check of the stand-in max: row sums must lie in [2^-40, 2^40], else redo with the true max")
    a(f"""
    v_cndmask_b32 v{M[0]}, v{O[0]+12}, v{O[0]+8}, s[38:39]
    v_cndmask_b32 v{M[1]}, v{O[1]+12}, v{O[1]+8}, s[38:39]
    v_cmp_le_f32 s[48:49], s46, v{M[0]}
    v_cmp_ge_f32 s[50:51], s47, v{M[0]}
    v_cmp_le_f32 s[52:53], s46, v{M[1]}
    v_cmp_ge_f32 s[54:55], s47, v{M[1]}
    v_rcp_f32 v{M[0]}, v{M[0]}
    v_rcp_f32 v{M[1]}, v{M[1]}
    s_and_b64 s[48:49], s[48:49], s[50:51]
    s_and_b64 s[52:53], s[52:53], s[54:55]
    s_and_b64 s[48:49], s[48:49], s[52:53]
    s_cmp_eq_u64 s[48:49], -1
    s_cbranch_scc0 L_BAD
    L_OK:
    v_mul_f32 v{M[0]}, v{M[0]}, v{G}
    v_mul_f32 v{M[1]}, v{M[1]}, v{G}
    """)
    P = S[3]
    for j in range(2):
        for i in range(12): a(f"v_mul_f32 v{O[j]+i}, v{O[j]+i}, v{M[j]}")
        for i in range(4): a(f"v_cvt_pk_bf16_f32 v{P+4*j+i}, v{O[j]+2*i}, v{O[j]+2*i+1}")
        for i in range(2): a(f"v_cvt_pk_bf16_f32 v{P+8+2*j+i}, v{O[j]+8+2*i}, v{O[j]+8+2*i+1}")
        for i in range(4): a(f"v_min_u32 v{P+4*j+i}, s23, v{P+4*j+i}")
        a(f"buffer_store_dwordx4 {vr(P+4*j,4)}, v{OA}, s[28:31], s26 offen offset:{512*j} sc1")
    for i in range(4): a(f"v_min_u32 v{P+8+i}, s23, v{P+8+i}")
    a(f"""
    s_mov_b32 exec_hi, 0
    buffer_store_dwordx4 {vr(P+8,4)}, v{OA}, s[28:31], s26 offen offset:1024 sc1
    """)
    if opt("dup"):
        a(f"buffer_store_dwordx4 {vr(P+8,4)}, v{OA}, s[28:31], s26 offen offset:1024\ns_mov_b32 exec_hi, -1")
        for j in range(2): a(f"buffer_store_dwordx4 {vr(P+4*j,4)}, v{OA}, s[28:31], s26 offen offset:{512*j}")
    a("s_mov_b32 exec_hi, -1\ns_setprio 0")
    EB = not opt("lateb")
    if EB:
        a.c("every wave of this workgroup is past its last K/V read at this barrier: LDS can be reused")
        a("s_cmp_eq_u32 s13, 0\ns_cbranch_scc1 L_NB\ns_barrier\nL_NB:")
    OF = 16
    EA = [96, 116, 16, 36]
    srd(a, 72, 66, 67, 2048 * 1280)
    a.c("partial sums change lanes on their way through LDS: writer (n, rg) -> slot 4n + (rg ^ ((n>>1)&3)); reader lane = 4*row + rg")
    a.c("out address (waves 0-3): row = 64*(2rb+branch) + 16w + (l>>2) ; columns 8rg.., 32+8rg.., 64+4rg..")
    a(f"""
    v_mov_b32 v2, s34
    v_mov_b32 v3, 0
    v_lshlrev_b32 v5, 4, v0
    v_add_u32 v6, 4096, v5
    v_lshlrev_b32 v14, 2, v0
    v_add_u32 v8, s8, v14
    v_add_u32 v9, s9, v14
    v_add_u32 v10, s10, v14
    v_add_u32 v11, s11, v14
    s_mul_i32 s22, s6, 40960
    v_add_u32 v12, s22, v5
    s_lshl_b32 s22, s16, 6
    s_lshl_b32 s21, s6, 4
    s_add_u32 s22, s22, s21
    s_mul_i32 s22, s22, 1280
    s_mul_i32 s21, s5, 160
    s_add_u32 s22, s22, s21
    v_and_b32 v13, 12, v0
    v_lshrrev_b32 v14, 4, v0
    v_add_u32 v13, v13, v14
    v_mul_u32_u24 v13, 1280, v13
    v_and_b32 v14, 3, v0
    v_lshl_add_u32 v7, v14, 3, v13
    v_lshl_add_u32 v13, v14, 4, v13
    s_mov_b32 s60, {SPIN}
    """)
    REQ = {"A": [int(c) for c in str(optv("reqa", 44444))], "B": [int(c) for c in str(optv("reqb", 12344))]}
    def oload(rt):
        for st in range(5):
            av = 5 if st < 4 else 6
            a(f"buffer_load_dwordx4 {vr(OF+(rt*5+st)*4,4)}, v{av}, s[28:31], s{17+rt} offen offset:{(st%4)*1024} sc1")
    def ewrites(rt):
        if opt("w32"): return [f"ds_write_b32 v{8+rt}, v{EA[rt]+i} offset:{i*256}" for i in range(20)]
        return [f"ds_write2st64_b32 v{8+rt}, v{EA[rt]+2*i}, v{EA[rt]+2*i+1} offset0:{2*i} offset1:{2*i+1}" for i in range(10)]
    tail = []
    def egemm(tag, bar=-1, wr=True):
        for rt in range(4):
            if rt == bar: a("s_barrier")
            a(f"L_CH{tag}{rt}:")
            b = OF + rt * 20
            w = ewrites(rt - 1) if rt >= 1 and wr else []
            a.c("MFMAs run ahead of the hand-off check (no word may still hold the not-yet-written mark); a failed check redoes the block")
            for st in range(5):
                if st == 0:
                    a(f"s_waitcnt vmcnt({4 + 5*(REQ[tag][rt] - rt - 1)})")
                    for r2 in range(REQ[tag][rt], REQ[tag][rt+1]): oload(r2)
                else: a(f"s_waitcnt vmcnt({4 - st + 5*(REQ[tag][rt+1] - rt - 1)})")
                f = b + 4 * st
                chk = [f"v_max3_u32 v15, v{f}, v{f+1}, v{f+2}" if st == 0 else f"v_max3_u32 v15, v{f}, v{f+1}, v15",
                       f"v_max_u32 v15, v{f+3}, v15" if st == 0 else f"v_max3_u32 v15, v{f+2}, v{f+3}, v15"]
                if st == 4: chk += ["v_cmp_eq_u32 vcc, -1, v15"]
                for ct in range(5):
                    d = vr(EA[rt] + 4 * ct, 4)
                    a(f"v_mfma_f32_16x16x32_bf16 {d}, {vr(f,4)}, {vr(WO+(st*5+ct)*4,4)}, {'0' if st == 0 else d}")
                    k = 5 * st + ct
                    if opt("w32"):
                        if ct == 0:
                            for x in chk: a(x)
                            if w and st in (1, 2, 3, 4): a("s_waitcnt lgkmcnt(6)")
                        elif w:
                            if k >= 6 and w: a(w.pop(0))
                            if k >= 21 and w: a(w.pop(0))
                    else:
                        if ct < len(chk): a(chk[ct])
                        if w and k == 5: a("s_waitcnt lgkmcnt(4)")
                        if w and k >= 7 and (ct >= 2 and not (st == 4 and ct == 2)): a(w.pop(0))
            assert not w
            a(f"s_cbranch_vccnz L_RE{tag}{rt}\nL_GO{tag}{rt}:")
            tail.append((tag, rt))
            if opt("probeE"): stamp(a, [1, 2, 3, 5][rt])
    def lastw():
        a("s_waitcnt lgkmcnt(0)\ns_nop 2" if opt("probeE") else "s_waitcnt lgkmcnt(4)\ns_nop 2")
        for i in range(10): a(f"ds_write2st64_b32 v11, v{EA[3]+2*i}, v{EA[3]+2*i+1} offset0:{2*i} offset1:{2*i+1}")
    def retries():
        if PROF and not opt("iters") and not opt("keep4"): a(f"s_waitcnt lgkmcnt(0)\ns_sub_u32 s84, {SPIN}, s60\ns_mul_i32 s84, s84, 100\ns_add_u32 s84, s84, s76")
    a("s_cmp_eq_u32 s13, 0\ns_cbranch_scc1 L_ELEAD")
    a.c("every wave of this workgroup is past its last K/V read at this barrier: LDS can be reused")
    if not opt("asym") and not EB: a("s_barrier")
    if not opt("noack"): a("s_waitcnt vmcnt(0)")
    elif optv("dly", 0): a(f"s_sleep {optv('dly', 0)}")
    stamp(a, 8)
    for rt in range(REQ["B"][0]): oload(rt)
    if opt("asym"): a("s_barrier")
    if opt("probeE"): stamp(a, 6)
    if PROF: a("s_waitcnt lgkmcnt(0)")
    if optv("bp", 0): a(f"s_setprio {optv('bp', 0)}")
    egemm("B", optv("bar", 2))
    stamp(a, 10); retries()
    lastw()
    a("s_waitcnt lgkmcnt(0)\ns_barrier\ns_branch L_FIN")
    a("L_ELEAD:")
    if not opt("asym") and not (not opt("leadlast")): a("s_barrier")
    a("s_waitcnt vmcnt(0)")
    stamp(a, 8)
    for rt in range(REQ["A"][0]): oload(rt)
    if opt("probeE"): stamp(a, 6)
    if PROF: a("s_waitcnt lgkmcnt(0)")
    if opt("asym"):
        egemm("A", wr=False)
        stamp(a, 9); retries()
        a("s_barrier\ns_setprio 2\ns_waitcnt lgkmcnt(0)\ns_nop 4")
        for rt in range(4):
            for x in ewrites(rt): a(x)
            if rt == 1: a("s_waitcnt lgkmcnt(4)")
    else:
        egemm("A", optv("bara", 1))
        stamp(a, 9); retries()
        lastw()
    a("s_waitcnt lgkmcnt(0)\ns_barrier")
    R = 56
    def rsum(src0, keep):
        for src in range(4):
            for c in range(5):
                a(f"ds_read_b128 {vr(R+src*20+4*c,4)}, v12 offset:{(src0+src)*5120+c*1024}")
            if src == 1: a("s_waitcnt lgkmcnt(4)")
        a("s_waitcnt lgkmcnt(10)")
        for i in range(20): a(f"v_add_f32 v{R+i}, v{R+i}, v{R+20+i}")
        if keep:
            for i in range(20): a(f"v_add_f32 v{R+i}, v{R+i}, v{16+i}")
        a("s_waitcnt lgkmcnt(0)")
        for i in range(20): a(f"v_add_f32 v{R+40+i}, v{R+40+i}, v{R+60+i}")
        for i in range(20): a(f"v_add_f32 v{16+i}, v{R+i}, v{R+40+i}")
    rsum(0, False)
    a("s_barrier")
    stamp(a, 10, True)
    rsum(4, True)
    for i in range(10): a(f"v_cvt_pk_bf16_f32 v{40+i}, v{16+2*i}, v{16+2*i+1}")
    a("""
    buffer_store_dwordx4 v[40:43], v13, s[72:75], s22 offen
    buffer_store_dwordx4 v[44:47], v13, s[72:75], s22 offen offset:64
    buffer_store_dwordx2 v[48:49], v7, s[72:75], s22 offen offset:128
    """)
    a.c("workgroup 0 advances the epoch: every workgroup has read it by now")
    a(f"""
    s_or_b32 s21, s2, s6
    s_cmp_eq_u32 s21, 0
    s_cbranch_scc0 L_FIN
    s_mov_b32 s21, {FL_EPOCH}
    s_mov_b64 exec, 1
    buffer_store_dword v2, v3, s[28:31], s21 offen sc1
    L_FIN:
    """)
    if PROF: a("s_waitcnt vmcnt(0)")
    stamp(a, 11)
    a("L_FIN2:")
    stamp_flush(a)
    a("s_endpgm")
    for tag, rt in tail:
        a(f"""
        L_RE{tag}{rt}:
        s_cmp_eq_u32 s60, 0
        s_cbranch_scc1 L_GO{tag}{rt}
        s_sub_u32 s60, s60, 1
        s_waitcnt vmcnt(0) lgkmcnt(0)
        s_sleep {optv("slp", 4)}
        """)
        for r2 in range(rt, REQ[tag][rt]): oload(r2)
        a(f"s_branch L_CH{tag}{rt}")
    a("L_BAD:")
    a.c("second (and last) pass: exact row max over all keys, then the same loop again")
    a(f"""
    s_cmp_eq_u32 s42, 0
    s_cbranch_scc1 L_OK
    s_mov_b32 s42, 0
    s_mov_b32 s40, 0xffff0000
    s_mov_b32 s43, 64
    v_subrev_u32 v{AK1}, {KV_BYTES}, v{AK1}
    v_subrev_u32 v{AK2}, {KV_BYTES}, v{AK2}
    v_subrev_u32 v{AV}, {KV_BYTES}, v{AV}
    v_mov_b32 v{T2}, v{AK1}
    v_mov_b32 v{T3}, v{AK2}
    """)
    for j in range(2):
        a(f"v_mov_b32 v{Q2[j]+1}, 0\nv_mov_b32 v{M[j]}, 0xff800000")
    for i in range(32): a(f"v_mov_b32 v{O[0]+i}, 0")
    for i in range(16): a(f"v_mov_b32 v{S[3]+i}, 0")
    a("L_MAXL:")
    a(f"ds_read_b128 {vr(KF1[0],4)}, v{T2}\nds_read_b32 v{KF2[0]}, v{T3} offset:1024")
    a(f"v_add_u32 v{T2}, 2560, v{T2}\nv_add_u32 v{T3}, 2560, v{T3}\ns_waitcnt lgkmcnt(0)")
    for j in range(2): a(qk1(j, 0)); a(qk2(j, 0))
    a("s_nop 11")
    for j in range(2):
        for i in range(8):
            a(f"v_max3_f32 v{M[j]}, v{S[j]+2*i}, v{S[j]+2*i+1}, v{M[j]}")
    a("s_sub_u32 s43, s43, 1\ns_cmp_lg_u32 s43, 0\ns_cbranch_scc1 L_MAXL")
    for x in rdK(0, 0) + rdK(1, 2560) + rdV(1, 0): a(x)
    a.c("-m split exactly into three bf16 pieces that ride in the spare k-slots")
    for j in range(2):
        a(f"""
        v_mov_b32 v{T2}, v{M[j]}
        s_nop 1
        v_permlane32_swap_b32 v{M[j]}, v{T2}
        s_nop 1
        v_min_f32 v{M[j]}, -v{M[j]}, -v{T2}
        v_and_b32 v{T2}, s40, v{M[j]}
        v_sub_f32 v{T3}, v{M[j]}, v{T2}
        v_lshrrev_b32 v{T2}, 16, v{T2}
        v_and_or_b32 v{T2}, v{T3}, s40, v{T2}
        v_and_b32 v{M[j]}, s40, v{T3}
        v_sub_f32 v{T3}, v{T3}, v{M[j]}
        v_and_b32 v{T3}, s40, v{T3}
        v_cndmask_b32 v{Q2[j]+1}, v{T2}, v{T3}, s[38:39]
        """)
    a("s_waitcnt lgkmcnt(0)\ns_nop 0")
    a(qk1(0, 0)); a(qk2(0, 0))
    a("s_mov_b32 s44, 8\ns_setprio 1\ns_nop 9\ns_branch L_LOOP")
    a("L_END:\ns_endpgm")
    return f""".p2align 6
.amdhsa_kernel {N}
  .amdhsa_next_free_vgpr 256
  .amdhsa_next_free_sgpr 102
  .amdhsa_accum_offset 256
  .amdhsa_group_segment_fixed_size 0
  .amdhsa_kernarg_size 112
  .amdhsa_user_sgpr_count 2
  .amdhsa_user_sgpr_kernarg_segment_ptr 1
  .amdhsa_system_sgpr_workgroup_id_x 1
.end_amdhsa_kernel
"""

def main():
    ref = open(f"cdna_kernels/{NAME}.s.ref").read().split("\n")
    head = [l for l in ref if l.startswith(";") and "@launch" not in l]
    a = Asm()
    kd = gen(a)
    out = "\n".join(head) + "\n"
    out += "; @launch grid=(256,1,1) block=(512,1,1) lds=163840\n"
    out += '.amdgcn_target "amdgcn-amd-amdhsa--gfx950"\n.text\n'
    t = a.text()
    if opt("outsc1"): t = "\n".join(l + " sc1" if "buffer_store" in l and "s[72:75]" in l else l for l in t.split("\n"))
    if opt("outnt"): t = "\n".join(l + " nt" if "buffer_store" in l and "s[72:75]" in l else l for l in t.split("\n"))
    if opt("plainonly"): t = "\n".join(l.replace(" sc1", "") if "buffer_store" in l and "s26" in l else l for l in t.split("\n"))
    out += t
    out += '.section .rodata,"a"\n' + kd
    path = ARGS[0] if ARGS and not ARGS[0].startswith("--") else f"cdna_kernels/{NAME}.s"
    open(path, "w").write(out)
main()
```

```python
import math, struct, sys

NAME = "gated_mix__grouped_kv_mqa__grouped_kv_mqa__prompt"
ARGS = sys.argv[1:]
def opt(n): return ("--" + n) in ARGS
def optv(n, d):
    for x in ARGS:
        if x.startswith("--" + n + "="): return int(x.split("=")[1])
    return d

KV_BYTES = 163840
WS_KV   = 0
WS_G    = 2 * KV_BYTES
WS_O    = WS_G + 16384
O_BYTES = 128 * 40 * 1024
WS_WO   = WS_O + O_BYTES
WO_BYTES = 8 * 5 * 40 * 1024
WS_FL   = WS_WO + WO_BYTES
FL_EPOCH = WS_FL
FL_KV   = WS_FL + 256
FL_W    = FL_KV + 8192
WS_END  = FL_W + 4096

def f32bits(x):
    return struct.unpack("<I", struct.pack("<f", x))[0]
QSCALE = f32bits((20 ** -0.5) * math.log2(math.e))
LOG2E = f32bits(math.log2(math.e))

class Asm:
    def __init__(self): self.l = []
    def __call__(self, s):
        for line in s.split("\n"):
            line = line.strip()
            if line: self.l.append(("" if line.endswith(":") else "  ") + line)
    def c(self, s): self.l.append("  ; " + s)
    def text(self): return "\n".join(self.l) + "\n"

def vr(b, n=1): return f"v{b}" if n == 1 else f"v[{b}:{b+n-1}]"

def srd(a, d, lo, hi, nbytes):
    a(f"s_mov_b32 s{d}, s{lo}\ns_mov_b32 s{d+1}, s{hi}\ns_mov_b32 s{d+2}, {nbytes}\ns_mov_b32 s{d+3}, 0x00020000")
def srd_sel(a, d, lo0, lo1, nbytes):
    a(f"s_cselect_b32 s{d}, s{lo0}, s{lo1}\ns_cselect_b32 s{d+1}, s{lo0+1}, s{lo1+1}\ns_mov_b32 s{d+2}, {nbytes}\ns_mov_b32 s{d+3}, 0x00020000")

PROF = opt("prof")
PROF_BASE = 16 << 20
NST = 12
def stamp(a, i, wait=False):
    if PROF and not (opt("iters") and i >= 7) and not (opt("clk") and i >= 8):
        a(f"s_memrealtime s[{76+2*i}:{77+2*i}]")
        if opt("clk") and i < 4: a(f"s_memtime s[{92+2*i}:{93+2*i}]")
        if wait: a("s_waitcnt lgkmcnt(0)")
def stamp_flush(a):
    if not PROF: return
    a("s_waitcnt lgkmcnt(0)\ns_mov_b64 exec, 1")
    a(f"s_lshl_b32 s62, s2, 3\ns_add_u32 s62, s62, s6\ns_lshl_b32 s62, s62, 6\ns_add_u32 s62, s62, {PROF_BASE}")
    a("s_mov_b32 s30, 0x2000000\nv_mov_b32 v0, 0")
    for i in range(NST):
        a(f"v_mov_b32 v2, s{76+2*i}\nbuffer_store_dword v2, v0, s[28:31], s62 offen offset:{4*i}\ns_nop 1")

SPIN = 200000
def poll(a, lbl, addr_v, soff, width, tmp, mask=None, preloaded=True, sleep=1):
    ld = {1: "dword", 2: "dwordx2", 4: "dwordx4"}[width]
    a(f"s_mov_b32 s60, {SPIN}")
    if mask is not None: a(f"s_mov_b64 exec, {mask}")
    if preloaded: a(f"s_branch {lbl}_chk")
    a(f"{lbl}_ld:")
    a(f"buffer_load_{ld} {vr(tmp,width)}, v{addr_v}, s[28:31], {soff} offen sc1")
    a(f"{lbl}_chk:\ns_waitcnt vmcnt(0)")
    a(f"v_cmp_ne_u32 vcc, s34, v{tmp}")
    for i in range(1, width):
        a(f"v_cmp_ne_u32 s[58:59], s34, v{tmp+i}\ns_or_b64 vcc, vcc, s[58:59]")
    a(f"s_sub_u32 s60, s60, 1\ns_cbranch_scc1 {lbl}_ok")
    a(f"s_cmp_eq_u64 vcc, 0\ns_cbranch_scc1 {lbl}_ok\ns_sleep {sleep}\ns_branch {lbl}_ld\n{lbl}_ok:")
    if mask is not None: a("s_mov_b64 exec, -1")

def flag_store(a, soff, vtmp, vzero):
    a(f"v_mov_b32 v{vtmp}, s34\ns_mov_b64 exec, 1\nbuffer_store_dword v{vtmp}, v{vzero}, s[28:31], {soff} offen sc1\ns_mov_b64 exec, -1")
def mk_tag(a):
    a("s_mul_i32 s34, s34, 0x9e3779b1\ns_add_u32 s34, s34, 0x7f4a7c15")

def gen(a):
    N = NAME + "_kernel"
    STG = 22528; XB = 12288
    L_M = 0; L_G = 25600; RING = 27648
    L_X32 = RING + 4 * STG
    SLOT = {"A": RING, "B": RING + STG, "C": RING + 2 * STG, "D": RING + 3 * STG}
    SMAP = ["A", "B", "C", "D", "A", "B", "C", "D", "A", "B"]
    L_QX = SLOT["D"]
    NCH0 = 25
    Q1 = [4, 12]; Q2 = [8, 16]
    IDX, G = 10, 11
    T2, T3 = 20, 21
    M = [22, 23]
    KF1 = [24, 32]; KF2 = [28, 36]
    OA, IMG, T0, T1 = 30, 31, 38, 39
    VF = [40, 48]
    O = [56, 72]
    S = [88, 104, 120, 136]
    AK1, AK2, AV, AQ1, AQ2 = 88, 89, 90, 91, 92
    WO = 152; PT = 252

    def att_init():
        a.c("attention constants and accumulators; s12 = rt32, s13 = hp, s26 + v30 = O address")
        a(f"""
        s_and_b32 s15, s6, 3
        s_lshl_b32 s13, s4, 2
        s_add_u32 s12, s15, s13
        s_lshr_b32 s13, s6, 2
        s_mul_i32 s15, s15, 5120
        s_mul_i32 s14, s13, 2560
        s_add_u32 s15, s15, s14
        s_add_u32 s15, s15, {L_QX}
        v_and_b32 v{T0}, 31, v0
        v_lshrrev_b32 v{T1}, 5, v0
        v_lshlrev_b32 v{AK2}, 3, v{T0}
        v_lshl_add_u32 v{AK2}, v{T1}, 2, v{AK2}
        v_add_u32 v{AQ1}, s15, v3
        v_add_u32 v{AQ2}, s15, v{AK2}
        v_mul_u32_u24 v{AV}, 20, v{T1}
        v_add_lshl_u32 v{AV}, v{AV}, v{T0}, 4
        s_mul_i32 s26, s12, 81920
        s_lshl_b32 s14, s13, 1
        s_add_u32 s14, s14, s3
        s_lshl_b32 s14, s14, 3
        s_add_u32 s14, s14, s5
        s_mul_i32 s14, s14, 1280
        s_add_u32 s26, s26, s14
        s_add_u32 s26, s26, {WS_O}
        v_lshrrev_b32 v{OA}, 4, v{T0}
        v_mul_u32_u24 v{OA}, 40960, v{OA}
        v_lshl_add_u32 v{OA}, v{T1}, 8, v{OA}
        v_and_b32 v{AK1}, 15, v0
        v_lshl_add_u32 v{OA}, v{AK1}, 4, v{OA}
        s_mul_i32 s14, s3, {KV_BYTES}
        v_add_u32 v{IMG}, s14, v3
        s_lshl_b32 s14, s3, 6
        s_add_u32 s14, s14, s12
        s_lshl_b32 s14, s14, 7
        s_add_u32 s14, s14, {WS_G}
        """)
        for b in range(2):
            a(f"v_mov_b32 v{KF2[b]+1}, 0x3f803f80")
            for i in range(8): a(f"v_mov_b32 v{VF[b]+i}, 0")
        a("s_mov_b32 exec_lo, 0x01100000\ns_mov_b32 exec_hi, 0x01100000")
        for b in range(2):
            for i in range(8): a(f"v_mov_b32 v{VF[b]+i}, 0x3f803f80")
        a("s_mov_b64 exec, -1")
        for i in range(32): a(f"v_mov_b32 v{O[0]+i}, 0")
        for i in range(16): a(f"v_mov_b32 v{S[3]+i}, 0")

    a(f".globl {N}\n.p2align 8\n.type {N},@function\n{N}:")
    if opt("probe0"): a("s_memrealtime s[90:91]")
    a("s_cmp_ge_u32 s2, 256\ns_cbranch_scc1 L_END")
    a("""
    s_load_dwordx8 s[8:15], s[0:1], 0
    s_load_dwordx8 s[16:23], s[0:1], 48
    s_load_dwordx2 s[24:25], s[0:1], 104
    s_load_dwordx4 s[64:67], s[0:1], 80
    s_load_dwordx2 s[68:69], s[0:1], 32
    """)
    if not opt("nocpf"):
        a.c("bring this kernel's own code into L2 ahead of the instruction fetch: 2 KB per workgroup, 16 workgroups of an XCD round cover it")
        a(f"""
        s_getpc_b64 s[56:57]
        L_PCREF:
        s_lshl_b32 s58, s2, 8
        s_and_b32 s58, s58, 0x7800
        v_lshl_add_u32 v94, v0, 2, s58
        v_min_u32 v94, L_END-L_PCREF, v94
        v_mov_b32 v95, s57
        v_add_co_u32 v94, vcc, s56, v94
        s_nop 1
        v_addc_co_u32 v95, vcc, 0, v95, vcc
        global_load_dword v93, v[94:95], off
        """)
    stamp(a, 0)
    a.c("s3 = branch, s4 = rb (128-row block), s5 = hg (head group), s6 = wave, s33 = k-chunk rotation (0,3,5,8), s70 = 32-row tile of the K/V job, s71 = 0: K and gate, 1: V")
    a("""
    v_lshrrev_b32 v1, 6, v0
    v_and_b32 v0, 63, v0
    s_and_b32 s3, s2, 1
    v_readfirstlane_b32 s6, v1
    s_lshr_b32 s4, s2, 1
    s_and_b32 s4, s4, 3
    s_lshl_b32 s4, s4, 2
    s_lshr_b32 s33, s2, 3
    s_and_b32 s33, s33, 3
    s_add_u32 s4, s4, s33
    s_lshr_b32 s5, s2, 5
    v_lshlrev_b32 v3, 4, v0
    v_lshrrev_b32 v5, 3, v0
    v_and_b32 v6, 7, v0
    v_xor_b32 v6, v6, v5
    v_lshlrev_b32 v6, 4, v6
    v_mul_u32_u24 v2, 1280, v5
    v_add_u32 v2, v2, v6
    v_mov_b32 v4, 0
    s_lshl_b32 s48, s4, 7
    s_lshl_b32 s50, s6, 10
    s_lshr_b32 s70, s5, 1
    s_and_b32 s71, s5, 1
    s_lshl_b32 s54, s70, 2
    s_add_u32 s54, s54, s33
    s_mul_i32 s33, s33, 5
    s_add_u32 s33, s33, 1
    s_lshr_b32 s33, s33, 1
    s_cmp_ge_u32 s6, 4
    s_cbranch_scc1 L_LOADER
    """)
    a(f"""
    s_lshl_b32 s49, s70, 2
    s_add_u32 s49, s49, s6
    s_lshl_b32 s49, s49, 3
    s_add_u32 s49, s48, s49
    s_mul_i32 s49, s49, 1280
    s_mul_i32 s53, s71, 640
    s_add_u32 s51, s49, s53
    s_sub_u32 s49, s49, s53
    s_mul_i32 s53, s71, 20480
    s_add_u32 s55, s50, s53
    s_sub_u32 s56, s50, s53
    s_and_b32 s52, s6, 1
    s_lshl_b32 s54, s54, 1
    s_add_u32 s54, s54, s52
    s_lshl_b32 s54, s54, 10
    s_waitcnt lgkmcnt(0)
    """)
    srd(a, 36, 8, 9, 2048 * 1280)
    a.c("the K/V job's 32 rows of x, all of k (they also serve the Q projection); 2 KB of wk / wv as L2 warm-up; gate")
    for j in range(10):
        sl, ss = ("s55", "s51") if j < 5 else ("s56", "s49")
        a(f"s_add_u32 m0, {sl}, {L_X32 + 4096*j}\ns_add_u32 s53, {ss}, {128*j}\nbuffer_load_dwordx4 v2, s[36:39], s53 offen lds")
        if j == 9 and opt("probe0"): stamp(a, 9)
        if j == 0:
            if opt("probe0"): stamp(a, 8)
            srd(a, 28, 24, 25, WS_END)
            a("""
            s_cmp_eq_u32 s71, 0
            s_cselect_b32 s12, s12, s14
            s_cselect_b32 s13, s13, s15
            s_cselect_b32 s18, s18, s20
            s_cselect_b32 s19, s19, s21
            s_cmp_eq_u32 s3, 0
            """)
            srd_sel(a, 40, 12, 18, 25600)
            srd(a, 72, 64, 65, 1280)
            a(f"""
            s_cmp_lt_u32 s6, 2
            s_cbranch_scc0 L_LA2
            buffer_load_dwordx4 v[96:99], v3, s[40:43], s54 offen
            s_branch L_LA3
            L_LA2:
            s_lshl_b32 s53, s52, 10
            s_add_u32 m0, s53, {L_G}
            s_nop 0
            buffer_load_dwordx4 v3, s[72:75], s53 offen lds
            L_LA3:
            """)
    a(f"s_mov_b32 s53, {FL_EPOCH}\nbuffer_load_dword v9, v4, s[28:31], s53 offen sc1")
    a.c("wk or wv: KB w+4j, then 256 B each of the last KB")
    for j in range(6):
        a(f"s_add_u32 m0, s50, {L_M + 4096*j}\ns_add_u32 s53, s50, {4096*j}\nbuffer_load_dwordx4 v3, s[40:43], s53 offen lds")
    a(f"s_lshl_b32 s53, s6, 8\ns_add_u32 s53, s53, {24*1024}\ns_mov_b64 exec, 0xffff\ns_add_u32 m0, s53, {L_M}\ns_nop 0\nbuffer_load_dwordx4 v3, s[40:43], s53 offen lds\ns_mov_b64 exec, -1")
    att_init()
    FS = [152, 180, 100]; ACC = 208
    KVR = [152, 164, 176, 188, 200, 212]
    AX = 248; AWR = [250, 251]
    a.c("K/V job: wave = (16-row tile w&1, columns 0-15 / 16-19 by w>>1)")
    a(f"""
    v_and_b32 v5, 15, v0
    v_lshrrev_b32 v6, 4, v0
    v_and_b32 v7, 7, v0
    v_xor_b32 v7, v7, v6
    v_lshlrev_b32 v7, 4, v7
    v_lshl_add_u32 v10, v5, 7, v7
    s_lshl_b32 s53, s52, 11
    s_add_u32 s53, s53, {L_X32}
    v_add_u32 v14, s53, v10
    v_xor_b32 v15, 64, v14
    v_bfe_u32 v7, v0, 2, 2
    v_lshl_add_u32 v7, v6, 3, v7
    v_mul_u32_u24 v18, 40, v7
    v_and_b32 v8, 3, v0
    v_lshlrev_b32 v8, 3, v8
    s_cmp_lt_u32 s6, 2
    s_cselect_b32 s56, -1, 0
    s_cselect_b32 s57, 0, 32
    v_and_b32 v8, s56, v8
    v_add3_u32 v18, v18, v8, s57
    v_lshlrev_b32 v19, 4, v6
    v_add_u32 v19, {L_G}, v19
    v_lshrrev_b32 v7, 1, v6
    v_lshlrev_b32 v7, 4, v7
    v_and_b32 v8, 1, v6
    v_lshl_add_u32 v7, v8, 2, v7
    v_bfe_u32 v8, v0, 2, 2
    v_add_u32 v7, v7, v8
    v_mul_u32_u24 v7, 160, v7
    v_and_b32 v8, 3, v0
    v_mul_u32_u24 v8, 40, v8
    v_add_u32 v7, v7, v8
    v_add_u32 v{AWR[0]}, {SLOT["A"] + XB}, v7
    v_add_u32 v{AWR[1]}, {SLOT["C"] + XB}, v7
    s_cmp_gt_u32 s6, s70
    s_cselect_b32 s62, 1, 0
    s_sub_u32 s62, s6, s62
    s_lshl_b32 s62, s62, 12
    """)
    a.c("store address v12 + s58, lanes s[60:61], scale s27; gate -> v13 + s59, s63 = -+log2e")
    a(f"""
    s_lshl_b32 s58, s4, 2
    s_add_u32 s58, s58, s70
    s_lshl_b32 s59, s58, 1
    s_mul_i32 s58, s58, 2560
    s_mul_i32 s60, s3, {KV_BYTES}
    s_add_u32 s58, s58, s60
    s_add_u32 s59, s59, s52
    s_lshl_b32 s60, s3, 7
    s_add_u32 s59, s59, s60
    s_lshl_b32 s59, s59, 6
    s_add_u32 s59, s59, {WS_G}
    v_lshlrev_b32 v13, 2, v5
    s_lshl_b32 s63, s3, 31
    s_xor_b32 s63, s63, {LOG2E | 0x80000000}
    v_lshrrev_b32 v7, 1, v6
    v_and_b32 v8, 1, v6
    s_mov_b32 s27, {QSCALE}
    s_mov_b64 s[60:61], -1
    s_cmp_eq_u32 s71, 0
    s_cbranch_scc0 L_AD2
    s_cmp_lt_u32 s6, 2
    s_cbranch_scc0 L_AD1
    s_lshl_b32 s53, s52, 8
    s_add_u32 s58, s58, s53
    v_lshlrev_b32 v12, 9, v7
    v_lshl_add_u32 v12, v5, 4, v12
    v_lshl_add_u32 v12, v8, 3, v12
    s_branch L_AD4
    L_AD1:
    s_lshl_b32 s53, s52, 7
    s_add_u32 s58, s58, s53
    s_add_u32 s58, s58, 1024
    v_lshlrev_b32 v12, 3, v5
    s_mov_b64 s[60:61], 0xffff
    s_branch L_AD4
    L_AD2:
    s_mul_i32 s53, s52, 640
    s_add_u32 s58, s58, s53
    s_add_u32 s58, s58, 1280
    v_mul_u32_u24 v12, 320, v7
    v_lshl_add_u32 v12, v5, 4, v12
    v_lshl_add_u32 v12, v8, 3, v12
    s_mov_b32 s27, 1.0
    s_cmp_lt_u32 s6, 2
    s_cbranch_scc1 L_AD4
    s_add_u32 s58, s58, 256
    s_mov_b32 s60, 0x000f000f
    s_mov_b32 s61, 0x000f000f
    L_AD4:
    """)
    def kv_loop(kind):
        per = 4 if kind == "G" else 3
        nb = 3 if kind == "G" else 5
        ring = nb + 1
        def rd(k):
            f = KVR[k % ring]
            r = [f"ds_read_b128 {vr(f,4)}, v{14 + (k & 1)} offset:{(k >> 1) * 4096}"]
            for hf in range(2):
                r.append(f"ds_read_b64_tr_b16 {vr(f+4+2*hf,2)}, v18 offset:{(32*k + 4*hf)*40}")
            if kind == "G": r.append(f"ds_read_b128 {vr(f+8,4)}, v19 offset:{64*k}")
            return r
        def mm(k):
            f = KVR[k % ring]
            c1 = "0" if k == 0 else "v[20:23]"; c2 = "0" if k == 0 else "v[24:27]"
            if kind == "V": r = [f"v_mfma_f32_16x16x32_bf16 v[20:23], {vr(f,4)}, {vr(f+4,4)}, {c1}"]
            else: r = [f"v_mfma_f32_16x16x32_bf16 v[20:23], {vr(f+4,4)}, {vr(f,4)}, {c1}"]
            if kind == "G": r.append(f"v_mfma_f32_16x16x32_bf16 v[24:27], {vr(f+8,4)}, {vr(f,4)}, {c2}")
            return r
        for k in range(nb):
            for x in rd(k): a(x)
        for k in range(20):
            ahead = min(k + nb, 20) - (k + 1)
            a(f"s_waitcnt lgkmcnt({ahead * per})")
            for x in mm(k): a(x)
            if k + nb < 20:
                for x in rd(k + nb): a(x)
    def xaddr(s):
        return [f"s_add_u32 s55, s33, {s}", "s_cmp_ge_u32 s55, 10", "s_cselect_b32 s56, 10, 0", "s_sub_u32 s55, s55, s56",
                "s_lshl_b32 s55, s55, 12", f"s_add_u32 s55, s55, {L_X32}", f"s_add_u32 s56, s62, {SLOT[SMAP[s]]}",
                "s_cmp_eq_u32 s6, s70", "s_cselect_b32 s55, s55, s56", f"v_add_u32 v{AX}, s55, v10", f"v_xor_b32 v{AX+1}, 64, v{AX}"]
    def reads(i):
        s, ks = i // 2, i % 2
        hi = SMAP[s] in "CD"; base = STG if SMAP[s] in "BD" else 0
        f = FS[i % 3]
        r = [f"ds_read_b128 {vr(f+4*rt,4)}, v{AX+ks} offset:{rt*2048}" for rt in range(2)]
        for ct in range(5):
            for hf in range(2):
                r.append(f"ds_read_b64_tr_b16 {vr(f+8+4*ct+2*hf,2)}, v{AWR[hi]} offset:{base + (32*ks + 8*hf)*160 + 8*ct}")
        return r
    def mf(i, ct):
        f = FS[i % 3]
        return [f"v_mfma_f32_16x16x32_bf16 {vr(ACC+(rt*5+ct)*4,4)}, {vr(f+8+4*ct,4)}, {vr(f+4*rt,4)}, {'0' if i == 0 else vr(ACC+(rt*5+ct)*4,4)}" for rt in range(2)]
    def stage(s):
        for ks in range(2):
            r = reads(2 * s + ks)
            if ks == 1: a("s_waitcnt lgkmcnt(3)")
            if s < 1:
                for x in r: a(x)
                continue
            m = [x for ct in range(5) for x in mf(2 * s - 2 + ks, ct)]
            for k in range(10):
                if not opt("nomfmaB"): a(m[k])
                if k < 6: a(r[2*k]); a(r[2*k+1])
                elif ks == 1 and s < 9:
                    for x in xaddr(s + 1)[3*(k-6):3*(k-5)]: a(x)
        if s == 0:
            for x in xaddr(1): a(x)
        a("s_waitcnt lgkmcnt(12)" if s == 9 else "s_waitcnt lgkmcnt(0)")
    PUB = optv("pub", 2)
    nb_ = [0]
    def cbar():
        i = nb_[0]; nb_[0] += 1
        if i == PUB: a("s_waitcnt vmcnt(0)")
        if not (opt("freerun") and 2 <= i <= 7): a("s_barrier")
        if opt("probeB"):
            stamp(a, 1 + i, True)
            if i == 10 or (opt("probe0") and i == 0): a("s_branch L_FIN2")
        if i == PUB:
            a.c("publish this workgroup's K/V slice (wave 0, one lane)")
            a(f"""
            s_cmp_eq_u32 s6, 0
            s_cbranch_scc0 L_NOPUB
            s_bfe_u32 s56, s2, 0x50001
            s_lshl_b32 s56, s56, 7
            s_lshl_b32 s57, s3, 12
            s_add_u32 s56, s56, s57
            s_lshr_b32 s57, s2, 6
            s_lshl_b32 s57, s57, 2
            s_add_u32 s56, s56, s57
            s_add_u32 s56, s56, {FL_KV}
            """)
            flag_store(a, "s56", 7, 4)
            a("L_NOPUB:")
    a("s_waitcnt vmcnt(0)")
    cbar()
    if not opt("probeB"): stamp(a, 1, True)
    a("v_readfirstlane_b32 s34, v9")
    a("s_cmp_eq_u32 s71, 1\ns_cbranch_scc1 L_KV_V\ns_cmp_ge_u32 s6, 2\ns_cbranch_scc1 L_KV_G")
    kv_loop("K")
    a("s_branch L_KV_E\nL_KV_G:")
    kv_loop("G")
    a("""
    s_nop 7
    v_mul_f32 v24, s63, v24
    v_exp_f32 v24, v24
    s_nop 0
    v_add_f32 v24, 1.0, v24
    v_rcp_f32 v24, v24
    s_mov_b64 exec, 0xffff
    buffer_store_dword v24, v13, s[28:31], s59 offen sc1
    s_mov_b64 exec, -1
    s_branch L_KV_E
    L_KV_V:
    """)
    kv_loop("V")
    a("L_KV_E:")
    for x in xaddr(0): a(x)
    a.c("the softmax scale rides on K")
    a("""
    v_mul_f32 v20, s27, v20
    v_mul_f32 v21, s27, v21
    v_mul_f32 v22, s27, v22
    v_mul_f32 v23, s27, v23
    v_cvt_pk_bf16_f32 v16, v20, v21
    v_cvt_pk_bf16_f32 v17, v22, v23
    s_mov_b64 exec, s[60:61]
    buffer_store_dwordx2 v[16:17], v12, s[28:31], s58 offen sc1
    s_mov_b64 exec, -1
    """)
    mk_tag(a)
    a(f"""
    s_mul_i32 s7, s6, 5120
    s_add_u32 s7, s7, {L_QX}
    v_mul_u32_u24 v12, 1280, v6
    v_add_u32 v12, s7, v12
    v_lshl_add_u32 v13, v5, 3, v12
    v_lshl_add_u32 v12, v5, 4, v12
    """)
    if not opt("probeB"): stamp(a, 2, True)
    for s in range(10):
        cbar(); stage(s)
    for rt in range(2):
        for ct in range(5): a(mf(18, ct)[rt])
    a("s_waitcnt lgkmcnt(0)")
    a.c("last k-step; finished tiles are packed and written to LDS [w][head rg][1280] behind it")
    def pack(k):
        rt, ct = k // 5, k % 5; P = 100 + 12 * rt
        r = [f"v_cvt_pk_bf16_f32 v{P+2*ct+i}, v{ACC+4*k+2*i}, v{ACC+4*k+2*i+1}" for i in range(2)]
        if ct == 1: r.append(f"ds_write_b128 v12, {vr(P,4)} offset:{rt*256}")
        if ct == 3: r.append(f"ds_write_b128 v12, {vr(P+4,4)} offset:{512+rt*256}")
        if ct == 4: r.append(f"ds_write_b64 v13, {vr(P+8,2)} offset:{1024+rt*128}")
        return r
    for k in range(10):
        a(mf(19, k % 5)[k // 5])
        if k == 5: a("s_nop 2")
        if k >= 5:
            for x in pack(k - 5): a(x)
    stamp(a, 3)
    for k in range(5, 10):
        for x in pack(k): a(x)
    a("s_branch L_ATT")

    a("L_LOADER:")
    a.c("Wq DMA source offsets for 3 instrs: q=64i+l, p=q/10, c=q%10, src row = swap bits 2,3 of p")
    for i in range(3):
        a(f"""
        v_add_u32 v5, {64*i}, v0
        v_mul_u32_u24 v6, 6554, v5
        v_lshrrev_b32 v6, 16, v6
        v_mul_u32_u24 v7, 10, v6
        v_sub_u32 v7, v5, v7
        v_and_b32 v5, 0x13, v6
        v_and_b32 v8, 4, v6
        v_lshl_or_b32 v5, v8, 1, v5
        v_and_b32 v8, 8, v6
        v_lshrrev_b32 v8, 1, v8
        v_or_b32 v5, v5, v8
        v_mul_u32_u24 v5, 1280, v5
        v_lshl_add_u32 v{10+i}, v7, 4, v5
        """)
    a.c("x row groups 3lw+i of the 12 that are not resident -> s40..s42")
    a(f"""
    s_sub_u32 s7, s6, 4
    s_mul_i32 s49, s5, 160
    s_mul_i32 s54, s7, {16*1280}
    s_add_u32 s49, s49, s54
    s_mul_i32 s54, s7, 3072
    s_mul_i32 s51, s7, 2560
    s_add_u32 s51, s51, {XB}
    s_lshl_b32 s50, s7, 10
    s_lshl_b32 s53, s70, 2
    """)
    for i in range(3):
        a(f"""
        s_mul_i32 s55, s7, 3
        s_add_u32 s55, s55, {i}
        s_cmp_ge_u32 s55, s53
        s_cselect_b32 s56, 4, 0
        s_add_u32 s55, s55, s56
        s_lshl_b32 s55, s55, 3
        s_add_u32 s55, s55, s48
        s_mul_i32 s{40+i}, s55, 1280
        """)
    a("s_waitcnt lgkmcnt(0)\ns_cmp_eq_u32 s3, 0")
    srd_sel(a, 72, 10, 16, 640 * 1280)
    Q_ = []
    def kchunk(s):
        return f"s_add_u32 s55, s33, {s}\ns_cmp_ge_u32 s55, 10\ns_cselect_b32 s56, 10, 0\ns_sub_u32 s55, s55, s56\n"
    def items_x(s):
        r = []
        for i in range(3):
            t = (kchunk(s) + "s_lshl_b32 s55, s55, 7\n") if i == 0 else ""
            t += f"s_add_u32 m0, s54, {SLOT[SMAP[s]] + 1024*i}\ns_add_u32 s56, s55, s{40+i}\nbuffer_load_dwordx4 v2, s[36:39], s56 offen lds"
            r.append((f"X{s}", t))
        return r
    def items_w(s):
        r = []
        for i in range(3):
            t = (kchunk(s) + f"s_mul_i32 s55, s55, {64*1280}\ns_add_u32 s55, s55, s49\n") if i == 0 else ""
            t += f"s_add_u32 m0, s51, {SLOT[SMAP[s]] + 1024*i}\n" + ("s_mov_b32 exec_hi, 0\n" if i == 2 else "s_nop 0\n")
            t += f"buffer_load_dwordx4 v{10+i}, s[72:75], s55 offen lds" + ("\ns_mov_b32 exec_hi, -1" if i == 2 else "")
            r.append((f"W{s}", t))
        return r
    def emit(items):
        for n, t in items:
            a(t); Q_.append(n)
    def younger(name):
        i = max(k for k, n in enumerate(Q_) if n == name)
        return len(Q_) - 1 - i
    lb_ = [0]
    def lbar(name):
        i = lb_[0]; lb_[0] += 1
        if opt("probeB"): stamp(a, 1 + i)
        if opt("freerun") and 2 <= i <= 7: return
        a(f"s_waitcnt vmcnt({younger(name)})\ns_barrier")
    srd(a, 36, 8, 9, 2048 * 1280)
    srd(a, 28, 24, 25, WS_END)
    NW0 = optv("nw0", 0)
    w012 = items_w(0) + items_w(1) + items_w(2)
    emit(w012[:NW0])
    att_init()
    RL = 152; RA = RL + 64; RS = RA + 12
    a.c("wo re-layout job (wave 5): cb = wg&7, head pair wg>>3, piece u = l/10, octet = l%10 (50 lanes); rows (u<4) 20(u>>1)+4(u&1)+{0..3,8..11}, (u=4) 16+{0..3,20..23}")
    for i in [2, 3, 12, 13]: a(f"v_mov_b32 v{RA+i}, 0")
    a("s_cmp_eq_u32 s6, 5\ns_cbranch_scc0 L_NORL")
    t = RL + 32
    U = RA + 11
    a(f"""
    s_lshr_b32 s56, s2, 3
    s_and_b32 s35, s56, 7
    s_lshl_b32 s35, s35, 1
    s_lshr_b32 s57, s2, 7
    s_add_u32 s35, s35, s57
    s_mul_i32 s35, s35, {40*1280}
    s_mul_i32 s56, s56, 5
    s_and_b32 s57, s2, 7
    s_mul_i32 s32, s57, 160
    s_add_u32 s32, s32, s35
    v_mul_u32_u24 v{U}, 6554, v0
    v_lshrrev_b32 v{U}, 16, v{U}
    v_mul_u32_u24 v{RA}, 10, v{U}
    v_sub_u32 v{RA}, v0, v{RA}
    v_lshrrev_b32 v{t}, 1, v{U}
    v_mul_u32_u24 v{t}, 20, v{t}
    v_and_b32 v{t+1}, 1, v{U}
    v_lshl_add_u32 v{t}, v{t+1}, 2, v{t}
    v_cmp_eq_u32 vcc, 4, v{U}
    v_mov_b32 v{t+1}, 8
    s_nop 0
    v_cndmask_b32 v{t}, v{t}, 16, vcc
    v_cndmask_b32 v{t+1}, v{t+1}, 20, vcc
    v_add_u32 v{t+1}, v{t}, v{t+1}
    v_mul_u32_u24 v{t}, 1280, v{t}
    v_mul_u32_u24 v{t+1}, 1280, v{t+1}
    v_lshl_add_u32 v{RS}, v{RA}, 4, v{t}
    v_lshl_add_u32 v{RS+1}, v{RA}, 4, v{t+1}
    """)
    a.c("destination of the two 4-column chunks: octet o<8: ct = 2(o>>2)+z, rg = o&3 ; o>=8: ct = 4, rg = 2(o&1)+z")
    a(f"""
    v_cmp_lt_u32 vcc, 7, v{RA}
    v_lshrrev_b32 v{t}, 2, v{RA}
    v_mul_u32_u24 v{t}, 81920, v{t}
    v_lshl_add_u32 v{t}, v{U}, 8, v{t}
    v_and_b32 v{t+1}, 3, v{RA}
    v_lshlrev_b32 v{t+2}, 1, v{t+1}
    v_cndmask_b32 v{t+1}, v{t+1}, v{t+2}, vcc
    v_lshl_add_u32 v{RA+2}, v{t+1}, 6, v{t}
    v_mov_b32 v{t+1}, 40960
    v_cndmask_b32 v{t+1}, v{t+1}, 64, vcc
    v_add_u32 v{RA+3}, v{RA+2}, v{t+1}
    """)
    a(f"""
    s_mul_i32 s35, s57, {5*40960}
    s_lshl_b32 s56, s56, 8
    s_add_u32 s35, s35, s56
    s_add_u32 s35, s35, {WS_WO}
    L_NORL:
    v_lshlrev_b32 v13, 7, v{T0}
    s_lshl_b32 s57, s3, 12
    s_add_u32 s57, s57, {FL_KV}
    """)
    NWB = optv("nwb", 6)
    if opt("probe0"): stamp(a, 8)
    emit(w012[NW0:NWB])
    a(f"s_mov_b32 s53, {FL_EPOCH}\nbuffer_load_dword v9, v4, s[28:31], s53 offen sc1")
    stamp(a, 1)
    lb_[0] += 1
    a("s_barrier")
    if opt("probe0"): a("s_branch L_FIN2")
    rest = []
    for s in range(3, 10): rest += items_w(s) + items_x(s)
    PRE = optv("pre", 0)
    emit(w012[NWB:] + items_x(0) + items_x(1) + items_x(2) + rest[:PRE]); rest = rest[PRE:]
    PER = [int(c) for c in str(optv("per", 166666660))[1:]]
    for r in range(8):
        lbar(f"X{r}")
        if r == 0:
            a("v_readfirstlane_b32 s34, v9")
            if not opt("probeB"): stamp(a, 2)
        if r == 1: mk_tag(a)
        chunk = rest[:PER[r]]; rest = rest[PER[r]:]
        for nme, _ in chunk:
            s = int(nme[1:]); prev = [p for p in range(s) if SMAP[p] == SMAP[s]]
            if prev: assert r >= prev[-1] + 1, (nme, r)
            assert r < s
        emit(chunk)
        if r == optv("pr", 4):
            emit([("PL", "s_cmp_eq_u32 s6, 4\ns_cselect_b32 exec_lo, -1, 1\ns_mov_b32 exec_hi, 0\nbuffer_load_dwordx4 v[16:19], v13, s[28:31], s57 offen sc1\ns_mov_b64 exec, -1")])
    assert not rest
    a.c("wave 4: one look at the K/V flags; if complete, fetch the first tiles of the image early")
    def img(r): a(f"s_mov_b32 m0, {1024*r}\ns_mov_b32 s20, {1024*r}\nbuffer_load_dwordx4 v{IMG}, s[28:31], s20 offen sc1 lds")
    NE = optv("ne", 25)
    a(f"""
    s_cmp_eq_u32 s6, 4
    s_cbranch_scc0 L_N4
    s_mov_b32 exec_hi, 0
    s_waitcnt vmcnt({younger("PL")})
    v_cmp_ne_u32 vcc, s34, v16
    v_cmp_ne_u32 s[58:59], s34, v17
    s_or_b64 vcc, vcc, s[58:59]
    v_cmp_ne_u32 s[58:59], s34, v18
    s_or_b64 vcc, vcc, s[58:59]
    v_cmp_ne_u32 s[58:59], s34, v19
    s_or_b64 vcc, vcc, s[58:59]
    s_mov_b32 exec_hi, -1
    s_cmp_eq_u64 vcc, 0
    s_cbranch_scc1 L_EARLY
    s_waitcnt vmcnt({younger("X8")})
    s_barrier
    s_waitcnt vmcnt(0)
    s_barrier
    s_mov_b32 s20, -1
    s_mov_b32 s21, 0
    """)
    if opt("probeB"): a("s_branch L_FIN2")
    stamp(a, 3)
    poll(a, "L_PKV", 13, "s57", 4, 16, mask="s[20:21]", preloaded=False)
    stamp(a, 4)
    for r in range(NE): img(r)
    a("s_branch L_LATE\nL_EARLY:")
    NE0 = optv("ne0", 10)
    for r in range(NE0): img(r)
    a(f"s_waitcnt vmcnt({younger('X8') + NE0})\ns_barrier")
    for r in range(NE0, NE): img(r)
    a(f"s_waitcnt vmcnt({NE})\ns_barrier")
    if opt("probeB"): a("s_branch L_FIN2")
    stamp(a, 3); stamp(a, 4)
    a("L_LATE:")
    NX = 0
    for r in range(NE, NCH0): img(r)
    a(f"s_waitcnt vmcnt({NCH0 - 5})\ns_branch L_ATT\nL_N4:")
    lbar("X8")
    lbar("X9")
    if opt("probeB"): a("s_branch L_FIN2")
    stamp(a, 3)

    pAK1, pAK2, pAV = AK1, AK2, AV
    AK1, AK2, AV = 3, 2, 1
    def rdK(b, off):
        return [f"ds_read_b128 {vr(KF1[b],4)}, v{AK1} offset:{off}", f"ds_read_b32 v{KF2[b]}, v{AK2} offset:{off+1024}"]
    def rdV(b, off):
        return ["s_mov_b64 exec, s[36:37]",
                f"ds_read_b128 {vr(VF[b],4)}, v{AV} offset:{off+1280}", f"ds_read_b128 {vr(VF[b]+4,4)}, v{AV} offset:{off+1920}",
                "s_mov_b64 exec, -1"]
    def qk1(u, kb): return f"v_mfma_f32_32x32x16_bf16 {vr(S[u%4],16)}, {vr(KF1[kb],4)}, {vr(Q1[u%2],4)}, 0"
    def qk2(u, kb): return f"v_mfma_f32_32x32x8_bf16 {vr(S[u%4],16)}, {vr(KF2[kb],2)}, {vr(Q2[u%2],2)}, {vr(S[u%4],16)}"
    def pv(u, vb, i): return f"v_smfmac_f32_32x32x32_bf16 {vr(O[u%2],16)}, {vr(VF[vb]+4*i,4)}, {vr(S[u%4]+8*i,8)}, v{IDX}"
    a("L_ATT:")
    a(f"""
    v_mov_b32 v{AK2}, v{pAK2}
    v_mov_b32 v{AV}, v{pAV}
    v_mov_b32 v{IDX}, 0xdddddddd
    v_mov_b32 v{Q2[0]+1}, 0
    v_mov_b32 v{Q2[1]+1}, 0
    v_lshlrev_b32 v{T2}, 2, v{T0}
    s_mov_b32 s36, 0x000fffff
    s_mov_b32 s37, 0x000fffff
    s_mov_b32 s38, 0
    s_mov_b32 s39, -1
    s_mov_b32 s42, 1
    s_mul_i32 s43, s13, {optv('nlh', 3)}
    s_cmp_eq_u32 s13, 0
    s_cselect_b32 s45, {(1 << 4) | (1 << 3)}, {(1 << 6) | (1 << 5) | (1 << 4)}
    s_or_b32 s45, s45, {1 << 8}
    s_mov_b32 s44, 8
    s_waitcnt lgkmcnt(0)
    s_barrier
    ds_read_b128 {vr(Q1[0],4)}, v{AQ1}
    ds_read_b32 v{Q2[0]}, v{AQ2} offset:1024
    ds_read_b128 {vr(Q1[1],4)}, v{AQ1} offset:1280
    ds_read_b32 v{Q2[1]}, v{AQ2} offset:2304
    """)
    for x in rdK(0, 0) + rdK(1, 2560) + rdV(1, 0): a(x)
    a(f"buffer_load_dword v{G}, v{T2}, s[28:31], s14 offen sc1")
    stamp(a, 5, True)
    a.c("stand-in for the row max: the max over the first 32 keys")
    a("s_waitcnt lgkmcnt(4)\ns_cmp_eq_u32 s13, 0\ns_cbranch_scc1 L_BQ2\ns_waitcnt vmcnt(1)\ns_barrier\nL_BQ2:")
    a(f"v_mfma_f32_32x32x16_bf16 {vr(S[2],16)}, {vr(KF1[0],4)}, {vr(Q1[0],4)}, 0")
    a(f"v_mfma_f32_32x32x8_bf16 {vr(S[0],16)}, {vr(KF2[0],2)}, {vr(Q2[0],2)}, {vr(S[2],16)}")
    a(f"v_mfma_f32_32x32x16_bf16 {vr(S[1],16)}, {vr(KF1[0],4)}, {vr(Q1[1],4)}, 0")
    a(f"v_mfma_f32_32x32x8_bf16 {vr(S[1],16)}, {vr(KF2[0],2)}, {vr(Q2[1],2)}, {vr(S[1],16)}")
    a("s_cbranch_scc0 L_BQ3\ns_setprio 2\ns_barrier\nL_BQ3:\ns_nop 8")
    for j in range(2):
        a(f"v_max3_f32 v{M[j]}, v{S[j]}, v{S[j]+1}, v{S[j]+2}\nv_max3_f32 v{T2+j}, v{S[j]+3}, v{S[j]+4}, v{S[j]+5}")
        if j == 1: a(f"v_mfma_f32_32x32x8_bf16 {vr(S[0],16)}, {vr(KF2[0],2)}, {vr(Q2[0],2)}, {vr(S[2],16)}")
        for i in range(6, 16, 4):
            a(f"v_max3_f32 v{M[j]}, v{S[j]+i}, v{S[j]+i+1}, v{M[j]}")
            if i + 2 < 16: a(f"v_max3_f32 v{T2+j}, v{S[j]+i+2}, v{S[j]+i+3}, v{T2+j}")
        a(f"""
        v_max_f32 v{M[j]}, v{M[j]}, v{T2+j}
        v_mov_b32 v{T2+j}, v{M[j]}
        s_nop 1
        v_permlane32_swap_b32 v{M[j]}, v{T2+j}
        s_nop 0
        v_min_f32 v{M[j]}, -v{M[j]}, -v{T2+j}
        v_lshrrev_b32 v{M[j]}, 16, v{M[j]}
        v_cndmask_b32 v{Q2[j]+1}, v{M[j]}, 0, s[38:39]
        """)
    a(f"""
    s_cmp_eq_u32 s13, 0
    s_cbranch_scc0 L_LAG0
    s_setprio 2
    s_waitcnt lgkmcnt(0)
    s_branch L_PR
    L_LAG0:
    """)
    a.c("waves 4-7: rest of the K/V image, side jobs, then S1 (waves 0-3 meet it after their first 8 tiles)")
    def rl_loads():
        a("s_bitcmp0_b32 s2, 6")
        srd_sel(a, 72, 68, 22, 640 * 1280)
        a("s_mov_b32 exec_hi, 0x3ffff")
        for e in range(8):
            a(f"buffer_load_dwordx4 {vr(RL+4*e,4)}, v{RS+e//4}, s[72:75], s32 offen offset:{(e%4)*1280}")
    def rl_stores():
        a("s_mov_b32 s56, 0x05040100\ns_mov_b32 s57, 0x07060302\ns_mov_b32 exec_hi, 0x3ffff")
        a.c("wo re-layout: 8x8 16-bit transposition in registers")
        for c in range(8):
            for r in range(4):
                a(f"v_perm_b32 v{RL+32+4*c+r}, v{RL+4*(2*r+1)+c//2}, v{RL+4*(2*r)+c//2}, {'s56' if c % 2 == 0 else 's57'}")
            a(f"buffer_store_dwordx4 {vr(RL+32+4*c,4)}, v{RA+2+c//4}, s[28:31], s35 offen offset:{(c%4)*16} sc1")
    RLE = False
    if RLE:
        a("s_cmp_eq_u32 s6, 5\ns_cbranch_scc0 L_NRL")
        rl_loads()
        a("s_mov_b32 exec_hi, -1\nL_NRL:")
    quads = [k for k in range(24, 160, 4) if not (56 <= k < 56 + NX)]
    for k in quads:
        a(f"s_add_u32 m0, s50, {1024*k}\ns_add_u32 s20, s50, {1024*k}\nbuffer_load_dwordx4 v{IMG}, s[28:31], s20 offen sc1 lds")
    a("s_cmp_eq_u32 s6, 5\ns_cbranch_scc0 L_POIS")
    if RLE:
        a(f"s_waitcnt vmcnt({len(quads)})")
        rl_stores()
    else: rl_loads()
    a("s_branch L_S1\nL_POIS:")
    a.c("waves 4,6,7: mark this workgroup's share of the O hand-off buffer as not yet written (rt16 = 8rb + i, slice 8*branch+hg); one KB column each")
    a(f"""
    s_mul_i32 s55, s4, {8*40960}
    s_lshl_b32 s56, s3, 3
    s_add_u32 s56, s56, s5
    s_mul_i32 s56, s56, 2560
    s_add_u32 s55, s55, s56
    s_add_u32 s55, s55, {WS_O}
    s_sub_u32 s56, s6, 5
    s_max_i32 s56, s56, 0
    s_lshl_b32 s56, s56, 10
    s_add_u32 s55, s55, s56
    v_mov_b32 v{PT}, -1
    v_mov_b32 v{PT+1}, -1
    v_mov_b32 v{PT+2}, -1
    v_mov_b32 v{PT+3}, -1
    s_cmp_eq_u32 s6, 7
    s_cselect_b32 exec_hi, 0, -1
    """)
    for i in range(8):
        if opt("nopois"): a("s_mov_b64 exec, 1")
        a(f"buffer_store_dwordx4 {vr(PT,4)}, v{AK1}, s[28:31], s55 offen sc1\ns_add_u32 s55, s55, 40960")
    a("""
    L_S1:
    s_mov_b64 exec, -1
    s_waitcnt vmcnt(8) lgkmcnt(0)
    s_barrier
    s_setprio 3
    L_PR:
    """)
    stamp(a, 6)
    if opt("cyc"): a("s_memtime s[80:81]")
    if opt("iters"): a("s_memtime s[94:95]\ns_waitcnt lgkmcnt(0)")
    a(f".p2align {optv('al', 6)}")
    for i in range(optv("pad", 0)): a("s_nop 0")
    a("L_LOOP:")
    for t in range(8):
        for j in range(2):
            u = 2 * t + j
            b = (t + j) % 2
            ex = [f"v_exp_f32 v{S[u%4]+i}, v{S[u%4]+i}" for i in range(16)]
            extra = [[], [], [], []]
            if j == 1:
                a("s_waitcnt lgkmcnt(0)")
                extra[0] = rdK(t % 2, (t + 2) * 2560)
                extra[1] = rdV(t % 2, (t + 1) * 2560)
            ms = [qk1(u + 1, b), qk2(u + 1, b), pv(u - 1, b, 0), pv(u - 1, b, 1)]
            if opt("xdense"):
                pb = S[(u-1)%4]
                ms[2] = f"v_mfma_f32_32x32x16_bf16 {vr(O[(u-1)%2],16)}, {vr(VF[b],4)}, {vr(pb,4)}, {vr(O[(u-1)%2],16)}"
                ms[3] = f"v_mfma_f32_32x32x16_bf16 {vr(O[(u-1)%2],16)}, {vr(VF[b]+4,4)}, {vr(pb+4,4)}, {vr(O[(u-1)%2],16)}"
                for g in range(2):
                    extra[g] = extra[g] + [f"v_cvt_pk_bf16_f32 v{pb+4*g+i}, v{pb+8*g+2*i}, v{pb+8*g+2*i+1}" for i in range(4)]
            if opt("x2b"):
                if j == 0: ms[1] = ""
                else:
                    base = S[0] if (u + 1) % 4 == 0 else S[2]
                    ms[1] = f"v_mfma_f32_32x32x4_2b_bf16 {vr(base,32)}, {vr(KF2[b],2)}, {vr(Q2[0],2)}, {vr(base,32)}"
            if opt("xqk16"):
                d = S[(u+1)%4]
                q = [f"v_mfma_f32_16x16x32_bf16 {vr(d+4*i,4)}, {vr(KF1[b] if i < 2 else KF1[1-b],4)}, {vr(Q1[i%2],4)}, 0" for i in range(4)]
                ms[0] = q[0]; ms[1] = q[2]; extra[0] = extra[0] + [q[1]]; extra[1] = extra[1] + [q[3]]
            for g in range(4):
                a(ms[g])
                for x in ex[4 * g:4 * g + 2]: a(x)
                for x in extra[g]: a(x)
                for x in ex[4 * g + 2:4 * g + 4]: a(x)
            if t == optv("nlt", 0) and j == 1 and optv("nlh", 3):
                a(f"s_cmp_eq_u32 s43, s44\ns_cbranch_scc0 L_PH\ns_setprio 1\nL_PH:")
    a(f"v_add_u32 v{AK1}, 20480, v{AK1}\nv_add_u32 v{AK2}, 20480, v{AK2}\nv_add_u32 v{AV}, 20480, v{AV}")
    a("s_bitcmp1_b32 s45, s44\ns_cbranch_scc1 L_EV")
    a("L_NEXT:")
    if opt("iters"):
        for k in range(1, 9): a(f"s_mov_b32 s{76+2*k}, s{76+2*(k+1)}")
        a("s_memtime s[94:95]\ns_waitcnt lgkmcnt(0)")
    a("s_sub_u32 s44, s44, 1\ns_cmp_lg_u32 s44, 0\ns_cbranch_scc1 L_LOOP")
    stamp(a, 7)
    if opt("cyc"): a("s_memtime s[82:83]")
    a(pv(15, 0, 0)); a(pv(15, 0, 1))
    a.c("phase E addresses: tile rows 64*(2rb+branch).., columns 80*hg.. ; wave = K eighth; row tiles in an order rotated by hg")
    a(f"""
    s_setprio 3
    s_mov_b32 s46, {f32bits(2.0**-40)}
    s_mov_b32 s47, {f32bits(2.0**40)}
    s_mov_b32 s23, -2
    s_lshl_b32 s16, s4, 1
    s_add_u32 s16, s16, s3
    s_mul_i32 s21, s16, {4*40960}
    s_mul_i32 s40, s6, 5120
    s_add_u32 s21, s21, s40
    s_add_u32 s21, s21, {WS_O}
    """)
    for i in range(4):
        a(f"s_add_u32 s22, s5, {i}\ns_and_b32 s22, s22, 3\ns_mul_i32 s22, s22, 40960\ns_add_u32 s{17+i}, s21, s22\ns_add_u32 s{8+i}, s22, s40")
    a("s_waitcnt vmcnt(0) lgkmcnt(0)")
    a.c("run-time safety check of the stand-in max: row sums must lie in [2^-40, 2^40], else redo with the true max")
    a(f"""
    v_cndmask_b32 v{M[0]}, v{O[0]+12}, v{O[0]+8}, s[38:39]
    v_cndmask_b32 v{M[1]}, v{O[1]+12}, v{O[1]+8}, s[38:39]
    v_cmp_le_f32 s[48:49], s46, v{M[0]}
    v_cmp_ge_f32 s[50:51], s47, v{M[0]}
    v_cmp_le_f32 s[52:53], s46, v{M[1]}
    v_cmp_ge_f32 s[54:55], s47, v{M[1]}
    v_rcp_f32 v{M[0]}, v{M[0]}
    v_rcp_f32 v{M[1]}, v{M[1]}
    s_and_b64 s[48:49], s[48:49], s[50:51]
    s_and_b64 s[52:53], s[52:53], s[54:55]
    s_and_b64 s[48:49], s[48:49], s[52:53]
    s_cmp_eq_u64 s[48:49], -1
    {"" if opt("nobad") else "s_cbranch_scc0 L_BAD"}
    L_OK:
    v_mul_f32 v{M[0]}, v{M[0]}, v{G}
    v_mul_f32 v{M[1]}, v{M[1]}, v{G}
    """)
    P = S[3]
    for j in range(2):
        for i in range(12): a(f"v_mul_f32 v{O[j]+i}, v{O[j]+i}, v{M[j]}")
        for i in range(4): a(f"v_cvt_pk_bf16_f32 v{P+4*j+i}, v{O[j]+2*i}, v{O[j]+2*i+1}")
        for i in range(2): a(f"v_cvt_pk_bf16_f32 v{P+8+2*j+i}, v{O[j]+8+2*i}, v{O[j]+8+2*i+1}")
        for i in range(4): a(f"v_min_u32 v{P+4*j+i}, s23, v{P+4*j+i}")
        a(f"buffer_store_dwordx4 {vr(P+4*j,4)}, v{OA}, s[28:31], s26 offen offset:{512*j} sc1")
    for i in range(4): a(f"v_min_u32 v{P+8+i}, s23, v{P+8+i}")
    a(f"""
    s_mov_b32 exec_hi, 0
    buffer_store_dwordx4 {vr(P+8,4)}, v{OA}, s[28:31], s26 offen offset:1024 sc1
    """)
    if opt("dup"):
        a(f"buffer_store_dwordx4 {vr(P+8,4)}, v{OA}, s[28:31], s26 offen offset:1024\ns_mov_b32 exec_hi, -1")
        for j in range(2): a(f"buffer_store_dwordx4 {vr(P+4*j,4)}, v{OA}, s[28:31], s26 offen offset:{512*j}")
    a("s_mov_b32 exec_hi, -1\ns_setprio 0")
    EB = not opt("lateb")
    if EB:
        a.c("every wave of this workgroup is past its last K/V read at this barrier: LDS can be reused")
        a("s_cmp_eq_u32 s13, 0\ns_cbranch_scc1 L_NB\ns_barrier\nL_NB:")
    OF = 16
    EA = [96, 116, 16, 36]
    srd(a, 72, 66, 67, 2048 * 1280)
    a.c("partial sums change lanes on their way through LDS: writer (n, rg) -> slot 4n + (rg ^ ((n>>1)&3)); reader lane = 4*row + rg")
    a.c("out address (waves 0-3): row = 64*(2rb+branch) + 16w + (l>>2) ; columns 8rg.., 32+8rg.., 64+4rg..")
    a(f"""
    v_mov_b32 v2, s34
    v_mov_b32 v3, 0
    v_lshlrev_b32 v5, 4, v0
    v_add_u32 v6, 4096, v5
    v_and_b32 v13, 15, v0
    v_lshrrev_b32 v14, 4, v0
    v_bfe_u32 v12, v0, 1, 2
    v_xor_b32 v14, v14, v12
    v_lshl_add_u32 v14, v13, 2, v14
    v_lshlrev_b32 v14, 4, v14
    v_add_u32 v8, s8, v14
    v_add_u32 v9, s9, v14
    v_add_u32 v10, s10, v14
    v_add_u32 v11, s11, v14
    v_bfe_u32 v12, v0, 3, 2
    v_xor_b32 v12, v12, v0
    s_mul_i32 s22, s6, 40960
    v_lshl_add_u32 v12, v12, 4, s22
    s_lshl_b32 s22, s16, 6
    s_lshl_b32 s21, s6, 4
    s_add_u32 s22, s22, s21
    s_mul_i32 s22, s22, 1280
    s_mul_i32 s21, s5, 160
    s_add_u32 s22, s22, s21
    v_lshrrev_b32 v13, 2, v0
    v_mul_u32_u24 v13, 1280, v13
    v_and_b32 v14, 3, v0
    v_lshl_add_u32 v7, v14, 3, v13
    v_lshl_add_u32 v13, v14, 4, v13
    s_mov_b32 s60, {SPIN}
    """)
    REQ = {"A": [int(c) for c in str(optv("reqa", 44444))], "B": [int(c) for c in str(optv("reqb", 12344))]}
    def oload(rt):
        for st in range(5):
            av = 5 if st < 4 else 6
            a(f"buffer_load_dwordx4 {vr(OF+(rt*5+st)*4,4)}, v{av}, s[28:31], s{17+rt} offen offset:{(st%4)*1024} sc1")
    def ewrites(rt):
        return [f"ds_write_b128 v{8+rt}, {vr(EA[rt]+4*ct,4)} offset:{ct*1024}" for ct in range(5)]
    tail = []
    def egemm(tag, bar=-1, wr=True):
        for rt in range(4):
            if rt == bar: a("s_barrier")
            a(f"L_CH{tag}{rt}:")
            b = OF + rt * 20
            w = ewrites(rt - 1) if rt >= 1 and wr else []
            a.c("MFMAs run ahead of the hand-off check (no word may still hold the not-yet-written mark); a failed check redoes the block")
            for st in range(5):
                if st == 0:
                    a(f"s_waitcnt vmcnt({4 + 5*(REQ[tag][rt] - rt - 1)})")
                    for r2 in range(REQ[tag][rt], REQ[tag][rt+1]): oload(r2)
                else: a(f"s_waitcnt vmcnt({4 - st + 5*(REQ[tag][rt+1] - rt - 1)})")
                f = b + 4 * st
                chk = [f"v_max3_u32 v15, v{f}, v{f+1}, v{f+2}" if st == 0 else f"v_max3_u32 v15, v{f}, v{f+1}, v15",
                       f"v_max_u32 v15, v{f+3}, v15" if st == 0 else f"v_max3_u32 v15, v{f+2}, v{f+3}, v15"]
                if st == 4: chk += ["v_cmp_eq_u32 vcc, -1, v15"]
                for ct in range(5):
                    d = vr(EA[rt] + 4 * ct, 4)
                    a(f"v_mfma_f32_16x16x32_bf16 {d}, {vr(WO+(st*5+ct)*4,4)}, {vr(f,4)}, {'0' if st == 0 else d}")
                    if ct < len(chk): a(chk[ct])
                    if w and st >= 1 and ct == 3: a(w[st - 1])
                    if w and st == 4 and ct == 4: a(w[4])
            a(f"s_cbranch_vccnz L_RE{tag}{rt}\nL_GO{tag}{rt}:")
            tail.append((tag, rt))
            if opt("probeE"): stamp(a, [1, 2, 3, 5][rt])
    def retries():
        if PROF and not opt("iters") and not opt("keep4"): a(f"s_waitcnt lgkmcnt(0)\ns_sub_u32 s84, {SPIN}, s60\ns_mul_i32 s84, s84, 100\ns_add_u32 s84, s84, s76")
    a("s_cmp_eq_u32 s13, 0\ns_cbranch_scc1 L_ELEAD")
    a.c("every wave of this workgroup is past its last K/V read at this barrier: LDS can be reused")
    if not opt("asym") and not EB: a("s_barrier")
    if not opt("noack"): a("s_waitcnt vmcnt(0)")
    elif optv("dly", 0): a(f"s_sleep {optv('dly', 0)}")
    stamp(a, 8)
    for rt in range(REQ["B"][0]): oload(rt)
    if opt("asym"): a("s_barrier")
    if opt("probeE"): stamp(a, 6)
    if PROF: a("s_waitcnt lgkmcnt(0)")
    if optv("bp", 0): a(f"s_setprio {optv('bp', 0)}")
    egemm("B", optv("bar", 2))
    stamp(a, 10); retries()
    a("s_waitcnt lgkmcnt(0)\ns_nop 6" if opt("probeE") else "s_waitcnt lgkmcnt(5)\ns_nop 6")
    for x in ewrites(3): a(x)
    a("s_waitcnt lgkmcnt(0)\ns_barrier\ns_branch L_FIN")
    a("L_ELEAD:")
    if not opt("asym") and not (not opt("leadlast")): a("s_barrier")
    a("s_waitcnt vmcnt(0)")
    stamp(a, 8)
    for rt in range(REQ["A"][0]): oload(rt)
    if opt("probeE"): stamp(a, 6)
    if PROF: a("s_waitcnt lgkmcnt(0)")
    if opt("asym"):
        egemm("A", wr=False)
        stamp(a, 9); retries()
        a("s_barrier\ns_setprio 2\ns_waitcnt lgkmcnt(0)\ns_nop 4")
        for rt in range(4):
            for x in ewrites(rt): a(x)
            if rt == 1: a("s_waitcnt lgkmcnt(4)")
    else:
        egemm("A", optv("bara", 1))
        stamp(a, 9); retries()
        a("s_waitcnt lgkmcnt(0)\ns_nop 6" if opt("probeE") else "s_waitcnt lgkmcnt(5)\ns_nop 6")
        for x in ewrites(3): a(x)
    a("s_waitcnt lgkmcnt(0)\ns_barrier")
    R = 56
    def rsum(src0, keep):
        for src in range(4):
            for c in range(5):
                a(f"ds_read_b128 {vr(R+src*20+4*c,4)}, v12 offset:{(src0+src)*5120+c*1024}")
            if src == 1: a("s_waitcnt lgkmcnt(4)")
        a("s_waitcnt lgkmcnt(10)")
        for i in range(20): a(f"v_add_f32 v{R+i}, v{R+i}, v{R+20+i}")
        if keep:
            for i in range(20): a(f"v_add_f32 v{R+i}, v{R+i}, v{16+i}")
        a("s_waitcnt lgkmcnt(0)")
        for i in range(20): a(f"v_add_f32 v{R+40+i}, v{R+40+i}, v{R+60+i}")
        for i in range(20): a(f"v_add_f32 v{16+i}, v{R+i}, v{R+40+i}")
    rsum(0, False)
    a("s_barrier")
    stamp(a, 10, True)
    rsum(4, True)
    for i in range(10): a(f"v_cvt_pk_bf16_f32 v{40+i}, v{16+2*i}, v{16+2*i+1}")
    a("""
    buffer_store_dwordx4 v[40:43], v13, s[72:75], s22 offen
    buffer_store_dwordx4 v[44:47], v13, s[72:75], s22 offen offset:64
    buffer_store_dwordx2 v[48:49], v7, s[72:75], s22 offen offset:128
    """)
    a.c("workgroup 0 advances the epoch: every workgroup has read it by now")
    a(f"""
    s_or_b32 s21, s2, s6
    s_cmp_eq_u32 s21, 0
    s_cbranch_scc0 L_FIN
    s_mov_b32 s21, {FL_EPOCH}
    s_mov_b64 exec, 1
    buffer_store_dword v2, v3, s[28:31], s21 offen sc1
    L_FIN:
    """)
    if PROF: a("s_waitcnt vmcnt(0)")
    stamp(a, 11)
    a("L_FIN2:")
    stamp_flush(a)
    a("s_endpgm")
    a.c("side jobs at the end of some passes of the attention loop (s45 = their bit mask)")
    a(f"""
    L_EV:
    s_cmp_eq_u32 s44, 8
    s_cbranch_scc0 L_E0
    s_cmp_eq_u32 s13, 0
    s_cbranch_scc0 L_RL2
    s_barrier
    s_branch L_NEXT
    L_RL2:
    """)
    if not RLE:
        a(f"s_cmp_eq_u32 s6, {15 if opt('norl') else 5}\ns_cbranch_scc0 L_NEXT\ns_waitcnt vmcnt(0)")
        rl_stores()
        a("s_mov_b32 exec_hi, -1")
    a(f"""
    s_branch L_NEXT
    L_E0:
    s_cmp_eq_u32 s44, 6
    s_cbranch_scc0 L_E1
    s_lshl_b32 s56, s2, 2
    s_add_u32 s56, s56, s6
    s_lshl_b32 s56, s56, 2
    s_add_u32 s56, s56, {FL_W - 16}
    v_mov_b32 v{T3}, 0
    s_waitcnt vmcnt(0)
    """)
    flag_store(a, "s56", T2, T3)
    a.c("flags to see: lanes 0-31 the workgroups that re-lay this tile's Wo columns, lanes 32-63 the row group")
    a(f"""
    s_branch L_NEXT
    L_E1:
    s_sub_u32 s56, s44, s13
    s_cmp_eq_u32 s56, 4
    s_cbranch_scc0 L_E2
    v_lshl_add_u32 v{T2}, v{T0}, 3, s5
    v_and_b32 v{T3}, 14, v0
    v_lshlrev_b32 v{T3}, 4, v{T3}
    v_and_or_b32 v{T3}, v0, 1, v{T3}
    s_and_b32 s57, s2, 0x1e
    v_or_b32 v{T3}, s57, v{T3}
    v_cndmask_b32 v{T2}, v{T2}, v{T3}, s[38:39]
    v_lshlrev_b32 v{T2}, 4, v{T2}
    s_mov_b32 s57, {FL_W}
    buffer_load_dwordx4 {vr(PT,4)}, v{T2}, s[28:31], s57 offen sc1
    s_branch L_NEXT
    L_E2:
    """)
    poll(a, "L_PW", T2, "s57", 4, PT, sleep=8)
    if opt("touch"):
        a.c("touch this tile's lines of the output (address translation and L2 are warm when the final stores come)")
        srd(a, 72, 66, 67, 2048 * 1280)
        a(f"""
        s_lshl_b32 s56, s4, 1
        s_add_u32 s56, s56, s3
        s_mul_i32 s56, s56, {64*1280}
        s_mul_i32 s57, s5, 160
        s_add_u32 s56, s56, s57
        s_and_b32 s57, s6, 3
        s_mul_i32 s57, s57, 52
        s_add_u32 s56, s56, s57
        v_mul_u32_u24 v{T2}, 1280, v0
        buffer_load_dword v{PT}, v{T2}, s[72:75], s56 offen
        """)
    a.c("prefetch this wave's Wo fragments: [cb=hg][ct][f32 = 5w+st]")
    a(f"""
    s_mul_i32 s56, s5, {5*40960}
    s_mul_i32 s57, s6, 5120
    s_add_u32 s56, s56, s57
    s_add_u32 s56, s56, {WS_WO}
    v_lshlrev_b32 v{T2}, 4, v0
    v_add_u32 v{T3}, 4096, v{T2}
    """)
    for ct in range(5):
        for st in range(5):
            av = T2 if st < 4 else T3
            if not opt("nowo"): a(f"buffer_load_dwordx4 {vr(WO+(st*5+ct)*4,4)}, v{av}, s[28:31], s56 offen offset:{(st%4)*1024} sc1")
        if ct < 4: a("s_add_u32 s56, s56, 40960")
        if opt("spread") and ct < 4:
            SP = [5, 4, 3, 2, 2]
            if SP[ct + 1] != SP[ct]:
                a(f"s_branch L_NEXT\nL_W{ct+1}:\ns_cmp_eq_u32 s44, {SP[ct+1]}\ns_cbranch_scc0 {'L_W%d' % (ct+2) if ct < 2 else 'L_NEXT'}")
    a("s_branch L_NEXT")
    for tag, rt in tail:
        a(f"""
        L_RE{tag}{rt}:
        s_cmp_eq_u32 s60, 0
        s_cbranch_scc1 L_GO{tag}{rt}
        s_sub_u32 s60, s60, 1
        s_waitcnt vmcnt(0) lgkmcnt(0)
        s_sleep {optv("slp", 4)}
        """)
        for r2 in range(rt, REQ[tag][rt]): oload(r2)
        a(f"s_branch L_CH{tag}{rt}")
    a("L_BAD:")
    a.c("second (and last) pass: exact row max over all keys, then the same loop again")
    a(f"""
    s_cmp_eq_u32 s42, 0
    s_cbranch_scc1 L_OK
    s_mov_b32 s42, 0
    s_mov_b32 s45, 0
    s_mov_b32 s40, 0xffff0000
    s_mov_b32 s43, 64
    v_subrev_u32 v{AK1}, {KV_BYTES}, v{AK1}
    v_subrev_u32 v{AK2}, {KV_BYTES}, v{AK2}
    v_subrev_u32 v{AV}, {KV_BYTES}, v{AV}
    v_mov_b32 v{T2}, v{AK1}
    v_mov_b32 v{T3}, v{AK2}
    """)
    for j in range(2):
        a(f"v_mov_b32 v{Q2[j]+1}, 0\nv_mov_b32 v{M[j]}, 0xff800000")
    for i in range(32): a(f"v_mov_b32 v{O[0]+i}, 0")
    for i in range(16): a(f"v_mov_b32 v{S[3]+i}, 0")
    a("L_MAXL:")
    a(f"ds_read_b128 {vr(KF1[0],4)}, v{T2}\nds_read_b32 v{KF2[0]}, v{T3} offset:1024")
    a(f"v_add_u32 v{T2}, 2560, v{T2}\nv_add_u32 v{T3}, 2560, v{T3}\ns_waitcnt lgkmcnt(0)")
    for j in range(2): a(qk1(j, 0)); a(qk2(j, 0))
    a("s_nop 11")
    for j in range(2):
        for i in range(8):
            a(f"v_max3_f32 v{M[j]}, v{S[j]+2*i}, v{S[j]+2*i+1}, v{M[j]}")
    a("s_sub_u32 s43, s43, 1\ns_cmp_lg_u32 s43, 0\ns_cbranch_scc1 L_MAXL")
    for x in rdK(0, 0) + rdK(1, 2560) + rdV(1, 0): a(x)
    a.c("-m split exactly into three bf16 pieces that ride in the spare k-slots")
    for j in range(2):
        a(f"""
        v_mov_b32 v{T2}, v{M[j]}
        s_nop 1
        v_permlane32_swap_b32 v{M[j]}, v{T2}
        s_nop 1
        v_min_f32 v{M[j]}, -v{M[j]}, -v{T2}
        v_and_b32 v{T2}, s40, v{M[j]}
        v_sub_f32 v{T3}, v{M[j]}, v{T2}
        v_lshrrev_b32 v{T2}, 16, v{T2}
        v_and_or_b32 v{T2}, v{T3}, s40, v{T2}
        v_and_b32 v{M[j]}, s40, v{T3}
        v_sub_f32 v{T3}, v{T3}, v{M[j]}
        v_and_b32 v{T3}, s40, v{T3}
        v_cndmask_b32 v{Q2[j]+1}, v{T2}, v{T3}, s[38:39]
        """)
    a("s_waitcnt lgkmcnt(0)\ns_nop 0")
    a(qk1(0, 0)); a(qk2(0, 0))
    a("s_mov_b32 s44, 8\ns_setprio 1\ns_nop 9\ns_branch L_LOOP")
    a("L_END:\ns_endpgm")
    return f""".p2align 6
.amdhsa_kernel {N}
  .amdhsa_next_free_vgpr 256
  .amdhsa_next_free_sgpr 102
  .amdhsa_accum_offset 256
  .amdhsa_group_segment_fixed_size 0
  .amdhsa_kernarg_size 112
  .amdhsa_user_sgpr_count 2
  .amdhsa_user_sgpr_kernarg_segment_ptr 1
  .amdhsa_system_sgpr_workgroup_id_x 1
.end_amdhsa_kernel
"""

def main():
    ref = open(f"cdna_kernels/{NAME}.s.ref").read().split("\n")
    head = [l for l in ref if l.startswith(";") and "@launch" not in l]
    a = Asm()
    kd = gen(a)
    out = "\n".join(head) + "\n"
    out += "; @launch grid=(256,1,1) block=(512,1,1) lds=163840\n"
    out += """;
;  E  gate * O / l goes through d_ws (slots pre-marked as unwritten, every word verified on arrival),
"""
    out += '.amdgcn_target "amdgcn-amd-amdhsa--gfx950"\n.text\n'
    t = a.text()
    if opt("outsc1"): t = "\n".join(l + " sc1" if "buffer_store" in l and "s[72:75]" in l else l for l in t.split("\n"))
    if opt("outnt"): t = "\n".join(l + " nt" if "buffer_store" in l and "s[72:75]" in l else l for l in t.split("\n"))
    if opt("plainonly"): t = "\n".join(l.replace(" sc1", "") if "buffer_store" in l and "s26" in l else l for l in t.split("\n"))
    out += t
    out += '.section .rodata,"a"\n' + kd
    path = ARGS[0] if ARGS and not ARGS[0].startswith("--") else f"cdna_kernels/{NAME}.s"
    open(path, "w").write(out)
main()
```

```python
import math, struct, sys

NAME = "gated_mix__grouped_kv_mqa__grouped_kv_mqa__prompt"
ARGS = sys.argv[1:]
def opt(n): return ("--" + n) in ARGS
def optv(n, d):
    for x in ARGS:
        if x.startswith("--" + n + "="): return int(x.split("=")[1])
    return d

KV_BYTES = 163840
WS_KV   = 0
WS_G    = 2 * KV_BYTES
WS_O    = WS_G + 16384
O_BYTES = 128 * 40 * 1024
WS_WO   = WS_O + O_BYTES
WO_BYTES = 8 * 5 * 40 * 1024
WS_FL   = WS_WO + WO_BYTES
FL_EPOCH = WS_FL
FL_KV   = WS_FL + 256
FL_W    = FL_KV + 8192
WS_END  = FL_W + 4096

def f32bits(x):
    return struct.unpack("<I", struct.pack("<f", x))[0]
QSCALE = f32bits((20 ** -0.5) * math.log2(math.e))
LOG2E = f32bits(math.log2(math.e))

class Asm:
    def __init__(self): self.l = []
    def __call__(self, s):
        for line in s.split("\n"):
            line = line.strip()
            if line: self.l.append(("" if line.endswith(":") else "  ") + line)
    def c(self, s): self.l.append("  ; " + s)
    def text(self): return "\n".join(self.l) + "\n"

def vr(b, n=1): return f"v{b}" if n == 1 else f"v[{b}:{b+n-1}]"

def srd(a, d, lo, hi, nbytes):
    a(f"s_mov_b32 s{d}, s{lo}\ns_mov_b32 s{d+1}, s{hi}\ns_mov_b32 s{d+2}, {nbytes}\ns_mov_b32 s{d+3}, 0x00020000")
def srd_sel(a, d, lo0, lo1, nbytes):
    a(f"s_cselect_b32 s{d}, s{lo0}, s{lo1}\ns_cselect_b32 s{d+1}, s{lo0+1}, s{lo1+1}\ns_mov_b32 s{d+2}, {nbytes}\ns_mov_b32 s{d+3}, 0x00020000")

PROF = opt("prof")
PROF_BASE = 16 << 20
NST = 12
def stamp(a, i, wait=False):
    if PROF and not (opt("iters") and i >= 7) and not (opt("clk") and i >= 8):
        a(f"s_memrealtime s[{76+2*i}:{77+2*i}]")
        if opt("clk") and i < 4: a(f"s_memtime s[{92+2*i}:{93+2*i}]")
        if wait: a("s_waitcnt lgkmcnt(0)")
def stamp_flush(a):
    if not PROF: return
    a("s_waitcnt lgkmcnt(0)\ns_mov_b64 exec, 1")
    a(f"s_lshl_b32 s62, s2, 3\ns_add_u32 s62, s62, s6\ns_lshl_b32 s62, s62, 6\ns_add_u32 s62, s62, {PROF_BASE}")
    a("s_mov_b32 s30, 0x2000000\nv_mov_b32 v0, 0")
    for i in range(NST):
        a(f"v_mov_b32 v2, s{76+2*i}\nbuffer_store_dword v2, v0, s[28:31], s62 offen offset:{4*i}\ns_nop 1")

SPIN = 200000
def poll(a, lbl, addr_v, soff, width, tmp, mask=None, preloaded=True, sleep=1):
    ld = {1: "dword", 2: "dwordx2", 4: "dwordx4"}[width]
    a(f"s_mov_b32 s60, {SPIN}")
    if mask is not None: a(f"s_mov_b64 exec, {mask}")
    if preloaded: a(f"s_branch {lbl}_chk")
    a(f"{lbl}_ld:")
    a(f"buffer_load_{ld} {vr(tmp,width)}, v{addr_v}, s[28:31], {soff} offen sc1")
    a(f"{lbl}_chk:\ns_waitcnt vmcnt(0)")
    a(f"v_cmp_ne_u32 vcc, s34, v{tmp}")
    for i in range(1, width):
        a(f"v_cmp_ne_u32 s[58:59], s34, v{tmp+i}\ns_or_b64 vcc, vcc, s[58:59]")
    a(f"s_sub_u32 s60, s60, 1\ns_cbranch_scc1 {lbl}_ok")
    a(f"s_cmp_eq_u64 vcc, 0\ns_cbranch_scc1 {lbl}_ok\ns_sleep {sleep}\ns_branch {lbl}_ld\n{lbl}_ok:")
    if mask is not None: a("s_mov_b64 exec, -1")

def flag_store(a, soff, vtmp, vzero):
    a(f"v_mov_b32 v{vtmp}, s34\ns_mov_b64 exec, 1\nbuffer_store_dword v{vtmp}, v{vzero}, s[28:31], {soff} offen sc1\ns_mov_b64 exec, -1")
def mk_tag(a):
    a("s_mul_i32 s34, s34, 0x9e3779b1\ns_add_u32 s34, s34, 0x7f4a7c15")

def gen(a):
    N = NAME + "_kernel"
    STG = 22528; XB = 12288
    L_M = 0; L_G = 25600; RING = 27648
    L_X32 = RING + 4 * STG
    SLOT = {"A": RING, "B": RING + STG, "C": RING + 2 * STG, "D": RING + 3 * STG}
    SMAP = ["A", "B", "C", "D", "A", "B", "C", "D", "A", "B"]
    L_QX = SLOT["D"]
    NCH0 = 25
    Q1 = [4, 12]; Q2 = [8, 16]
    IDX, G = 10, 11
    T2, T3 = 20, 21
    M = [22, 23]
    KF1 = [24, 32]; KF2 = [28, 36]
    OA, IMG, T0, T1 = 30, 31, 38, 39
    VF = [40, 48]
    O = [56, 72]
    S = [88, 104, 120, 136]
    AK1, AK2, AV, AQ1, AQ2 = 88, 89, 90, 91, 92
    WO = 152; PT = 252

    def att_init():
        a.c("attention constants and accumulators; s12 = rt32, s13 = hp, s26 + v30 = O address")
        a(f"""
        s_and_b32 s15, s6, 3
        s_lshl_b32 s13, s4, 2
        s_add_u32 s12, s15, s13
        s_lshr_b32 s13, s6, 2
        s_mul_i32 s15, s15, 5120
        s_mul_i32 s14, s13, 2560
        s_add_u32 s15, s15, s14
        s_add_u32 s15, s15, {L_QX}
        v_and_b32 v{T0}, 31, v0
        v_lshrrev_b32 v{T1}, 5, v0
        v_lshlrev_b32 v{AK2}, 3, v{T0}
        v_lshl_add_u32 v{AK2}, v{T1}, 2, v{AK2}
        v_add_u32 v{AQ1}, s15, v3
        v_add_u32 v{AQ2}, s15, v{AK2}
        v_mul_u32_u24 v{AV}, 20, v{T1}
        v_add_lshl_u32 v{AV}, v{AV}, v{T0}, 4
        s_mul_i32 s26, s12, 81920
        s_lshl_b32 s14, s13, 1
        s_add_u32 s14, s14, s3
        s_lshl_b32 s14, s14, 3
        s_add_u32 s14, s14, s5
        s_mul_i32 s14, s14, 1280
        s_add_u32 s26, s26, s14
        s_add_u32 s26, s26, {WS_O}
        v_lshrrev_b32 v{OA}, 4, v{T0}
        v_mul_u32_u24 v{OA}, 40960, v{OA}
        v_lshl_add_u32 v{OA}, v{T1}, 8, v{OA}
        v_and_b32 v{AK1}, 15, v0
        v_lshl_add_u32 v{OA}, v{AK1}, 4, v{OA}
        s_mul_i32 s14, s3, {KV_BYTES}
        v_add_u32 v{IMG}, s14, v3
        s_lshl_b32 s14, s3, 6
        s_add_u32 s14, s14, s12
        s_lshl_b32 s14, s14, 7
        s_add_u32 s14, s14, {WS_G}
        """)
        for b in range(2):
            a(f"v_mov_b32 v{KF2[b]+1}, 0x3f803f80")
            for i in range(8): a(f"v_mov_b32 v{VF[b]+i}, 0")
        a("s_mov_b32 exec_lo, 0x01100000\ns_mov_b32 exec_hi, 0x01100000")
        for b in range(2):
            for i in range(8): a(f"v_mov_b32 v{VF[b]+i}, 0x3f803f80")
        a("s_mov_b64 exec, -1")
        for i in range(32): a(f"v_mov_b32 v{O[0]+i}, 0")
        for i in range(16): a(f"v_mov_b32 v{S[3]+i}, 0")

    a(f".globl {N}\n.p2align 8\n.type {N},@function\n{N}:")
    if opt("probe0"): a("s_memrealtime s[90:91]")
    a("s_cmp_ge_u32 s2, 256\ns_cbranch_scc1 L_END")
    a("""
    s_load_dwordx8 s[8:15], s[0:1], 0
    s_load_dwordx8 s[16:23], s[0:1], 48
    s_load_dwordx2 s[24:25], s[0:1], 104
    s_load_dwordx4 s[64:67], s[0:1], 80
    s_load_dwordx2 s[68:69], s[0:1], 32
    """)
    if not opt("nocpf"):
        a.c("bring this kernel's own code into L2 ahead of the instruction fetch: 2 KB per workgroup, 16 workgroups of an XCD round cover it")
        a(f"""
        s_getpc_b64 s[56:57]
        L_PCREF:
        s_lshl_b32 s58, s2, 8
        s_and_b32 s58, s58, 0x7800
        v_lshl_add_u32 v94, v0, 2, s58
        v_min_u32 v94, L_END-L_PCREF, v94
        v_mov_b32 v95, s57
        v_add_co_u32 v94, vcc, s56, v94
        s_nop 1
        v_addc_co_u32 v95, vcc, 0, v95, vcc
        global_load_dword v93, v[94:95], off
        """)
    stamp(a, 0)
    a.c("s3 = branch, s4 = rb (128-row block), s5 = hg (head group), s6 = wave, s33 = k-chunk rotation (0,3,5,8), s70 = 32-row tile of the K/V job, s71 = 0: K and gate, 1: V")
    a("""
    v_lshrrev_b32 v1, 6, v0
    v_and_b32 v0, 63, v0
    s_and_b32 s3, s2, 1
    v_readfirstlane_b32 s6, v1
    s_lshr_b32 s4, s2, 1
    s_and_b32 s4, s4, 3
    s_lshl_b32 s4, s4, 2
    s_lshr_b32 s33, s2, 3
    s_and_b32 s33, s33, 3
    s_add_u32 s4, s4, s33
    s_lshr_b32 s5, s2, 5
    v_lshlrev_b32 v3, 4, v0
    v_lshrrev_b32 v5, 3, v0
    v_and_b32 v6, 7, v0
    v_xor_b32 v6, v6, v5
    v_lshlrev_b32 v6, 4, v6
    v_mul_u32_u24 v2, 1280, v5
    v_add_u32 v2, v2, v6
    v_mov_b32 v4, 0
    s_lshl_b32 s48, s4, 7
    s_lshl_b32 s50, s6, 10
    s_lshr_b32 s70, s5, 1
    s_and_b32 s71, s5, 1
    s_lshl_b32 s54, s70, 2
    s_add_u32 s54, s54, s33
    s_mul_i32 s33, s33, 5
    s_add_u32 s33, s33, 1
    s_lshr_b32 s33, s33, 1
    s_cmp_ge_u32 s6, 4
    s_cbranch_scc1 L_LOADER
    """)
    a(f"""
    s_lshl_b32 s49, s70, 2
    s_add_u32 s49, s49, s6
    s_lshl_b32 s49, s49, 3
    s_add_u32 s49, s48, s49
    s_mul_i32 s49, s49, 1280
    s_mul_i32 s53, s71, 640
    s_add_u32 s51, s49, s53
    s_sub_u32 s49, s49, s53
    s_mul_i32 s53, s71, 20480
    s_add_u32 s55, s50, s53
    s_sub_u32 s56, s50, s53
    s_and_b32 s52, s6, 1
    s_lshl_b32 s54, s54, 1
    s_add_u32 s54, s54, s52
    s_lshl_b32 s54, s54, 10
    s_waitcnt lgkmcnt(0)
    """)
    srd(a, 36, 8, 9, 2048 * 1280)
    a.c("the K/V job's 32 rows of x, all of k (they also serve the Q projection); 2 KB of wk / wv as L2 warm-up; gate")
    for j in range(10):
        sl, ss = ("s55", "s51") if j < 5 else ("s56", "s49")
        a(f"s_add_u32 m0, {sl}, {L_X32 + 4096*j}\ns_add_u32 s53, {ss}, {128*j}\nbuffer_load_dwordx4 v2, s[36:39], s53 offen lds")
        if j == 9 and opt("probe0"): stamp(a, 9)
        if j == 0:
            if opt("probe0"): stamp(a, 8)
            srd(a, 28, 24, 25, WS_END)
            a("""
            s_cmp_eq_u32 s71, 0
            s_cselect_b32 s12, s12, s14
            s_cselect_b32 s13, s13, s15
            s_cselect_b32 s18, s18, s20
            s_cselect_b32 s19, s19, s21
            s_cmp_eq_u32 s3, 0
            """)
            srd_sel(a, 40, 12, 18, 25600)
            srd(a, 72, 64, 65, 1280)
            a(f"""
            s_cmp_lt_u32 s6, 2
            s_cbranch_scc0 L_LA2
            buffer_load_dwordx4 v[96:99], v3, s[40:43], s54 offen
            s_branch L_LA3
            L_LA2:
            s_lshl_b32 s53, s52, 10
            s_add_u32 m0, s53, {L_G}
            s_nop 0
            buffer_load_dwordx4 v3, s[72:75], s53 offen lds
            L_LA3:
            """)
    a(f"s_mov_b32 s53, {FL_EPOCH}\nbuffer_load_dword v9, v4, s[28:31], s53 offen sc1")
    a.c("wk or wv: KB w+4j, then 256 B each of the last KB")
    for j in range(6):
        a(f"s_add_u32 m0, s50, {L_M + 4096*j}\ns_add_u32 s53, s50, {4096*j}\nbuffer_load_dwordx4 v3, s[40:43], s53 offen lds")
    a(f"s_lshl_b32 s53, s6, 8\ns_add_u32 s53, s53, {24*1024}\ns_mov_b64 exec, 0xffff\ns_add_u32 m0, s53, {L_M}\ns_nop 0\nbuffer_load_dwordx4 v3, s[40:43], s53 offen lds\ns_mov_b64 exec, -1")
    att_init()
    FS = [152, 180, 100]; ACC = 208
    KVR = [152, 164, 176, 188, 200, 212]
    AX = 248; AWR = [250, 251]
    a.c("K/V job: wave = (16-row tile w&1, columns 0-15 / 16-19 by w>>1)")
    a(f"""
    v_and_b32 v5, 15, v0
    v_lshrrev_b32 v6, 4, v0
    v_and_b32 v7, 7, v0
    v_xor_b32 v7, v7, v6
    v_lshlrev_b32 v7, 4, v7
    v_lshl_add_u32 v10, v5, 7, v7
    s_lshl_b32 s53, s52, 11
    s_add_u32 s53, s53, {L_X32}
    v_add_u32 v14, s53, v10
    v_xor_b32 v15, 64, v14
    v_bfe_u32 v7, v0, 2, 2
    v_lshl_add_u32 v7, v6, 3, v7
    v_mul_u32_u24 v18, 40, v7
    v_and_b32 v8, 3, v0
    v_lshlrev_b32 v8, 3, v8
    s_cmp_lt_u32 s6, 2
    s_cselect_b32 s56, -1, 0
    s_cselect_b32 s57, 0, 32
    v_and_b32 v8, s56, v8
    v_add3_u32 v18, v18, v8, s57
    v_lshlrev_b32 v19, 4, v6
    v_add_u32 v19, {L_G}, v19
    v_lshrrev_b32 v7, 1, v6
    v_lshlrev_b32 v7, 4, v7
    v_and_b32 v8, 1, v6
    v_lshl_add_u32 v7, v8, 2, v7
    v_bfe_u32 v8, v0, 2, 2
    v_add_u32 v7, v7, v8
    v_mul_u32_u24 v7, 160, v7
    v_and_b32 v8, 3, v0
    v_mul_u32_u24 v8, 40, v8
    v_add_u32 v7, v7, v8
    v_add_u32 v{AWR[0]}, {SLOT["A"] + XB}, v7
    v_add_u32 v{AWR[1]}, {SLOT["C"] + XB}, v7
    s_cmp_gt_u32 s6, s70
    s_cselect_b32 s62, 1, 0
    s_sub_u32 s62, s6, s62
    s_lshl_b32 s62, s62, 12
    """)
    a.c("store address v12 + s58, lanes s[60:61], scale s27; gate -> v13 + s59, s63 = -+log2e")
    a(f"""
    s_lshl_b32 s58, s4, 2
    s_add_u32 s58, s58, s70
    s_lshl_b32 s59, s58, 1
    s_mul_i32 s58, s58, 2560
    s_mul_i32 s60, s3, {KV_BYTES}
    s_add_u32 s58, s58, s60
    s_add_u32 s59, s59, s52
    s_lshl_b32 s60, s3, 7
    s_add_u32 s59, s59, s60
    s_lshl_b32 s59, s59, 6
    s_add_u32 s59, s59, {WS_G}
    v_lshlrev_b32 v13, 2, v5
    s_lshl_b32 s63, s3, 31
    s_xor_b32 s63, s63, {LOG2E | 0x80000000}
    v_lshrrev_b32 v7, 1, v6
    v_and_b32 v8, 1, v6
    s_mov_b32 s27, {QSCALE}
    s_mov_b64 s[60:61], -1
    s_cmp_eq_u32 s71, 0
    s_cbranch_scc0 L_AD2
    s_cmp_lt_u32 s6, 2
    s_cbranch_scc0 L_AD1
    s_lshl_b32 s53, s52, 8
    s_add_u32 s58, s58, s53
    v_lshlrev_b32 v12, 9, v7
    v_lshl_add_u32 v12, v5, 4, v12
    v_lshl_add_u32 v12, v8, 3, v12
    s_branch L_AD4
    L_AD1:
    s_lshl_b32 s53, s52, 7
    s_add_u32 s58, s58, s53
    s_add_u32 s58, s58, 1024
    v_lshlrev_b32 v12, 3, v5
    s_mov_b64 s[60:61], 0xffff
    s_branch L_AD4
    L_AD2:
    s_mul_i32 s53, s52, 640
    s_add_u32 s58, s58, s53
    s_add_u32 s58, s58, 1280
    v_mul_u32_u24 v12, 320, v7
    v_lshl_add_u32 v12, v5, 4, v12
    v_lshl_add_u32 v12, v8, 3, v12
    s_mov_b32 s27, 1.0
    s_cmp_lt_u32 s6, 2
    s_cbranch_scc1 L_AD4
    s_add_u32 s58, s58, 256
    s_mov_b32 s60, 0x000f000f
    s_mov_b32 s61, 0x000f000f
    L_AD4:
    """)
    def kv_loop(kind):
        per = 4 if kind == "G" else 3
        nb = 3 if kind == "G" else 5
        ring = nb + 1
        def rd(k):
            f = KVR[k % ring]
            r = [f"ds_read_b128 {vr(f,4)}, v{14 + (k & 1)} offset:{(k >> 1) * 4096}"]
            for hf in range(2):
                r.append(f"ds_read_b64_tr_b16 {vr(f+4+2*hf,2)}, v18 offset:{(32*k + 4*hf)*40}")
            if kind == "G": r.append(f"ds_read_b128 {vr(f+8,4)}, v19 offset:{64*k}")
            return r
        def mm(k):
            f = KVR[k % ring]
            c1 = "0" if k == 0 else "v[20:23]"; c2 = "0" if k == 0 else "v[24:27]"
            if kind == "V": r = [f"v_mfma_f32_16x16x32_bf16 v[20:23], {vr(f,4)}, {vr(f+4,4)}, {c1}"]
            else: r = [f"v_mfma_f32_16x16x32_bf16 v[20:23], {vr(f+4,4)}, {vr(f,4)}, {c1}"]
            if kind == "G": r.append(f"v_mfma_f32_16x16x32_bf16 v[24:27], {vr(f+8,4)}, {vr(f,4)}, {c2}")
            return r
        for k in range(nb):
            for x in rd(k): a(x)
        for k in range(20):
            ahead = min(k + nb, 20) - (k + 1)
            a(f"s_waitcnt lgkmcnt({ahead * per})")
            for x in mm(k): a(x)
            if k + nb < 20:
                for x in rd(k + nb): a(x)
    def xaddr(s):
        return [f"s_add_u32 s55, s33, {s}", "s_cmp_ge_u32 s55, 10", "s_cselect_b32 s56, 10, 0", "s_sub_u32 s55, s55, s56",
                "s_lshl_b32 s55, s55, 12", f"s_add_u32 s55, s55, {L_X32}", f"s_add_u32 s56, s62, {SLOT[SMAP[s]]}",
                "s_cmp_eq_u32 s6, s70", "s_cselect_b32 s55, s55, s56", f"v_add_u32 v{AX}, s55, v10", f"v_xor_b32 v{AX+1}, 64, v{AX}"]
    def reads(i):
        s, ks = i // 2, i % 2
        hi = SMAP[s] in "CD"; base = STG if SMAP[s] in "BD" else 0
        f = FS[i % 3]
        r = [f"ds_read_b128 {vr(f+4*rt,4)}, v{AX+ks} offset:{rt*2048}" for rt in range(2)]
        for ct in range(5):
            for hf in range(2):
                r.append(f"ds_read_b64_tr_b16 {vr(f+8+4*ct+2*hf,2)}, v{AWR[hi]} offset:{base + (32*ks + 8*hf)*160 + 8*ct}")
        return r
    def mf(i, ct):
        f = FS[i % 3]
        return [f"v_mfma_f32_16x16x32_bf16 {vr(ACC+(rt*5+ct)*4,4)}, {vr(f+8+4*ct,4)}, {vr(f+4*rt,4)}, {'0' if i == 0 else vr(ACC+(rt*5+ct)*4,4)}" for rt in range(2)]
    def stage(s):
        for ks in range(2):
            r = reads(2 * s + ks)
            if ks == 1: a("s_waitcnt lgkmcnt(3)")
            if s < 1:
                for x in r: a(x)
                continue
            m = [x for ct in range(5) for x in mf(2 * s - 2 + ks, ct)]
            for k in range(10):
                if not opt("nomfmaB"): a(m[k])
                if k < 6: a(r[2*k]); a(r[2*k+1])
                elif ks == 1 and s < 9:
                    for x in xaddr(s + 1)[3*(k-6):3*(k-5)]: a(x)
        if s == 0:
            for x in xaddr(1): a(x)
        a("s_waitcnt lgkmcnt(12)" if s == 9 else "s_waitcnt lgkmcnt(0)")
    PUB = optv("pub", 2)
    nb_ = [0]
    def cbar():
        i = nb_[0]; nb_[0] += 1
        if i == PUB: a("s_waitcnt vmcnt(0)")
        if not (opt("freerun") and 2 <= i <= 7): a("s_barrier")
        if opt("probeB"):
            stamp(a, 1 + i, True)
            if i == 10 or (opt("probe0") and i == 0): a("s_branch L_FIN2")
        if i == PUB:
            a.c("publish this workgroup's K/V slice (wave 0, one lane)")
            a(f"""
            s_cmp_eq_u32 s6, 0
            s_cbranch_scc0 L_NOPUB
            s_bfe_u32 s56, s2, 0x50001
            s_lshl_b32 s56, s56, 7
            s_lshl_b32 s57, s3, 12
            s_add_u32 s56, s56, s57
            s_lshr_b32 s57, s2, 6
            s_lshl_b32 s57, s57, 2
            s_add_u32 s56, s56, s57
            s_add_u32 s56, s56, {FL_KV}
            """)
            flag_store(a, "s56", 7, 4)
            a("L_NOPUB:")
    a("s_waitcnt vmcnt(0)")
    cbar()
    if not opt("probeB"): stamp(a, 1, True)
    a("v_readfirstlane_b32 s34, v9")
    a("s_cmp_eq_u32 s71, 1\ns_cbranch_scc1 L_KV_V\ns_cmp_ge_u32 s6, 2\ns_cbranch_scc1 L_KV_G")
    kv_loop("K")
    a("s_branch L_KV_E\nL_KV_G:")
    kv_loop("G")
    a("""
    s_nop 7
    v_mul_f32 v24, s63, v24
    v_exp_f32 v24, v24
    s_nop 0
    v_add_f32 v24, 1.0, v24
    v_rcp_f32 v24, v24
    s_mov_b64 exec, 0xffff
    buffer_store_dword v24, v13, s[28:31], s59 offen sc1
    s_mov_b64 exec, -1
    s_branch L_KV_E
    L_KV_V:
    """)
    kv_loop("V")
    a("L_KV_E:")
    for x in xaddr(0): a(x)
    a.c("the softmax scale rides on K")
    a("""
    v_mul_f32 v20, s27, v20
    v_mul_f32 v21, s27, v21
    v_mul_f32 v22, s27, v22
    v_mul_f32 v23, s27, v23
    v_cvt_pk_bf16_f32 v16, v20, v21
    v_cvt_pk_bf16_f32 v17, v22, v23
    s_mov_b64 exec, s[60:61]
    buffer_store_dwordx2 v[16:17], v12, s[28:31], s58 offen sc1
    s_mov_b64 exec, -1
    """)
    mk_tag(a)
    a(f"""
    s_mul_i32 s7, s6, 5120
    s_add_u32 s7, s7, {L_QX}
    v_mul_u32_u24 v12, 1280, v6
    v_add_u32 v12, s7, v12
    v_lshl_add_u32 v13, v5, 3, v12
    v_lshl_add_u32 v12, v5, 4, v12
    """)
    if not opt("probeB"): stamp(a, 2, True)
    for s in range(10):
        cbar(); stage(s)
    for rt in range(2):
        for ct in range(5): a(mf(18, ct)[rt])
    a("s_waitcnt lgkmcnt(0)")
    a.c("last k-step; finished tiles are packed and written to LDS [w][head rg][1280] behind it")
    def pack(k):
        rt, ct = k // 5, k % 5; P = 100 + 12 * rt
        r = [f"v_cvt_pk_bf16_f32 v{P+2*ct+i}, v{ACC+4*k+2*i}, v{ACC+4*k+2*i+1}" for i in range(2)]
        if ct == 1: r.append(f"ds_write_b128 v12, {vr(P,4)} offset:{rt*256}")
        if ct == 3: r.append(f"ds_write_b128 v12, {vr(P+4,4)} offset:{512+rt*256}")
        if ct == 4: r.append(f"ds_write_b64 v13, {vr(P+8,2)} offset:{1024+rt*128}")
        return r
    for k in range(10):
        a(mf(19, k % 5)[k // 5])
        if k == 5: a("s_nop 2")
        if k >= 5:
            for x in pack(k - 5): a(x)
    stamp(a, 3)
    for k in range(5, 10):
        for x in pack(k): a(x)
    a("s_branch L_ATT")

    a("L_LOADER:")
    a.c("Wq DMA source offsets for 3 instrs: q=64i+l, p=q/10, c=q%10, src row = swap bits 2,3 of p")
    for i in range(3):
        a(f"""
        v_add_u32 v5, {64*i}, v0
        v_mul_u32_u24 v6, 6554, v5
        v_lshrrev_b32 v6, 16, v6
        v_mul_u32_u24 v7, 10, v6
        v_sub_u32 v7, v5, v7
        v_and_b32 v5, 0x13, v6
        v_and_b32 v8, 4, v6
        v_lshl_or_b32 v5, v8, 1, v5
        v_and_b32 v8, 8, v6
        v_lshrrev_b32 v8, 1, v8
        v_or_b32 v5, v5, v8
        v_mul_u32_u24 v5, 1280, v5
        v_lshl_add_u32 v{10+i}, v7, 4, v5
        """)
    a.c("x row groups 3lw+i of the 12 that are not resident -> s40..s42")
    a(f"""
    s_sub_u32 s7, s6, 4
    s_mul_i32 s49, s5, 160
    s_mul_i32 s54, s7, {16*1280}
    s_add_u32 s49, s49, s54
    s_mul_i32 s54, s7, 3072
    s_mul_i32 s51, s7, 2560
    s_add_u32 s51, s51, {XB}
    s_lshl_b32 s50, s7, 10
    s_lshl_b32 s53, s70, 2
    """)
    for i in range(3):
        a(f"""
        s_mul_i32 s55, s7, 3
        s_add_u32 s55, s55, {i}
        s_cmp_ge_u32 s55, s53
        s_cselect_b32 s56, 4, 0
        s_add_u32 s55, s55, s56
        s_lshl_b32 s55, s55, 3
        s_add_u32 s55, s55, s48
        s_mul_i32 s{40+i}, s55, 1280
        """)
    a("s_waitcnt lgkmcnt(0)\ns_cmp_eq_u32 s3, 0")
    srd_sel(a, 72, 10, 16, 640 * 1280)
    Q_ = []
    def kchunk(s):
        return f"s_add_u32 s55, s33, {s}\ns_cmp_ge_u32 s55, 10\ns_cselect_b32 s56, 10, 0\ns_sub_u32 s55, s55, s56\n"
    def items_x(s):
        r = []
        for i in range(3):
            t = (kchunk(s) + "s_lshl_b32 s55, s55, 7\n") if i == 0 else ""
            t += f"s_add_u32 m0, s54, {SLOT[SMAP[s]] + 1024*i}\ns_add_u32 s56, s55, s{40+i}\nbuffer_load_dwordx4 v2, s[36:39], s56 offen lds"
            r.append((f"X{s}", t))
        return r
    def items_w(s):
        r = []
        for i in range(3):
            t = (kchunk(s) + f"s_mul_i32 s55, s55, {64*1280}\ns_add_u32 s55, s55, s49\n") if i == 0 else ""
            t += f"s_add_u32 m0, s51, {SLOT[SMAP[s]] + 1024*i}\n" + ("s_mov_b32 exec_hi, 0\n" if i == 2 else "s_nop 0\n")
            t += f"buffer_load_dwordx4 v{10+i}, s[72:75], s55 offen lds" + ("\ns_mov_b32 exec_hi, -1" if i == 2 else "")
            r.append((f"W{s}", t))
        return r
    def emit(items):
        for n, t in items:
            a(t); Q_.append(n)
    def younger(name):
        i = max(k for k, n in enumerate(Q_) if n == name)
        return len(Q_) - 1 - i
    lb_ = [0]
    def lbar(name):
        i = lb_[0]; lb_[0] += 1
        if opt("probeB"): stamp(a, 1 + i)
        if opt("freerun") and 2 <= i <= 7: return
        a(f"s_waitcnt vmcnt({younger(name)})\ns_barrier")
    srd(a, 36, 8, 9, 2048 * 1280)
    srd(a, 28, 24, 25, WS_END)
    NW0 = optv("nw0", 0)
    w012 = items_w(0) + items_w(1) + items_w(2)
    emit(w012[:NW0])
    att_init()
    RL = 152; RA = RL + 64; RS = RA + 12
    a.c("wo re-layout job (wave 5): cb = wg&7, head pair wg>>3, piece u = l/10, octet = l%10 (50 lanes); rows (u<4) 20(u>>1)+4(u&1)+{0..3,8..11}, (u=4) 16+{0..3,20..23}")
    for i in [2, 3, 12, 13]: a(f"v_mov_b32 v{RA+i}, 0")
    a("s_cmp_eq_u32 s6, 5\ns_cbranch_scc0 L_NORL")
    t = RL + 32
    U = RA + 11
    a(f"""
    s_lshr_b32 s56, s2, 3
    s_and_b32 s35, s56, 7
    s_lshl_b32 s35, s35, 1
    s_lshr_b32 s57, s2, 7
    s_add_u32 s35, s35, s57
    s_mul_i32 s35, s35, {40*1280}
    s_mul_i32 s56, s56, 5
    s_and_b32 s57, s2, 7
    s_mul_i32 s32, s57, 160
    s_add_u32 s32, s32, s35
    v_mul_u32_u24 v{U}, 6554, v0
    v_lshrrev_b32 v{U}, 16, v{U}
    v_mul_u32_u24 v{RA}, 10, v{U}
    v_sub_u32 v{RA}, v0, v{RA}
    v_lshrrev_b32 v{t}, 1, v{U}
    v_mul_u32_u24 v{t}, 20, v{t}
    v_and_b32 v{t+1}, 1, v{U}
    v_lshl_add_u32 v{t}, v{t+1}, 2, v{t}
    v_cmp_eq_u32 vcc, 4, v{U}
    v_mov_b32 v{t+1}, 8
    s_nop 0
    v_cndmask_b32 v{t}, v{t}, 16, vcc
    v_cndmask_b32 v{t+1}, v{t+1}, 20, vcc
    v_add_u32 v{t+1}, v{t}, v{t+1}
    v_mul_u32_u24 v{t}, 1280, v{t}
    v_mul_u32_u24 v{t+1}, 1280, v{t+1}
    v_lshl_add_u32 v{RS}, v{RA}, 4, v{t}
    v_lshl_add_u32 v{RS+1}, v{RA}, 4, v{t+1}
    """)
    a.c("destination of the two 4-column chunks: octet o<8: ct = 2(o>>2)+z, rg = o&3 ; o>=8: ct = 4, rg = 2(o&1)+z")
    a(f"""
    v_cmp_lt_u32 vcc, 7, v{RA}
    v_lshrrev_b32 v{t}, 2, v{RA}
    v_mul_u32_u24 v{t}, 81920, v{t}
    v_lshl_add_u32 v{t}, v{U}, 8, v{t}
    v_and_b32 v{t+1}, 3, v{RA}
    v_lshlrev_b32 v{t+2}, 1, v{t+1}
    v_cndmask_b32 v{t+1}, v{t+1}, v{t+2}, vcc
    v_lshl_add_u32 v{RA+2}, v{t+1}, 6, v{t}
    v_mov_b32 v{t+1}, 40960
    v_cndmask_b32 v{t+1}, v{t+1}, 64, vcc
    v_add_u32 v{RA+3}, v{RA+2}, v{t+1}
    """)
    a(f"""
    s_mul_i32 s35, s57, {5*40960}
    s_lshl_b32 s56, s56, 8
    s_add_u32 s35, s35, s56
    s_add_u32 s35, s35, {WS_WO}
    L_NORL:
    v_lshlrev_b32 v13, 7, v{T0}
    s_lshl_b32 s57, s3, 12
    s_add_u32 s57, s57, {FL_KV}
    """)
    NWB = optv("nwb", 6)
    if opt("probe0"): stamp(a, 8)
    emit(w012[NW0:NWB])
    a(f"s_mov_b32 s53, {FL_EPOCH}\nbuffer_load_dword v9, v4, s[28:31], s53 offen sc1")
    stamp(a, 1)
    lb_[0] += 1
    a("s_barrier")
    if opt("probe0"): a("s_branch L_FIN2")
    rest = []
    for s in range(3, 10): rest += items_w(s) + items_x(s)
    PRE = optv("pre", 0)
    emit(w012[NWB:] + items_x(0) + items_x(1) + items_x(2) + rest[:PRE]); rest = rest[PRE:]
    PER = [int(c) for c in str(optv("per", 166666660))[1:]]
    for r in range(8):
        lbar(f"X{r}")
        if r == 0:
            a("v_readfirstlane_b32 s34, v9")
            if not opt("probeB"): stamp(a, 2)
        if r == 1: mk_tag(a)
        chunk = rest[:PER[r]]; rest = rest[PER[r]:]
        for nme, _ in chunk:
            s = int(nme[1:]); prev = [p for p in range(s) if SMAP[p] == SMAP[s]]
            if prev: assert r >= prev[-1] + 1, (nme, r)
            assert r < s
        emit(chunk)
        if r == optv("pr", 4):
            emit([("PL", "s_cmp_eq_u32 s6, 4\ns_cselect_b32 exec_lo, -1, 1\ns_mov_b32 exec_hi, 0\nbuffer_load_dwordx4 v[16:19], v13, s[28:31], s57 offen sc1\ns_mov_b64 exec, -1")])
    assert not rest
    a.c("wave 4: one look at the K/V flags; if complete, fetch the first tiles of the image early")
    def img(r): a(f"s_mov_b32 m0, {1024*r}\ns_mov_b32 s20, {1024*r}\nbuffer_load_dwordx4 v{IMG}, s[28:31], s20 offen sc1 lds")
    NE = optv("ne", 25)
    a(f"""
    s_cmp_eq_u32 s6, 4
    s_cbranch_scc0 L_N4
    s_mov_b32 exec_hi, 0
    s_waitcnt vmcnt({younger("PL")})
    v_cmp_ne_u32 vcc, s34, v16
    v_cmp_ne_u32 s[58:59], s34, v17
    s_or_b64 vcc, vcc, s[58:59]
    v_cmp_ne_u32 s[58:59], s34, v18
    s_or_b64 vcc, vcc, s[58:59]
    v_cmp_ne_u32 s[58:59], s34, v19
    s_or_b64 vcc, vcc, s[58:59]
    s_mov_b32 exec_hi, -1
    s_cmp_eq_u64 vcc, 0
    s_cbranch_scc1 L_EARLY
    s_waitcnt vmcnt({younger("X8")})
    s_barrier
    s_waitcnt vmcnt(0)
    s_barrier
    s_mov_b32 s20, -1
    s_mov_b32 s21, 0
    """)
    if opt("probeB"): a("s_branch L_FIN2")
    stamp(a, 3)
    poll(a, "L_PKV", 13, "s57", 4, 16, mask="s[20:21]", preloaded=False)
    stamp(a, 4)
    for r in range(NE): img(r)
    a("s_branch L_LATE\nL_EARLY:")
    NE0 = optv("ne0", 10)
    for r in range(NE0): img(r)
    a(f"s_waitcnt vmcnt({younger('X8') + NE0})\ns_barrier")
    for r in range(NE0, NE): img(r)
    a(f"s_waitcnt vmcnt({NE})\ns_barrier")
    if opt("probeB"): a("s_branch L_FIN2")
    stamp(a, 3); stamp(a, 4)
    a("L_LATE:")
    NX = 0
    for r in range(NE, NCH0): img(r)
    a(f"s_waitcnt vmcnt({NCH0 - 5})\ns_branch L_ATT\nL_N4:")
    lbar("X8")
    lbar("X9")
    if opt("probeB"): a("s_branch L_FIN2")
    stamp(a, 3)

    pAK1, pAK2, pAV = AK1, AK2, AV
    AK1, AK2, AV = 3, 2, 1
    def rdK(b, off):
        return [f"ds_read_b128 {vr(KF1[b],4)}, v{AK1} offset:{off}", f"ds_read_b32 v{KF2[b]}, v{AK2} offset:{off+1024}"]
    def rdV(b, off):
        return ["s_mov_b64 exec, s[36:37]",
                f"ds_read_b128 {vr(VF[b],4)}, v{AV} offset:{off+1280}", f"ds_read_b128 {vr(VF[b]+4,4)}, v{AV} offset:{off+1920}",
                "s_mov_b64 exec, -1"]
    def qk1(u, kb): return f"v_mfma_f32_32x32x16_bf16 {vr(S[u%4],16)}, {vr(KF1[kb],4)}, {vr(Q1[u%2],4)}, 0"
    def qk2(u, kb): return f"v_mfma_f32_32x32x8_bf16 {vr(S[u%4],16)}, {vr(KF2[kb],2)}, {vr(Q2[u%2],2)}, {vr(S[u%4],16)}"
    def pv(u, vb, i): return f"v_smfmac_f32_32x32x32_bf16 {vr(O[u%2],16)}, {vr(VF[vb]+4*i,4)}, {vr(S[u%4]+8*i,8)}, v{IDX}"
    a("L_ATT:")
    a(f"""
    v_mov_b32 v{AK2}, v{pAK2}
    v_mov_b32 v{AV}, v{pAV}
    v_mov_b32 v{IDX}, 0xdddddddd
    v_mov_b32 v{Q2[0]+1}, 0
    v_mov_b32 v{Q2[1]+1}, 0
    v_lshlrev_b32 v{T2}, 2, v{T0}
    s_mov_b32 s36, 0x000fffff
    s_mov_b32 s37, 0x000fffff
    s_mov_b32 s38, 0
    s_mov_b32 s39, -1
    s_mov_b32 s42, 1
    s_mul_i32 s43, s13, {optv('nlh', 3)}
    s_cmp_eq_u32 s13, 0
    s_cselect_b32 s45, {(1 << 4) | (1 << 3)}, {(1 << 6) | (1 << 5) | (1 << 4)}
    s_or_b32 s45, s45, {1 << 8}
    s_mov_b32 s44, 8
    s_waitcnt lgkmcnt(0)
    s_barrier
    ds_read_b128 {vr(Q1[0],4)}, v{AQ1}
    ds_read_b32 v{Q2[0]}, v{AQ2} offset:1024
    ds_read_b128 {vr(Q1[1],4)}, v{AQ1} offset:1280
    ds_read_b32 v{Q2[1]}, v{AQ2} offset:2304
    """)
    for x in rdK(0, 0) + rdK(1, 2560) + rdV(1, 0): a(x)
    a(f"buffer_load_dword v{G}, v{T2}, s[28:31], s14 offen sc1")
    stamp(a, 5, True)
    a.c("stand-in for the row max: the max over the first 32 keys")
    a("s_waitcnt lgkmcnt(4)\ns_cmp_eq_u32 s13, 0\ns_cbranch_scc1 L_BQ2\ns_waitcnt vmcnt(1)\ns_barrier\nL_BQ2:")
    a(f"v_mfma_f32_32x32x16_bf16 {vr(S[2],16)}, {vr(KF1[0],4)}, {vr(Q1[0],4)}, 0")
    a(f"v_mfma_f32_32x32x8_bf16 {vr(S[0],16)}, {vr(KF2[0],2)}, {vr(Q2[0],2)}, {vr(S[2],16)}")
    a(f"v_mfma_f32_32x32x16_bf16 {vr(S[1],16)}, {vr(KF1[0],4)}, {vr(Q1[1],4)}, 0")
    a(f"v_mfma_f32_32x32x8_bf16 {vr(S[1],16)}, {vr(KF2[0],2)}, {vr(Q2[1],2)}, {vr(S[1],16)}")
    a("s_cbranch_scc0 L_BQ3\ns_setprio 2\ns_barrier\nL_BQ3:\ns_nop 8")
    for j in range(2):
        a(f"v_max3_f32 v{M[j]}, v{S[j]}, v{S[j]+1}, v{S[j]+2}\nv_max3_f32 v{T2+j}, v{S[j]+3}, v{S[j]+4}, v{S[j]+5}")
        if j == 1: a(f"v_mfma_f32_32x32x8_bf16 {vr(S[0],16)}, {vr(KF2[0],2)}, {vr(Q2[0],2)}, {vr(S[2],16)}")
        for i in range(6, 16, 4):
            a(f"v_max3_f32 v{M[j]}, v{S[j]+i}, v{S[j]+i+1}, v{M[j]}")
            if i + 2 < 16: a(f"v_max3_f32 v{T2+j}, v{S[j]+i+2}, v{S[j]+i+3}, v{T2+j}")
        a(f"""
        v_max_f32 v{M[j]}, v{M[j]}, v{T2+j}
        v_mov_b32 v{T2+j}, v{M[j]}
        s_nop 1
        v_permlane32_swap_b32 v{M[j]}, v{T2+j}
        s_nop 0
        v_min_f32 v{M[j]}, -v{M[j]}, -v{T2+j}
        v_lshrrev_b32 v{M[j]}, 16, v{M[j]}
        v_cndmask_b32 v{Q2[j]+1}, v{M[j]}, 0, s[38:39]
        """)
    a(f"""
    s_cmp_eq_u32 s13, 0
    s_cbranch_scc0 L_LAG0
    s_setprio 2
    s_waitcnt lgkmcnt(0)
    s_branch L_PR
    L_LAG0:
    """)
    a.c("waves 4-7: rest of the K/V image, side jobs, then S1 (waves 0-3 meet it after their first 8 tiles)")
    def rl_loads():
        a("s_bitcmp0_b32 s2, 6")
        srd_sel(a, 72, 68, 22, 640 * 1280)
        a("s_mov_b32 exec_hi, 0x3ffff")
        for e in range(8):
            a(f"buffer_load_dwordx4 {vr(RL+4*e,4)}, v{RS+e//4}, s[72:75], s32 offen offset:{(e%4)*1280}")
    def rl_stores():
        a("s_mov_b32 s56, 0x05040100\ns_mov_b32 s57, 0x07060302\ns_mov_b32 exec_hi, 0x3ffff")
        a.c("wo re-layout: 8x8 16-bit transposition in registers")
        for c in range(8):
            for r in range(4):
                a(f"v_perm_b32 v{RL+32+4*c+r}, v{RL+4*(2*r+1)+c//2}, v{RL+4*(2*r)+c//2}, {'s56' if c % 2 == 0 else 's57'}")
            a(f"buffer_store_dwordx4 {vr(RL+32+4*c,4)}, v{RA+2+c//4}, s[28:31], s35 offen offset:{(c%4)*16} sc1")
    RLE = False
    if RLE:
        a("s_cmp_eq_u32 s6, 5\ns_cbranch_scc0 L_NRL")
        rl_loads()
        a("s_mov_b32 exec_hi, -1\nL_NRL:")
    quads = [k for k in range(24, 160, 4) if not (56 <= k < 56 + NX)]
    for k in quads:
        a(f"s_add_u32 m0, s50, {1024*k}\ns_add_u32 s20, s50, {1024*k}\nbuffer_load_dwordx4 v{IMG}, s[28:31], s20 offen sc1 lds")
    a("s_cmp_eq_u32 s6, 5\ns_cbranch_scc0 L_POIS")
    if RLE:
        a(f"s_waitcnt vmcnt({len(quads)})")
        rl_stores()
    else: rl_loads()
    a("s_branch L_S1\nL_POIS:")
    a.c("waves 4,6,7: mark this workgroup's share of the O hand-off buffer as not yet written (rt16 = 8rb + i, slice 8*branch+hg); one KB column each")
    a(f"""
    s_mul_i32 s55, s4, {8*40960}
    s_lshl_b32 s56, s3, 3
    s_add_u32 s56, s56, s5
    s_mul_i32 s56, s56, 2560
    s_add_u32 s55, s55, s56
    s_add_u32 s55, s55, {WS_O}
    s_sub_u32 s56, s6, 5
    s_max_i32 s56, s56, 0
    s_lshl_b32 s56, s56, 10
    s_add_u32 s55, s55, s56
    v_mov_b32 v{PT}, -1
    v_mov_b32 v{PT+1}, -1
    v_mov_b32 v{PT+2}, -1
    v_mov_b32 v{PT+3}, -1
    s_cmp_eq_u32 s6, 7
    s_cselect_b32 exec_hi, 0, -1
    """)
    for i in range(8):
        if opt("nopois"): a("s_mov_b64 exec, 1")
        a(f"buffer_store_dwordx4 {vr(PT,4)}, v{AK1}, s[28:31], s55 offen sc1\ns_add_u32 s55, s55, 40960")
    a("""
    L_S1:
    s_mov_b64 exec, -1
    s_waitcnt vmcnt(8) lgkmcnt(0)
    s_barrier
    s_setprio 3
    L_PR:
    """)
    stamp(a, 6)
    if opt("cyc"): a("s_memtime s[80:81]")
    if opt("iters"): a("s_memtime s[94:95]\ns_waitcnt lgkmcnt(0)")
    a(f".p2align {optv('al', 6)}")
    for i in range(optv("pad", 0)): a("s_nop 0")
    a("L_LOOP:")
    for t in range(8):
        for j in range(2):
            u = 2 * t + j
            b = (t + j) % 2
            ex = [f"v_exp_f32 v{S[u%4]+i}, v{S[u%4]+i}" for i in range(16)]
            extra = [[], [], [], []]
            if j == 1:
                a("s_waitcnt lgkmcnt(0)")
                extra[0] = rdK(t % 2, (t + 2) * 2560)
                extra[1] = rdV(t % 2, (t + 1) * 2560)
            ms = [qk1(u + 1, b), qk2(u + 1, b), pv(u - 1, b, 0), pv(u - 1, b, 1)]
            if opt("xdense"):
                pb = S[(u-1)%4]
                ms[2] = f"v_mfma_f32_32x32x16_bf16 {vr(O[(u-1)%2],16)}, {vr(VF[b],4)}, {vr(pb,4)}, {vr(O[(u-1)%2],16)}"
                ms[3] = f"v_mfma_f32_32x32x16_bf16 {vr(O[(u-1)%2],16)}, {vr(VF[b]+4,4)}, {vr(pb+4,4)}, {vr(O[(u-1)%2],16)}"
                for g in range(2):
                    extra[g] = extra[g] + [f"v_cvt_pk_bf16_f32 v{pb+4*g+i}, v{pb+8*g+2*i}, v{pb+8*g+2*i+1}" for i in range(4)]
            if opt("x2b"):
                if j == 0: ms[1] = ""
                else:
                    base = S[0] if (u + 1) % 4 == 0 else S[2]
                    ms[1] = f"v_mfma_f32_32x32x4_2b_bf16 {vr(base,32)}, {vr(KF2[b],2)}, {vr(Q2[0],2)}, {vr(base,32)}"
            if opt("xqk16"):
                d = S[(u+1)%4]
                q = [f"v_mfma_f32_16x16x32_bf16 {vr(d+4*i,4)}, {vr(KF1[b] if i < 2 else KF1[1-b],4)}, {vr(Q1[i%2],4)}, 0" for i in range(4)]
                ms[0] = q[0]; ms[1] = q[2]; extra[0] = extra[0] + [q[1]]; extra[1] = extra[1] + [q[3]]
            for g in range(4):
                a(ms[g])
                for x in ex[4 * g:4 * g + 2]: a(x)
                for x in extra[g]: a(x)
                for x in ex[4 * g + 2:4 * g + 4]: a(x)
            if t == optv("nlt", 1) and j == 1 and optv("nlh", 3):
                a(f"s_cmp_eq_u32 s43, s44\ns_cbranch_scc0 L_PH\ns_setprio 1\nL_PH:")
    a(f"v_add_u32 v{AK1}, 20480, v{AK1}\nv_add_u32 v{AK2}, 20480, v{AK2}\nv_add_u32 v{AV}, 20480, v{AV}")
    a("s_bitcmp1_b32 s45, s44\ns_cbranch_scc1 L_EV")
    a("L_NEXT:")
    if opt("iters"):
        for k in range(1, 9): a(f"s_mov_b32 s{76+2*k}, s{76+2*(k+1)}")
        a("s_memtime s[94:95]\ns_waitcnt lgkmcnt(0)")
    a("s_sub_u32 s44, s44, 1\ns_cmp_lg_u32 s44, 0\ns_cbranch_scc1 L_LOOP")
    stamp(a, 7)
    if opt("cyc"): a("s_memtime s[82:83]")
    a(pv(15, 0, 0)); a(pv(15, 0, 1))
    a.c("phase E addresses: tile rows 64*(2rb+branch).., columns 80*hg.. ; wave = K eighth; row tiles in an order rotated by hg")
    a(f"""
    s_setprio 3
    s_mov_b32 s46, {f32bits(2.0**-40)}
    s_mov_b32 s47, {f32bits(2.0**40)}
    s_mov_b32 s23, -2
    s_lshl_b32 s16, s4, 1
    s_add_u32 s16, s16, s3
    s_mul_i32 s21, s16, {4*40960}
    s_mul_i32 s40, s6, 5120
    s_add_u32 s21, s21, s40
    s_add_u32 s21, s21, {WS_O}
    """)
    for i in range(4):
        a(f"s_add_u32 s22, s5, {i}\ns_and_b32 s22, s22, 3\ns_mul_i32 s22, s22, 40960\ns_add_u32 s{17+i}, s21, s22\ns_add_u32 s{8+i}, s22, s40")
    a("s_waitcnt vmcnt(0) lgkmcnt(0)")
    a.c("run-time safety check of the stand-in max: row sums must lie in [2^-40, 2^40], else redo with the true max")
    a(f"""
    v_cndmask_b32 v{M[0]}, v{O[0]+12}, v{O[0]+8}, s[38:39]
    v_cndmask_b32 v{M[1]}, v{O[1]+12}, v{O[1]+8}, s[38:39]
    v_cmp_le_f32 s[48:49], s46, v{M[0]}
    v_cmp_ge_f32 s[50:51], s47, v{M[0]}
    v_cmp_le_f32 s[52:53], s46, v{M[1]}
    v_cmp_ge_f32 s[54:55], s47, v{M[1]}
    v_rcp_f32 v{M[0]}, v{M[0]}
    v_rcp_f32 v{M[1]}, v{M[1]}
    s_and_b64 s[48:49], s[48:49], s[50:51]
    s_and_b64 s[52:53], s[52:53], s[54:55]
    s_and_b64 s[48:49], s[48:49], s[52:53]
    s_cmp_eq_u64 s[48:49], -1
    {"" if opt("nobad") else "s_cbranch_scc0 L_BAD"}
    L_OK:
    v_mul_f32 v{M[0]}, v{M[0]}, v{G}
    v_mul_f32 v{M[1]}, v{M[1]}, v{G}
    """)
    P = S[3]
    for j in range(2):
        for i in range(12): a(f"v_mul_f32 v{O[j]+i}, v{O[j]+i}, v{M[j]}")
        for i in range(4): a(f"v_cvt_pk_bf16_f32 v{P+4*j+i}, v{O[j]+2*i}, v{O[j]+2*i+1}")
        for i in range(2): a(f"v_cvt_pk_bf16_f32 v{P+8+2*j+i}, v{O[j]+8+2*i}, v{O[j]+8+2*i+1}")
        for i in range(4): a(f"v_min_u32 v{P+4*j+i}, s23, v{P+4*j+i}")
        a(f"buffer_store_dwordx4 {vr(P+4*j,4)}, v{OA}, s[28:31], s26 offen offset:{512*j} sc1")
    for i in range(4): a(f"v_min_u32 v{P+8+i}, s23, v{P+8+i}")
    a(f"""
    s_mov_b32 exec_hi, 0
    buffer_store_dwordx4 {vr(P+8,4)}, v{OA}, s[28:31], s26 offen offset:1024 sc1
    """)
    if opt("dup"):
        a(f"buffer_store_dwordx4 {vr(P+8,4)}, v{OA}, s[28:31], s26 offen offset:1024\ns_mov_b32 exec_hi, -1")
        for j in range(2): a(f"buffer_store_dwordx4 {vr(P+4*j,4)}, v{OA}, s[28:31], s26 offen offset:{512*j}")
    a("s_mov_b32 exec_hi, -1\ns_setprio 0")
    EB = not opt("lateb")
    if EB:
        a.c("every wave of this workgroup is past its last K/V read at this barrier: LDS can be reused")
        a("s_cmp_eq_u32 s13, 0\ns_cbranch_scc1 L_NB\ns_barrier\nL_NB:")
    OF = 16
    EA = [96, 116, 16, 36]
    srd(a, 72, 66, 67, 2048 * 1280)
    a.c("partial sums change lanes on their way through LDS: writer (n, rg) -> slot 4n + (rg ^ ((n>>1)&3)); reader lane = 4*row + rg")
    a.c("out address (waves 0-3): row = 64*(2rb+branch) + 16w + (l>>2) ; columns 8rg.., 32+8rg.., 64+4rg..")
    a(f"""
    v_mov_b32 v2, s34
    v_mov_b32 v3, 0
    v_lshlrev_b32 v5, 4, v0
    v_add_u32 v6, 4096, v5
    v_and_b32 v13, 15, v0
    v_lshrrev_b32 v14, 4, v0
    v_bfe_u32 v12, v0, 1, 2
    v_xor_b32 v14, v14, v12
    v_lshl_add_u32 v14, v13, 2, v14
    v_lshlrev_b32 v14, 4, v14
    v_add_u32 v8, s8, v14
    v_add_u32 v9, s9, v14
    v_add_u32 v10, s10, v14
    v_add_u32 v11, s11, v14
    v_bfe_u32 v12, v0, 3, 2
    v_xor_b32 v12, v12, v0
    s_mul_i32 s22, s6, 40960
    v_lshl_add_u32 v12, v12, 4, s22
    s_lshl_b32 s22, s16, 6
    s_lshl_b32 s21, s6, 4
    s_add_u32 s22, s22, s21
    s_mul_i32 s22, s22, 1280
    s_mul_i32 s21, s5, 160
    s_add_u32 s22, s22, s21
    v_lshrrev_b32 v13, 2, v0
    v_mul_u32_u24 v13, 1280, v13
    v_and_b32 v14, 3, v0
    v_lshl_add_u32 v7, v14, 3, v13
    v_lshl_add_u32 v13, v14, 4, v13
    s_mov_b32 s60, {SPIN}
    """)
    REQ = {"A": [int(c) for c in str(optv("reqa", 44444))], "B": [int(c) for c in str(optv("reqb", 12344))]}
    def oload(rt):
        for st in range(5):
            av = 5 if st < 4 else 6
            a(f"buffer_load_dwordx4 {vr(OF+(rt*5+st)*4,4)}, v{av}, s[28:31], s{17+rt} offen offset:{(st%4)*1024} sc1")
    def ewrites(rt):
        return [f"ds_write_b128 v{8+rt}, {vr(EA[rt]+4*ct,4)} offset:{ct*1024}" for ct in range(5)]
    tail = []
    def egemm(tag, bar=-1, wr=True):
        for rt in range(4):
            if rt == bar: a("s_barrier")
            a(f"L_CH{tag}{rt}:")
            b = OF + rt * 20
            w = ewrites(rt - 1) if rt >= 1 and wr else []
            if tag == "A" and rt < bar: w = []
            if tag == "A" and rt == bar and bar >= 2:
                for r0 in range(bar - 1):
                    for x in ewrites(r0): a(x)
                a("s_waitcnt lgkmcnt(5)")
            a.c("MFMAs run ahead of the hand-off check (no word may still hold the not-yet-written mark); a failed check redoes the block")
            for st in range(5):
                if st == 0:
                    a(f"s_waitcnt vmcnt({4 + 5*(REQ[tag][rt] - rt - 1)})")
                    for r2 in range(REQ[tag][rt], REQ[tag][rt+1]): oload(r2)
                else: a(f"s_waitcnt vmcnt({4 - st + 5*(REQ[tag][rt+1] - rt - 1)})")
                f = b + 4 * st
                chk = [f"v_max3_u32 v15, v{f}, v{f+1}, v{f+2}" if st == 0 else f"v_max3_u32 v15, v{f}, v{f+1}, v15",
                       f"v_max_u32 v15, v{f+3}, v15" if st == 0 else f"v_max3_u32 v15, v{f+2}, v{f+3}, v15"]
                if st == 4: chk += ["v_cmp_eq_u32 vcc, -1, v15"]
                for ct in range(5):
                    d = vr(EA[rt] + 4 * ct, 4)
                    a(f"v_mfma_f32_16x16x32_bf16 {d}, {vr(WO+(st*5+ct)*4,4)}, {vr(f,4)}, {'0' if st == 0 else d}")
                    if ct < len(chk): a(chk[ct])
                    if w and st >= 1 and ct == 3: a(w[st - 1])
                    if w and st == 4 and ct == 4: a(w[4])
            a(f"s_cbranch_vccnz L_RE{tag}{rt}\nL_GO{tag}{rt}:")
            tail.append((tag, rt))
            if opt("probeE"): stamp(a, [1, 2, 3, 5][rt])
    def retries():
        if PROF and not opt("iters") and not opt("keep4"): a(f"s_waitcnt lgkmcnt(0)\ns_sub_u32 s84, {SPIN}, s60\ns_mul_i32 s84, s84, 100\ns_add_u32 s84, s84, s76")
    a("s_cmp_eq_u32 s13, 0\ns_cbranch_scc1 L_ELEAD")
    a.c("every wave of this workgroup is past its last K/V read at this barrier: LDS can be reused")
    if not opt("asym") and not EB: a("s_barrier")
    if not opt("noack"): a("s_waitcnt vmcnt(0)")
    elif optv("dly", 0): a(f"s_sleep {optv('dly', 0)}")
    stamp(a, 8)
    for rt in range(REQ["B"][0]): oload(rt)
    if opt("asym"): a("s_barrier")
    if opt("probeE"): stamp(a, 6)
    if PROF: a("s_waitcnt lgkmcnt(0)")
    if optv("bp", 0): a(f"s_setprio {optv('bp', 0)}")
    egemm("B", optv("bar", 2))
    stamp(a, 10); retries()
    a("s_waitcnt lgkmcnt(0)\ns_nop 6" if opt("probeE") else "s_waitcnt lgkmcnt(5)\ns_nop 6")
    for x in ewrites(3): a(x)
    a("s_waitcnt lgkmcnt(0)\ns_barrier\ns_branch L_FIN")
    a("L_ELEAD:")
    if not opt("asym") and not (not opt("leadlast")): a("s_barrier")
    a("s_waitcnt vmcnt(0)")
    stamp(a, 8)
    for rt in range(REQ["A"][0]): oload(rt)
    if opt("probeE"): stamp(a, 6)
    if PROF: a("s_waitcnt lgkmcnt(0)")
    if opt("asym"):
        egemm("A", wr=False)
        stamp(a, 9); retries()
        a("s_barrier\ns_setprio 2\ns_waitcnt lgkmcnt(0)\ns_nop 4")
        for rt in range(4):
            for x in ewrites(rt): a(x)
            if rt == 1: a("s_waitcnt lgkmcnt(4)")
    else:
        egemm("A", optv("bara", 1))
        stamp(a, 9); retries()
        a("s_waitcnt lgkmcnt(0)\ns_nop 6" if opt("probeE") else "s_waitcnt lgkmcnt(5)\ns_nop 6")
        for x in ewrites(3): a(x)
    a("s_waitcnt lgkmcnt(0)\ns_barrier")
    R = 56
    def rsum(src0, keep):
        for src in range(4):
            for c in range(5):
                a(f"ds_read_b128 {vr(R+src*20+4*c,4)}, v12 offset:{(src0+src)*5120+c*1024}")
            if src == 1: a("s_waitcnt lgkmcnt(4)")
        a("s_waitcnt lgkmcnt(10)")
        for i in range(20): a(f"v_add_f32 v{R+i}, v{R+i}, v{R+20+i}")
        if keep:
            for i in range(20): a(f"v_add_f32 v{R+i}, v{R+i}, v{16+i}")
        a("s_waitcnt lgkmcnt(0)")
        for i in range(20): a(f"v_add_f32 v{R+40+i}, v{R+40+i}, v{R+60+i}")
        for i in range(20): a(f"v_add_f32 v{16+i}, v{R+i}, v{R+40+i}")
    rsum(0, False)
    a("s_barrier")
    stamp(a, 10, True)
    rsum(4, True)
    for i in range(10): a(f"v_cvt_pk_bf16_f32 v{40+i}, v{16+2*i}, v{16+2*i+1}")
    a("""
    buffer_store_dwordx4 v[40:43], v13, s[72:75], s22 offen
    buffer_store_dwordx4 v[44:47], v13, s[72:75], s22 offen offset:64
    buffer_store_dwordx2 v[48:49], v7, s[72:75], s22 offen offset:128
    """)
    a.c("workgroup 0 advances the epoch: every workgroup has read it by now")
    a(f"""
    s_or_b32 s21, s2, s6
    s_cmp_eq_u32 s21, 0
    s_cbranch_scc0 L_FIN
    s_mov_b32 s21, {FL_EPOCH}
    s_mov_b64 exec, 1
    buffer_store_dword v2, v3, s[28:31], s21 offen sc1
    L_FIN:
    """)
    if PROF: a("s_waitcnt vmcnt(0)")
    stamp(a, 11)
    a("L_FIN2:")
    stamp_flush(a)
    a("s_endpgm")
    a.c("side jobs at the end of some passes of the attention loop (s45 = their bit mask)")
    a(f"""
    L_EV:
    s_cmp_eq_u32 s44, 8
    s_cbranch_scc0 L_E0
    s_cmp_eq_u32 s13, 0
    s_cbranch_scc0 L_RL2
    s_barrier
    s_branch L_NEXT
    L_RL2:
    """)
    if not RLE:
        a(f"s_cmp_eq_u32 s6, {15 if opt('norl') else 5}\ns_cbranch_scc0 L_NEXT\ns_waitcnt vmcnt(0)")
        rl_stores()
        a("s_mov_b32 exec_hi, -1")
    a(f"""
    s_branch L_NEXT
    L_E0:
    s_cmp_eq_u32 s44, 6
    s_cbranch_scc0 L_E1
    s_lshl_b32 s56, s2, 2
    s_add_u32 s56, s56, s6
    s_lshl_b32 s56, s56, 2
    s_add_u32 s56, s56, {FL_W - 16}
    v_mov_b32 v{T3}, 0
    s_waitcnt vmcnt(0)
    """)
    flag_store(a, "s56", T2, T3)
    a.c("flags to see: lanes 0-31 the workgroups that re-lay this tile's Wo columns, lanes 32-63 the row group")
    a(f"""
    s_branch L_NEXT
    L_E1:
    s_sub_u32 s56, s44, s13
    s_cmp_eq_u32 s56, 4
    s_cbranch_scc0 L_E2
    v_lshl_add_u32 v{T2}, v{T0}, 3, s5
    v_and_b32 v{T3}, 14, v0
    v_lshlrev_b32 v{T3}, 4, v{T3}
    v_and_or_b32 v{T3}, v0, 1, v{T3}
    s_and_b32 s57, s2, 0x1e
    v_or_b32 v{T3}, s57, v{T3}
    v_cndmask_b32 v{T2}, v{T2}, v{T3}, s[38:39]
    v_lshlrev_b32 v{T2}, 4, v{T2}
    s_mov_b32 s57, {FL_W}
    buffer_load_dwordx4 {vr(PT,4)}, v{T2}, s[28:31], s57 offen sc1
    s_branch L_NEXT
    L_E2:
    """)
    poll(a, "L_PW", T2, "s57", 4, PT, sleep=8)
    if opt("touch"):
        a.c("touch this tile's lines of the output (address translation and L2 are warm when the final stores come)")
        srd(a, 72, 66, 67, 2048 * 1280)
        a(f"""
        s_lshl_b32 s56, s4, 1
        s_add_u32 s56, s56, s3
        s_mul_i32 s56, s56, {64*1280}
        s_mul_i32 s57, s5, 160
        s_add_u32 s56, s56, s57
        s_and_b32 s57, s6, 3
        s_mul_i32 s57, s57, 52
        s_add_u32 s56, s56, s57
        v_mul_u32_u24 v{T2}, 1280, v0
        buffer_load_dword v{PT}, v{T2}, s[72:75], s56 offen
        """)
    a.c("prefetch this wave's Wo fragments: [cb=hg][ct][f32 = 5w+st]")
    a(f"""
    s_mul_i32 s56, s5, {5*40960}
    s_mul_i32 s57, s6, 5120
    s_add_u32 s56, s56, s57
    s_add_u32 s56, s56, {WS_WO}
    v_lshlrev_b32 v{T2}, 4, v0
    v_add_u32 v{T3}, 4096, v{T2}
    """)
    for ct in range(5):
        for st in range(5):
            av = T2 if st < 4 else T3
            if not opt("nowo"): a(f"buffer_load_dwordx4 {vr(WO+(st*5+ct)*4,4)}, v{av}, s[28:31], s56 offen offset:{(st%4)*1024} sc1")
        if ct < 4: a("s_add_u32 s56, s56, 40960")
        if opt("spread") and ct < 4:
            SP = [5, 4, 3, 2, 2]
            if SP[ct + 1] != SP[ct]:
                a(f"s_branch L_NEXT\nL_W{ct+1}:\ns_cmp_eq_u32 s44, {SP[ct+1]}\ns_cbranch_scc0 {'L_W%d' % (ct+2) if ct < 2 else 'L_NEXT'}")
    a("s_branch L_NEXT")
    for tag, rt in tail:
        a(f"""
        L_RE{tag}{rt}:
        s_cmp_eq_u32 s60, 0
        s_cbranch_scc1 L_GO{tag}{rt}
        s_sub_u32 s60, s60, 1
        s_waitcnt vmcnt(0) lgkmcnt(0)
        s_sleep {optv("slp", 4)}
        """)
        for r2 in range(rt, REQ[tag][rt]): oload(r2)
        a(f"s_branch L_CH{tag}{rt}")
    a("L_BAD:")
    a.c("second (and last) pass: exact row max over all keys, then the same loop again")
    a(f"""
    s_cmp_eq_u32 s42, 0
    s_cbranch_scc1 L_OK
    s_mov_b32 s42, 0
    s_mov_b32 s45, 0
    s_mov_b32 s40, 0xffff0000
    s_mov_b32 s43, 64
    v_subrev_u32 v{AK1}, {KV_BYTES}, v{AK1}
    v_subrev_u32 v{AK2}, {KV_BYTES}, v{AK2}
    v_subrev_u32 v{AV}, {KV_BYTES}, v{AV}
    v_mov_b32 v{T2}, v{AK1}
    v_mov_b32 v{T3}, v{AK2}
    """)
    for j in range(2):
        a(f"v_mov_b32 v{Q2[j]+1}, 0\nv_mov_b32 v{M[j]}, 0xff800000")
    for i in range(32): a(f"v_mov_b32 v{O[0]+i}, 0")
    for i in range(16): a(f"v_mov_b32 v{S[3]+i}, 0")
    a("L_MAXL:")
    a(f"ds_read_b128 {vr(KF1[0],4)}, v{T2}\nds_read_b32 v{KF2[0]}, v{T3} offset:1024")
    a(f"v_add_u32 v{T2}, 2560, v{T2}\nv_add_u32 v{T3}, 2560, v{T3}\ns_waitcnt lgkmcnt(0)")
    for j in range(2): a(qk1(j, 0)); a(qk2(j, 0))
    a("s_nop 11")
    for j in range(2):
        for i in range(8):
            a(f"v_max3_f32 v{M[j]}, v{S[j]+2*i}, v{S[j]+2*i+1}, v{M[j]}")
    a("s_sub_u32 s43, s43, 1\ns_cmp_lg_u32 s43, 0\ns_cbranch_scc1 L_MAXL")
    for x in rdK(0, 0) + rdK(1, 2560) + rdV(1, 0): a(x)
    a.c("-m split exactly into three bf16 pieces that ride in the spare k-slots")
    for j in range(2):
        a(f"""
        v_mov_b32 v{T2}, v{M[j]}
        s_nop 1
        v_permlane32_swap_b32 v{M[j]}, v{T2}
        s_nop 1
        v_min_f32 v{M[j]}, -v{M[j]}, -v{T2}
        v_and_b32 v{T2}, s40, v{M[j]}
        v_sub_f32 v{T3}, v{M[j]}, v{T2}
        v_lshrrev_b32 v{T2}, 16, v{T2}
        v_and_or_b32 v{T2}, v{T3}, s40, v{T2}
        v_and_b32 v{M[j]}, s40, v{T3}
        v_sub_f32 v{T3}, v{T3}, v{M[j]}
        v_and_b32 v{T3}, s40, v{T3}
        v_cndmask_b32 v{Q2[j]+1}, v{T2}, v{T3}, s[38:39]
        """)
    a("s_waitcnt lgkmcnt(0)\ns_nop 0")
    a(qk1(0, 0)); a(qk2(0, 0))
    a("s_mov_b32 s44, 8\ns_setprio 1\ns_nop 9\ns_branch L_LOOP")
    a("L_END:\ns_endpgm")
    return f""".p2align 6
.amdhsa_kernel {N}
  .amdhsa_next_free_vgpr 256
  .amdhsa_next_free_sgpr 102
  .amdhsa_accum_offset 256
  .amdhsa_group_segment_fixed_size 0
  .amdhsa_kernarg_size 112
  .amdhsa_user_sgpr_count 2
  .amdhsa_user_sgpr_kernarg_segment_ptr 1
  .amdhsa_system_sgpr_workgroup_id_x 1
.end_amdhsa_kernel
"""

def main():
    ref = open(f"cdna_kernels/{NAME}.s.ref").read().split("\n")
    head = [l for l in ref if l.startswith(";") and "@launch" not in l]
    a = Asm()
    kd = gen(a)
    out = "\n".join(head) + "\n"
    out += "; @launch grid=(256,1,1) block=(512,1,1) lds=163840\n"
    out += """;
;  E  gate * O / l goes through d_ws (slots pre-marked as unwritten, every word verified on arrival),
"""
    out += '.amdgcn_target "amdgcn-amd-amdhsa--gfx950"\n.text\n'
    t = a.text()
    if opt("outsc1"): t = "\n".join(l + " sc1" if "buffer_store" in l and "s[72:75]" in l else l for l in t.split("\n"))
    if opt("outnt"): t = "\n".join(l + " nt" if "buffer_store" in l and "s[72:75]" in l else l for l in t.split("\n"))
    if opt("plainonly"): t = "\n".join(l.replace(" sc1", "") if "buffer_store" in l and "s26" in l else l for l in t.split("\n"))
    out += t
    out += '.section .rodata,"a"\n' + kd
    path = ARGS[0] if ARGS and not ARGS[0].startswith("--") else f"cdna_kernels/{NAME}.s"
    open(path, "w").write(out)
main()
```
